```python
import torch

def _softmax(x, axis=-1):
    return torch.softmax(x, dim=axis)
def _gelu(x):
    return torch.nn.functional.gelu(x, approximate="tanh")
def _silu(x):
    return torch.nn.functional.silu(x)
def _sigmoid(x):
    return torch.sigmoid(x)
def _layernorm(x, axis=-1, eps=1e-5):
    m = x.mean(dim=axis, keepdim=True)
    v = x.var(dim=axis, keepdim=True, unbiased=False)
    return (x - m) / torch.sqrt(v + eps)
def _scatter_add(tgt, idx, src, axis=0):
    return tgt.clone().index_add_(axis, idx, src)
def _segment_sum(src, seg, n):
    out = torch.zeros((n,) + src.shape[1:], dtype=src.dtype)
    return out.index_add_(0, seg, src)
def _pad(x, pw):
    flat = tuple(v for pair in reversed(pw) for v in pair)
    return torch.nn.functional.pad(x, flat)

kernel_name = 'gated_mix__linear_kernel_hedgehog__mha_block__prompt'

def setup_inputs():

    _w = (lambda a: (lambda t: t.to(torch.bfloat16) if t.is_floating_point() else t)(torch.as_tensor(a)))
    def _A_setup():
        B, S, D, H = 1, 2048, 512, 32
        Dh = D // H
        return {
            "x": _w((lambda *s: torch.randn(*s, dtype=torch.bfloat16) * 0.05)(B, S, D)),
            "wqkv": _w((lambda *s: torch.randn(*s, dtype=torch.bfloat16) * 3.2)(D, 3 * D)),
            "w_phi": _w((lambda *s: torch.randn(*s, dtype=torch.bfloat16) * 3.2)(H, Dh, Dh) * (Dh ** -0.5)),
            "wo": _w((lambda *s: torch.randn(*s, dtype=torch.bfloat16) * 0.05)(D, D)),
        }
    _A_in = _A_setup()

    def _B_setup():
        B, S, D, H = 1, 2048, 512, 32
        return {
            "x": _w((lambda *s: torch.randn(*s, dtype=torch.bfloat16) * 0.05)(B, S, D)),
            "wqkv": _w((lambda *s: torch.randn(*s, dtype=torch.bfloat16) * 1.6)(D, 3 * D)),
            "wo": _w((lambda *s: torch.randn(*s, dtype=torch.bfloat16) * 0.05)(D, D)),
        }
    _B_in = _B_setup()

    return {
        "A_x": _A_in["x"],
        "A_wqkv": _A_in["wqkv"],
        "A_w_phi": _A_in["w_phi"],
        "A_wo": _A_in["wo"],
        "B_x": _B_in["x"],
        "B_wqkv": _B_in["wqkv"],
        "B_wo": _B_in["wo"],
        "gate_w": _w((lambda *s: torch.randn(*s, dtype=torch.bfloat16) * 0.05)(512) * 16.0),
    }

def reference(A_x, A_wqkv, A_w_phi, A_wo, B_x, B_wqkv, B_wo, gate_w):
    def _A_ref(x, wqkv, w_phi, wo):
        B, S, D = x.shape
        H = 32; Dh = D // H
        qkv = (lambda x, *d: x.permute(*d))((x @ wqkv).reshape(B, S, 3, H, Dh), 2, 0, 3, 1, 4)
        q, k, v = qkv[0], qkv[1], qkv[2]
        pq = torch.einsum("bhsd,hdf->bhsf", q, w_phi)
        pk = torch.einsum("bhsd,hdf->bhsf", k, w_phi)
        phi_q = torch.concatenate([_softmax(pq, axis=-1), _softmax(-pq, axis=-1)], axis=-1)
        phi_k = torch.concatenate([_softmax(pk, axis=-1), _softmax(-pk, axis=-1)], axis=-1)
        kv = torch.einsum("bhsf,bhsd->bhfd", phi_k, v)
        z  = torch.einsum("bhsf->bhf", phi_k)
        num = torch.einsum("bhqf,bhfd->bhqd", phi_q, kv)
        den = torch.einsum("bhqf,bhf->bhq", phi_q, z)[..., None] + 1e-6
        o = num / den
        return (lambda x, *d: x.permute(*d))(o, 0, 2, 1, 3).reshape(B, S, D) @ wo

    def _B_ref(x, wqkv, wo):
        B, S, D = x.shape
        H = 32
        Dh = D // H
        qkv = (lambda x, *d: x.permute(*d))((x @ wqkv).reshape(B, S, 3, H, Dh), 2, 0, 3, 1, 4)
        q, k, v = qkv[0], qkv[1], qkv[2]
        scores = torch.einsum("bhqd,bhkd->bhqk", q, k) * (Dh ** -0.5)
        p = _softmax(scores, axis=-1)
        o = torch.einsum("bhqk,bhkd->bhqd", p, v)
        return (lambda x, *d: x.permute(*d))(o, 0, 2, 1, 3).reshape(B, S, D) @ wo

    x = A_x
    g = _sigmoid((x * gate_w).sum(-1, keepdims=True))
    a = _A_ref(x, A_wqkv, A_w_phi, A_wo)
    b = _B_ref(x, B_wqkv, B_wo)
    return g * a + (1 - g) * b
```

```python
import re

class Asm:
    def __init__(self):
        self.lines = []
        self.vm = []
    def __call__(self, s):
        for ln in s.split("\n"):
            ln = ln.strip()
            if ln:
                self.lines.append("    " + ln)
    def label(self, l):
        self.lines.append(l + ":")
    def raw(self, s):
        self.lines.append(s)
    def c(self, s):
        self.lines.append("    ; " + s)
    def nop(self, n):
        while n > 0:
            k = min(n, 16)
            self(f"s_nop {k-1}")
            n -= k
    def vmem(self, s, tag):
        self(s); self.vm.append(tag)
    def wait_vm(self, *tags, extra=""):
        last = max(i for i, t in enumerate(self.vm) if t in tags)
        n = len(self.vm) - 1 - last
        assert n <= 63
        self(f"s_waitcnt vmcnt({n}) {extra}".strip())
        self.vm = self.vm[last+1:]
    def text(self):
        return "\n".join(self.lines) + "\n"

def vr(a, n=1):
    return f"v{a}" if n == 1 else f"v[{a}:{a+n-1}]"
def sr(a, n=1):
    return f"s{a}" if n == 1 else f"s[{a}:{a+n-1}]"

_reg = re.compile(r"^(-|abs\(|\|)?([vsa])(\d+|\[(\d+):(\d+)\])")
def regs_of(op):
    op = op.strip()
    op = op.lstrip("-").replace("abs(", "").replace("|", "").rstrip(")")
    if op in ("vcc",): return {("s", "vcc")}
    if op in ("exec",): return {("s", "exec")}
    if op == "m0": return {("s", "m0")}
    m = re.match(r"^([vsa])(\d+)$", op)
    if m: return {(m.group(1), int(m.group(2)))}
    m = re.match(r"^([vsa])\[(\d+):(\d+)\]$", op)
    if m: return {(m.group(1), i) for i in range(int(m.group(2)), int(m.group(3)) + 1)}
    return set()

TRANS = ("v_exp_f32", "v_rcp_f32", "v_log_f32", "v_rsq_f32", "v_sqrt_f32", "v_sin_f32", "v_cos_f32", "v_exp_f16")
def passes(op):
    if "32x32x16" in op or "32x32x32" in op: return 8
    if "16x16x32" in op or "16x16x64" in op: return 4
    raise ValueError(op)

class Ins:
    pass

def parse(line):
    s = line.split(";")[0].strip()
    if not s or s.endswith(":") or s.startswith("."): return None
    parts = s.split(None, 1)
    op = parts[0]
    rest = parts[1] if len(parts) > 1 else ""
    ops = [o.strip() for o in re.split(r",(?![^\[]*\])", rest)] if rest else []
    if ops:
        toks = ops[-1].split()
        mods = toks[1:]
        ops[-1] = toks[0] if toks else ""
    else:
        mods = []
    I = Ins(); I.op = op; I.text = s; I.mods = mods
    I.w = set(); I.r = set(); I.kind = "other"; I.srcC = set(); I.srcAB = set()
    R = [regs_of(o) for o in ops]
    base = op.replace("_e32", "").replace("_e64", "").replace("_dpp", "").replace("_sdwa", "")
    I.base = base
    I.dpp = op.endswith("_dpp") or any(m.startswith(("row_", "quad_perm")) for m in mods)
    if op.startswith("v_mfma"):
        I.kind = "mfma"; I.w = R[0]; I.srcAB = R[1] | R[2]; I.srcC = R[3]; I.r = I.srcAB | I.srcC; I.p = passes(op)
    elif op.startswith("v_smfmac"):
        I.kind = "mfma"; I.w = R[0]; I.srcAB = R[1] | R[2] | R[3]; I.srcC = R[0]; I.r = I.srcAB | I.srcC; I.p = passes(op)
    elif op.startswith("v_permlane") and "swap" in op:
        I.kind = "valu"; I.w = R[0] | R[1]; I.r = R[0] | R[1]
    elif op.startswith("v_"):
        I.kind = "valu"
        I.w = set(R[0]); srcs = R[1:]
        if base in ("v_add_co_u32", "v_sub_co_u32", "v_addc_co_u32", "v_subb_co_u32", "v_div_scale_f32"):
            I.w |= R[1]; srcs = R[2:]
        for x in srcs: I.r |= x
        if base in ("v_fmac_f32", "v_dot2c_f32_bf16", "v_pk_fmac_f16") or I.dpp or op.endswith("_sdwa"): I.r |= R[0]
        if base == "v_cndmask_b32" and len(ops) == 3: I.r |= {("s", "vcc")}
    elif op.startswith("ds_read") or op.startswith("ds_bpermute") or op.startswith("ds_swizzle"):
        I.kind = "ds"; I.w = R[0]
        for x in R[1:]: I.r |= x
    elif op.startswith("ds_"):
        I.kind = "ds"
        for x in R: I.r |= x
    elif op.startswith(("buffer_load", "global_load")):
        I.kind = "vmem"
        if "lds" in mods or "_lds_" in op:
            I.ldsdma = True
            for x in R: I.r |= x
            I.r |= {("s", "m0")}
        else:
            I.w = R[0]
            for x in R[1:]: I.r |= x
    elif op.startswith(("buffer_store", "global_store", "buffer_atomic", "global_atomic")):
        I.kind = "vmem"; I.store = True
        for x in R: I.r |= x
        if op.startswith("buffer_store"): I.sdata = R[0]
        elif op.startswith("global_store"): I.sdata = R[1]
        else: I.sdata = set()
        if "atomic" in op and "sc0" in mods: I.w = R[0]
    elif op.startswith("s_"):
        I.kind = "salu"
        if op.startswith(("s_cmp", "s_cbranch", "s_branch", "s_waitcnt", "s_nop", "s_barrier", "s_endpgm", "s_sleep", "s_setprio")):
            for x in R: I.r |= x
        else:
            if R: I.w = R[0]
            for x in R[1:]: I.r |= x
    I.ws = 1
    if op == "s_nop": I.ws = int(ops[0], 0) + 1
    return I

def check(lines, name=""):
    ins = [(n, parse(l)) for n, l in enumerate(lines)]
    ins = [(n, i) for n, i in ins if i is not None]
    errs = []
    D_RW = {2: 5, 4: 8, 8: 12, 16: 20}
    C_OV = {2: 4, 4: 6, 8: 10, 16: 18}
    C_WAR = {2: 1, 4: 3, 8: 7, 16: 15}
    def isv(s): return {x for x in s if x[0] in "va"}
    def iss(s): return {x for x in s if x[0] == "s"}
    for k, (n, c) in enumerate(ins):
        dist = 0
        for j in range(k - 1, max(-1, k - 30), -1):
            p = ins[j][1]
            need = 0; why = ""
            if p.op in ("s_branch", "s_endpgm"): break
            if p.kind == "valu":
                pw = isv(p.w); sw = iss(p.w)
                if c.kind == "mfma" and pw & c.r: need, why = 2, "valu->mfma"
                if c.kind == "valu":
                    if p.base in TRANS and c.base not in TRANS and pw & c.r: need, why = max(need, 1), "trans->valu"
                    if c.op.startswith("v_permlane") and pw & c.r: need, why = max(need, 2), "valu->permlane"
                    if c.dpp and pw & c.r: need, why = max(need, 2), "valu->dpp"
                    if c.base in ("v_readfirstlane_b32", "v_readlane_b32") and pw & c.r: need, why = max(need, 1), "valu->readlane"
                    if sw & c.r: need, why = max(need, 2), "valu sgpr->valu"
                    if (p.op.endswith("_sdwa") or any(m.startswith("op_sel") for m in p.mods)) and pw & (c.r | c.w): need, why = max(need, 1), "opsel"
                if c.kind == "vmem" and sw & c.r: need, why = max(need, 5), "valu sgpr->vmem"
                if p.base in TRANS and c.kind in ("vmem", "ds") and pw & c.r: need, why = max(need, 1), "trans->mem"
            if p.kind == "mfma":
                if c.kind == "mfma":
                    if p.w & c.srcAB: need, why = max(need, D_RW[p.p]), "mfma D->AB"
                    if p.w & c.srcC and not (p.w == c.srcC and p.p == c.p): need, why = max(need, C_OV[p.p]), "mfma D->C overlap"
                elif c.kind in ("valu", "vmem", "ds"):
                    if p.w & (c.r | c.w): need, why = max(need, D_RW[p.p]), "mfma D->rw"
                    if c.kind == "valu" and p.srcC & c.w: need, why = max(need, C_WAR[p.p]), "mfma C war"
            if p.kind == "salu" and ("s", "m0") in p.w and getattr(c, "ldsdma", False): need, why = max(need, 1), "m0->dma"
            if getattr(p, "store", False) and ("x4" in p.op or "x3" in p.op) and p.sdata & c.w:
                need, why = max(need, 2 if c.kind == "valu" else 1), "store data war"
            if need > dist:
                errs.append(f"{name} line {n}: [{why}] need {need} have {dist}:\n     {p.text}\n     {c.text}")
            dist += p.ws
            if dist >= 24: break
    return errs
```

```python
import sys, struct
from asmlib import *

NAME = "gated_mix__linear_kernel_hedgehog__mha_block__prompt"
WS_QB, WS_KB, WS_VB, WS_PHIQ, WS_KVP, WS_GATE, WS_OF = 0x0, 0x200000, 0x400000, 0x600000, 0xA00000, 0xC00000, 0x1000000
WS_USED = 0x1400000
def f32(x): return "0x%08x" % struct.unpack("<I", struct.pack("<f", x))[0]
LOG2E = 1.4426950408889634
ROUND_P = True

def mfma(a, d, A, B, C):
    a(f"v_mfma_f32_32x32x16_bf16 {vr(d,16)}, {vr(A,4)}, {vr(B,4)}, {C if isinstance(C,str) else vr(C,16)}")
def smfmac(a, d, A, B, idx):
    a(f"v_smfmac_f32_32x32x32_bf16 {vr(d,16)}, {vr(A,4)}, {vr(B,8)}, v{idx}")
def srd(a, s, lo, hi, nrec):
    a(f"s_mov_b32 s{s}, s{lo}")
    a(f"s_mov_b32 s{s+1}, s{hi}")
    a(f"s_mov_b32 s{s+2}, {nrec}")
    a(f"s_mov_b32 s{s+3}, 0x00020000")

def k1(a):
    SLOT = 40960
    ACC = [64, 80, 96]
    FR = [32, 48]
    VXR = 8
    VWR = 16
    VXD, VWD = 18, 20
    BSEL = 112
    a.label("k1_kernel")
    a("s_cmp_ge_u32 s2, 256")
    a("s_cbranch_scc1 L_k1_end")
    a("s_load_dwordx4 s[4:7], s[0:1], 0")
    a("s_load_dwordx2 s[8:9], s[0:1], 16")
    a("s_load_dwordx2 s[10:11], s[0:1], 40")
    a("s_load_dwordx2 s[12:13], s[0:1], 56")
    a("s_load_dwordx2 s[14:15], s[0:1], 80")
    a("v_and_b32 v1, 63, v0")
    a("v_lshrrev_b32 v2, 6, v0")
    a("s_and_b32 s45, s2, 7")
    a("v_readfirstlane_b32 s44, v2")
    a("s_lshr_b32 s46, s2, 3")
    a("s_and_b32 s47, s46, 1")
    a("s_lshr_b32 s48, s46, 1")
    a("v_lshrrev_b32 v3, 3, v1")
    a("v_and_b32 v4, 7, v1")
    a("v_lshrrev_b32 v5, 1, v3")
    a("v_xor_b32 v6, v4, v5")
    a("v_lshlrev_b32 v6, 4, v6")
    a(f"v_lshl_add_u32 v{VXD}, v3, 10, v6")
    a("v_xor_b32 v6, 64, v6")
    a(f"v_lshl_add_u32 v{VXD+1}, v3, 10, v6")
    a(f"v_add_u32 v{VXD+1}, {8192-1024}, v{VXD+1}")
    a("v_lshrrev_b32 v6, 2, v1")
    a("v_and_b32 v6, 4, v6")
    a("v_xor_b32 v6, v4, v6")
    a("v_lshlrev_b32 v6, 4, v6")
    a("v_mul_u32_u24 v7, 3072, v3")
    a(f"v_add_u32 v{VWD}, v7, v6")
    a("v_lshlrev_b32 v21, 4, v1")
    a("s_lshl_b32 s49, s48, 17")
    a("s_lshl_b32 s50, s44, 14")
    a("s_add_u32 s49, s49, s50")
    a("s_mul_i32 s50, s44, 24576")
    a("s_lshl_b32 s51, s44, 11")
    a("s_mul_i32 s52, s44, 3072")
    a("s_add_u32 s52, s52, 16384")
    a("s_lshl_b32 s53, s45, 7")
    a("s_lshl_b32 s54, s2, 3")
    a("s_add_u32 s54, s54, s44")
    a("s_lshl_b32 s55, s54, 10")
    a("s_waitcnt lgkmcnt(0)")
    srd(a, 16, 4, 5, 0x200000)
    srd(a, 40, 12, 13, 1024)
    a("s_cmp_eq_u32 s47, 0")
    a("s_cselect_b32 s56, 1024, 0")
    a("s_cselect_b32 s57, 0, 1024")
    a("s_cselect_b32 s58, s6, s10")
    a("s_cselect_b32 s59, s7, s11")
    a("s_add_u32 s56, s56, s53")
    a("s_add_u32 s20, s6, s56")
    a("s_addc_u32 s21, s7, 0")
    a("s_sub_u32 s22, 0x180000, s56")
    a("s_mov_b32 s23, 0x00020000")
    a("s_add_u32 s56, s53, 1024")
    a("s_add_u32 s24, s58, s56")
    a("s_addc_u32 s25, s59, 0")
    a("s_sub_u32 s26, 0x180000, s56")
    a("s_mov_b32 s27, 0x00020000")
    a("s_add_u32 s57, s57, s53")
    a("s_add_u32 s28, s10, s57")
    a("s_addc_u32 s29, s11, 0")
    a("s_sub_u32 s28, s28, 2048")
    a("s_subb_u32 s29, s29, 0")
    a("s_sub_u32 s30, 0x180800, s57")
    a("s_mov_b32 s31, 0x00020000")
    a.vmem("buffer_load_dwordx4 v[120:123], v21, s[16:19], s55 offen", "g")
    a.vmem("buffer_load_dwordx4 v[124:127], v21, s[40:43], 0 offen", "g")
    def dma(c):
        sl = (c & 3) * SLOT
        a(f"s_add_u32 m0, s51, {sl}")
        a(f"s_add_u32 s60, s49, {c*128}")
        a.vmem(f"buffer_load_dwordx4 v{VXD}, s[16:19], s60 offen lds", f"c{c}")
        a.vmem(f"buffer_load_dwordx4 v{VXD+1}, s[16:19], s60 offen offset:1024 lds", f"c{c}")
        a(f"s_add_u32 m0, s52, {sl}")
        a(f"s_add_u32 s61, s50, {c*196608}")
        for s in range(3):
            a.vmem(f"buffer_load_dwordx4 v{VWD}, s[{20+4*s}:{23+4*s}], s61 offen offset:{1024*s} lds", f"c{c}")
    for c in range(4): dma(c)
    srd(a, 32, 14, 15, WS_USED)
    srd(a, 36, 8, 9, 16384)
    a("v_and_b32 v3, 31, v1")
    a("v_lshrrev_b32 v4, 5, v1")
    a("v_bfe_u32 v5, v1, 1, 3")
    a("s_and_b32 s62, s44, 3")
    a("s_lshr_b32 s63, s44, 2")
    a("s_lshl_b32 s64, s62, 12")
    a("v_lshl_add_u32 v6, v3, 7, s64")
    for st in range(4):
        a(f"v_or_b32 v7, {2*st}, v4")
        a("v_xor_b32 v7, v7, v5")
        a(f"v_lshl_add_u32 v{VXR+st}, v7, 4, v6")
        a(f"v_add_u32 v{VXR+4+st}, {2*SLOT}, v{VXR+st}")
    a("v_mul_u32_u24 v6, 3072, v4")
    a("v_bfe_u32 v7, v1, 2, 2")
    a("v_lshl_add_u32 v6, v7, 7, v6")
    a("v_bfe_u32 v7, v1, 3, 1")
    a("v_xor_b32 v7, s63, v7")
    a("v_lshl_add_u32 v6, v7, 6, v6")
    a("v_bfe_u32 v7, v1, 4, 1")
    a("v_lshl_add_u32 v6, v7, 5, v6")
    a("v_and_b32 v7, 3, v1")
    a("v_lshl_add_u32 v6, v7, 3, v6")
    a(f"v_add_u32 v{VWR}, 16384, v6")
    a(f"v_add_u32 v{VWR+1}, {16384+2*SLOT}, v6")
    a("v_bfe_u32 v6, v1, 2, 2")
    a("v_lshl_add_u32 v6, v4, 2, v6")
    a("v_lshlrev_b32 v6, 5, v6")
    a("v_lshl_add_u32 v6, v7, 3, v6")
    a("s_lshl_b32 s64, s63, 10")
    a("v_add_u32 v22, s64, v6")
    a("v_lshlrev_b32 v6, 2, v4")
    a("v_sub_u32 v6, v3, v6")
    a("v_mov_b32 v23, 0x3f80")
    a("v_mov_b32 v24, 0x3f800000")
    for sg in range(2):
        for q in range(4):
            T0 = 16*sg + 8*((2*q)//4) + (2*q) % 4
            a(f"v_cmp_eq_u32 vcc, {T0}, v6")
            a(f"v_cmp_eq_u32 s[66:67], {T0+1}, v6")
            a("s_nop 0")
            a(f"v_cndmask_b32 v7, 0, v23, vcc")
            a(f"v_cndmask_b32 v{BSEL+4*sg+q}, v7, v24, s[66:67]")
    for i in range(48): a(f"v_mov_b32 v{64+i}, 0")
    a.wait_vm("g")
    for q in range(4):
        a(f"v_lshlrev_b32 v128, 16, v{120+q}")
        a(f"v_lshlrev_b32 v129, 16, v{124+q}")
        a(f"v_and_b32 v130, 0xffff0000, v{120+q}")
        a(f"v_and_b32 v131, 0xffff0000, v{124+q}")
        a("v_mul_f32 v128, v128, v129")
        a("v_mul_f32 v130, v130, v131")
        a("v_cvt_pk_bf16_f32 v128, v128, v130")
        a("v_lshlrev_b32 v129, 16, v128")
        a("v_and_b32 v130, 0xffff0000, v128")
        a("v_add_f32 v129, v129, v130")
        if q == 0: a("v_mov_b32 v132, v129")
        else: a("v_add_f32 v132, v132, v129")
    for sw in ("32", "16"):
        a("v_mov_b32 v133, v132")
        a.nop(2)
        a(f"v_permlane{sw}_swap_b32 v132, v133")
        a("v_add_f32 v132, v132, v133")
    for r in (8, 4, 2, 1):
        a.nop(2)
        a(f"v_add_f32_dpp v132, v132, v132 row_ror:{r} row_mask:0xf bank_mask:0xf")
    a("v_cvt_pk_bf16_f32 v132, v132, v132")
    a("v_lshlrev_b32 v132, 16, v132")
    a(f"v_mul_f32 v132, {f32(-LOG2E)}, v132")
    a("v_exp_f32 v132, v132")
    a("s_nop 0")
    a("v_add_f32 v132, 1.0, v132")
    a("v_rcp_f32 v132, v132")
    a("s_nop 0")
    a("v_cvt_pk_bf16_f32 v132, v132, v132")
    a("v_lshlrev_b32 v132, 16, v132")
    a("s_lshl_b32 s55, s54, 2")
    a(f"s_add_u32 s55, s55, {WS_GATE}")
    a("v_mov_b32 v133, 0")
    a("s_mov_b64 exec, 1")
    a.vmem("buffer_store_dword v132, v133, s[32:35], s55 offen", "gs")
    a("s_mov_b64 exec, -1")

    def reads(c, st, buf):
        sl = c & 3
        f = FR[buf]
        a(f"ds_read_b128 {vr(f,4)}, v{VXR+4*(sl>>1)+st} offset:{(sl&1)*SLOT}")
        for s in range(3):
            o = st*6144 + s*1024 + (sl & 1)*SLOT
            a(f"ds_read_b64_tr_b16 {vr(f+4+4*s,2)}, v{VWR+(sl>>1)} offset:{o}")
            a(f"ds_read_b64_tr_b16 {vr(f+6+4*s,2)}, v{VWR+(sl>>1)} offset:{o+512}")
    def mm(buf):
        f = FR[buf]
        mfma(a, ACC[0], f+4, f, ACC[0])
        mfma(a, ACC[1], f, f+8, ACC[1])
        mfma(a, ACC[2], f+12, f, ACC[2])
    a.wait_vm("c0")
    a("s_barrier")
    reads(0, 0, 0)
    for c in range(8):
        for st in range(3):
            reads(c, st+1, (st+1) & 1)
            a("s_waitcnt lgkmcnt(7)")
            mm(st & 1)
        if c < 7:
            if c == 6: a.wait_vm("c7", "phi", extra="lgkmcnt(0)")
            else: a.wait_vm(f"c{c+1}", extra="lgkmcnt(0)")
            a("s_barrier")
            if c + 4 < 8: dma(c+4)
            if c == 4:
                a("s_and_b32 s64, s44, 1")
                a("s_lshl_b32 s64, s64, 10")
                a("s_mov_b32 m0, s64")
                a("s_lshl_b32 s65, s45, 11")
                a("s_add_u32 s65, s65, s64")
                a.vmem("buffer_load_dwordx4 v21, s[36:39], s65 offen lds", "phi")
            reads(c+1, 0, 0)
        else:
            for e in range(2):
                a(f"ds_read_b64_tr_b16 {vr(136+4*e,2)}, v22 offset:{e*512}")
                a(f"ds_read_b64_tr_b16 {vr(138+4*e,2)}, v22 offset:{e*512+256}")
            a("s_waitcnt lgkmcnt(4)")
        mm(1)
    a("s_lshl_b32 s64, s48, 2")
    a("s_add_u32 s64, s64, s62")
    a("s_lshl_b32 s65, s45, 2")
    a("s_lshl_b32 s66, s63, 1")
    a("s_add_u32 s65, s65, s66")
    a("s_lshl_b32 s66, s65, 16")
    a("s_lshl_b32 s67, s64, 10")
    a("s_add_u32 s66, s66, s67")
    a("s_cmp_eq_u32 s47, 0")
    a(f"s_cselect_b32 s68, {f32(0.25*LOG2E)}, 1.0")
    a(f"s_cselect_b32 s69, {WS_QB}, {WS_KB}")
    a("s_cselect_b64 s[70:71], -1, 0")
    a("s_add_u32 s69, s69, s66")
    a("s_add_u32 s72, s69, 65536")
    a("v_and_b32 v6, 0x33, v1")
    a("v_bfe_u32 v7, v1, 2, 1")
    a("v_lshl_or_b32 v6, v7, 3, v6")
    a("v_bfe_u32 v7, v1, 3, 1")
    a("v_lshl_or_b32 v6, v7, 2, v6")
    a("v_cndmask_b32 v6, v6, v1, s[70:71]")
    a("v_lshlrev_b32 v25, 4, v6")
    for e in range(2):
        for q in range(4):
            a(f"v_cvt_pk_bf16_f32 v{144+4*e+q}, v{ACC[0]+8*e+2*q}, v{ACC[0]+8*e+2*q+1}")
    a("s_waitcnt lgkmcnt(0)")
    PH = [160, 176]
    a("s_nop 0")
    mfma(a, PH[0], 136, 144, "0")
    mfma(a, PH[1], 140, 148, "0")
    for i in range(16): a(f"v_mul_f32 v{ACC[2]+i}, s68, v{ACC[2]+i}")
    for e in range(2):
        for q in range(4):
            a(f"v_cvt_pk_bf16_f32 v{32+4*e+q}, v{ACC[2]+8*e+2*q}, v{ACC[2]+8*e+2*q+1}")
    a("buffer_store_dwordx4 v[32:35], v25, s[32:35], s69 offen")
    a("buffer_store_dwordx4 v[36:39], v25, s[32:35], s72 offen")
    for g in range(2):
        for q in range(4):
            a(f"v_cvt_pk_bf16_f32 v{40+4*g+q}, v{ACC[1]+8*g+2*q}, v{ACC[1]+8*g+2*q+1}")
    a("s_cmp_eq_u32 s47, 0")
    a("s_cbranch_scc1 L_k1_nov")
    a("v_bfe_u32 v6, v1, 4, 1")
    a("v_lshlrev_b32 v6, 16, v6")
    a("v_lshl_add_u32 v6, v4, 8, v6")
    a("v_and_b32 v7, 15, v1")
    a("v_lshl_add_u32 v6, v7, 4, v6")
    a(f"s_add_u32 s72, s66, {WS_VB}")
    a("buffer_store_dwordx4 v[40:43], v6, s[32:35], s72 offen")
    a("buffer_store_dwordx4 v[44:47], v6, s[32:35], s72 offen offset:512")
    a.label("L_k1_nov")
    a(f"s_mov_b32 s73, {f32(LOG2E)}")
    for e in range(2):
        P = PH[e]; EP = 64 + 16*e; EM = EP + 8; T = 152
        if ROUND_P:
            for q in range(4):
                a(f"v_cvt_pk_bf16_f32 v{T+q}, v{P+2*q}, v{P+2*q+1}")
            for q in range(4):
                a(f"v_lshlrev_b32 v{P+2*q}, 16, v{T+q}")
                a(f"v_and_b32 v{P+2*q+1}, 0xffff0000, v{T+q}")
        a(f"v_max3_f32 v{T}, v{P}, v{P+1}, v{P+2}")
        a(f"v_max3_f32 v{T+1}, -v{P}, -v{P+1}, -v{P+2}")
        a(f"v_max3_f32 v{T}, v{T}, v{P+3}, v{P+4}")
        a(f"v_max3_f32 v{T+1}, v{T+1}, -v{P+3}, -v{P+4}")
        a(f"v_max3_f32 v{T}, v{T}, v{P+5}, v{P+6}")
        a(f"v_max3_f32 v{T+1}, v{T+1}, -v{P+5}, -v{P+6}")
        a(f"v_max_f32 v{T}, v{T}, v{P+7}")
        a(f"v_max_f32_e64 v{T+1}, v{T+1}, -v{P+7}")
        a.nop(2)
        a(f"v_permlane32_swap_b32 v{T}, v{T+1}")
        a(f"v_max_f32 v{T}, v{T}, v{T+1}")
        a(f"v_mul_f32 v{T}, {f32(-LOG2E)}, v{T}")
        a(f"v_mov_b32 v{T+1}, v{T}")
        a.nop(2)
        a(f"v_permlane32_swap_b32 v{T}, v{T+1}")
        for j in range(8):
            a(f"v_fma_f32 v{EP+j}, v{P+j}, s73, v{T}")
            a(f"v_fma_f32 v{EM+j}, -v{P+j}, s73, v{T+1}")
        for j in range(16): a(f"v_exp_f32 v{EP+j}, v{EP+j}")
        a(f"v_add_f32 v{T}, v{EP}, v{EP+1}")
        a(f"v_add_f32 v{T+1}, v{EM}, v{EM+1}")
        for j in range(2, 8):
            a(f"v_add_f32 v{T}, v{T}, v{EP+j}")
            a(f"v_add_f32 v{T+1}, v{T+1}, v{EM+j}")
        a.nop(2)
        a(f"v_permlane32_swap_b32 v{T}, v{T+1}")
        a(f"v_add_f32 v{T}, v{T}, v{T+1}")
        a(f"v_rcp_f32 v{T}, v{T}")
        a("s_nop 0")
        a(f"v_mov_b32 v{T+1}, v{T}")
        a.nop(2)
        a(f"v_permlane32_swap_b32 v{T}, v{T+1}")
        for j in range(8):
            a(f"v_mul_f32 v{EP+j}, v{EP+j}, v{T}")
            a(f"v_mul_f32 v{EM+j}, v{EM+j}, v{T+1}")
        for q in range(8):
            a(f"v_cvt_pk_bf16_f32 v{192+8*e+q}, v{EP+2*q}, v{EP+2*q+1}")
    a("s_cmp_eq_u32 s47, 0")
    a("s_cbranch_scc1 L_k1_t0")
    a("s_lshl_b32 s72, s66, 1")
    a(f"s_add_u32 s72, s72, {WS_PHIQ}")
    a("s_add_u32 s74, s72, 131072")
    a("buffer_store_dwordx4 v[192:195], v21, s[32:35], s72 offen")
    a("buffer_store_dwordx4 v[196:199], v21, s[32:35], s72 offen offset:1024")
    a("buffer_store_dwordx4 v[200:203], v21, s[32:35], s74 offen")
    a("buffer_store_dwordx4 v[204:207], v21, s[32:35], s74 offen offset:1024")
    a("s_endpgm")
    a.label("L_k1_t0")
    a.nop(2)
    for e in range(2):
        mfma(a, PH[e], 192+8*e, BSEL, "0")
        mfma(a, PH[e], 196+8*e, BSEL+4, PH[e])
    a("s_mov_b32 s70, 0x0000ffff")
    a("s_mov_b32 s71, 0x0000ffff")
    a("v_mov_b32 v23, 0x3f803f80")
    for q in range(8):
        a(f"v_cndmask_b32 v{208+q}, v23, v{40+q}, s[70:71]")
        a(f"v_cndmask_b32 v{216+q}, v{40+q}, v23, s[70:71]")
    for e in range(2):
        for q in range(8):
            a(f"v_cvt_pk_bf16_f32 v{224+8*e+q}, v{PH[e]+2*q}, v{PH[e]+2*q+1}")
    a.nop(2)
    for e in range(2):
        mfma(a, 64+16*e, 224+8*e, 208+8*e, "0")
        mfma(a, 64+16*e, 228+8*e, 212+8*e, 64+16*e)
    a("s_lshl_b32 s72, s44, 13")
    a(f"s_add_u32 s72, s72, {SLOT}")
    a("v_add_u32 v6, s72, v21")
    a("s_lshl_b32 s72, s63, 15")
    a("s_lshl_b32 s74, s62, 11")
    a("s_add_u32 s72, s72, s74")
    a(f"s_add_u32 s72, s72, {SLOT}")
    a("v_add_u32 v7, s72, v21")
    a.nop(6)
    for e in range(2):
        for q in range(4):
            a(f"ds_write_b128 v6, {vr(64+16*e+4*q,4)} offset:{e*4096+q*1024}")
    a("s_lshr_b32 s74, s62, 1")
    a("s_and_b32 s75, s62, 1")
    a("v_bfe_u32 v26, v1, 4, 1")
    a("v_cmp_eq_u32 vcc, s74, v26")
    a("v_and_b32 v26, 15, v1")
    a("v_lshlrev_b32 v26, 4, v26")
    a("v_lshl_add_u32 v26, v4, 8, v26")
    a("s_lshl_b32 s76, s75, 10")
    a("v_add_u32 v26, s76, v26")
    a("v_add_u32 v27, 512, v26")
    a("s_lshl_b32 s76, s75, 6")
    a("s_add_u32 s76, s76, 2048")
    a("v_lshl_add_u32 v28, v4, 4, s76")
    a("v_add_u32 v29, 32, v28")
    a("v_cndmask_b32 v26, v28, v26, vcc")
    a("v_cndmask_b32 v27, v29, v27, vcc")
    a("s_add_u32 s76, s65, s74")
    a("s_lshl_b32 s76, s76, 4")
    a("s_add_u32 s76, s76, s48")
    a("s_lshl_b32 s76, s76, 12")
    a(f"s_add_u32 s76, s76, {WS_KVP}")
    a("s_waitcnt lgkmcnt(0)")
    a("s_barrier")
    for w in range(4):
        for q in range(2):
            a(f"ds_read_b128 {vr(96+8*w+4*q,4)}, v7 offset:{w*8192+q*1024}")
    a("s_waitcnt lgkmcnt(4)")
    for j in range(8): a(f"v_add_f32 v{96+j}, v{96+j}, v{104+j}")
    a("s_waitcnt lgkmcnt(0)")
    for j in range(8): a(f"v_add_f32 v{112+j}, v{112+j}, v{120+j}")
    for j in range(8): a(f"v_add_f32 v{96+j}, v{96+j}, v{112+j}")
    a("buffer_store_dwordx4 v[96:99], v26, s[32:35], s76 offen")
    a("buffer_store_dwordx4 v[100:103], v27, s[32:35], s76 offen")
    a.label("L_k1_end")
    a("s_endpgm")

def k2(a):
    Q = [8, 12]; C = [16, 32]; S = [48, 64]; O = [80, 96]
    KB_ = [112, 116]; VA = [120, 128]; VBB = [124, 132]
    IDX, VK, VV = 136, 137, 138
    PHQ, G = 140, 148
    PL, ZL = 152, 168
    XCH, KVF, FLAG = 131072, 149504, 150592
    a.label("k2_kernel")
    a("s_cmp_ge_u32 s2, 256")
    a("s_cbranch_scc1 L_k2_end")
    a("s_load_dwordx2 s[14:15], s[0:1], 80")
    a("v_and_b32 v1, 63, v0")
    a("v_lshrrev_b32 v2, 6, v0")
    a("s_and_b32 s45, s2, 7")
    a("v_readfirstlane_b32 s44, v2")
    a("s_lshl_b32 s45, s45, 2")
    a("s_bfe_u32 s46, s2, 0x20003")
    a("s_add_u32 s45, s45, s46")
    a("s_lshr_b32 s46, s2, 5")
    a("s_and_b32 s47, s44, 3")
    a("s_lshr_b32 s48, s44, 2")
    a("v_lshlrev_b32 v3, 4, v1")
    a("s_lshl_b32 s49, s45, 16")
    a("s_lshl_b32 s50, s48, 5")
    a("s_add_u32 s50, s50, s47")
    a("s_lshl_b32 s50, s50, 10")
    a("s_add_u32 s51, s49, s50")
    a("s_lshl_b32 s52, s46, 3")
    a("s_lshl_b32 s53, s47, 1")
    a("s_add_u32 s52, s52, s53")
    a("s_lshl_b32 s53, s52, 10")
    a("s_add_u32 s53, s53, s49")
    a("s_waitcnt lgkmcnt(0)")
    srd(a, 32, 14, 15, WS_USED)
    a.vmem(f"buffer_load_dwordx4 {vr(Q[0],4)}, v3, s[32:35], s53 offen", "q")
    a.vmem(f"buffer_load_dwordx4 {vr(Q[1],4)}, v3, s[32:35], s53 offen offset:1024", "q")
    def dma(rr):
        a(f"s_add_u32 m0, s50, {rr*4096}")
        a(f"s_add_u32 s54, s51, {WS_KB+rr*4096}")
        a.vmem("buffer_load_dwordx4 v3, s[32:35], s54 offen lds", f"r{rr}")
        a(f"s_add_u32 m0, s50, {65536+rr*4096}")
        a(f"s_add_u32 s55, s51, {WS_VB+rr*4096}")
        a.vmem("buffer_load_dwordx4 v3, s[32:35], s55 offen lds", f"r{rr}")
    for rr in range(8): dma(rr)
    a("s_add_u32 s56, s52, s48")
    a("s_lshl_b32 s57, s45, 6")
    a("s_add_u32 s57, s57, s56")
    a("s_lshl_b32 s57, s57, 11")
    a(f"s_add_u32 s57, s57, {WS_PHIQ}")
    a.vmem(f"buffer_load_dwordx4 {vr(PHQ,4)}, v3, s[32:35], s57 offen", "x")
    a.vmem(f"buffer_load_dwordx4 {vr(PHQ+4,4)}, v3, s[32:35], s57 offen offset:1024", "x")
    a("v_and_b32 v4, 31, v1")
    a("v_lshlrev_b32 v5, 2, v4")
    a("s_lshl_b32 s57, s56, 7")
    a(f"s_add_u32 s57, s57, {WS_GATE}")
    a.vmem(f"buffer_load_dword v{G}, v5, s[32:35], s57 offen", "x")
    a("v_lshrrev_b32 v5, 4, v1")
    a("v_and_b32 v6, 15, v1")
    a("v_lshlrev_b32 v7, 14, v5")
    a("v_lshl_add_u32 v184, v6, 4, v7")
    a("v_and_b32 v6, 7, v1")
    a("v_lshl_add_u32 v185, v6, 4, v7")
    a("s_lshl_b32 s58, s44, 8")
    a(f"s_add_u32 s57, s49, {WS_KVP}")
    a("s_add_u32 s58, s58, s57")
    for p in range(4):
        a(f"s_add_u32 s59, s58, {p*4096}")
        a.vmem(f"buffer_load_dwordx4 {vr(PL+4*p,4)}, v184, s[32:35], s59 offen", "x")
    for p in range(4):
        a(f"s_add_u32 s59, s57, {p*4096+2048}")
        a.vmem(f"buffer_load_dwordx4 {vr(ZL+4*p,4)}, v185, s[32:35], s59 offen", "x")
    a(f"v_mov_b32 v{IDX}, 0xdddddddd")
    a("v_lshrrev_b32 v6, 5, v1")
    a("s_lshl_b32 s60, s48, 15")
    a("v_add_u32 v186, s60, v3")
    a("v_and_b32 v7, 15, v1")
    a("v_lshlrev_b32 v7, 4, v7")
    a("v_lshl_add_u32 v7, v6, 8, v7")
    a("s_add_u32 s60, s60, 65536")
    a("v_add_u32 v187, s60, v7")
    for i in range(16): a(f"v_mov_b32 v{VA[0]+i}, 0x3f803f80")
    a("s_mov_b32 s62, 0x0000ffff")
    a("s_mov_b32 s63, 0x0000ffff")
    a("s_mov_b32 s64, 0")
    a("s_mov_b32 s65, 0")
    a(f"v_mov_b32 v5, {FLAG}")
    a("v_mov_b32 v7, 0")
    a("ds_write_b32 v5, v7")
    vm_after = list(a.vm)
    a.wait_vm("q", "r0", extra="lgkmcnt(0)")
    n_r1 = len(a.vm) - 1 - max(i for i, t in enumerate(a.vm) if t == "r1")
    a("s_barrier")
    a(f"ds_read_b128 {vr(KB_[0],4)}, v3")
    a("s_waitcnt lgkmcnt(0)")
    mfma(a, S[0], KB_[0], Q[0], "0")
    mfma(a, S[1], KB_[0], Q[1], "0")
    a.nop(12)
    def maxtree(dst, src, first):
        if first:
            a(f"v_max3_f32 v{dst}, v{src}, v{src+1}, v{src+2}")
            for j in range(3, 15, 2): a(f"v_max3_f32 v{dst}, v{dst}, v{src+j}, v{src+j+1}")
            a(f"v_max_f32 v{dst}, v{dst}, v{src+15}")
        else:
            for j in range(0, 16, 2): a(f"v_max3_f32 v{dst}, v{dst}, v{src+j}, v{src+j+1}")
    maxtree(188, S[0], True)
    maxtree(189, S[1], True)
    a.label("L_k2_setmax")
    a.nop(2)
    a("v_permlane32_swap_b32 v188, v189")
    a("v_max_f32 v188, v188, v189")
    a("v_mov_b32 v189, v188")
    a.nop(2)
    a("v_permlane32_swap_b32 v188, v189")
    for i in range(16):
        a(f"v_sub_f32 v{C[0]+i}, 0, v188")
        a(f"v_sub_f32 v{C[1]+i}, 0, v189")
    for i in range(32): a(f"v_mov_b32 v{O[0]+i}, 0")
    for i in range(8, 16): a(f"v_mov_b32 v{S[1]+i}, 0")
    a(f"v_mov_b32 v{VK}, v186")
    a(f"v_mov_b32 v{VV}, v187")
    a(f"ds_read_b128 {vr(KB_[0],4)}, v{VK}")
    a(f"ds_read_b128 {vr(KB_[1],4)}, v{VK} offset:1024")
    a("s_mov_b64 exec, s[62:63]")
    a(f"ds_read_b128 {vr(VA[0],4)}, v{VV}")
    a(f"ds_read_b128 {vr(VBB[0],4)}, v{VV} offset:512")
    a("s_mov_b64 exec, -1")
    a("s_mov_b32 s66, 8")
    a("s_waitcnt lgkmcnt(0)")
    mfma(a, S[0], KB_[0], Q[0], C[0])
    a.nop(12)
    a.raw(".p2align 6")
    a.label("L_k2_loop")
    loop_start = len(a.lines)
    for t in range(4):
        for qi in range(2):
            s = S[qi]
            ex = lambda j: a(f"v_exp_f32 v{s+j}, v{s+j}")
            ex(0); ex(1)
            tp = t if qi == 1 else t - 1
            smfmac(a, O[1-qi], VBB[tp & 1], S[1-qi]+8, IDX)
            if qi == 1:
                if t == 2:
                    a("s_cmp_lt_u32 s64, 2")
                    a("s_cbranch_scc1 L_k2_sync")
                    a.label("L_k2_syncret")
                a(f"ds_read_b128 {vr(KB_[t&1],4)}, v{VK} offset:{(t+2)*1024}")
                a("s_mov_b64 exec, s[62:63]")
                a(f"ds_read_b128 {vr(VA[(t+1)&1],4)}, v{VV} offset:{(t+1)*1024}")
                a(f"ds_read_b128 {vr(VBB[(t+1)&1],4)}, v{VV} offset:{(t+1)*1024+512}")
                a("s_mov_b64 exec, -1")
            ex(2); ex(3)
            tn = t if qi == 0 else t + 1
            mfma(a, S[1-qi], KB_[tn & 1], Q[1-qi], C[1-qi])
            if qi == 1 and t == 3:
                a(f"v_add_u32 v{VK}, 4096, v{VK}")
                a(f"v_add_u32 v{VV}, 4096, v{VV}")
            for j in range(4, 10): ex(j)
            if qi == 0: a("s_waitcnt lgkmcnt(0)")
            smfmac(a, O[qi], VA[t & 1], s, IDX)
            if qi == 1 and t == 3:
                a("s_sub_u32 s66, s66, 1")
                a("s_cmp_lg_u32 s66, 0")
            for j in range(10, 16): ex(j)
    loop_end = len(a.lines)
    a("s_cbranch_scc1 L_k2_loop")
    a.nop(2)
    smfmac(a, O[1], VBB[1], S[1]+8, IDX)
    a("s_mul_i32 s67, s44, 2304")
    a(f"s_add_u32 s67, s67, {XCH}")
    a("v_add_u32 v5, s67, v3")
    a("v_lshl_add_u32 v6, v1, 2, s67")
    a("s_xor_b32 s68, s44, 4")
    a("s_mul_i32 s68, s68, 2304")
    a(f"s_add_u32 s68, s68, {XCH}")
    a("v_add_u32 v7, s68, v3")
    a("v_lshl_add_u32 v4, v1, 2, s68")
    a("s_waitcnt lgkmcnt(0)")
    a.nop(4)
    a(f"v_add_f32_e64 v188, |v{O[0]}|, |v{O[1]}|")
    for i in range(1, 9):
        a(f"v_add_f32_e64 v188, v188, |v{O[0]+i}|")
        a(f"v_add_f32_e64 v188, v188, |v{O[1]+i}|")
    a(f"v_mov_b32 v189, {f32(2.0**100)}")
    a("v_cmp_nlt_f32 vcc, v188, v189")
    a("s_cmp_eq_u32 s48, 0")
    a("s_cbranch_scc1 L_k2_send1")
    a(f"ds_write_b128 v5, {vr(O[0],4)}")
    a(f"ds_write_b128 v5, {vr(O[0]+4,4)} offset:1024")
    a(f"ds_write_b32 v6, v{O[0]+8} offset:2048")
    a("s_waitcnt lgkmcnt(0)")
    for i in range(9): a(f"v_mov_b32 v{O[0]+i}, v{O[1]+i}")
    a("s_branch L_k2_sent")
    a.label("L_k2_send1")
    a(f"ds_write_b128 v5, {vr(O[1],4)}")
    a(f"ds_write_b128 v5, {vr(O[1]+4,4)} offset:1024")
    a(f"ds_write_b32 v6, v{O[1]+8} offset:2048")
    a.label("L_k2_sent")
    a("s_cbranch_vccz L_k2_noflag")
    a(f"v_mov_b32 v188, {FLAG}")
    a("v_mov_b32 v189, 1")
    a("ds_write_b32 v188, v189")
    a.label("L_k2_noflag")
    a("s_waitcnt lgkmcnt(0)")
    a("s_barrier")
    a(f"v_mov_b32 v188, {FLAG}")
    a("ds_read_b32 v189, v188")
    a(f"ds_read_b128 {vr(S[0],4)}, v7")
    a(f"ds_read_b128 {vr(S[0]+4,4)}, v7 offset:1024")
    a(f"ds_read_b32 v{S[0]+8}, v4 offset:2048")
    a("v_and_b32 v5, 31, v1")
    a("v_min_u32 v5, 16, v5")
    a("v_lshrrev_b32 v6, 5, v1")
    a("v_mul_u32_u24 v6, 272, v6")
    a("v_lshl_add_u32 v5, v5, 4, v6")
    a(f"v_add_u32 v5, {KVF}, v5")
    a(f"ds_read_b128 {vr(KB_[0],4)}, v5")
    a(f"ds_read_b128 {vr(KB_[1],4)}, v5 offset:544")
    a("s_waitcnt lgkmcnt(5)")
    a("v_readfirstlane_b32 s69, v189")
    a("s_nop 3")
    a("s_cmp_lg_u32 s69, 0")
    a("s_cbranch_scc1 L_k2_maybe_fb")
    a.label("L_k2_fin")
    a("s_waitcnt lgkmcnt(0)")
    mfma(a, S[1], KB_[0], PHQ, "0")
    mfma(a, S[1], KB_[1], PHQ+4, S[1])
    for i in range(9): a(f"v_add_f32 v{O[0]+i}, v{O[0]+i}, v{S[0]+i}")
    a(f"v_rcp_f32 v188, v{O[0]+8}")
    a(f"v_sub_f32 v189, 1.0, v{G}")
    a("v_cvt_pk_bf16_f32 v189, v189, v189")
    a("v_lshlrev_b32 v189, 16, v189")
    a("v_mul_f32 v188, v188, v189")
    for i in range(8): a(f"v_mul_f32 v{O[0]+i}, v{O[0]+i}, v188")
    for q in range(4): a(f"v_cvt_pk_bf16_f32 v{192+q}, v{O[0]+2*q}, v{O[0]+2*q+1}")
    a("s_lshl_b32 s70, s56, 16")
    a("s_lshl_b32 s71, s45, 10")
    a("s_add_u32 s70, s70, s71")
    a(f"s_add_u32 s70, s70, {WS_OF}")
    a("s_add_u32 s71, s70, 32768")
    a("buffer_store_dwordx4 v[192:195], v3, s[32:35], s71 offen")
    a(f"v_add_f32 v188, {f32(1e-6)}, v{S[1]+8}")
    a("v_rcp_f32 v188, v188")
    a("s_nop 0")
    a(f"v_mul_f32 v188, v188, v{G}")
    for i in range(8): a(f"v_mul_f32 v{S[1]+i}, v{S[1]+i}, v188")
    for q in range(4): a(f"v_cvt_pk_bf16_f32 v{196+q}, v{S[1]+2*q}, v{S[1]+2*q+1}")
    a("buffer_store_dwordx4 v[196:199], v3, s[32:35], s70 offen")
    a.label("L_k2_end")
    a("s_endpgm")
    a.label("L_k2_sync")
    a("s_cmp_eq_u32 s64, 0")
    a("s_cbranch_scc0 L_k2_sync2")
    a(f"s_waitcnt vmcnt({n_r1})")
    a("s_add_u32 s64, s64, 1")
    a("s_barrier")
    a("s_branch L_k2_syncret")
    a.label("L_k2_sync2")
    a("s_waitcnt vmcnt(0)")
    for base, isz in ((PL, False), (ZL, True)):
        for j in range(4):
            a(f"v_add_f32 v{base+j}, v{base+j}, v{base+4+j}")
            a(f"v_add_f32 v{base+8+j}, v{base+8+j}, v{base+12+j}")
        for j in range(4): a(f"v_add_f32 v{base+j}, v{base+j}, v{base+8+j}")
        a.nop(2)
        a(f"v_permlane32_swap_b32 v{base}, v{base+1}")
        a(f"v_permlane32_swap_b32 v{base+2}, v{base+3}")
        a(f"v_add_f32 v{base}, v{base}, v{base+1}")
        a(f"v_add_f32 v{base+2}, v{base+2}, v{base+3}")
        a.nop(2)
        a(f"v_permlane16_swap_b32 v{base}, v{base+2}")
        a(f"v_add_f32 v{base}, v{base}, v{base+2}")
        a(f"v_cvt_pk_bf16_f32 v{base}, v{base}, v{base}")
        a("v_bfe_u32 v190, v1, 4, 1")
        a("v_lshrrev_b32 v191, 5, v1")
        a("v_lshl_add_u32 v190, v190, 1, v191")
        a("v_lshlrev_b32 v190, 1, v190")
        if not isz:
            a("s_lshr_b32 s72, s44, 2")
            a("s_mul_i32 s72, s72, 544")
            a("s_and_b32 s73, s44, 1")
            a("s_mul_i32 s73, s73, 272")
            a("s_add_u32 s72, s72, s73")
            a("s_and_b32 s73, s44, 2")
            a("s_lshl_b32 s73, s73, 2")
            a("s_add_u32 s72, s72, s73")
            a(f"s_add_u32 s72, s72, {KVF}")
            a("v_and_b32 v191, 15, v1")
            a("v_lshl_add_u32 v190, v191, 4, v190")
            a("v_add_u32 v190, s72, v190")
        else:
            a("v_bfe_u32 v191, v1, 2, 1")
            a("v_mul_u32_u24 v191, 544, v191")
            a("v_add_u32 v190, v190, v191")
            a("v_and_b32 v191, 1, v1")
            a("v_mul_u32_u24 v191, 272, v191")
            a("v_add_u32 v190, v190, v191")
            a("v_and_b32 v191, 2, v1")
            a("v_lshl_add_u32 v190, v191, 2, v190")
            a(f"v_add_u32 v190, {KVF+256}, v190")
        a(f"ds_write_b16 v190, v{base}")
    a("s_add_u32 s64, s64, 1")
    a("s_waitcnt lgkmcnt(0)")
    a("s_barrier")
    a("s_branch L_k2_syncret")
    a.label("L_k2_maybe_fb")
    a("s_cmp_lg_u32 s65, 0")
    a("s_cbranch_scc1 L_k2_fin")
    a("s_mov_b32 s65, 1")
    a("s_waitcnt lgkmcnt(0)")
    a("v_mov_b32 v188, 0xff800000")
    a("v_mov_b32 v189, 0xff800000")
    a(f"v_mov_b32 v{VK}, v3")
    a("s_mov_b32 s66, 64")
    a.label("L_k2_fbloop")
    a(f"ds_read_b128 {vr(KB_[0],4)}, v{VK}")
    a(f"v_add_u32 v{VK}, 1024, v{VK}")
    a("s_waitcnt lgkmcnt(0)")
    mfma(a, S[0], KB_[0], Q[0], "0")
    mfma(a, S[1], KB_[0], Q[1], "0")
    a.nop(12)
    maxtree(188, S[0], False)
    maxtree(189, S[1], False)
    a("s_sub_u32 s66, s66, 1")
    a("s_cmp_lg_u32 s66, 0")
    a("s_cbranch_scc1 L_k2_fbloop")
    a("s_barrier")
    a("s_branch L_k2_setmax")
    return loop_start, loop_end

def k3(a):
    SLOT = 32768
    ACC = 64
    FR = [32, 40, 48, 56]
    a.label("k3_kernel")
    a("s_cmp_ge_u32 s2, 256")
    a("s_cbranch_scc1 L_k3_end")
    a("s_load_dwordx2 s[4:5], s[0:1], 24")
    a("s_load_dwordx2 s[6:7], s[0:1], 48")
    a("s_load_dwordx2 s[8:9], s[0:1], 64")
    a("s_load_dwordx2 s[14:15], s[0:1], 80")
    a("v_and_b32 v1, 63, v0")
    a("v_lshrrev_b32 v2, 6, v0")
    a("s_and_b32 s45, s2, 7")
    a("v_readfirstlane_b32 s44, v2")
    a("s_lshl_b32 s45, s45, 2")
    a("s_bfe_u32 s46, s2, 0x20003")
    a("s_add_u32 s45, s45, s46")
    a("s_lshr_b32 s46, s2, 5")
    a("v_lshlrev_b32 v3, 4, v1")
    a("v_lshrrev_b32 v4, 3, v1")
    a("v_lshrrev_b32 v5, 2, v1")
    a("v_and_b32 v5, 4, v5")
    a("v_and_b32 v6, 7, v1")
    a("v_xor_b32 v5, v5, v6")
    a("v_lshlrev_b32 v5, 4, v5")
    a("v_lshl_add_u32 v8, v4, 10, v5")
    a(f"v_add_u32 v9, {8192-1024}, v8")
    a("s_lshl_b32 s47, s45, 17")
    a("s_lshl_b32 s48, s44, 10")
    a("s_add_u32 s47, s47, s48")
    a(f"s_add_u32 s47, s47, {WS_OF}")
    a("s_lshl_b32 s49, s44, 14")
    a("s_lshl_b32 s50, s46, 7")
    a("s_add_u32 s49, s49, s50")
    a("s_lshl_b32 s51, s44, 11")
    a("s_add_u32 s51, s51, 16384")
    a("s_waitcnt lgkmcnt(0)")
    srd(a, 32, 14, 15, WS_USED)
    srd(a, 16, 4, 5, 0x80000)
    srd(a, 20, 6, 7, 0x80000)
    def dma(c):
        sl = (c & 3) * SLOT
        a(f"s_add_u32 m0, s51, {sl}")
        a(f"s_add_u32 s61, s49, {(c&3)*131072}")
        S = 16 if c < 4 else 20
        a.vmem(f"buffer_load_dwordx4 v8, s[{S}:{S+3}], s61 offen lds", f"c{c}")
        a.vmem(f"buffer_load_dwordx4 v9, s[{S}:{S+3}], s61 offen offset:1024 lds", f"c{c}")
        a(f"s_add_u32 m0, s48, {sl}")
        a(f"s_add_u32 s60, s47, {c*8192}")
        a.vmem(f"buffer_load_dwordx4 v3, s[32:35], s60 offen lds", f"c{c}")
        a(f"s_add_u32 m0, s48, {sl+8192}")
        a(f"s_add_u32 s60, s47, {c*8192+65536}")
        a.vmem(f"buffer_load_dwordx4 v3, s[32:35], s60 offen lds", f"c{c}")
    for c in range(4): dma(c)
    srd(a, 24, 8, 9, 0x200000)
    a("s_and_b32 s62, s44, 1")
    a("s_bfe_u32 s63, s44, 0x10001")
    a("s_lshr_b32 s64, s44, 2")
    a("s_lshl_b32 s65, s63, 13")
    a("s_lshl_b32 s66, s64, 10")
    a("s_add_u32 s65, s65, s66")
    a("v_add_u32 v10, s65, v3")
    a(f"v_add_u32 v11, {2*SLOT}, v10")
    a("v_lshrrev_b32 v4, 5, v1")
    a("v_bfe_u32 v5, v1, 2, 2")
    a("v_lshl_add_u32 v5, v4, 2, v5")
    a("v_lshlrev_b32 v5, 7, v5")
    a("v_bfe_u32 v6, v1, 3, 1")
    a("v_xor_b32 v6, s62, v6")
    a("v_lshl_add_u32 v5, v6, 6, v5")
    a("v_bfe_u32 v6, v1, 4, 1")
    a("v_lshl_add_u32 v5, v6, 5, v5")
    a("v_and_b32 v6, 3, v1")
    a("v_lshl_add_u32 v5, v6, 3, v5")
    a("s_lshl_b32 s66, s64, 11")
    a("s_add_u32 s66, s66, 16384")
    a("v_add_u32 v12, s66, v5")
    a(f"v_add_u32 v13, {2*SLOT}, v12")
    for i in range(16): a(f"v_mov_b32 v{ACC+i}, 0")
    def reads(c):
        sl = c & 3
        for i in range(4):
            f = FR[i]
            a(f"ds_read_b128 {vr(f,4)}, v{10+(sl>>1)} offset:{(sl&1)*SLOT+i*2048}")
            a(f"ds_read_b64_tr_b16 {vr(f+4,2)}, v{12+(sl>>1)} offset:{(sl&1)*SLOT+i*4096}")
            a(f"ds_read_b64_tr_b16 {vr(f+6,2)}, v{12+(sl>>1)} offset:{(sl&1)*SLOT+i*4096+1024}")
    for c in range(8):
        a.wait_vm(f"c{c}")
        a("s_barrier")
        if c >= 1 and c + 3 < 8: dma(c+3)
        reads(c)
        for i in range(4):
            a(f"s_waitcnt lgkmcnt({9-3*i})")
            mfma(a, ACC, FR[i]+4, FR[i], ACC)
    a("s_and_b32 s67, s44, 3")
    a("s_lshl_b32 s67, s67, 12")
    a("v_add_u32 v14, s67, v3")
    a("s_cmp_eq_u32 s64, 0")
    a("s_cbranch_scc1 L_k3_recv")
    a.nop(12)
    for q in range(4): a(f"ds_write_b128 v14, {vr(ACC+4*q,4)} offset:{q*1024}")
    a("s_waitcnt lgkmcnt(0)")
    a("s_barrier")
    a("s_endpgm")
    a.label("L_k3_recv")
    a("v_and_b32 v5, 31, v1")
    a("v_lshlrev_b32 v5, 10, v5")
    a("v_lshl_add_u32 v5, v4, 4, v5")
    a("s_lshl_b32 s68, s45, 16")
    a("s_lshl_b32 s69, s63, 15")
    a("s_add_u32 s68, s68, s69")
    a("s_lshl_b32 s69, s46, 7")
    a("s_add_u32 s68, s68, s69")
    a("s_lshl_b32 s69, s62, 6")
    a("s_add_u32 s68, s68, s69")
    a("s_barrier")
    for q in range(4): a(f"ds_read_b128 {vr(32+4*q,4)}, v14 offset:{q*1024}")
    for q in range(4):
        a(f"s_waitcnt lgkmcnt({3-q})")
        for j in range(4): a(f"v_add_f32 v{ACC+4*q+j}, v{ACC+4*q+j}, v{32+4*q+j}")
    for q in range(8): a(f"v_cvt_pk_bf16_f32 v{48+q}, v{ACC+2*q}, v{ACC+2*q+1}")
    a.nop(2)
    for p in range(2):
        a(f"v_permlane32_swap_b32 v{48+4*p}, v{50+4*p}")
        a(f"v_permlane32_swap_b32 v{49+4*p}, v{51+4*p}")
    a("buffer_store_dwordx4 v[48:51], v5, s[24:27], s68 offen")
    a("buffer_store_dwordx4 v[52:55], v5, s[24:27], s68 offen offset:32")
    a.label("L_k3_end")
    a("s_endpgm")

def kd(name, vgpr, sgpr=96):
    return f""".amdhsa_kernel {name}
  .amdhsa_next_free_vgpr {vgpr}
  .amdhsa_next_free_sgpr {sgpr}
  .amdhsa_accum_offset {(vgpr+3)//4*4}
  .amdhsa_group_segment_fixed_size 0
  .amdhsa_kernarg_size 88
  .amdhsa_user_sgpr_count 2
  .amdhsa_user_sgpr_kernarg_segment_ptr 1
  .amdhsa_system_sgpr_workgroup_id_x 1
.end_amdhsa_kernel
"""

def main(out):
    hdr = open("cdna_kernels/" + NAME + ".s.ref").read().split("; Override launch")[0]
    txt = hdr
    txt += "; @launch kernel=k1_kernel grid=(256,1,1) block=(512,1,1) lds=163840\n"
    txt += "; @launch kernel=k2_kernel grid=(256,1,1) block=(512,1,1) lds=151552\n"
    txt += "; @launch kernel=k3_kernel grid=(256,1,1) block=(512,1,1) lds=131072\n"
    txt += '.amdgcn_target "amdgcn-amd-amdhsa--gfx950"\n.text\n'
    errs = []
    for nm, fn in (("k1_kernel", k1), ("k2_kernel", k2), ("k3_kernel", k3)):
        a = Asm()
        r = fn(a)
        errs += check(a.lines, nm)
        if r:
            body = a.lines[r[0]:r[1]]
            errs += check(body + body, nm + "(loop)")
        txt += f".globl {nm}\n.p2align 8\n.type {nm},@function\n" + a.text()
    txt += '.section .rodata,"a"\n'
    for nm, v in (("k1_kernel", 240), ("k2_kernel", 200), ("k3_kernel", 80)):
        txt += ".p2align 6\n" + kd(nm, v)
    open(out, "w").write(txt)
    for e in errs: print("HAZARD", e)
    print("written", out, len(txt), "bytes;", len(errs), "hazards")

if __name__ == "__main__":
    main(sys.argv[1] if len(sys.argv) > 1 else "cdna_kernels/" + NAME + ".s")
```

```python
import re

class Asm:
    def __init__(self):
        self.lines = []
        self.vm = []
    def __call__(self, s):
        for ln in s.split("\n"):
            ln = ln.strip()
            if ln:
                self.lines.append("    " + ln)
    def label(self, l):
        self.lines.append(l + ":")
    def raw(self, s):
        self.lines.append(s)
    def c(self, s):
        self.lines.append("    ; " + s)
    def nop(self, n):
        while n > 0:
            k = min(n, 16)
            self(f"s_nop {k-1}")
            n -= k
    def vmem(self, s, tag):
        self(s); self.vm.append(tag)
    def wait_vm(self, *tags, extra=""):
        last = max(i for i, t in enumerate(self.vm) if t in tags)
        n = len(self.vm) - 1 - last
        assert n <= 63
        self(f"s_waitcnt vmcnt({n}) {extra}".strip())
        self.vm = self.vm[last+1:]
    def text(self):
        return "\n".join(self.lines) + "\n"

def vr(a, n=1):
    return f"v{a}" if n == 1 else f"v[{a}:{a+n-1}]"
def sr(a, n=1):
    return f"s{a}" if n == 1 else f"s[{a}:{a+n-1}]"

_reg = re.compile(r"^(-|abs\(|\|)?([vsa])(\d+|\[(\d+):(\d+)\])")
def regs_of(op):
    op = op.strip()
    op = op.lstrip("-").replace("abs(", "").replace("|", "").rstrip(")")
    if op in ("vcc",): return {("s", "vcc")}
    if op in ("exec",): return {("s", "exec")}
    if op == "m0": return {("s", "m0")}
    m = re.match(r"^([vsa])(\d+)$", op)
    if m: return {(m.group(1), int(m.group(2)))}
    m = re.match(r"^([vsa])\[(\d+):(\d+)\]$", op)
    if m: return {(m.group(1), i) for i in range(int(m.group(2)), int(m.group(3)) + 1)}
    return set()

TRANS = ("v_exp_f32", "v_rcp_f32", "v_log_f32", "v_rsq_f32", "v_sqrt_f32", "v_sin_f32", "v_cos_f32", "v_exp_f16")
def passes(op):
    if "32x32x16" in op or "32x32x32" in op: return 8
    if "16x16x32" in op or "16x16x64" in op: return 4
    raise ValueError(op)

class Ins:
    pass

def parse(line):
    s = line.split(";")[0].strip()
    if not s or s.endswith(":") or s.startswith("."): return None
    parts = s.split(None, 1)
    op = parts[0]
    rest = parts[1] if len(parts) > 1 else ""
    ops = [o.strip() for o in re.split(r",(?![^\[]*\])", rest)] if rest else []
    if ops:
        toks = ops[-1].split()
        mods = toks[1:]
        ops[-1] = toks[0] if toks else ""
    else:
        mods = []
    I = Ins(); I.op = op; I.text = s; I.mods = mods
    I.w = set(); I.r = set(); I.kind = "other"; I.srcC = set(); I.srcAB = set()
    R = [regs_of(o) for o in ops]
    base = op.replace("_e32", "").replace("_e64", "").replace("_dpp", "").replace("_sdwa", "")
    I.base = base
    I.dpp = op.endswith("_dpp") or any(m.startswith(("row_", "quad_perm")) for m in mods)
    if op.startswith("v_mfma"):
        I.kind = "mfma"; I.w = R[0]; I.srcAB = R[1] | R[2]; I.srcC = R[3]; I.r = I.srcAB | I.srcC; I.p = passes(op)
    elif op.startswith("v_smfmac"):
        I.kind = "mfma"; I.w = R[0]; I.srcAB = R[1] | R[2] | R[3]; I.srcC = R[0]; I.r = I.srcAB | I.srcC; I.p = passes(op)
    elif op.startswith("v_permlane") and "swap" in op:
        I.kind = "valu"; I.w = R[0] | R[1]; I.r = R[0] | R[1]
    elif op.startswith("v_"):
        I.kind = "valu"
        I.w = set(R[0]); srcs = R[1:]
        if base in ("v_add_co_u32", "v_sub_co_u32", "v_addc_co_u32", "v_subb_co_u32", "v_div_scale_f32"):
            I.w |= R[1]; srcs = R[2:]
        for x in srcs: I.r |= x
        if base in ("v_fmac_f32", "v_dot2c_f32_bf16", "v_pk_fmac_f16") or I.dpp or op.endswith("_sdwa"): I.r |= R[0]
        if base == "v_cndmask_b32" and len(ops) == 3: I.r |= {("s", "vcc")}
    elif op.startswith("ds_read") or op.startswith("ds_bpermute") or op.startswith("ds_swizzle"):
        I.kind = "ds"; I.w = R[0]
        for x in R[1:]: I.r |= x
    elif op.startswith("ds_"):
        I.kind = "ds"
        for x in R: I.r |= x
    elif op.startswith(("buffer_load", "global_load")):
        I.kind = "vmem"
        if "lds" in mods or "_lds_" in op:
            I.ldsdma = True
            for x in R: I.r |= x
            I.r |= {("s", "m0")}
        else:
            I.w = R[0]
            for x in R[1:]: I.r |= x
    elif op.startswith(("buffer_store", "global_store", "buffer_atomic", "global_atomic")):
        I.kind = "vmem"; I.store = True
        for x in R: I.r |= x
        if op.startswith("buffer_store"): I.sdata = R[0]
        elif op.startswith("global_store"): I.sdata = R[1]
        else: I.sdata = set()
        if "atomic" in op and "sc0" in mods: I.w = R[0]
    elif op.startswith("s_"):
        I.kind = "salu"
        if op.startswith(("s_cmp", "s_cbranch", "s_branch", "s_waitcnt", "s_nop", "s_barrier", "s_endpgm", "s_sleep", "s_setprio")):
            for x in R: I.r |= x
        else:
            if R: I.w = R[0]
            for x in R[1:]: I.r |= x
    I.ws = 1
    if op == "s_nop": I.ws = int(ops[0], 0) + 1
    return I

def check(lines, name=""):
    ins = [(n, parse(l)) for n, l in enumerate(lines)]
    ins = [(n, i) for n, i in ins if i is not None]
    errs = []
    D_RW = {2: 5, 4: 8, 8: 12, 16: 20}
    C_OV = {2: 4, 4: 6, 8: 10, 16: 18}
    C_WAR = {2: 1, 4: 3, 8: 7, 16: 15}
    def isv(s): return {x for x in s if x[0] in "va"}
    def iss(s): return {x for x in s if x[0] == "s"}
    for k, (n, c) in enumerate(ins):
        dist = 0
        for j in range(k - 1, max(-1, k - 30), -1):
            p = ins[j][1]
            need = 0; why = ""
            if p.op in ("s_branch", "s_endpgm"): break
            if p.kind == "valu":
                pw = isv(p.w); sw = iss(p.w)
                if c.kind == "mfma" and pw & c.r: need, why = 2, "valu->mfma"
                if c.kind == "valu":
                    if p.base in TRANS and c.base not in TRANS and pw & c.r: need, why = max(need, 1), "trans->valu"
                    if c.op.startswith("v_permlane") and pw & c.r: need, why = max(need, 2), "valu->permlane"
                    if c.dpp and pw & c.r: need, why = max(need, 2), "valu->dpp"
                    if c.base in ("v_readfirstlane_b32", "v_readlane_b32") and pw & c.r: need, why = max(need, 1), "valu->readlane"
                    if sw & c.r: need, why = max(need, 2), "valu sgpr->valu"
                    if (p.op.endswith("_sdwa") or any(m.startswith("op_sel") for m in p.mods)) and pw & (c.r | c.w): need, why = max(need, 1), "opsel"
                if c.kind == "vmem" and sw & c.r: need, why = max(need, 5), "valu sgpr->vmem"
                if p.base in TRANS and c.kind in ("vmem", "ds") and pw & c.r: need, why = max(need, 1), "trans->mem"
            if p.kind == "mfma":
                if c.kind == "mfma":
                    if p.w & c.srcAB: need, why = max(need, D_RW[p.p]), "mfma D->AB"
                    if p.w & c.srcC and not (p.w == c.srcC and p.p == c.p): need, why = max(need, C_OV[p.p]), "mfma D->C overlap"
                elif c.kind in ("valu", "vmem", "ds"):
                    if p.w & (c.r | c.w): need, why = max(need, D_RW[p.p]), "mfma D->rw"
                    if c.kind == "valu" and p.srcC & c.w: need, why = max(need, C_WAR[p.p]), "mfma C war"
            if p.kind == "salu" and ("s", "m0") in p.w and getattr(c, "ldsdma", False): need, why = max(need, 1), "m0->dma"
            if getattr(p, "store", False) and ("x4" in p.op or "x3" in p.op) and p.sdata & c.w:
                need, why = max(need, 2 if c.kind == "valu" else 1), "store data war"
            if need > dist:
                errs.append(f"{name} line {n}: [{why}] need {need} have {dist}:\n     {p.text}\n     {c.text}")
            dist += p.ws
            if dist >= 24: break
    return errs

def autonop(lines, maxiter=400):
    lines = list(lines)
    added = 0
    for _ in range(maxiter):
        errs = check(lines)
        if not errs: break
        m = re.match(r" line (\d+): \[.*?\] need (\d+) have (\d+)", errs[0])
        n, need, have = int(m.group(1)), int(m.group(2)), int(m.group(3))
        for e in errs:
            mm = re.match(r" line (\d+): \[.*?\] need (\d+) have (\d+)", e)
            if int(mm.group(1)) == n and int(mm.group(2)) - int(mm.group(3)) > need - have:
                need, have = int(mm.group(2)), int(mm.group(3))
        lines.insert(n, f"    s_nop {need-have-1}")
        added += 1
    return lines, added
```

```python
import sys, struct
from asmlib import *

NAME = "gated_mix__linear_kernel_hedgehog__mha_block__prompt"
WS_E, WS_F1, WS_F2, WS_F3, WS_GATE = 0x0, 0x10000, 0x20000, 0x30000, 0x40000
WS_QB, WS_KB, WS_VB, WS_PHIQ, WS_KVP, WS_OF = 0x100000, 0x300000, 0x500000, 0x700000, 0xB00000, 0xD00000
WS_USED = 0x2100000
def f32(x): return "0x%08x" % struct.unpack("<I", struct.pack("<f", x))[0]
LOG2E = 1.4426950408889634
STAMPS = False
OPT = dict(rp=1, pos=(1, 6, 11), thr=2.0**100)
SC = " sc1"
POLL_LIMIT = 200000
NST = 11

def mfma(a, d, A, B, C):
    a(f"v_mfma_f32_32x32x16_bf16 {vr(d,16)}, {vr(A,4)}, {vr(B,4)}, {C if isinstance(C,str) else vr(C,16)}")
def smfmac(a, d, A, B, idx):
    a(f"v_smfmac_f32_32x32x32_bf16 {vr(d,16)}, {vr(A,4)}, {vr(B,8)}, v{idx}")
def srd(a, s, lo, hi, nrec):
    a(f"s_mov_b32 s{s}, s{lo}")
    a(f"s_mov_b32 s{s+1}, s{hi}")
    a(f"s_mov_b32 s{s+2}, {nrec}")
    a(f"s_mov_b32 s{s+3}, 0x00020000")
def stamp(a, j):
    if STAMPS: a(f"s_memrealtime s[{80+2*j}:{81+2*j}]")
def flush_stamps(a):
    if not STAMPS: return
    a("s_waitcnt vmcnt(0)")
    stamp(a, NST-1)
    a("s_waitcnt lgkmcnt(0)")
    a("s_lshl_b32 s70, s2, 3")
    a("s_add_u32 s70, s70, s44")
    a("s_lshl_b32 s70, s70, 6")
    a(f"s_add_u32 s70, s70, {0x2000000}")
    a("s_mov_b64 exec, 1")
    a("v_mov_b32 v1, 0")
    for j in range(NST):
        a(f"v_mov_b32 v2, s{80+2*j}")
        a(f"buffer_store_dword v2, v1, s[32:35], s70 offen offset:{4*j}")
def flag_store(a, soff, vtmp):
    a(f"v_mov_b32 v{vtmp}, s40")
    a(f"v_mov_b32 v{vtmp+1}, 0")
    a("s_waitcnt vmcnt(0)")
    a.vm = []
    a("s_mov_b64 exec, 1")
    a.vmem(f"buffer_store_dword v{vtmp}, v{vtmp+1}, s[32:35], {soff} offen{SC}", "flag")
    a("s_mov_b64 exec, -1")
def poll(a, lab, n, vaddr, vdst, soff, first_issued=False):
    a(f"s_mov_b32 s70, {POLL_LIMIT}")
    if first_issued: a(f"s_branch {lab}_chk")
    a.label(lab)
    a(f"buffer_load_dword{'x2' if n==2 else ''} {vr(vdst,n)}, v{vaddr}, s[32:35], {soff} offen{SC}")
    a.label(lab + "_chk")
    a("s_waitcnt vmcnt(0)")
    a(f"v_cmp_ne_u32 vcc, s40, v{vdst}")
    if n == 2:
        a(f"v_cmp_ne_u32 s[68:69], s40, v{vdst+1}")
        a("s_nop 1")
        a("s_or_b64 vcc, vcc, s[68:69]")
    else:
        a("s_nop 1")
    a(f"s_cbranch_vccz {lab}_ok")
    a("s_sub_u32 s70, s70, 1")
    a("s_cmp_eq_u32 s70, 0")
    a(f"s_cbranch_scc1 {lab}_ok")
    a("s_sleep 1")
    a(f"s_branch {lab}")
    a.label(lab + "_ok")
    a.vm = []

def phase1(a):
    SLOT = 40960
    ACC = [64, 80, 96]
    FR = [32, 48]
    VXR, VWR, VXD, VWD, BSEL = 8, 16, 18, 20, 112
    a("s_cmp_ge_u32 s2, 256")
    a("s_cbranch_scc1 L_end")
    stamp(a, 0)
    a("s_load_dwordx4 s[4:7], s[0:1], 0")
    a("s_load_dwordx2 s[10:11], s[0:1], 40")
    a("s_load_dwordx2 s[14:15], s[0:1], 80")
    a("s_load_dwordx2 s[8:9], s[0:1], 16")
    a("s_load_dwordx2 s[12:13], s[0:1], 56")
    a("s_load_dwordx2 s[76:77], s[0:1], 24")
    a("s_load_dwordx2 s[78:79], s[0:1], 48")
    a("s_load_dwordx2 s[74:75], s[0:1], 64")
    a("v_and_b32 v1, 63, v0")
    a("v_lshrrev_b32 v2, 6, v0")
    a("s_and_b32 s45, s2, 7")
    a("v_readfirstlane_b32 s44, v2")
    a("s_lshr_b32 s46, s2, 3")
    a("s_and_b32 s47, s46, 1")
    a("s_lshr_b32 s48, s46, 1")
    a("v_lshrrev_b32 v3, 3, v1")
    a("v_and_b32 v4, 7, v1")
    a("v_lshrrev_b32 v5, 1, v3")
    a("v_xor_b32 v6, v4, v5")
    a("v_lshlrev_b32 v6, 4, v6")
    a(f"v_lshl_add_u32 v{VXD}, v3, 10, v6")
    a("v_xor_b32 v6, 64, v6")
    a(f"v_lshl_add_u32 v{VXD+1}, v3, 10, v6")
    a(f"v_add_u32 v{VXD+1}, {8192-1024}, v{VXD+1}")
    a("v_lshrrev_b32 v6, 2, v1")
    a("v_and_b32 v6, 4, v6")
    a("v_xor_b32 v6, v4, v6")
    a("v_lshlrev_b32 v6, 4, v6")
    a("v_mul_u32_u24 v7, 3072, v3")
    a(f"v_add_u32 v{VWD}, v7, v6")
    a("v_lshlrev_b32 v21, 4, v1")
    a("s_lshl_b32 s49, s48, 17")
    a("s_lshl_b32 s50, s44, 14")
    a("s_add_u32 s49, s49, s50")
    a("s_mul_i32 s50, s44, 24576")
    a("s_lshl_b32 s51, s44, 11")
    a("s_mul_i32 s52, s44, 3072")
    a("s_add_u32 s52, s52, 16384")
    a("s_lshl_b32 s53, s45, 7")
    a("s_cmp_eq_u32 s47, 0")
    a("s_cselect_b32 s56, 1024, 0")
    a("s_cselect_b32 s57, 0, 1024")
    a("s_add_u32 s56, s56, s53")
    a("s_add_u32 s57, s57, s53")
    a("s_add_u32 s53, s53, 1024")
    a("s_sub_u32 s22, 0x180000, s56")
    a("s_sub_u32 s26, 0x180000, s53")
    a("s_sub_u32 s30, 0x180800, s57")
    a("s_mov_b32 s23, 0x00020000")
    a("s_mov_b32 s27, 0x00020000")
    a("s_mov_b32 s31, 0x00020000")
    a("s_mov_b32 s18, 0x200000")
    a("s_mov_b32 s19, 0x00020000")
    a("s_cmp_eq_u32 s47, 0")
    a("s_waitcnt lgkmcnt(0)")
    a("s_cselect_b32 s58, s6, s10")
    a("s_cselect_b32 s59, s7, s11")
    a("s_mov_b32 s16, s4")
    a("s_mov_b32 s17, s5")
    a("s_add_u32 s20, s6, s56")
    a("s_addc_u32 s21, s7, 0")
    a("s_add_u32 s24, s58, s53")
    a("s_addc_u32 s25, s59, 0")
    a("s_add_u32 s28, s10, s57")
    a("s_addc_u32 s29, s11, 0")
    a("s_sub_u32 s28, s28, 2048")
    a("s_subb_u32 s29, s29, 0")
    def dma(c):
        sl = (c & 3) * SLOT
        a(f"s_add_u32 m0, s51, {sl}")
        a(f"s_add_u32 s60, s49, {c*128}")
        a.vmem(f"buffer_load_dwordx4 v{VXD}, s[16:19], s60 offen lds", f"c{c}")
        a.vmem(f"buffer_load_dwordx4 v{VXD+1}, s[16:19], s60 offen offset:1024 lds", f"c{c}")
        a(f"s_add_u32 m0, s52, {sl}")
        a(f"s_add_u32 s61, s50, {c*196608}")
        for s in range(3):
            a.vmem(f"buffer_load_dwordx4 v{VWD}, s[{20+4*s}:{23+4*s}], s61 offen offset:{1024*s} lds", f"c{c}")
    dma(0)
    a(f"s_load_dword s40, s[14:15], {WS_E}")
    a("s_barrier")
    dma(1)
    srd(a, 32, 14, 15, WS_USED)
    srd(a, 36, 8, 9, 16384)
    a("v_and_b32 v3, 31, v1")
    a("v_lshrrev_b32 v4, 5, v1")
    a("v_bfe_u32 v5, v1, 1, 3")
    a("s_and_b32 s62, s44, 3")
    a("s_lshr_b32 s63, s44, 2")
    a("s_lshl_b32 s64, s62, 12")
    a("v_lshl_add_u32 v6, v3, 7, s64")
    for st in range(4):
        a(f"v_or_b32 v7, {2*st}, v4")
        a("v_xor_b32 v7, v7, v5")
        a(f"v_lshl_add_u32 v{VXR+st}, v7, 4, v6")
        a(f"v_add_u32 v{VXR+4+st}, {2*SLOT}, v{VXR+st}")
    a("s_barrier")
    dma(2)
    a("v_mul_u32_u24 v6, 3072, v4")
    a("v_bfe_u32 v7, v1, 2, 2")
    a("v_lshl_add_u32 v6, v7, 7, v6")
    a("v_bfe_u32 v7, v1, 3, 1")
    a("v_xor_b32 v7, s63, v7")
    a("v_lshl_add_u32 v6, v7, 6, v6")
    a("v_bfe_u32 v7, v1, 4, 1")
    a("v_lshl_add_u32 v6, v7, 5, v6")
    a("v_and_b32 v7, 3, v1")
    a("v_lshl_add_u32 v6, v7, 3, v6")
    a(f"v_add_u32 v{VWR}, 16384, v6")
    a(f"v_add_u32 v{VWR+1}, {16384+2*SLOT}, v6")
    a("v_bfe_u32 v6, v1, 2, 2")
    a("v_lshl_add_u32 v6, v4, 2, v6")
    a("v_lshlrev_b32 v6, 5, v6")
    a("v_lshl_add_u32 v6, v7, 3, v6")
    a("s_lshl_b32 s64, s63, 10")
    a("v_add_u32 v22, s64, v6")
    dma(3)
    a("v_lshlrev_b32 v6, 2, v4")
    a("v_sub_u32 v6, v3, v6")
    a("v_mov_b32 v23, 0x3f80")
    a("v_mov_b32 v24, 0x3f800000")
    for sg in range(2):
        for q in range(4):
            T0 = 16*sg + 8*((2*q)//4) + (2*q) % 4
            a(f"v_cmp_eq_u32 vcc, {T0}, v6")
            a(f"v_cmp_eq_u32 s[66:67], {T0+1}, v6")
            a(f"v_cndmask_b32 v7, 0, v23, vcc")
            a(f"v_cndmask_b32 v{BSEL+4*sg+q}, v7, v24, s[66:67]")
    for i in range(0, 48, 2): a(f"v_mov_b64 v[{64+i}:{65+i}], 0")
    a("s_lshl_b32 s64, s48, 2")
    a("s_add_u32 s64, s64, s62")
    a("s_lshl_b32 s65, s45, 2")
    a("s_lshl_b32 s66, s63, 1")
    a("s_add_u32 s65, s65, s66")
    a("s_lshl_b32 s66, s65, 16")
    a("s_lshl_b32 s67, s64, 10")
    a("s_add_u32 s66, s66, s67")
    a("s_cmp_eq_u32 s47, 0")
    a(f"s_cselect_b32 s54, {WS_QB}, 0")
    a(f"s_cselect_b32 s55, 0, {WS_KB}")
    a("s_cselect_b64 s[70:71], -1, 0")
    a("s_add_u32 s54, s54, s55")
    a("s_add_u32 s54, s54, s66")
    a("s_add_u32 s55, s54, 65536")
    a("v_and_b32 v6, 0x33, v1")
    a("v_bfe_u32 v7, v1, 2, 1")
    a("v_lshl_or_b32 v6, v7, 3, v6")
    a("v_bfe_u32 v7, v1, 3, 1")
    a("v_lshl_or_b32 v6, v7, 2, v6")
    a("v_cndmask_b32 v6, v6, v1, s[70:71]")
    a("v_lshlrev_b32 v25, 4, v6")
    a("v_bfe_u32 v6, v1, 4, 1")
    a("v_lshlrev_b32 v6, 16, v6")
    a("v_lshl_add_u32 v6, v4, 8, v6")
    a("v_and_b32 v7, 15, v1")
    a("v_lshl_add_u32 v30, v7, 4, v6")
    a("s_lshl_b32 s41, s45, 10")
    a("s_lshl_b32 s42, s63, 9")
    a("s_add_u32 s41, s41, s42")
    a("s_lshl_b32 s42, s47, 8")
    a("s_add_u32 s41, s41, s42")
    a("s_lshl_b32 s42, s64, 2")
    a("s_add_u32 s41, s41, s42")
    a(f"s_add_u32 s42, s41, {WS_F2}")
    a(f"s_add_u32 s41, s41, {WS_F1}")
    a("s_waitcnt lgkmcnt(0)")
    a("s_add_u32 s40, s40, 0x9e3779b1")

    def reads(c, st, buf):
        sl = c & 3
        f = FR[buf]
        a(f"ds_read_b128 {vr(f,4)}, v{VXR+4*(sl>>1)+st} offset:{(sl&1)*SLOT}")
        for s in range(3):
            o = st*6144 + s*1024 + (sl & 1)*SLOT
            a(f"ds_read_b64_tr_b16 {vr(f+4+4*s,2)}, v{VWR+(sl>>1)} offset:{o}")
            a(f"ds_read_b64_tr_b16 {vr(f+6+4*s,2)}, v{VWR+(sl>>1)} offset:{o+512}")
    def mm(buf):
        f = FR[buf]
        mfma(a, ACC[0], f+4, f, ACC[0])
        mfma(a, ACC[1], f, f+8, ACC[1])
        mfma(a, ACC[2], f+12, f, ACC[2])
    a.wait_vm("c0")
    a("s_barrier")
    stamp(a, 1)
    reads(0, 0, 0)
    for c in range(8):
        for st in range(3):
            reads(c, st+1, (st+1) & 1)
            a("s_waitcnt lgkmcnt(7)")
            mm(st & 1)
        if c < 7:
            if c == 6: a.wait_vm("c7", "phi", extra="lgkmcnt(0)")
            else: a.wait_vm(f"c{c+1}", extra="lgkmcnt(0)")
            a("s_barrier")
            reads(c+1, 0, 0)
            if c + 4 < 8: dma(c+4)
            if c == 4:
                a("s_and_b32 s60, s44, 1")
                a("s_lshl_b32 s60, s60, 10")
                a("s_mov_b32 m0, s60")
                a("s_lshl_b32 s61, s45, 11")
                a("s_add_u32 s61, s61, s60")
                a.vmem("buffer_load_dwordx4 v21, s[36:39], s61 offen lds", "phi")
        else:
            for e in range(2):
                a(f"ds_read_b64_tr_b16 {vr(136+4*e,2)}, v22 offset:{e*512}")
                a(f"ds_read_b64_tr_b16 {vr(138+4*e,2)}, v22 offset:{e*512+256}")
            a("s_waitcnt lgkmcnt(4)")
        mm(1)
    stamp(a, 2)
    a(f"s_mov_b32 s68, {f32(0.25*LOG2E)}")
    a(f"s_mov_b32 s72, {f32(LOG2E)}")
    a(f"s_add_u32 s67, s66, {WS_VB}")
    a("s_cmp_eq_u32 s47, 0")
    for e in range(2):
        for q in range(4):
            a(f"v_cvt_pk_bf16_f32 v{144+4*e+q}, v{ACC[0]+8*e+2*q}, v{ACC[0]+8*e+2*q+1}")
    for g in range(2):
        for q in range(4):
            a(f"v_cvt_pk_bf16_f32 v{40+4*g+q}, v{ACC[1]+8*g+2*q}, v{ACC[1]+8*g+2*q+1}")
    a("s_waitcnt lgkmcnt(0)")
    PH = [160, 176]
    mfma(a, PH[0], 136, 144, "0")
    mfma(a, PH[1], 140, 148, "0")
    a("s_cbranch_scc1 L_p1_q")
    a(f"buffer_store_dwordx4 v[40:43], v30, s[32:35], s67 offen{SC}")
    a(f"buffer_store_dwordx4 v[44:47], v30, s[32:35], s67 offen offset:512{SC}")
    a("s_branch L_p1_qk")
    a.label("L_p1_q")
    for i in range(0, 16, 2): a(f"v_pk_mul_f32 v[{ACC[2]+i}:{ACC[2]+i+1}], v[{ACC[2]+i}:{ACC[2]+i+1}], s[68:69] op_sel_hi:[1,0]")
    a("s_nop 0")
    a.label("L_p1_qk")
    for e in range(2):
        for q in range(4):
            a(f"v_cvt_pk_bf16_f32 v{32+4*e+q}, v{ACC[2]+8*e+2*q}, v{ACC[2]+8*e+2*q+1}")
        a(f"buffer_store_dwordx4 {vr(32+4*e,4)}, v25, s[32:35], s{54+e} offen{SC}")
    E2 = range(2)
    EP = [64, 80]; T = [152, 156]
    if OPT["rp"]:
        for e in E2:
            for q in range(4): a(f"v_cvt_pk_bf16_f32 v{T[e]+q}, v{PH[e]+2*q}, v{PH[e]+2*q+1}")
        for e in E2:
            for q in range(4):
                a(f"v_lshlrev_b32 v{PH[e]+2*q}, 16, v{T[e]+q}")
                a(f"v_and_b32 v{PH[e]+2*q+1}, 0xffff0000, v{T[e]+q}")
    for e in E2:
        P = PH[e]; t = T[e]
        a(f"v_max3_f32 v{t}, v{P}, v{P+1}, v{P+2}")
        a(f"v_max3_f32 v{t+1}, -v{P}, -v{P+1}, -v{P+2}")
        a(f"v_max3_f32 v{t}, v{t}, v{P+3}, v{P+4}")
        a(f"v_max3_f32 v{t+1}, v{t+1}, -v{P+3}, -v{P+4}")
        a(f"v_max3_f32 v{t}, v{t}, v{P+5}, v{P+6}")
        a(f"v_max3_f32 v{t+1}, v{t+1}, -v{P+5}, -v{P+6}")
        a(f"v_max_f32 v{t}, v{t}, v{P+7}")
        a(f"v_max_f32_e64 v{t+1}, v{t+1}, -v{P+7}")
    for e in E2: a(f"v_permlane32_swap_b32 v{T[e]}, v{T[e]+1}")
    for e in E2: a(f"v_max_f32 v{T[e]}, v{T[e]}, v{T[e]+1}")
    for e in E2: a(f"v_mul_f32 v{T[e]}, {f32(-LOG2E)}, v{T[e]}")
    for e in E2: a(f"v_mov_b32 v{T[e]+1}, v{T[e]}")
    for e in E2: a(f"v_permlane32_swap_b32 v{T[e]}, v{T[e]+1}")
    for e in E2:
        for q in range(4):
            a(f"v_pk_fma_f32 {vr(EP[e]+2*q,2)}, {vr(PH[e]+2*q,2)}, s[72:73], {vr(T[e],2)} op_sel_hi:[1,0,0]")
            a(f"v_pk_fma_f32 {vr(EP[e]+8+2*q,2)}, {vr(PH[e]+2*q,2)}, s[72:73], {vr(T[e],2)} op_sel:[0,0,1] op_sel_hi:[1,0,1] neg_lo:[1,0,0] neg_hi:[1,0,0]")
    for e in E2:
        for j in range(16): a(f"v_exp_f32 v{EP[e]+j}, v{EP[e]+j}")
    flag_store(a, "s41", 26)
    stamp(a, 3)
    for e in E2:
        P = PH[e]
        for sg in range(2):
            b = EP[e] + 8*sg
            a(f"v_pk_add_f32 {vr(P+4*sg,2)}, {vr(b,2)}, {vr(b+2,2)}")
            a(f"v_pk_add_f32 {vr(P+4*sg+2,2)}, {vr(b+4,2)}, {vr(b+6,2)}")
    for e in E2:
        for sg in range(2): a(f"v_pk_add_f32 {vr(PH[e]+4*sg,2)}, {vr(PH[e]+4*sg,2)}, {vr(PH[e]+4*sg+2,2)}")
    for e in E2:
        for sg in range(2): a(f"v_add_f32 v{T[e]+sg}, v{PH[e]+4*sg}, v{PH[e]+4*sg+1}")
    for e in E2: a(f"v_permlane32_swap_b32 v{T[e]}, v{T[e]+1}")
    for e in E2: a(f"v_add_f32 v{T[e]}, v{T[e]}, v{T[e]+1}")
    for e in E2: a(f"v_rcp_f32 v{T[e]}, v{T[e]}")
    for e in E2: a(f"v_mov_b32 v{T[e]+1}, v{T[e]}")
    for e in E2: a(f"v_permlane32_swap_b32 v{T[e]}, v{T[e]+1}")
    for e in E2:
        for q in range(4):
            a(f"v_pk_mul_f32 {vr(EP[e]+2*q,2)}, {vr(EP[e]+2*q,2)}, {vr(T[e],2)} op_sel_hi:[1,0]")
            a(f"v_pk_mul_f32 {vr(EP[e]+8+2*q,2)}, {vr(EP[e]+8+2*q,2)}, {vr(T[e],2)} op_sel:[0,1]")
    a("s_cmp_eq_u32 s47, 0")
    for e in E2:
        for q in range(8): a(f"v_cvt_pk_bf16_f32 v{192+8*e+q}, v{EP[e]+2*q}, v{EP[e]+2*q+1}")
    a("s_cbranch_scc1 L_p1_t0")
    a("s_lshl_b32 s60, s66, 1")
    a(f"s_add_u32 s60, s60, {WS_PHIQ}")
    a("s_add_u32 s61, s60, 131072")
    a(f"buffer_store_dwordx4 v[192:195], v21, s[32:35], s60 offen{SC}")
    a(f"buffer_store_dwordx4 v[196:199], v21, s[32:35], s60 offen offset:1024{SC}")
    a(f"buffer_store_dwordx4 v[200:203], v21, s[32:35], s61 offen{SC}")
    a(f"buffer_store_dwordx4 v[204:207], v21, s[32:35], s61 offen offset:1024{SC}")
    a("s_branch L_p1_done")
    a.label("L_p1_t0")
    a.nop(2)
    for e in E2:
        mfma(a, PH[e], 192+8*e, BSEL, "0")
        mfma(a, PH[e], 196+8*e, BSEL+4, PH[e])
    a("s_mov_b32 s70, 0x0000ffff")
    a("s_mov_b32 s71, 0x0000ffff")
    a("v_mov_b32 v23, 0x3f803f80")
    for q in range(8):
        a(f"v_cndmask_b32 v{208+q}, v23, v{40+q}, s[70:71]")
        a(f"v_cndmask_b32 v{216+q}, v{40+q}, v23, s[70:71]")
    for e in E2:
        for q in range(8): a(f"v_cvt_pk_bf16_f32 v{224+8*e+q}, v{PH[e]+2*q}, v{PH[e]+2*q+1}")
        mfma(a, 64+16*e, 224+8*e, 208+8*e, "0")
        mfma(a, 64+16*e, 228+8*e, 212+8*e, 64+16*e)
    a("s_lshl_b32 s60, s44, 13")
    a(f"s_add_u32 s60, s60, {SLOT}")
    a("v_add_u32 v6, s60, v21")
    a("s_lshl_b32 s60, s63, 15")
    a("s_lshl_b32 s61, s62, 11")
    a("s_add_u32 s60, s60, s61")
    a(f"s_add_u32 s60, s60, {SLOT}")
    a("v_add_u32 v7, s60, v21")
    a("s_lshr_b32 s56, s62, 1")
    a("s_and_b32 s57, s62, 1")
    a("v_bfe_u32 v26, v1, 4, 1")
    a("v_cmp_eq_u32 vcc, s56, v26")
    a("v_and_b32 v26, 15, v1")
    a("v_lshlrev_b32 v26, 4, v26")
    a("v_lshl_add_u32 v26, v4, 8, v26")
    a("s_lshl_b32 s58, s57, 10")
    a("v_add_u32 v26, s58, v26")
    for q in range(4): a(f"ds_write_b128 v6, {vr(64+4*q,4)} offset:{q*1024}")
    a("v_add_u32 v27, 512, v26")
    a("s_lshl_b32 s58, s57, 6")
    a("s_add_u32 s58, s58, 2048")
    a("v_lshl_add_u32 v28, v4, 4, s58")
    a("v_add_u32 v29, 32, v28")
    for q in range(4): a(f"ds_write_b128 v6, {vr(80+4*q,4)} offset:{4096+q*1024}")
    a("v_cndmask_b32 v26, v28, v26, vcc")
    a("v_cndmask_b32 v27, v29, v27, vcc")
    a("s_add_u32 s58, s65, s56")
    a("s_lshl_b32 s58, s58, 4")
    a("s_add_u32 s58, s58, s48")
    a("s_lshl_b32 s58, s58, 12")
    a(f"s_add_u32 s58, s58, {WS_KVP}")
    a("s_waitcnt lgkmcnt(0)")
    a("s_barrier")
    for w in range(4):
        for q in range(2):
            a(f"ds_read_b128 {vr(96+8*w+4*q,4)}, v7 offset:{w*8192+q*1024}")
    a("s_waitcnt lgkmcnt(4)")
    for j in range(0, 8, 2): a(f"v_pk_add_f32 {vr(96+j,2)}, {vr(96+j,2)}, {vr(104+j,2)}")
    a("s_waitcnt lgkmcnt(0)")
    for j in range(0, 8, 2): a(f"v_pk_add_f32 {vr(112+j,2)}, {vr(112+j,2)}, {vr(120+j,2)}")
    for j in range(0, 8, 2): a(f"v_pk_add_f32 {vr(96+j,2)}, {vr(96+j,2)}, {vr(112+j,2)}")
    a(f"buffer_store_dwordx4 v[96:99], v26, s[32:35], s58 offen{SC}")
    a(f"buffer_store_dwordx4 v[100:103], v27, s[32:35], s58 offen{SC}")
    a.label("L_p1_done")
    a("s_nop 1")

Q = [8, 12]; C = [16, 32]; S4 = [[48, 200], [64, 216]]; O = [80, 96]
KB_ = [112, 116]; VA = [120, 128]; VBB = [124, 132]
IDX, VK, VV = 136, 137, 138
PHQ = 140
PL, ZL = 152, 168
XCH, KVF, FLAG = 131072, 149504, 150592

def maxtree(a, dst, src, first):
    if first:
        a(f"v_max3_f32 v{dst}, v{src}, v{src+1}, v{src+2}")
        for j in range(3, 15, 2): a(f"v_max3_f32 v{dst}, v{dst}, v{src+j}, v{src+j+1}")
        a(f"v_max_f32 v{dst}, v{dst}, v{src+15}")
    else:
        for j in range(0, 16, 2): a(f"v_max3_f32 v{dst}, v{dst}, v{src+j}, v{src+j+1}")

def kv_dma(a, rr):
    a(f"s_add_u32 m0, s50, {rr*4096}")
    a(f"s_add_u32 s54, s51, {WS_KB+rr*4096}")
    a.vmem(f"buffer_load_dwordx4 v3, s[32:35], s54 offen{SC} lds", f"r{rr}")
    a(f"s_add_u32 m0, s50, {65536+rr*4096}")
    a(f"s_add_u32 s55, s51, {WS_VB+rr*4096}")
    a.vmem(f"buffer_load_dwordx4 v3, s[32:35], s55 offen{SC} lds", f"r{rr}")

def wo_dma(a):
    a("s_mov_b32 m0, s58")
    a("s_add_u32 s58, s58, 65536")
    a("buffer_load_dwordx4 v139, s[16:19], s59 offen lds")
    a("s_mov_b32 m0, s58")
    a(f"s_sub_u32 s58, s58, {65536-4096}")
    a("buffer_load_dwordx4 v139, s[20:23], s59 offen lds")
    a("s_add_u32 s59, s59, 32768")

def phase2(a):
    a("s_lshl_b32 s45, s45, 2")
    a("s_and_b32 s47, s46, 3")
    a("s_add_u32 s45, s45, s47")
    a("s_lshr_b32 s46, s2, 5")
    a("s_and_b32 s47, s44, 3")
    a("s_lshr_b32 s48, s44, 2")
    a("v_lshlrev_b32 v3, 4, v1")
    a("s_lshl_b32 s49, s45, 16")
    a("s_lshl_b32 s50, s48, 5")
    a("s_add_u32 s50, s50, s47")
    a("s_lshl_b32 s50, s50, 10")
    a("s_add_u32 s51, s49, s50")
    a("s_lshl_b32 s52, s46, 3")
    a("s_lshl_b32 s53, s47, 1")
    a("s_add_u32 s52, s52, s53")
    a("s_lshl_b32 s53, s52, 10")
    a("s_add_u32 s53, s53, s49")
    a(f"s_add_u32 s53, s53, {WS_QB}")
    a("s_add_u32 s56, s52, s48")
    a("s_lshl_b32 s57, s56, 5")
    a("s_add_u32 s57, s57, s45")
    a("s_lshl_b32 s60, s57, 10")
    srd(a, 24, 12, 13, 1024)
    a.vmem("buffer_load_dwordx4 v[232:235], v3, s[16:19], s60 offen", "g")
    a.vmem("buffer_load_dwordx4 v[236:239], v3, s[24:27], 0 offen", "g")
    flag_store(a, "s42", 26)
    stamp(a, 4)
    a("s_lshr_b32 s43, s45, 1")
    a("s_lshl_b32 s43, s43, 9")
    a(f"s_add_u32 s41, s43, {WS_F1}")
    a(f"s_add_u32 s42, s43, {WS_F2}")
    a("v_lshlrev_b32 v149, 3, v1")
    a(f"v_mov_b32 v5, {FLAG}")
    a("v_mov_b32 v7, 0")
    a("s_cmp_lg_u32 s44, 0")
    a("s_cbranch_scc1 L_p2_go")
    poll(a, "L_pollF1", 2, 149, 150, "s41")
    a.label("L_p2_go")
    a("s_barrier")
    stamp(a, 5)
    a.vmem(f"buffer_load_dwordx4 {vr(Q[0],4)}, v3, s[32:35], s53 offen{SC}", "q")
    a.vmem(f"buffer_load_dwordx4 {vr(Q[1],4)}, v3, s[32:35], s53 offen offset:1024{SC}", "q")
    kv_dma(a, 0)
    a("ds_write_b32 v5, v7")
    a("s_barrier")
    for rr in range(1, 8): kv_dma(a, rr)
    for q in range(4):
        a(f"v_lshlrev_b32 v240, 16, v{232+q}")
        a(f"v_lshlrev_b32 v241, 16, v{236+q}")
        a(f"v_and_b32 v242, 0xffff0000, v{232+q}")
        a(f"v_and_b32 v243, 0xffff0000, v{236+q}")
        a("v_mul_f32 v240, v240, v241")
        a("v_mul_f32 v242, v242, v243")
        a("v_cvt_pk_bf16_f32 v240, v240, v242")
        a("v_lshlrev_b32 v241, 16, v240")
        a("v_and_b32 v242, 0xffff0000, v240")
        a("v_add_f32 v241, v241, v242")
        if q == 0: a("v_mov_b32 v244, v241")
        else: a("v_add_f32 v244, v244, v241")
    for sw in ("32", "16"):
        a("v_mov_b32 v245, v244")
        a(f"v_permlane{sw}_swap_b32 v244, v245")
        a("v_add_f32 v244, v244, v245")
    for r in (8, 4, 2, 1):
        a(f"v_add_f32_dpp v244, v244, v244 row_ror:{r} row_mask:0xf bank_mask:0xf")
    a("v_cvt_pk_bf16_f32 v244, v244, v244")
    a("v_lshlrev_b32 v244, 16, v244")
    a(f"v_mul_f32 v244, {f32(-LOG2E)}, v244")
    a("v_exp_f32 v244, v244")
    a("v_add_f32 v244, 1.0, v244")
    a("v_rcp_f32 v244, v244")
    a("v_cvt_pk_bf16_f32 v244, v244, v244")
    a("v_lshlrev_b32 v244, 16, v244")
    a("s_lshl_b32 s60, s57, 2")
    a(f"s_add_u32 s60, s60, {WS_GATE}")
    a("v_mov_b32 v245, 0")
    a("s_mov_b64 exec, 1")
    a.vmem(f"buffer_store_dword v244, v245, s[32:35], s60 offen{SC}", "gs")
    a("s_mov_b64 exec, -1")
    srd(a, 16, 76, 77, 0x80000)
    srd(a, 20, 78, 79, 0x80000)
    a("v_lshrrev_b32 v5, 4, v1")
    a("v_and_b32 v6, 15, v1")
    a("v_lshlrev_b32 v7, 14, v5")
    a("v_lshl_add_u32 v184, v6, 4, v7")
    a("v_and_b32 v6, 7, v1")
    a("v_lshl_add_u32 v185, v6, 4, v7")
    a("v_lshrrev_b32 v5, 2, v1")
    a("v_and_b32 v5, 4, v5")
    a("v_xor_b32 v5, v5, v6")
    a("v_lshlrev_b32 v5, 4, v5")
    a("v_lshrrev_b32 v6, 3, v1")
    a("v_lshl_add_u32 v139, v6, 10, v5")
    a(f"v_mov_b32 v{IDX}, 0xdddddddd")
    a("v_lshrrev_b32 v6, 5, v1")
    a("s_lshl_b32 s60, s48, 15")
    a("v_add_u32 v186, s60, v3")
    a("v_and_b32 v7, 15, v1")
    a("v_lshlrev_b32 v7, 4, v7")
    a("v_lshl_add_u32 v7, v6, 8, v7")
    a("s_add_u32 s60, s60, 65536")
    a("v_add_u32 v187, s60, v7")
    a("v_and_b32 v5, 27, v1")
    a("v_cmp_eq_u32 vcc, 16, v5")
    a("v_mov_b32 v5, 0x3f803f80")
    for i in range(16): a(f"v_cndmask_b32 v{VA[0]+i}, 0, v5, vcc")
    a("s_mov_b32 s62, 0x0000ffff")
    a("s_mov_b32 s63, 0x0000ffff")
    a("s_mov_b32 s64, 0")
    a("s_mov_b32 s65, 0")
    a("s_and_b32 s61, s2, 1")
    a("s_lshl_b32 s61, s61, 2")
    a("s_and_b32 s60, s45, 3")
    a("s_add_u32 s61, s61, s60")
    a("s_lshl_b32 s61, s61, 7")
    def zero_acc():
        for i in range(0, 32, 2): a(f"v_mov_b64 v[{O[0]+i}:{O[0]+i+1}], 0")
        for i in range(8, 16, 2): a(f"v_mov_b64 v[{S4[1][1]+i}:{S4[1][1]+i+1}], 0")
        a(f"v_mov_b32 v{VK}, v186")
        a(f"v_mov_b32 v{VV}, v187")
        a("s_mov_b32 s58, s50")
        a("s_lshl_b32 s59, s50, 3")
        a("s_add_u32 s59, s59, s61")
        a("s_mov_b32 s66, 8")
    def prime_reads():
        a(f"ds_read_b128 {vr(KB_[0],4)}, v{VK}")
        a(f"ds_read_b128 {vr(KB_[1],4)}, v{VK} offset:1024")
        a("s_mov_b64 exec, s[62:63]")
        a(f"ds_read_b128 {vr(VA[0],4)}, v{VV}")
        a(f"ds_read_b128 {vr(VBB[0],4)}, v{VV} offset:512")
        a("s_mov_b64 exec, -1")
    zero_acc()
    a.wait_vm("q", "r0")
    n_r1 = len(a.vm) - 1 - max(i for i, t in enumerate(a.vm) if t == "r1")
    a("s_barrier")
    stamp(a, 6)
    a(f"ds_read_b128 v[232:235], v3")
    prime_reads()
    a("s_waitcnt lgkmcnt(4)")
    mfma(a, S4[0][0], 232, Q[0], "0")
    mfma(a, S4[1][0], 232, Q[1], "0")
    maxtree(a, 188, S4[0][0], True)
    maxtree(a, 189, S4[1][0], True)
    a.label("L_setmax")
    a.nop(2)
    a("v_permlane32_swap_b32 v188, v189")
    a("v_max_f32 v188, v188, v189")
    a("v_sub_f32 v188, 0, v188")
    a("v_mov_b32 v189, v188")
    a("v_permlane32_swap_b32 v188, v189")
    for i in range(0, 16, 2): a(f"v_pk_mov_b32 {vr(C[0]+i,2)}, v[188:189], v[188:189] op_sel:[0,0]")
    a("s_waitcnt lgkmcnt(0)")
    mfma(a, S4[0][0], KB_[0], Q[0], C[0])
    for i in range(0, 16, 2): a(f"v_pk_mov_b32 {vr(C[1]+i,2)}, v[188:189], v[188:189] op_sel:[1,1]")
    mfma(a, S4[1][0], KB_[0], Q[1], C[1])
    a.nop(4)
    a.raw(".p2align 6")
    a.label("L_loop")
    loop_start = len(a.lines)
    p0, p1, p2 = OPT["pos"]
    for t in range(4):
        for qi in range(2):
            s = S4[qi][t & 1]
            for j in range(16):
                a(f"v_exp_f32 v{s+j}, v{s+j}")
                if j == p0:
                    tp = t if qi == 1 else t - 1
                    smfmac(a, O[1-qi], VBB[tp & 1], S4[1-qi][tp & 1]+8, IDX)
                    if qi == 1:
                        if t == 2:
                            a("s_cmp_lt_u32 s64, 3")
                            a("s_cbranch_scc1 L_rare")
                            a.label("L_rare_ret1")
                            a("s_barrier")
                            wo_dma(a)
                            a.label("L_rare_ret0")
                        a(f"ds_read_b128 {vr(KB_[t&1],4)}, v{VK} offset:{(t+2)*1024}")
                        a("s_mov_b64 exec, s[62:63]")
                        a(f"ds_read_b128 {vr(VA[(t+1)&1],4)}, v{VV} offset:{(t+1)*1024}")
                        a(f"ds_read_b128 {vr(VBB[(t+1)&1],4)}, v{VV} offset:{(t+1)*1024+512}")
                        a("s_mov_b64 exec, -1")
                if j == p1:
                    if qi == 0: a("s_waitcnt lgkmcnt(0)")
                    mfma(a, S4[qi][(t+1) & 1], KB_[(t+1) & 1], Q[qi], C[qi])
                    if qi == 1 and t == 3:
                        a(f"v_add_u32 v{VK}, 4096, v{VK}")
                        a(f"v_add_u32 v{VV}, 4096, v{VV}")
                if j == p2:
                    smfmac(a, O[qi], VA[t & 1], s, IDX)
                    if qi == 1 and t == 3:
                        a("s_sub_u32 s66, s66, 1")
                        a("s_cmp_lg_u32 s66, 0")
    loop_end = len(a.lines)
    a("s_cbranch_scc1 L_loop")
    a.nop(2)
    smfmac(a, O[1], VBB[1], S4[1][1]+8, IDX)
    stamp(a, 7)
    SX = 48; SN = 64
    a("s_mul_i32 s67, s44, 2304")
    a(f"s_add_u32 s67, s67, {XCH}")
    a("v_add_u32 v5, s67, v3")
    a("v_lshl_add_u32 v6, v1, 2, s67")
    a("s_xor_b32 s68, s44, 4")
    a("s_mul_i32 s68, s68, 2304")
    a(f"s_add_u32 s68, s68, {XCH}")
    a("v_add_u32 v7, s68, v3")
    a("v_lshl_add_u32 v4, v1, 2, s68")
    a("v_and_b32 v190, 31, v1")
    a("v_min_u32 v190, 16, v190")
    a("v_lshrrev_b32 v191, 5, v1")
    a("v_mul_u32_u24 v191, 272, v191")
    a("v_lshl_add_u32 v190, v190, 4, v191")
    a(f"v_add_u32 v190, {KVF}, v190")
    a(f"v_mov_b32 v191, {FLAG}")
    a("s_cmp_eq_u32 s48, 0")
    a("s_waitcnt lgkmcnt(0)")
    a("s_cbranch_scc1 L_send1")
    a(f"ds_write_b128 v5, {vr(O[0],4)}")
    a(f"ds_write_b128 v5, {vr(O[0]+4,4)} offset:1024")
    a(f"ds_write_b32 v6, v{O[0]+8} offset:2048")
    a("s_branch L_sent")
    a.label("L_send1")
    a(f"ds_write_b128 v5, {vr(O[1],4)}")
    a(f"ds_write_b128 v5, {vr(O[1]+4,4)} offset:1024")
    a(f"ds_write_b32 v6, v{O[1]+8} offset:2048")
    a.label("L_sent")
    a(f"v_add_f32_e64 v188, |v{O[0]}|, |v{O[0]+1}|")
    a(f"v_add_f32_e64 v189, |v{O[1]}|, |v{O[1]+1}|")
    for i in range(2, 9):
        a(f"v_add_f32_e64 v188, v188, |v{O[0]+i}|")
        a(f"v_add_f32_e64 v189, v189, |v{O[1]+i}|")
    a("v_add_f32 v188, v188, v189")
    a(f"v_mov_b32 v189, {f32(OPT['thr'])}")
    a("v_cmp_nlt_f32 vcc, v188, v189")
    a("v_mov_b32 v189, 1")
    a("s_nop 1")
    a("s_cbranch_vccz L_noflag")
    a("ds_write_b32 v191, v189")
    a.label("L_noflag")
    a("s_cbranch_scc1 L_keep0")
    a("s_waitcnt lgkmcnt(0)")
    for i in range(0, 10, 2): a(f"v_mov_b64 v[{O[0]+i}:{O[0]+i+1}], v[{O[1]+i}:{O[1]+i+1}]")
    a.label("L_keep0")
    a("s_waitcnt lgkmcnt(0)")
    a("s_barrier")
    a("ds_read_b32 v189, v191")
    a(f"ds_read_b128 {vr(KB_[0],4)}, v190")
    a(f"ds_read_b128 {vr(KB_[1],4)}, v190 offset:544")
    a(f"ds_read_b128 {vr(SX,4)}, v7")
    a(f"ds_read_b128 {vr(SX+4,4)}, v7 offset:1024")
    a(f"ds_read_b32 v{SX+8}, v4 offset:2048")
    wo_dma(a)
    a("s_lshl_b32 s70, s56, 16")
    a("s_lshl_b32 s71, s45, 10")
    a("s_add_u32 s70, s70, s71")
    a(f"s_add_u32 s70, s70, {WS_OF}")
    a("s_add_u32 s71, s70, 32768")
    a("s_waitcnt lgkmcnt(3)")
    a("v_readfirstlane_b32 s69, v189")
    mfma(a, SN, KB_[0], PHQ, "0")
    mfma(a, SN, KB_[1], PHQ+4, SN)
    a("s_cmp_lg_u32 s69, 0")
    a("s_cbranch_scc1 L_maybe_fb")
    a.label("L_fin")
    a("s_waitcnt lgkmcnt(0)")
    a(f"v_add_f32 v{O[0]+8}, v{O[0]+8}, v{SX+8}")
    a(f"v_rcp_f32 v188, v{O[0]+8}")
    for i in range(0, 8, 2): a(f"v_pk_add_f32 {vr(O[0]+i,2)}, {vr(O[0]+i,2)}, {vr(SX+i,2)}")
    for i in range(0, 8, 2): a(f"v_pk_mul_f32 {vr(O[0]+i,2)}, {vr(O[0]+i,2)}, v[188:189] op_sel_hi:[1,0]")
    for q in range(4): a(f"v_cvt_pk_bf16_f32 v{192+q}, v{O[0]+2*q}, v{O[0]+2*q+1}")
    a(f"buffer_store_dwordx4 v[192:195], v3, s[32:35], s71 offen{SC}")
    a(f"v_add_f32 v188, {f32(1e-6)}, v{SN+8}")
    a("v_rcp_f32 v188, v188")
    for i in range(0, 8, 2): a(f"v_pk_mul_f32 {vr(SN+i,2)}, {vr(SN+i,2)}, v[188:189] op_sel_hi:[1,0]")
    for q in range(4): a(f"v_cvt_pk_bf16_f32 v{196+q}, v{SN+2*q}, v{SN+2*q+1}")
    a(f"buffer_store_dwordx4 v[196:199], v3, s[32:35], s70 offen{SC}")

    def rare(a):
        a.label("L_rare")
        a("s_cmp_eq_u32 s64, 1")
        a("s_cbranch_scc1 L_rare1")
        a("s_cmp_eq_u32 s64, 2")
        a("s_cbranch_scc1 L_rare2")
        a(f"s_waitcnt vmcnt({n_r1})")
        a("s_add_u32 s64, s64, s65")
        a("s_add_u32 s64, s64, s65")
        a("s_add_u32 s64, s64, 1")
        a(f"buffer_load_dwordx2 v[150:151], v149, s[32:35], s42 offen{SC}")
        a("s_barrier")
        a("s_branch L_rare_ret0")
        a.label("L_rare1")
        poll(a, "L_pollF2", 2, 149, 150, "s42", first_issued=True)
        a("s_lshl_b32 s67, s45, 6")
        a("s_add_u32 s67, s67, s56")
        a("s_lshl_b32 s67, s67, 11")
        a(f"s_add_u32 s67, s67, {WS_PHIQ}")
        a(f"buffer_load_dwordx4 {vr(PHQ,4)}, v3, s[32:35], s67 offen{SC}")
        a(f"buffer_load_dwordx4 {vr(PHQ+4,4)}, v3, s[32:35], s67 offen offset:1024{SC}")
        a("s_lshl_b32 s68, s44, 8")
        a(f"s_add_u32 s67, s49, {WS_KVP}")
        a("s_add_u32 s68, s68, s67")
        for p in range(4):
            a(f"s_add_u32 s69, s68, {p*4096}")
            a(f"buffer_load_dwordx4 {vr(PL+4*p,4)}, v184, s[32:35], s69 offen{SC}")
        for p in range(4):
            a(f"s_add_u32 s69, s67, {p*4096+2048}")
            a(f"buffer_load_dwordx4 {vr(ZL+4*p,4)}, v185, s[32:35], s69 offen{SC}")
        a("s_mov_b32 s64, 2")
        a("s_branch L_rare_ret1")
        a.label("L_rare2")
        a("s_waitcnt vmcnt(0)")
        B2 = (PL, ZL)
        for base in B2:
            for j in (0, 2):
                a(f"v_pk_add_f32 {vr(base+j,2)}, {vr(base+j,2)}, {vr(base+4+j,2)}")
                a(f"v_pk_add_f32 {vr(base+8+j,2)}, {vr(base+8+j,2)}, {vr(base+12+j,2)}")
        for base in B2:
            for j in (0, 2): a(f"v_pk_add_f32 {vr(base+j,2)}, {vr(base+j,2)}, {vr(base+8+j,2)}")
        a("v_bfe_u32 v190, v1, 4, 1")
        a("v_lshrrev_b32 v191, 5, v1")
        for base in B2:
            a(f"v_permlane32_swap_b32 v{base}, v{base+1}")
            a(f"v_permlane32_swap_b32 v{base+2}, v{base+3}")
        for base in B2:
            a(f"v_add_f32 v{base}, v{base}, v{base+1}")
            a(f"v_add_f32 v{base+2}, v{base+2}, v{base+3}")
        a("v_lshl_add_u32 v190, v190, 1, v191")
        a("v_lshlrev_b32 v190, 1, v190")
        for base in B2: a(f"v_permlane16_swap_b32 v{base}, v{base+2}")
        for base in B2: a(f"v_add_f32 v{base}, v{base}, v{base+2}")
        for base in B2: a(f"v_cvt_pk_bf16_f32 v{base}, v{base}, v{base}")
        a("s_lshr_b32 s67, s44, 2")
        a("s_mul_i32 s67, s67, 544")
        a("s_and_b32 s68, s44, 1")
        a("s_mul_i32 s68, s68, 272")
        a("s_add_u32 s67, s67, s68")
        a("s_and_b32 s68, s44, 2")
        a("s_lshl_b32 s68, s68, 2")
        a("s_add_u32 s67, s67, s68")
        a(f"s_add_u32 s67, s67, {KVF}")
        a("v_and_b32 v191, 15, v1")
        a("v_lshl_add_u32 v191, v191, 4, v190")
        a("v_add_u32 v191, s67, v191")
        a(f"ds_write_b16 v191, v{PL}")
        a(f"v_bfe_u32 v{ZL+1}, v1, 2, 1")
        a(f"v_mul_u32_u24 v{ZL+1}, 544, v{ZL+1}")
        a(f"v_add_u32 v190, v190, v{ZL+1}")
        a(f"v_and_b32 v{ZL+1}, 1, v1")
        a(f"v_mul_u32_u24 v{ZL+1}, 272, v{ZL+1}")
        a(f"v_add_u32 v190, v190, v{ZL+1}")
        a(f"v_and_b32 v{ZL+1}, 2, v1")
        a(f"v_lshl_add_u32 v190, v{ZL+1}, 2, v190")
        a(f"v_add_u32 v190, {KVF+256}, v190")
        a(f"ds_write_b16 v190, v{ZL}")
        a("s_mov_b32 s64, 3")
        a("s_branch L_rare_ret1")
        a.label("L_maybe_fb")
        a("s_cmp_lg_u32 s65, 0")
        a("s_cbranch_scc1 L_fin")
        a("s_mov_b32 s65, 1")
        a("s_mov_b32 s64, 0")
        a("s_waitcnt vmcnt(0) lgkmcnt(0)")
        a("s_barrier")
        for rr in range(8): kv_dma(a, rr)
        a("v_mov_b32 v188, 0xff800000")
        a("v_mov_b32 v189, 0xff800000")
        a("v_mov_b32 v190, v3")
        a("s_mov_b32 s66, 64")
        a("s_waitcnt vmcnt(0)")
        a("s_barrier")
        a.label("L_fbloop")
        a("ds_read_b128 v[232:235], v190")
        a("v_add_u32 v190, 1024, v190")
        a("s_waitcnt lgkmcnt(0)")
        mfma(a, S4[0][0], 232, Q[0], "0")
        mfma(a, S4[1][0], 232, Q[1], "0")
        a.nop(12)
        maxtree(a, 188, S4[0][0], False)
        maxtree(a, 189, S4[1][0], False)
        a("s_sub_u32 s66, s66, 1")
        a("s_cmp_lg_u32 s66, 0")
        a("s_cbranch_scc1 L_fbloop")
        zero_acc()
        prime_reads()
        a("s_branch L_setmax")
    return (loop_start, loop_end), rare

def phase3(a):
    WO, OFR, ACC = 64, 192, 32
    a("s_lshl_b32 s41, s56, 7")
    a("s_lshl_b32 s42, s45, 2")
    a("s_add_u32 s41, s41, s42")
    a(f"s_add_u32 s41, s41, {WS_F3}")
    a("s_and_b32 s47, s44, 1")
    a("s_lshr_b32 s48, s44, 1")
    a("s_bfe_u32 s49, s2, 0x20001")
    a("s_lshl_b32 s50, s46, 2")
    a("s_add_u32 s49, s49, s50")
    a("s_lshl_b32 s49, s49, 1")
    a("s_add_u32 s49, s49, s47")
    a("s_lshl_b32 s50, s49, 7")
    a(f"s_add_u32 s51, s50, {WS_GATE}")
    a(f"s_add_u32 s50, s50, {WS_F3}")
    a("s_lshl_b32 s52, s49, 16")
    a("s_lshl_b32 s53, s48, 14")
    a("s_add_u32 s52, s52, s53")
    a(f"s_add_u32 s52, s52, {WS_OF}")
    a("v_and_b32 v8, 31, v1")
    a("v_lshlrev_b32 v8, 2, v8")
    a("v_lshrrev_b32 v4, 5, v1")
    a("v_bfe_u32 v5, v1, 2, 2")
    a("v_lshl_add_u32 v5, v4, 2, v5")
    a("v_lshlrev_b32 v5, 7, v5")
    a("v_bfe_u32 v6, v1, 3, 1")
    a("v_lshl_add_u32 v5, v6, 6, v5")
    a("v_bfe_u32 v6, v1, 4, 1")
    a("v_lshl_add_u32 v5, v6, 5, v5")
    a("v_and_b32 v6, 3, v1")
    a("v_lshl_add_u32 v5, v6, 3, v5")
    a("s_lshl_b32 s53, s48, 15")
    a("v_add_u32 v10, s53, v5")
    a("v_xor_b32 v11, 64, v10")
    flag_store(a, "s41", 26)
    stamp(a, 8)
    a("s_barrier")
    a(f"buffer_load_dword v12, v8, s[32:35], s50 offen{SC}")
    for i in range(16):
        for ct in range(2):
            f = WO + 8*i + 4*ct
            a(f"ds_read_b64_tr_b16 {vr(f,2)}, v{10+ct} offset:{i*2048}")
            a(f"ds_read_b64_tr_b16 {vr(f+2,2)}, v{10+ct} offset:{i*2048+1024}")
        if i % 2 == 1: a("s_waitcnt lgkmcnt(4)")
    srd(a, 24, 74, 75, 0x200000)
    for i in range(0, 32, 2): a(f"v_mov_b64 v[{ACC+i}:{ACC+i+1}], 0")
    a("s_lshl_b32 s53, s47, 15")
    a("s_lshl_b32 s54, s48, 11")
    a("s_add_u32 s54, s54, s53")
    a("v_add_u32 v13, s54, v3")
    a("s_lshl_b32 s54, s48, 13")
    a("s_add_u32 s54, s54, s53")
    a("v_add_u32 v14, s54, v3")
    a("v_and_b32 v5, 31, v1")
    a("v_lshlrev_b32 v5, 10, v5")
    a("v_lshl_add_u32 v15, v4, 4, v5")
    a("s_lshl_b32 s55, s49, 15")
    a("s_add_u32 s55, s55, s61")
    a("s_lshl_b32 s54, s48, 5")
    a("s_add_u32 s55, s55, s54")
    a("s_waitcnt lgkmcnt(0)")
    a("s_barrier")
    poll(a, "L_pollF3", 1, 8, 12, "s50", first_issued=True)
    stamp(a, 9)
    for i in range(16):
        if i % 4 == 0 and i: a("s_add_u32 s52, s52, 4096")
        a.vmem(f"buffer_load_dwordx4 {vr(OFR+4*i,4)}, v3, s[32:35], s52 offen offset:{(i%4)*1024}{SC}", f"o{i}")
    a.vmem(f"buffer_load_dword v16, v8, s[32:35], s51 offen{SC}", "g")
    for i in range(16):
        a.wait_vm(f"o{i}")
        for ct in range(2): mfma(a, ACC+16*ct, WO+8*i+4*ct, OFR+4*i, ACC+16*ct)
    a.nop(10)
    for p in range(4):
        for q in range(2): a(f"ds_write_b128 v13, {vr(ACC+8*p+4*q,4)} offset:{p*8192+q*1024}")
    a("s_waitcnt vmcnt(0)")
    a("v_sub_f32 v17, 1.0, v16")
    a("v_cvt_pk_bf16_f32 v17, v17, v17")
    a("v_lshlrev_b32 v17, 16, v17")
    a("s_waitcnt lgkmcnt(0)")
    a("s_barrier")
    for src in range(4):
        for q in range(2): a(f"ds_read_b128 {vr(64+8*src+4*q,4)}, v14 offset:{src*2048+q*1024}")
    a("s_waitcnt lgkmcnt(4)")
    for j in range(0, 8, 2): a(f"v_pk_add_f32 {vr(64+j,2)}, {vr(64+j,2)}, {vr(72+j,2)}")
    for j in range(0, 8, 2): a(f"v_pk_mul_f32 {vr(64+j,2)}, {vr(64+j,2)}, v[16:17] op_sel_hi:[1,0]")
    a("s_waitcnt lgkmcnt(0)")
    for j in range(0, 8, 2): a(f"v_pk_add_f32 {vr(80+j,2)}, {vr(80+j,2)}, {vr(88+j,2)}")
    for j in range(0, 8, 2): a(f"v_pk_fma_f32 {vr(64+j,2)}, {vr(80+j,2)}, v[16:17], {vr(64+j,2)} op_sel:[0,1,0]")
    for q in range(4): a(f"v_cvt_pk_bf16_f32 v{20+q}, v{64+2*q}, v{64+2*q+1}")
    a("v_permlane32_swap_b32 v20, v22")
    a("v_permlane32_swap_b32 v21, v23")
    a("buffer_store_dwordx4 v[20:23], v15, s[24:27], s55 offen")
    a("s_or_b32 s54, s2, s44")
    a("s_cmp_lg_u32 s54, 0")
    a("s_cbranch_scc1 L_noE")
    a("v_mov_b32 v24, s40")
    a(f"v_mov_b32 v25, {WS_E}")
    a("s_mov_b64 exec, 1")
    a("buffer_store_dword v24, v25, s[32:35], 0 offen")
    a("s_mov_b64 exec, -1")
    a.label("L_noE")
    flush_stamps(a)

def main(out):
    hdr = open("cdna_kernels/" + NAME + ".s.ref").read().split("; Override launch")[0]
    txt = hdr + "; @launch grid=(256,1,1) block=(512,1,1) lds=163840\n"
    txt += '.amdgcn_target "amdgcn-amd-amdhsa--gfx950"\n.text\n'
    nm = NAME + "_kernel"
    a = Asm()
    a.label(nm)
    phase1(a)
    r, rare = phase2(a)
    body = a.lines[r[0]:r[1]]
    errs = check(body + body, "loop")
    phase3(a)
    a.label("L_end")
    a("s_endpgm")
    rare(a)
    a.lines, added = autonop(a.lines)
    errs += check(a.lines, nm)
    txt += f".globl {nm}\n.p2align 8\n.type {nm},@function\n" + a.text()
    txt += f""".section .rodata,"a"
.p2align 6
.amdhsa_kernel {nm}
  .amdhsa_next_free_vgpr 256
  .amdhsa_next_free_sgpr 102
  .amdhsa_accum_offset 256
  .amdhsa_group_segment_fixed_size 0
  .amdhsa_kernarg_size 88
  .amdhsa_user_sgpr_count 2
  .amdhsa_user_sgpr_kernarg_segment_ptr 1
  .amdhsa_system_sgpr_workgroup_id_x 1
.end_amdhsa_kernel
"""
    open(out, "w").write(txt)
    for e in errs: print("HAZARD", e)
    print("written", out, len(txt), "bytes;", len(errs), "hazards;", added, "auto nops")

if __name__ == "__main__":
    if "--stamps" in sys.argv:
        STAMPS = True; sys.argv.remove("--stamps")
    for x in list(sys.argv):
        if x.startswith("--o:"):
            k, v = x[4:].split("=")
            OPT[k] = eval(v); sys.argv.remove(x)
    main(sys.argv[1] if len(sys.argv) > 1 else "cdna_kernels/" + NAME + ".s")
```

```python
import sys, struct
from asmlib import *

NAME = "gated_mix__linear_kernel_hedgehog__mha_block__prompt"
WS_E, WS_F1, WS_F2, WS_F3, WS_GATE, WS_F4, WS_F5, WS_KVF = 0x0, 0x10000, 0x20000, 0x30000, 0x40000, 0x50000, 0x60000, 0x70000
WS_QB, WS_KB, WS_VB, WS_KVP, WS_OF = 0x200000, 0x400000, 0x600000, 0x800000, 0xA00000
WS_USED = 0x2100000
def f32(x): return "0x%08x" % struct.unpack("<I", struct.pack("<f", x))[0]
LOG2E = 1.4426950408889634
STAMPS = False
OPT = dict(st0=0, rot=1, touch=0, cyc=0, pre=0, jobs=(2,4,5,6,7,9,10,11,14), rp=1, pos=(1, 6, 11), thr=2.0**100)
SC = " sc1"
POLL_LIMIT = 200000
NST = 11

def mfma(a, d, A, B, C):
    a(f"v_mfma_f32_32x32x16_bf16 {vr(d,16)}, {vr(A,4)}, {vr(B,4)}, {C if isinstance(C,str) else vr(C,16)}")
def smfmac(a, d, A, B, idx):
    a(f"v_smfmac_f32_32x32x32_bf16 {vr(d,16)}, {vr(A,4)}, {vr(B,8)}, v{idx}")
def srd(a, s, lo, hi, nrec):
    a(f"s_mov_b32 s{s}, s{lo}")
    a(f"s_mov_b32 s{s+1}, s{hi}")
    a(f"s_mov_b32 s{s+2}, {nrec}")
    a(f"s_mov_b32 s{s+3}, 0x00020000")
_seen = set()
def stamp(a, j):
    if OPT["st0"] and j in _seen: return
    _seen.add(j)
    if STAMPS: a(f"s_mem{'' if OPT['cyc'] else 'real'}time s[{80+2*j}:{81+2*j}]")
def flush_stamps(a):
    if not STAMPS: return
    a("s_waitcnt vmcnt(0)")
    stamp(a, NST-1)
    a("s_waitcnt lgkmcnt(0)")
    a("s_lshl_b32 s70, s2, 3")
    a("s_add_u32 s70, s70, s44")
    a("s_lshl_b32 s70, s70, 6")
    a(f"s_add_u32 s70, s70, {0x2000000}")
    a("s_mov_b64 exec, 1")
    a("v_mov_b32 v1, 0")
    for j in range(NST):
        a(f"v_mov_b32 v2, s{80+2*j}")
        a(f"buffer_store_dword v2, v1, s[32:35], s70 offen offset:{4*j}")
def flag_store(a, soff, vtmp, wg=None):
    a(f"v_mov_b32 v{vtmp}, s40")
    a(f"v_mov_b32 v{vtmp+1}, 0")
    a("s_waitcnt vmcnt(0)")
    a.vm = []
    if wg:
        a("s_cmp_lg_u32 s44, 0")
        a("s_barrier")
        a(f"s_cbranch_scc1 {wg}")
        a("s_mov_b64 exec, 1")
        a(f"buffer_store_dword v{vtmp}, v{vtmp+1}, s[32:35], {soff} offen{SC}")
        a("s_mov_b64 exec, -1")
        a.label(wg)
        return
    a("s_mov_b64 exec, 1")
    a.vmem(f"buffer_store_dword v{vtmp}, v{vtmp+1}, s[32:35], {soff} offen{SC}", "flag")
    a("s_mov_b64 exec, -1")
def poll(a, lab, n, vaddr, vdst, soff, first_issued=False, landed=False):
    a(f"s_mov_b32 s70, {POLL_LIMIT}")
    if landed: a(f"s_branch {lab}_cmp")
    elif first_issued: a(f"s_branch {lab}_chk")
    a.label(lab)
    a(f"buffer_load_dword{'x2' if n==2 else ''} {vr(vdst,n)}, v{vaddr}, s[32:35], {soff} offen{SC}")
    a.label(lab + "_chk")
    a("s_waitcnt vmcnt(0)")
    a.label(lab + "_cmp")
    a(f"v_cmp_ne_u32 vcc, s40, v{vdst}")
    if n == 2:
        a(f"v_cmp_ne_u32 s[68:69], s40, v{vdst+1}")
        a("s_nop 1")
        a("s_or_b64 vcc, vcc, s[68:69]")
    else:
        a("s_nop 1")
    a(f"s_cbranch_vccz {lab}_ok")
    a("s_sub_u32 s70, s70, 1")
    a("s_cmp_eq_u32 s70, 0")
    a(f"s_cbranch_scc1 {lab}_ok")
    a("s_sleep 1")
    a(f"s_branch {lab}")
    a.label(lab + "_ok")
    a.vm = []

def phase1(a):
    SLOT = 40960
    ACC = [64, 80, 96]
    FR = [32, 48]
    VXR, VWR, VXD, VWD, BSEL = 8, 16, 18, 20, 112
    a("s_cmp_ge_u32 s2, 256")
    a("s_cbranch_scc1 L_end")
    stamp(a, 0)
    a("s_load_dwordx4 s[4:7], s[0:1], 0")
    a("s_load_dwordx2 s[10:11], s[0:1], 40")
    a("s_load_dwordx2 s[14:15], s[0:1], 80")
    a("s_load_dwordx2 s[8:9], s[0:1], 16")
    a("s_load_dwordx2 s[12:13], s[0:1], 56")
    a("s_load_dwordx2 s[76:77], s[0:1], 24")
    a("s_load_dwordx2 s[78:79], s[0:1], 48")
    a("s_load_dwordx2 s[74:75], s[0:1], 64")
    a("v_and_b32 v1, 63, v0")
    a("v_lshrrev_b32 v2, 6, v0")
    a("s_and_b32 s45, s2, 7")
    a("v_readfirstlane_b32 s44, v2")
    a("s_lshr_b32 s46, s2, 3")
    a("s_and_b32 s47, s46, 1")
    a("s_lshr_b32 s48, s46, 1")
    a("v_lshrrev_b32 v3, 3, v1")
    a("v_and_b32 v4, 7, v1")
    a("v_lshrrev_b32 v5, 1, v3")
    a("v_xor_b32 v6, v4, v5")
    a("v_lshlrev_b32 v6, 4, v6")
    a(f"v_lshl_add_u32 v{VXD}, v3, 10, v6")
    a("v_xor_b32 v6, 64, v6")
    a(f"v_lshl_add_u32 v{VXD+1}, v3, 10, v6")
    a(f"v_add_u32 v{VXD+1}, {8192-1024}, v{VXD+1}")
    a("v_lshrrev_b32 v6, 2, v1")
    a("v_and_b32 v6, 4, v6")
    a("v_xor_b32 v6, v4, v6")
    a("v_lshlrev_b32 v6, 4, v6")
    a("v_mul_u32_u24 v7, 3072, v3")
    a(f"v_add_u32 v{VWD}, v7, v6")
    a("v_lshlrev_b32 v21, 4, v1")
    a("s_lshl_b32 s49, s48, 17")
    a("s_lshl_b32 s50, s44, 14")
    a("s_add_u32 s49, s49, s50")
    a("s_mul_i32 s50, s44, 24576")
    a("s_lshl_b32 s51, s44, 11")
    a("s_mul_i32 s52, s44, 3072")
    a("s_add_u32 s52, s52, 16384")
    a("s_lshl_b32 s53, s45, 7")
    a("s_cmp_eq_u32 s47, 0")
    a("s_cselect_b32 s56, 1024, 0")
    a("s_cselect_b32 s57, 0, 1024")
    a("s_add_u32 s56, s56, s53")
    a("s_add_u32 s57, s57, s53")
    a("s_add_u32 s53, s53, 1024")
    a("s_sub_u32 s22, 0x180000, s56")
    a("s_sub_u32 s26, 0x180000, s53")
    a("s_sub_u32 s30, 0x180800, s57")
    a("s_mov_b32 s23, 0x00020000")
    a("s_mov_b32 s27, 0x00020000")
    a("s_mov_b32 s31, 0x00020000")
    a("s_mov_b32 s18, 0x200000")
    a("s_mov_b32 s19, 0x00020000")
    a("s_cmp_eq_u32 s47, 0")
    a("s_waitcnt lgkmcnt(0)")
    if OPT["st0"]: stamp(a, 3)
    a("s_cselect_b32 s58, s6, s10")
    a("s_cselect_b32 s59, s7, s11")
    a("s_mov_b32 s16, s4")
    a("s_mov_b32 s17, s5")
    a("s_add_u32 s20, s6, s56")
    a("s_addc_u32 s21, s7, 0")
    a("s_add_u32 s24, s58, s53")
    a("s_addc_u32 s25, s59, 0")
    a("s_add_u32 s28, s10, s57")
    a("s_addc_u32 s29, s11, 0")
    a("s_sub_u32 s28, s28, 2048")
    a("s_subb_u32 s29, s29, 0")
    def dma_part(c, p):
        sl = (c & 3) * SLOT
        if p == 0:
            a(f"s_add_u32 m0, s51, {sl}")
            if OPT["rot"]:
                a(f"s_add_u32 s59, s46, {c}")
                a("s_and_b32 s59, s59, 7")
                a("s_lshl_b32 s60, s59, 7")
                a("s_add_u32 s60, s60, s49")
            else:
                a(f"s_add_u32 s60, s49, {c*128}")
            a.vmem(f"buffer_load_dwordx4 v{VXD}, s[16:19], s60 offen lds", f"c{c}")
            a.vmem(f"buffer_load_dwordx4 v{VXD+1}, s[16:19], s60 offen offset:1024 lds", f"c{c}")
        else:
            if p == 1:
                a(f"s_add_u32 m0, s52, {sl}")
                if OPT["rot"]:
                    a("s_mul_i32 s61, s59, 196608")
                    a("s_add_u32 s61, s61, s50")
                else:
                    a(f"s_add_u32 s61, s50, {c*196608}")
            sg = p - 1
            a.vmem(f"buffer_load_dwordx4 v{VWD}, s[{20+4*sg}:{23+4*sg}], s61 offen offset:{1024*sg} lds", f"c{c}")
    def dma(c):
        for p in range(4): dma_part(c, p)
    dma(0)
    if OPT["st0"]:
        stamp(a, 4)
        a("s_waitcnt vmcnt(4)")
        stamp(a, 5)
        a("s_waitcnt vmcnt(2)")
        stamp(a, 6)
        a("s_waitcnt vmcnt(0)")
        stamp(a, 7)
    a(f"s_load_dword s40, s[14:15], {WS_E}")
    a("s_barrier")
    dma(1)
    srd(a, 32, 14, 15, WS_USED)
    srd(a, 36, 8, 9, 16384)
    a("v_and_b32 v3, 31, v1")
    a("v_lshrrev_b32 v4, 5, v1")
    a("v_bfe_u32 v5, v1, 1, 3")
    a("s_and_b32 s62, s44, 3")
    a("s_lshr_b32 s63, s44, 2")
    a("s_lshl_b32 s64, s62, 12")
    a("v_lshl_add_u32 v6, v3, 7, s64")
    for st in range(4):
        a(f"v_or_b32 v7, {2*st}, v4")
        a("v_xor_b32 v7, v7, v5")
        a(f"v_lshl_add_u32 v{VXR+st}, v7, 4, v6")
        a(f"v_add_u32 v{VXR+4+st}, {2*SLOT}, v{VXR+st}")
    a("v_mul_u32_u24 v6, 3072, v4")
    a("v_bfe_u32 v7, v1, 2, 2")
    a("v_lshl_add_u32 v6, v7, 7, v6")
    a("v_bfe_u32 v7, v1, 3, 1")
    a("v_xor_b32 v7, s63, v7")
    a("v_lshl_add_u32 v6, v7, 6, v6")
    a("v_bfe_u32 v7, v1, 4, 1")
    a("v_lshl_add_u32 v6, v7, 5, v6")
    a("v_and_b32 v7, 3, v1")
    a("v_lshl_add_u32 v6, v7, 3, v6")
    a(f"v_add_u32 v{VWR}, 16384, v6")
    a(f"v_add_u32 v{VWR+1}, {16384+2*SLOT}, v6")
    a("v_bfe_u32 v6, v1, 2, 2")
    a("v_lshl_add_u32 v6, v4, 2, v6")
    a("v_lshlrev_b32 v6, 5, v6")
    a("v_lshl_add_u32 v6, v7, 3, v6")
    a("s_lshl_b32 s64, s63, 10")
    a("v_add_u32 v22, s64, v6")
    a("v_lshlrev_b32 v6, 2, v4")
    a("v_sub_u32 v6, v3, v6")
    a("v_mov_b32 v23, 0x3f80")
    a("v_mov_b32 v24, 0x3f800000")
    for sg in range(2):
        for q in range(4):
            T0 = 16*sg + 8*((2*q)//4) + (2*q) % 4
            a(f"v_cmp_eq_u32 vcc, {T0}, v6")
            a(f"v_cmp_eq_u32 s[66:67], {T0+1}, v6")
            a(f"v_cndmask_b32 v7, 0, v23, vcc")
            a(f"v_cndmask_b32 v{BSEL+4*sg+q}, v7, v24, s[66:67]")
    for i in range(0, 48, 2): a(f"v_mov_b64 v[{64+i}:{65+i}], 0")
    a("s_lshl_b32 s64, s48, 2")
    a("s_add_u32 s64, s64, s62")
    a("s_lshl_b32 s65, s45, 2")
    a("s_lshl_b32 s66, s63, 1")
    a("s_add_u32 s65, s65, s66")
    a("s_lshl_b32 s66, s65, 16")
    a("s_lshl_b32 s67, s64, 10")
    a("s_add_u32 s66, s66, s67")
    a("s_cmp_eq_u32 s47, 0")
    a(f"s_cselect_b32 s54, {WS_QB}, 0")
    a(f"s_cselect_b32 s55, 0, {WS_KB}")
    a("s_cselect_b64 s[70:71], -1, 0")
    a("s_add_u32 s54, s54, s55")
    a("s_add_u32 s54, s54, s66")
    a("s_add_u32 s55, s54, 65536")
    a("v_and_b32 v6, 0x33, v1")
    a("v_bfe_u32 v7, v1, 2, 1")
    a("v_lshl_or_b32 v6, v7, 3, v6")
    a("v_bfe_u32 v7, v1, 3, 1")
    a("v_lshl_or_b32 v6, v7, 2, v6")
    a("v_cndmask_b32 v6, v6, v1, s[70:71]")
    a("v_lshlrev_b32 v25, 4, v6")
    a("v_bfe_u32 v6, v1, 4, 1")
    a("v_lshlrev_b32 v6, 16, v6")
    a("v_lshl_add_u32 v6, v4, 8, v6")
    a("v_and_b32 v7, 15, v1")
    a("v_lshl_add_u32 v30, v7, 4, v6")
    a("s_lshl_b32 s41, s45, 5")
    a("s_add_u32 s41, s41, s46")
    a("s_lshl_b32 s41, s41, 7")
    a(f"s_add_u32 s41, s41, {WS_F1}")
    a("s_lshl_b32 s42, s45, 4")
    a("s_add_u32 s42, s42, s48")
    a("s_lshl_b32 s42, s42, 7")
    a(f"s_add_u32 s42, s42, {WS_F2}")
    a("s_lshr_b32 s43, s2, 5")
    a("s_lshl_b32 s43, s43, 2")
    a("s_add_u32 s43, s43, s62")
    a("s_lshl_b32 s43, s43, 1")
    a("s_add_u32 s43, s43, s63")
    a("s_lshl_b32 s43, s43, 3")
    a("s_add_u32 s43, s43, s45")
    a("s_lshl_b32 s43, s43, 2")
    a("s_and_b32 s56, s46, 3")
    a("s_add_u32 s43, s43, s56")
    a("s_lshl_b32 s43, s43, 10")
    srd(a, 68, 12, 13, 1024)
    a.vmem("buffer_load_dwordx4 v[248:251], v21, s[16:19], s43 offen", "g")
    a.vmem("buffer_load_dwordx4 v[252:255], v21, s[68:71], 0 offen", "g")
    if OPT["touch"]:
        a("s_lshl_b32 s56, s45, 11")
        a("v_lshlrev_b32 v6, 5, v1")
        a.vmem("buffer_load_dword v244, v6, s[36:39], s56 offen", "t")
        a("v_and_b32 v6, 7, v1")
        a("v_lshlrev_b32 v6, 21, v6")
        a(f"s_mov_b32 s56, {0x1fff80}")
        a.vmem(f"buffer_load_dword v245, v6, s[32:35], s56 offen{SC}", "t")
        a("v_mov_b32 v6, 0")
        a.vmem("global_load_dword v246, v6, s[74:75]", "t")
        a.vmem("global_load_dword v247, v6, s[76:77]", "t")
        a.vmem("global_load_dword v243, v6, s[78:79]", "t")
    a("s_waitcnt lgkmcnt(0)")
    a("s_add_u32 s40, s40, 0x9e3779b1")

    def reads(c, st, buf):
        sl = c & 3
        f = FR[buf]
        a(f"ds_read_b128 {vr(f,4)}, v{VXR+4*(sl>>1)+st} offset:{(sl&1)*SLOT}")
        for s in range(3):
            o = st*6144 + s*1024 + (sl & 1)*SLOT
            a(f"ds_read_b64_tr_b16 {vr(f+4+4*s,2)}, v{VWR+(sl>>1)} offset:{o}")
            a(f"ds_read_b64_tr_b16 {vr(f+6+4*s,2)}, v{VWR+(sl>>1)} offset:{o+512}")
    def mm(buf):
        f = FR[buf]
        mfma(a, ACC[0], f+4, f, ACC[0])
        mfma(a, ACC[1], f, f+8, ACC[1])
        mfma(a, ACC[2], f+12, f, ACC[2])
    a.wait_vm("c0")
    a("s_barrier")
    stamp(a, 1)
    reads(0, 0, 0)
    def later(c, st):
        if c == 0:
            for p in ((0, 1), (2, 3))[st & 1]: dma_part(2 + (st >> 1), p)
        elif c + 3 < 8: dma_part(c + 3, st)
        elif c == 5 and st == 0:
            a("s_and_b32 s60, s44, 1")
            a("s_lshl_b32 s60, s60, 10")
            a("s_mov_b32 m0, s60")
            a("s_lshl_b32 s61, s45, 11")
            a("s_add_u32 s61, s61, s60")
            a.vmem("buffer_load_dwordx4 v21, s[36:39], s61 offen lds", "phi")
    for c in range(8):
        for st in range(3):
            reads(c, st+1, (st+1) & 1)
            a("s_waitcnt lgkmcnt(7)")
            mm(st & 1)
            later(c, st)
        if c < 7:
            if c == 6: a.wait_vm("c7", "phi", extra="lgkmcnt(0)")
            else: a.wait_vm(f"c{c+1}", extra="lgkmcnt(0)")
            a("s_barrier")
            reads(c+1, 0, 0)
        else:
            for e in range(2):
                a(f"ds_read_b64_tr_b16 {vr(136+4*e,2)}, v22 offset:{e*512}")
                a(f"ds_read_b64_tr_b16 {vr(138+4*e,2)}, v22 offset:{e*512+256}")
            a("s_waitcnt lgkmcnt(4)")
        mm(1)
        later(c, 3)
    stamp(a, 2)
    a(f"s_mov_b32 s68, {f32(0.25*LOG2E)}")
    a(f"s_mov_b32 s72, {f32(LOG2E)}")
    a(f"s_add_u32 s67, s66, {WS_VB}")
    a("s_cmp_eq_u32 s47, 0")
    for e in range(2):
        for q in range(4):
            a(f"v_cvt_pk_bf16_f32 v{144+4*e+q}, v{ACC[0]+8*e+2*q}, v{ACC[0]+8*e+2*q+1}")
    for g in range(2):
        for q in range(4):
            a(f"v_cvt_pk_bf16_f32 v{40+4*g+q}, v{ACC[1]+8*g+2*q}, v{ACC[1]+8*g+2*q+1}")
    a("s_waitcnt lgkmcnt(0)")
    PH = [160, 176]
    mfma(a, PH[0], 136, 144, "0")
    mfma(a, PH[1], 140, 148, "0")
    a("s_cbranch_scc1 L_p1_q")
    a(f"buffer_store_dwordx4 v[40:43], v30, s[32:35], s67 offen{SC}")
    a(f"buffer_store_dwordx4 v[44:47], v30, s[32:35], s67 offen offset:512{SC}")
    a("s_branch L_p1_qk")
    a.label("L_p1_q")
    for i in range(0, 16, 2): a(f"v_pk_mul_f32 v[{ACC[2]+i}:{ACC[2]+i+1}], v[{ACC[2]+i}:{ACC[2]+i+1}], s[68:69] op_sel_hi:[1,0]")
    a("s_nop 0")
    a.label("L_p1_qk")
    for e in range(2):
        for q in range(4):
            a(f"v_cvt_pk_bf16_f32 v{32+4*e+q}, v{ACC[2]+8*e+2*q}, v{ACC[2]+8*e+2*q+1}")
        a(f"buffer_store_dwordx4 {vr(32+4*e,4)}, v25, s[32:35], s{54+e} offen{SC}")
    E2 = range(2)
    EP = [64, 80]; T = [152, 156]
    if OPT["rp"]:
        for e in E2:
            for q in range(4): a(f"v_cvt_pk_bf16_f32 v{T[e]+q}, v{PH[e]+2*q}, v{PH[e]+2*q+1}")
        for e in E2:
            for q in range(4):
                a(f"v_lshlrev_b32 v{PH[e]+2*q}, 16, v{T[e]+q}")
                a(f"v_and_b32 v{PH[e]+2*q+1}, 0xffff0000, v{T[e]+q}")
    for e in E2:
        P = PH[e]; t = T[e]
        a(f"v_max3_f32 v{t}, v{P}, v{P+1}, v{P+2}")
        a(f"v_max3_f32 v{t+1}, -v{P}, -v{P+1}, -v{P+2}")
        a(f"v_max3_f32 v{t}, v{t}, v{P+3}, v{P+4}")
        a(f"v_max3_f32 v{t+1}, v{t+1}, -v{P+3}, -v{P+4}")
        a(f"v_max3_f32 v{t}, v{t}, v{P+5}, v{P+6}")
        a(f"v_max3_f32 v{t+1}, v{t+1}, -v{P+5}, -v{P+6}")
        a(f"v_max_f32 v{t}, v{t}, v{P+7}")
        a(f"v_max_f32_e64 v{t+1}, v{t+1}, -v{P+7}")
    for e in E2: a(f"v_permlane32_swap_b32 v{T[e]}, v{T[e]+1}")
    for e in E2: a(f"v_max_f32 v{T[e]}, v{T[e]}, v{T[e]+1}")
    for e in E2: a(f"v_mul_f32 v{T[e]}, {f32(-LOG2E)}, v{T[e]}")
    for e in E2: a(f"v_mov_b32 v{T[e]+1}, v{T[e]}")
    for e in E2: a(f"v_permlane32_swap_b32 v{T[e]}, v{T[e]+1}")
    for e in E2:
        for q in range(4):
            a(f"v_pk_fma_f32 {vr(EP[e]+2*q,2)}, {vr(PH[e]+2*q,2)}, s[72:73], {vr(T[e],2)} op_sel_hi:[1,0,0]")
            a(f"v_pk_fma_f32 {vr(EP[e]+8+2*q,2)}, {vr(PH[e]+2*q,2)}, s[72:73], {vr(T[e],2)} op_sel:[0,0,1] op_sel_hi:[1,0,1] neg_lo:[1,0,0] neg_hi:[1,0,0]")
    for e in E2:
        for j in range(16): a(f"v_exp_f32 v{EP[e]+j}, v{EP[e]+j}")
    flag_store(a, "s41", 26, wg="L_f1done")
    stamp(a, 3)
    for e in E2:
        P = PH[e]
        for sg in range(2):
            b = EP[e] + 8*sg
            a(f"v_pk_add_f32 {vr(P+4*sg,2)}, {vr(b,2)}, {vr(b+2,2)}")
            a(f"v_pk_add_f32 {vr(P+4*sg+2,2)}, {vr(b+4,2)}, {vr(b+6,2)}")
    for e in E2:
        for sg in range(2): a(f"v_pk_add_f32 {vr(PH[e]+4*sg,2)}, {vr(PH[e]+4*sg,2)}, {vr(PH[e]+4*sg+2,2)}")
    for e in E2:
        for sg in range(2): a(f"v_add_f32 v{T[e]+sg}, v{PH[e]+4*sg}, v{PH[e]+4*sg+1}")
    for e in E2: a(f"v_permlane32_swap_b32 v{T[e]}, v{T[e]+1}")
    for e in E2: a(f"v_add_f32 v{T[e]}, v{T[e]}, v{T[e]+1}")
    for e in E2: a(f"v_rcp_f32 v{T[e]}, v{T[e]}")
    for e in E2: a(f"v_mov_b32 v{T[e]+1}, v{T[e]}")
    for e in E2: a(f"v_permlane32_swap_b32 v{T[e]}, v{T[e]+1}")
    for e in E2:
        for q in range(4):
            a(f"v_pk_mul_f32 {vr(EP[e]+2*q,2)}, {vr(EP[e]+2*q,2)}, {vr(T[e],2)} op_sel_hi:[1,0]")
            a(f"v_pk_mul_f32 {vr(EP[e]+8+2*q,2)}, {vr(EP[e]+8+2*q,2)}, {vr(T[e],2)} op_sel:[0,1]")
    a("s_cmp_eq_u32 s47, 0")
    for e in E2:
        for q in range(8): a(f"v_cvt_pk_bf16_f32 v{232+8*e+q}, v{EP[e]+2*q}, v{EP[e]+2*q+1}")
    a("s_cbranch_scc0 L_p1_done")
    for e in E2:
        mfma(a, PH[e], 232+8*e, BSEL, "0")
        mfma(a, PH[e], 236+8*e, BSEL+4, PH[e])
    a("s_mov_b32 s70, 0x0000ffff")
    a("s_mov_b32 s71, 0x0000ffff")
    a("v_mov_b32 v23, 0x3f803f80")
    for q in range(8):
        a(f"v_cndmask_b32 v{208+q}, v23, v{40+q}, s[70:71]")
        a(f"v_cndmask_b32 v{216+q}, v{40+q}, v23, s[70:71]")
    for e in E2:
        for q in range(8): a(f"v_cvt_pk_bf16_f32 v{192+8*e+q}, v{PH[e]+2*q}, v{PH[e]+2*q+1}")
        mfma(a, 64+16*e, 192+8*e, 208+8*e, "0")
        mfma(a, 64+16*e, 196+8*e, 212+8*e, 64+16*e)
    a("s_lshl_b32 s60, s44, 13")
    a(f"s_add_u32 s60, s60, {SLOT}")
    a("v_add_u32 v6, s60, v21")
    a("s_lshl_b32 s60, s63, 15")
    a("s_lshl_b32 s61, s62, 11")
    a("s_add_u32 s60, s60, s61")
    a(f"s_add_u32 s60, s60, {SLOT}")
    a("v_add_u32 v7, s60, v21")
    a("s_lshr_b32 s56, s62, 1")
    a("s_and_b32 s57, s62, 1")
    a("v_bfe_u32 v26, v1, 4, 1")
    a("v_cmp_eq_u32 vcc, s56, v26")
    a("v_and_b32 v26, 15, v1")
    a("v_lshlrev_b32 v26, 4, v26")
    a("v_lshl_add_u32 v26, v4, 8, v26")
    a("s_lshl_b32 s58, s57, 10")
    a("v_add_u32 v26, s58, v26")
    for q in range(4): a(f"ds_write_b128 v6, {vr(64+4*q,4)} offset:{q*1024}")
    a("v_add_u32 v27, 512, v26")
    a("s_lshl_b32 s58, s57, 6")
    a("s_add_u32 s58, s58, 2048")
    a("v_lshl_add_u32 v28, v4, 4, s58")
    a("v_add_u32 v29, 32, v28")
    for q in range(4): a(f"ds_write_b128 v6, {vr(80+4*q,4)} offset:{4096+q*1024}")
    a("v_cndmask_b32 v240, v28, v26, vcc")
    a("v_cndmask_b32 v241, v29, v27, vcc")
    a("s_add_u32 s58, s65, s56")
    a("s_lshl_b32 s58, s58, 4")
    a("s_add_u32 s58, s58, s48")
    a("s_lshl_b32 s58, s58, 12")
    a(f"s_add_u32 s73, s58, {WS_KVP}")
    a("s_waitcnt lgkmcnt(0)")
    a("s_barrier")
    for w in range(4):
        for q in range(2):
            a(f"ds_read_b128 {vr(96+8*w+4*q,4)}, v7 offset:{w*8192+q*1024}")
    a("s_waitcnt lgkmcnt(4)")
    for j in range(0, 8, 2): a(f"v_pk_add_f32 {vr(96+j,2)}, {vr(96+j,2)}, {vr(104+j,2)}")
    a("s_waitcnt lgkmcnt(0)")
    for j in range(0, 8, 2): a(f"v_pk_add_f32 {vr(112+j,2)}, {vr(112+j,2)}, {vr(120+j,2)}")
    for j in range(0, 8, 2): a(f"v_pk_add_f32 {vr(232+j,2)}, {vr(96+j,2)}, {vr(112+j,2)}")
    a.label("L_p1_done")
    a("s_mov_b32 s36, s47")
    a("s_mov_b32 s37, s64")
    a("s_mov_b32 s38, s65")
    a("s_mov_b32 s39, s42")

Q = [8, 12]; C = [16, 32]; S4 = [[48, 200], [64, 216]]; O = [80, 96]
KB_ = [112, 116]; VA = [120, 128]; VBB = [124, 132]
IDX, VK, VV, VWO = 136, 137, 138, 139
VK0, VV0, VL8, VPOLL = 140, 141, 142, 144
SCR = 152
PHI = 232
XCH, FLAG = 131072, 150592

def maxtree(a, dst, src, first):
    if first:
        a(f"v_max3_f32 v{dst}, v{src}, v{src+1}, v{src+2}")
        for j in range(3, 15, 2): a(f"v_max3_f32 v{dst}, v{dst}, v{src+j}, v{src+j+1}")
        a(f"v_max_f32 v{dst}, v{dst}, v{src+15}")
    else:
        for j in range(0, 16, 2): a(f"v_max3_f32 v{dst}, v{dst}, v{src+j}, v{src+j+1}")

def kv_dma(a, tag="r"):
    a("s_mov_b32 m0, s54")
    a(f"s_add_u32 s67, s55, {WS_VB-WS_KB}")
    a.vmem(f"buffer_load_dwordx4 v3, s[32:35], s55 offen{SC} lds", tag)
    a("s_add_u32 m0, s54, 65536")
    a("s_add_u32 s54, s54, 4096")
    a.vmem(f"buffer_load_dwordx4 v3, s[32:35], s67 offen{SC} lds", tag)
    a("s_add_u32 s55, s55, 4096")

def wo_dma(a):
    a("s_mov_b32 m0, s58")
    a("s_nop 0")
    a(f"buffer_load_dwordx4 v{VWO}, s[16:19], s59 offen lds")
    a("s_add_u32 m0, s58, 65536")
    a("s_add_u32 s58, s58, 4096")
    a(f"buffer_load_dwordx4 v{VWO}, s[20:23], s59 offen lds")
    a("s_add_u32 s59, s59, 32768")

def phase2(a):
    M1, M2 = 146, 147
    a("s_lshl_b32 s45, s45, 2")
    a("s_and_b32 s47, s46, 3")
    a("s_add_u32 s45, s45, s47")
    a("s_lshr_b32 s46, s2, 5")
    a("s_and_b32 s47, s44, 3")
    a("s_lshr_b32 s48, s44, 2")
    a("v_lshlrev_b32 v3, 4, v1")
    a("s_lshl_b32 s49, s45, 16")
    a("s_lshl_b32 s50, s48, 5")
    a("s_add_u32 s50, s50, s47")
    a("s_lshl_b32 s50, s50, 10")
    a("s_add_u32 s51, s49, s50")
    a(f"s_add_u32 s51, s51, {WS_KB}")
    a("s_lshl_b32 s52, s46, 3")
    a("s_lshl_b32 s53, s47, 1")
    a("s_add_u32 s52, s52, s53")
    a("s_lshl_b32 s53, s52, 10")
    a("s_add_u32 s53, s53, s49")
    a(f"s_add_u32 s53, s53, {WS_QB}")
    a("s_add_u32 s56, s52, s48")
    a("s_lshl_b32 s57, s56, 5")
    a("s_add_u32 s57, s57, s45")
    a("s_and_b32 s43, s2, 7")
    a("s_lshl_b32 s41, s43, 12")
    a(f"s_add_u32 s41, s41, {WS_F1}")
    a("s_lshl_b32 s42, s43, 11")
    a(f"s_add_u32 s42, s42, {WS_F2}")
    a(f"v_and_b32 v{VL8}, 31, v1")
    a(f"v_lshlrev_b32 v{VL8}, 7, v{VL8}")
    a("s_mov_b32 s54, s50")
    a("s_mov_b32 s55, s51")
    a("s_cmp_lg_u32 s44, 0")
    a("s_cbranch_scc1 L_p2_nopoll")
    a(f"buffer_load_dword v{VPOLL}, v{VL8}, s[32:35], s41 offen{SC}")
    a.label("L_p2_nopoll")
    stamp(a, 4)
    gate_job(a)
    a("v_and_b32 v6, 7, v1")
    a("v_lshrrev_b32 v5, 2, v1")
    a("v_and_b32 v5, 4, v5")
    a("v_xor_b32 v5, v5, v6")
    a("v_lshlrev_b32 v5, 4, v5")
    a("v_lshrrev_b32 v6, 3, v1")
    a(f"v_lshl_add_u32 v{VWO}, v6, 10, v5")
    a(f"v_mov_b32 v{IDX}, 0xdddddddd")
    a("v_lshrrev_b32 v6, 5, v1")
    a("s_lshl_b32 s60, s48, 15")
    a(f"v_add_u32 v{VK0}, s60, v3")
    a("v_and_b32 v7, 15, v1")
    a("v_lshlrev_b32 v7, 4, v7")
    a("v_lshl_add_u32 v7, v6, 8, v7")
    a("s_add_u32 s60, s60, 65536")
    a(f"v_add_u32 v{VV0}, s60, v7")
    a("v_and_b32 v5, 27, v1")
    a("v_cmp_eq_u32 vcc, 16, v5")
    a("v_mov_b32 v5, 0x3f803f80")
    for i in range(16): a(f"v_cndmask_b32 v{VA[0]+i}, 0, v5, vcc")
    a("s_mov_b32 s62, 0x0000ffff")
    a("s_mov_b32 s63, 0x0000ffff")
    a("s_mov_b32 s65, 0")
    a("s_and_b32 s61, s2, 1")
    a("s_lshl_b32 s61, s61, 2")
    a("s_and_b32 s60, s45, 3")
    a("s_add_u32 s61, s61, s60")
    a("s_lshl_b32 s61, s61, 7")
    J = OPT["jobs"]
    a("s_cmp_eq_u32 s36, 0")
    a(f"s_cselect_b32 s66, 0, {(1 << J[5]) | (1 << J[6]) | (1 << J[7])}")
    a(f"s_cselect_b32 s60, {1 << J[0]}, {1 << J[8]}")
    a(f"s_cselect_b32 s72, 10, {10 | (1 << (J[8]-1))}")
    a("s_cmp_eq_u32 s44, 0")
    a("s_cselect_b32 s60, s60, 0")
    a("s_or_b32 s66, s66, s60")
    a("s_cmp_eq_u32 s44, s46")
    a(f"s_cselect_b32 s60, {(1 << J[1]) | (1 << J[2]) | (1 << J[3]) | (1 << J[4])}, 0")
    a("s_or_b32 s66, s66, s60")
    a("s_or_b32 s72, s72, s66")
    assert J[0] == 2 and J[8] % 2 == 0 and J[8] - 1 > J[7]
    def zero_acc():
        for i in range(0, 32, 2): a(f"v_mov_b64 v[{O[0]+i}:{O[0]+i+1}], 0")
        for i in range(8, 16, 2): a(f"v_mov_b64 v[{S4[1][1]+i}:{S4[1][1]+i+1}], 0")
        a(f"v_mov_b32 v{VK}, v{VK0}")
        a(f"v_mov_b32 v{VV}, v{VV0}")
        a("s_mov_b32 s58, s50")
        a("s_lshl_b32 s59, s50, 3")
        a("s_add_u32 s59, s59, s61")
        a("s_mov_b32 s64, 0")
    def prime_reads():
        a(f"ds_read_b128 {vr(KB_[0],4)}, v{VK}")
        a(f"ds_read_b128 {vr(KB_[1],4)}, v{VK} offset:1024")
        a("s_mov_b64 exec, s[62:63]")
        a(f"ds_read_b128 {vr(VA[0],4)}, v{VV}")
        a(f"ds_read_b128 {vr(VBB[0],4)}, v{VV} offset:512")
        a("s_mov_b64 exec, -1")
    zero_acc()
    a(f"v_mov_b32 v5, {FLAG}")
    a("v_mov_b32 v7, 0")
    a("s_lshl_b32 s60, s57, 2")
    a(f"s_add_u32 s60, s60, {WS_GATE}")
    a("s_cmp_lg_u32 s44, 0")
    a("s_cbranch_scc1 L_p2_go")
    poll(a, "L_pollF1", 1, VL8, VPOLL, "s41", first_issued=True)
    a.label("L_p2_go")
    a("s_barrier")
    stamp(a, 5)
    kv_dma(a, "r0")
    a.vmem(f"buffer_load_dwordx4 {vr(Q[0],4)}, v3, s[32:35], s53 offen{SC}", "q")
    a.vmem(f"buffer_load_dwordx4 {vr(Q[1],4)}, v3, s[32:35], s53 offen offset:1024{SC}", "q")
    a("ds_write_b32 v5, v7")
    kv_dma(a, "r1")
    a("s_mov_b64 exec, 1")
    a.vmem(f"buffer_store_dword v{SCR+12}, v7, s[32:35], s60 offen{SC}", "gs")
    a("s_mov_b64 exec, -1")
    srd(a, 16, 76, 77, 0x80000)
    srd(a, 20, 78, 79, 0x80000)
    a.wait_vm("q", "r0")
    a("s_barrier")
    stamp(a, 6)
    a(f"ds_read_b128 {vr(SCR+16,4)}, v3")
    prime_reads()
    a("s_cmp_lg_u32 s36, 0")
    a("s_cbranch_scc1 L_p2_nokvp")
    a(f"buffer_store_dwordx4 {vr(PHI,4)}, v240, s[32:35], s73 offen{SC}")
    a(f"buffer_store_dwordx4 {vr(PHI+4,4)}, v241, s[32:35], s73 offen{SC}")
    a.label("L_p2_nokvp")
    a("s_waitcnt lgkmcnt(4)")
    mfma(a, S4[0][0], SCR+16, Q[0], "0")
    mfma(a, S4[1][0], SCR+16, Q[1], "0")
    maxtree(a, M1, S4[0][0], True)
    maxtree(a, M2, S4[1][0], True)
    a.label("L_setmax")
    a.nop(2)
    a(f"v_permlane32_swap_b32 v{M1}, v{M2}")
    a(f"v_max_f32 v{M1}, v{M1}, v{M2}")
    a(f"v_sub_f32 v{M1}, 0, v{M1}")
    a(f"v_mov_b32 v{M2}, v{M1}")
    a(f"v_permlane32_swap_b32 v{M1}, v{M2}")
    for i in range(0, 16, 2): a(f"v_pk_mov_b32 {vr(C[0]+i,2)}, {vr(M1,2)}, {vr(M1,2)} op_sel:[0,0]")
    a("s_waitcnt lgkmcnt(0)")
    mfma(a, S4[0][0], KB_[0], Q[0], C[0])
    for i in range(0, 16, 2): a(f"v_pk_mov_b32 {vr(C[1]+i,2)}, {vr(M1,2)}, {vr(M1,2)} op_sel:[1,1]")
    mfma(a, S4[1][0], KB_[0], Q[1], C[1])
    a.nop(4)
    a.raw(".p2align 6")
    a.label("L_loop")
    loop_start = len(a.lines)
    p0, p1, p2 = OPT["pos"]
    for t in range(4):
        for qi in range(2):
            s = S4[qi][t & 1]
            for j in range(16):
                a(f"v_exp_f32 v{s+j}, v{s+j}")
                if j == p0:
                    tp = t if qi == 1 else t - 1
                    smfmac(a, O[1-qi], VBB[tp & 1], S4[1-qi][tp & 1]+8, IDX)
                    if qi == 1:
                        if t == 0:
                            a("s_bitcmp1_b32 s72, s64")
                            a("s_cbranch_scc1 L_job")
                            a.label("L_job_retA")
                            a("s_add_u32 s64, s64, 1")
                        if t == 2:
                            a("s_bitcmp1_b32 s72, s64")
                            a("s_cbranch_scc1 L_job")
                            a("s_waitcnt vmcnt(2)")
                            a.label("L_job_retB")
                            a("s_barrier")
                            a("s_cmp_lt_u32 s64, 12")
                            a("s_cbranch_scc0 L_nokv")
                            kv_dma(a)
                            a("s_cmp_eq_u32 s64, 1")
                            a("s_cbranch_scc1 L_nowo")
                            a.label("L_nokv")
                            wo_dma(a)
                            a.label("L_nowo")
                            a("s_add_u32 s64, s64, 1")
                        a(f"ds_read_b128 {vr(KB_[t&1],4)}, v{VK} offset:{(t+2)*1024}")
                        a("s_mov_b64 exec, s[62:63]")
                        a(f"ds_read_b128 {vr(VA[(t+1)&1],4)}, v{VV} offset:{(t+1)*1024}")
                        a(f"ds_read_b128 {vr(VBB[(t+1)&1],4)}, v{VV} offset:{(t+1)*1024+512}")
                        a("s_mov_b64 exec, -1")
                if j == p1:
                    if qi == 0: a("s_waitcnt lgkmcnt(0)")
                    mfma(a, S4[qi][(t+1) & 1], KB_[(t+1) & 1], Q[qi], C[qi])
                    if qi == 1 and t == 3:
                        a(f"v_add_u32 v{VK}, 4096, v{VK}")
                        a(f"v_add_u32 v{VV}, 4096, v{VV}")
                if j == p2:
                    smfmac(a, O[qi], VA[t & 1], s, IDX)
                    if qi == 1 and t == 3:
                        a("s_cmp_lg_u32 s64, 16")
    loop_end = len(a.lines)
    a("s_cbranch_scc1 L_loop")
    a.nop(2)
    smfmac(a, O[1], VBB[1], S4[1][1]+8, IDX)
    stamp(a, 7)
    SX = 48
    a("s_mul_i32 s67, s44, 2304")
    a(f"s_add_u32 s67, s67, {XCH}")
    a("v_add_u32 v5, s67, v3")
    a("v_lshl_add_u32 v6, v1, 2, s67")
    a("s_xor_b32 s68, s44, 4")
    a("s_mul_i32 s68, s68, 2304")
    a(f"s_add_u32 s68, s68, {XCH}")
    a("v_add_u32 v7, s68, v3")
    a("v_lshl_add_u32 v4, v1, 2, s68")
    a(f"v_mov_b32 v148, {FLAG}")
    a("s_lshl_b32 s70, s56, 16")
    a("s_lshl_b32 s71, s45, 10")
    a("s_add_u32 s71, s70, s71")
    a(f"s_add_u32 s71, s71, {WS_OF+32768}")
    a("s_cmp_eq_u32 s48, 0")
    a("s_waitcnt lgkmcnt(0)")
    a("s_cbranch_scc1 L_send1")
    a(f"ds_write_b128 v5, {vr(O[0],4)}")
    a(f"ds_write_b128 v5, {vr(O[0]+4,4)} offset:1024")
    a(f"ds_write_b32 v6, v{O[0]+8} offset:2048")
    a("s_branch L_sent")
    a.label("L_send1")
    a(f"ds_write_b128 v5, {vr(O[1],4)}")
    a(f"ds_write_b128 v5, {vr(O[1]+4,4)} offset:1024")
    a(f"ds_write_b32 v6, v{O[1]+8} offset:2048")
    a.label("L_sent")
    a(f"v_add_f32_e64 v{M1}, |v{O[0]}|, |v{O[0]+1}|")
    a(f"v_add_f32_e64 v{M2}, |v{O[1]}|, |v{O[1]+1}|")
    for i in range(2, 9):
        a(f"v_add_f32_e64 v{M1}, v{M1}, |v{O[0]+i}|")
        a(f"v_add_f32_e64 v{M2}, v{M2}, |v{O[1]+i}|")
    a(f"v_add_f32 v{M1}, v{M1}, v{M2}")
    a(f"v_mov_b32 v{M2}, {f32(OPT['thr'])}")
    a(f"v_cmp_nlt_f32 vcc, v{M1}, v{M2}")
    a(f"v_mov_b32 v{M2}, 1")
    a("s_nop 1")
    a("s_cbranch_vccz L_noflag")
    a(f"ds_write_b32 v148, v{M2}")
    a.label("L_noflag")
    a("s_cbranch_scc1 L_keep0")
    a("s_waitcnt lgkmcnt(0)")
    for i in range(0, 10, 2): a(f"v_mov_b64 v[{O[0]+i}:{O[0]+i+1}], v[{O[1]+i}:{O[1]+i+1}]")
    a.label("L_keep0")
    a("s_waitcnt lgkmcnt(0)")
    a("s_barrier")
    a(f"ds_read_b32 v{M2}, v148")
    a(f"ds_read_b32 v{SX+8}, v4 offset:2048")
    a(f"ds_read_b128 {vr(SX,4)}, v7")
    a(f"ds_read_b128 {vr(SX+4,4)}, v7 offset:1024")
    wo_dma(a)
    a("s_waitcnt lgkmcnt(2)")
    a(f"v_readfirstlane_b32 s69, v{M2}")
    a(f"v_add_f32 v{O[0]+8}, v{O[0]+8}, v{SX+8}")
    a(f"v_rcp_f32 v{M1}, v{O[0]+8}")
    a("s_cmp_lg_u32 s69, 0")
    a("s_cbranch_scc1 L_maybe_fb")
    a.label("L_fin")
    a("s_waitcnt lgkmcnt(0)")
    for i in range(0, 8, 2): a(f"v_pk_add_f32 {vr(O[0]+i,2)}, {vr(O[0]+i,2)}, {vr(SX+i,2)}")
    for i in range(0, 8, 2): a(f"v_pk_mul_f32 {vr(O[0]+i,2)}, {vr(O[0]+i,2)}, {vr(M1,2)} op_sel_hi:[1,0]")
    for q in range(4): a(f"v_cvt_pk_bf16_f32 v{248+q}, v{O[0]+2*q}, v{O[0]+2*q+1}")
    a(f"buffer_store_dwordx4 v[248:251], v3, s[32:35], s71 offen{SC}")

    def rare(a):
        PL, ZL = SCR, SCR + 16
        def ret():
            a("s_branch L_job_ret")
        a.label("L_job")
        a("s_waitcnt vmcnt(0)")
        a("s_bitcmp1_b32 s66, s64")
        a("s_cbranch_scc0 L_job_ret")
        names = ["f2", "p2", "ld", "red", "f5", "p5", "kv", "oa", "f4"]
        for n, nm in enumerate(names[1:], 1):
            a(f"s_cmp_eq_u32 s64, {J[n]}")
            a(f"s_cbranch_scc1 L_job_{nm}")
        flag_store(a, "s39", 4)
        a.label("L_job_ret")
        a("s_bitcmp1_b32 s64, 0")
        a("s_cbranch_scc1 L_job_retB")
        a("s_branch L_job_retA")
        a.label("L_job_p2")
        a(f"v_and_b32 v4, 0x7ff, v{VL8}")
        a(f"buffer_load_dword v{VPOLL}, v4, s[32:35], s42 offen{SC}")
        ret()
        a.label("L_job_ld")
        a(f"v_and_b32 v4, 0x7ff, v{VL8}")
        poll(a, "L_pollF2", 1, 4, VPOLL, "s42", first_issued=True)
        a("v_lshrrev_b32 v5, 4, v1")
        a("v_lshlrev_b32 v5, 14, v5")
        a("v_and_b32 v6, 15, v1")
        a("v_lshl_add_u32 v6, v6, 4, v5")
        a("s_lshl_b32 s68, s46, 8")
        a(f"s_add_u32 s67, s49, {WS_KVP}")
        a("s_add_u32 s68, s68, s67")
        a("s_lshl_b32 s69, s46, 4")
        a("s_add_u32 s67, s67, s69")
        for p in range(4):
            a(f"s_add_u32 s69, s68, {p*4096}")
            a(f"buffer_load_dwordx4 {vr(PL+4*p,4)}, v6, s[32:35], s69 offen{SC}")
        for p in range(4):
            a(f"s_add_u32 s69, s67, {p*4096+2048}")
            a(f"buffer_load_dwordx4 {vr(ZL+4*p,4)}, v5, s[32:35], s69 offen{SC}")
        ret()
        a.label("L_job_red")
        B2 = (PL, ZL)
        for base in B2:
            for j in (0, 2):
                a(f"v_pk_add_f32 {vr(base+j,2)}, {vr(base+j,2)}, {vr(base+4+j,2)}")
                a(f"v_pk_add_f32 {vr(base+8+j,2)}, {vr(base+8+j,2)}, {vr(base+12+j,2)}")
        for base in B2:
            for j in (0, 2): a(f"v_pk_add_f32 {vr(base+j,2)}, {vr(base+j,2)}, {vr(base+8+j,2)}")
        for sw in ("32", "16"):
            for base in B2:
                for j in (0, 2): a(f"v_mov_b64 {vr(base+4+j,2)}, {vr(base+j,2)}")
            for base in B2:
                for j in range(4): a(f"v_permlane{sw}_swap_b32 v{base+j}, v{base+4+j}")
            for base in B2:
                for j in (0, 2): a(f"v_pk_add_f32 {vr(base+j,2)}, {vr(base+j,2)}, {vr(base+4+j,2)}")
        for base in B2:
            a(f"v_cvt_pk_bf16_f32 v{base+4}, v{base}, v{base+1}")
            a(f"v_cvt_pk_bf16_f32 v{base+5}, v{base+2}, v{base+3}")
        a("v_cmp_eq_u32 vcc, 16, v1")
        a("s_lshr_b32 s67, s46, 2")
        a("s_mul_i32 s67, s67, 544")
        a(f"v_cndmask_b32 v{PL+4}, v{PL+4}, v{ZL+4}, vcc")
        a(f"v_cndmask_b32 v{PL+5}, v{PL+5}, v{ZL+5}, vcc")
        a("s_and_b32 s68, s46, 1")
        a("s_mul_i32 s68, s68, 272")
        a("s_add_u32 s67, s67, s68")
        a("s_and_b32 s68, s46, 2")
        a("s_lshl_b32 s68, s68, 2")
        a("s_add_u32 s67, s67, s68")
        a("s_lshl_b32 s68, s45, 11")
        a("s_add_u32 s67, s67, s68")
        a(f"s_add_u32 s67, s67, {WS_KVF}")
        a("s_mov_b64 exec, 0x1ffff")
        a(f"buffer_store_dwordx2 {vr(PL+4,2)}, v3, s[32:35], s67 offen{SC}")
        a("s_mov_b64 exec, -1")
        ret()
        a.label("L_job_f5")
        a("s_lshl_b32 s67, s45, 10")
        a("s_lshl_b32 s68, s46, 7")
        a("s_add_u32 s67, s67, s68")
        a(f"s_add_u32 s67, s67, {WS_F5}")
        flag_store(a, "s67", 4)
        ret()
        def f5addr():
            a(f"v_and_b32 v4, 0x7ff, v{VL8}")
            a("s_lshl_b32 s67, s38, 10")
            a(f"s_add_u32 s67, s67, {WS_F5}")
        a.label("L_job_p5")
        f5addr()
        a(f"buffer_load_dword v{VPOLL+1}, v4, s[32:35], s67 offen{SC}")
        ret()
        a.label("L_job_kv")
        f5addr()
        poll(a, "L_pollF5", 1, 4, VPOLL+1, "s67", first_issued=True)
        a("v_and_b32 v5, 31, v1")
        a("v_min_u32 v5, 16, v5")
        a("v_lshrrev_b32 v6, 5, v1")
        a("v_mul_u32_u24 v6, 272, v6")
        a("v_lshl_add_u32 v5, v5, 4, v6")
        a("s_lshl_b32 s67, s38, 11")
        a(f"s_add_u32 s67, s67, {WS_KVF}")
        for e in range(2):
            for sg in range(2):
                a(f"buffer_load_dwordx4 {vr(SCR+8*e+4*sg,4)}, v5, s[32:35], s67 offen offset:{e*2048+sg*544}{SC}")
        ret()
        a.label("L_job_oa")
        for e in range(2):
            mfma(a, SCR+16+16*e, SCR+8*e, PHI+8*e, "0")
            mfma(a, SCR+16+16*e, SCR+8*e+4, PHI+8*e+4, SCR+16+16*e)
        a("s_lshl_b32 s67, s37, 16")
        a("s_lshl_b32 s68, s38, 10")
        a("s_add_u32 s67, s67, s68")
        a(f"s_add_u32 s67, s67, {WS_OF}")
        for e in range(2):
            D = SCR+16+16*e
            a(f"v_add_f32 v{4+2*e}, {f32(1e-6)}, v{D+8}")
            a(f"v_rcp_f32 v{4+2*e}, v{4+2*e}")
            for i in range(0, 8, 2): a(f"v_pk_mul_f32 {vr(D+i,2)}, {vr(D+i,2)}, {vr(4+2*e,2)} op_sel_hi:[1,0]")
            for q in range(4): a(f"v_cvt_pk_bf16_f32 v{SCR+4*e+q}, v{D+2*q}, v{D+2*q+1}")
            a(f"buffer_store_dwordx4 {vr(SCR+4*e,4)}, v3, s[32:35], s67 offen offset:{e*1024}{SC}")
        ret()
        a.label("L_job_f4")
        a("s_lshr_b32 s67, s37, 2")
        a("s_lshl_b32 s67, s67, 3")
        a("s_and_b32 s68, s2, 7")
        a("s_add_u32 s67, s67, s68")
        a("s_lshl_b32 s67, s67, 7")
        a(f"s_add_u32 s67, s67, {WS_F4}")
        flag_store(a, "s67", 4)
        ret()
        a.label("L_maybe_fb")
        a("s_cmp_lg_u32 s65, 0")
        a("s_cbranch_scc1 L_fin")
        a("s_mov_b32 s65, 1")
        a("s_mov_b32 s72, 10")
        a("s_mov_b32 s54, s50")
        a("s_mov_b32 s55, s51")
        a("s_waitcnt vmcnt(0) lgkmcnt(0)")
        a("s_barrier")
        for rr in range(8): kv_dma(a)
        a("s_add_u32 s54, s50, 8192")
        a("s_add_u32 s55, s51, 8192")
        a(f"v_mov_b32 v{M1}, 0xff800000")
        a(f"v_mov_b32 v{M2}, 0xff800000")
        a("v_mov_b32 v4, v3")
        a("s_mov_b32 s66, 64")
        a("s_waitcnt vmcnt(0)")
        a("s_barrier")
        a.label("L_fbloop")
        a(f"ds_read_b128 {vr(SCR+16,4)}, v4")
        a("v_add_u32 v4, 1024, v4")
        a("s_waitcnt lgkmcnt(0)")
        mfma(a, S4[0][0], SCR+16, Q[0], "0")
        mfma(a, S4[1][0], SCR+16, Q[1], "0")
        a.nop(12)
        maxtree(a, M1, S4[0][0], False)
        maxtree(a, M2, S4[1][0], False)
        a("s_sub_u32 s66, s66, 1")
        a("s_cmp_lg_u32 s66, 0")
        a("s_cbranch_scc1 L_fbloop")
        zero_acc()
        prime_reads()
        a("s_branch L_setmax")
    return (loop_start, loop_end), rare

def gate_job(a):
    X, W, t = 248, 252, SCR+8
    for q in range(4):
        a(f"v_lshlrev_b32 v{t}, 16, v{X+q}")
        a(f"v_lshlrev_b32 v{t+2}, 16, v{W+q}")
        a(f"v_and_b32 v{t+1}, 0xffff0000, v{X+q}")
        a(f"v_and_b32 v{t+3}, 0xffff0000, v{W+q}")
        a(f"v_pk_mul_f32 {vr(t,2)}, {vr(t,2)}, {vr(t+2,2)}")
        a(f"v_cvt_pk_bf16_f32 v{t+2}, v{t}, v{t+1}")
        d = t+4 if q == 0 else t
        a(f"v_lshlrev_b32 v{d}, 16, v{t+2}")
        a(f"v_and_b32 v{d+1}, 0xffff0000, v{t+2}")
        if q: a(f"v_pk_add_f32 {vr(t+4,2)}, {vr(t+4,2)}, {vr(t,2)}")
    s = t+4
    a(f"v_add_f32 v{s}, v{s}, v{s+1}")
    for sw in ("32", "16"):
        a(f"v_mov_b32 v{s+1}, v{s}")
        a(f"v_permlane{sw}_swap_b32 v{s}, v{s+1}")
        a(f"v_add_f32 v{s}, v{s}, v{s+1}")
    for r in (8, 4, 2, 1):
        a(f"v_add_f32_dpp v{s}, v{s}, v{s} row_ror:{r} row_mask:0xf bank_mask:0xf")
    a(f"v_cvt_pk_bf16_f32 v{s}, v{s}, v{s}")
    a(f"v_lshlrev_b32 v{s}, 16, v{s}")
    a(f"v_mul_f32 v{s}, {f32(-LOG2E)}, v{s}")
    a(f"v_exp_f32 v{s}, v{s}")
    a(f"v_add_f32 v{s}, 1.0, v{s}")
    a(f"v_rcp_f32 v{s}, v{s}")
    a(f"v_cvt_pk_bf16_f32 v{s}, v{s}, v{s}")
    a(f"v_lshlrev_b32 v{s}, 16, v{s}")

def phase3(a):
    WO, OFR, ACC = 96, 224, 32
    a("s_lshl_b32 s42, s46, 12")
    a("s_lshl_b32 s41, s45, 7")
    a("s_add_u32 s41, s41, s42")
    a(f"s_add_u32 s41, s41, {WS_F3}")
    a("s_and_b32 s47, s44, 1")
    a("s_lshr_b32 s48, s44, 1")
    a("s_bfe_u32 s49, s2, 0x20001")
    a("s_lshl_b32 s50, s46, 2")
    a("s_add_u32 s49, s49, s50")
    a("s_lshl_b32 s49, s49, 1")
    a("s_add_u32 s49, s49, s47")
    a("s_lshl_b32 s50, s49, 7")
    a(f"s_add_u32 s51, s50, {WS_GATE}")
    a("s_lshr_b32 s43, s49, 2")
    a("s_lshl_b32 s43, s43, 10")
    a(f"s_add_u32 s43, s43, {WS_F4}")
    a(f"s_add_u32 s50, s42, {WS_F3}")
    a(f"v_mov_b32 v9, v{VL8}")
    a(f"v_and_b32 v7, 0x3ff, v{VL8}")
    a("s_lshl_b32 s52, s49, 16")
    a("s_lshl_b32 s53, s48, 13")
    a("s_add_u32 s52, s52, s53")
    a(f"s_add_u32 s52, s52, {WS_OF}")
    a("v_and_b32 v8, 31, v1")
    a("v_lshlrev_b32 v8, 2, v8")
    a("v_lshrrev_b32 v4, 5, v1")
    a("v_bfe_u32 v5, v1, 2, 2")
    a("v_lshl_add_u32 v5, v4, 2, v5")
    a("v_lshlrev_b32 v5, 7, v5")
    a("v_bfe_u32 v6, v1, 3, 1")
    a("v_lshl_add_u32 v5, v6, 6, v5")
    a("v_bfe_u32 v6, v1, 4, 1")
    a("v_lshl_add_u32 v5, v6, 5, v5")
    a("v_and_b32 v6, 3, v1")
    a("v_lshl_add_u32 v5, v6, 3, v5")
    a("s_lshl_b32 s53, s48, 14")
    a("v_add_u32 v10, s53, v5")
    a("v_xor_b32 v11, 64, v10")
    a("v_add_u32 v18, 65536, v10")
    a("v_add_u32 v19, 65536, v11")
    a(f"buffer_load_dword v12, v7, s[32:35], s43 offen{SC}")
    flag_store(a, "s41", 26, wg="L_f3done")
    stamp(a, 8)
    poll(a, "L_pollF4", 1, 7, 12, "s43", landed=True)
    def oloads(off):
        for i in range(8):
            if i == 0: a(f"s_add_u32 s53, s52, {off}")
            if i == 4: a(f"s_add_u32 s53, s52, {off+4096}")
            a.vmem(f"buffer_load_dwordx4 {vr(OFR+4*i,4)}, v3, s[32:35], s53 offen offset:{(i%4)*1024}{SC}", f"o{i}")
    oloads(0)
    for br in range(2):
        for i in range(8):
            for ct in range(2):
                f = WO + 64*br + 8*i + 4*ct
                a(f"ds_read_b64_tr_b16 {vr(f,2)}, v{10+8*br+ct} offset:{i*2048}")
                a(f"ds_read_b64_tr_b16 {vr(f+2,2)}, v{10+8*br+ct} offset:{i*2048+1024}")
            if i % 2 == 1: a("s_waitcnt lgkmcnt(4)")
    srd(a, 24, 74, 75, 0x200000)
    a("s_lshl_b32 s53, s47, 15")
    a("s_lshl_b32 s54, s48, 11")
    a("s_add_u32 s54, s54, s53")
    a("v_add_u32 v13, s54, v3")
    a("s_lshl_b32 s54, s48, 13")
    a("s_add_u32 s54, s54, s53")
    a("v_add_u32 v14, s54, v3")
    a("v_and_b32 v5, 31, v1")
    a("v_lshlrev_b32 v5, 10, v5")
    a("v_lshl_add_u32 v15, v4, 4, v5")
    a("s_lshl_b32 s55, s49, 15")
    a("s_add_u32 s55, s55, s61")
    a("s_lshl_b32 s54, s48, 5")
    a("s_add_u32 s55, s55, s54")
    for i in range(8):
        a.wait_vm(f"o{i}")
        for ct in range(2): mfma(a, ACC+16*ct, WO+8*i+4*ct, OFR+4*i, "0" if i == 0 else ACC+16*ct)
    a("s_waitcnt lgkmcnt(0)")
    a("s_cmp_lg_u32 s44, 0")
    a("s_cbranch_scc1 L_p3_go")
    poll(a, "L_pollF3", 1, 9, 12, "s50")
    a.label("L_p3_go")
    a("s_barrier")
    stamp(a, 9)
    a.vmem(f"buffer_load_dword v16, v8, s[32:35], s51 offen{SC}", "g")
    oloads(32768)
    a.wait_vm("g")
    a("v_sub_f32 v17, 1.0, v16")
    a("v_cvt_pk_bf16_f32 v17, v17, v17")
    a("v_lshlrev_b32 v17, 16, v17")
    for j in range(0, 32, 2): a(f"v_pk_mul_f32 {vr(ACC+j,2)}, {vr(ACC+j,2)}, v[16:17] op_sel_hi:[1,0]")
    for i in range(8):
        a.wait_vm(f"o{i}")
        for ct in range(2): mfma(a, ACC+32+16*ct, WO+64+8*i+4*ct, OFR+4*i, "0" if i == 0 else ACC+32+16*ct)
    for p in range(4):
        for j in range(0, 8, 2):
            r = ACC+8*p+j
            a(f"v_pk_fma_f32 {vr(r,2)}, {vr(r+32,2)}, v[16:17], {vr(r,2)} op_sel:[0,1,0]")
        for q in range(2): a(f"ds_write_b128 v13, {vr(ACC+8*p+4*q,4)} offset:{p*8192+q*1024}")
    a("s_waitcnt lgkmcnt(0)")
    a("s_barrier")
    for src in range(4):
        for q in range(2): a(f"ds_read_b128 {vr(64+8*src+4*q,4)}, v14 offset:{src*2048+q*1024}")
    a("s_waitcnt lgkmcnt(4)")
    for j in range(0, 8, 2): a(f"v_pk_add_f32 {vr(64+j,2)}, {vr(64+j,2)}, {vr(72+j,2)}")
    a("s_waitcnt lgkmcnt(0)")
    for j in range(0, 8, 2): a(f"v_pk_add_f32 {vr(80+j,2)}, {vr(80+j,2)}, {vr(88+j,2)}")
    for j in range(0, 8, 2): a(f"v_pk_add_f32 {vr(64+j,2)}, {vr(64+j,2)}, {vr(80+j,2)}")
    for q in range(4): a(f"v_cvt_pk_bf16_f32 v{20+q}, v{64+2*q}, v{64+2*q+1}")
    a("v_permlane32_swap_b32 v20, v22")
    a("v_permlane32_swap_b32 v21, v23")
    a("buffer_store_dwordx4 v[20:23], v15, s[24:27], s55 offen")
    a("s_or_b32 s54, s2, s44")
    a("s_cmp_lg_u32 s54, 0")
    a("s_cbranch_scc1 L_noE")
    a("v_mov_b32 v24, s40")
    a(f"v_mov_b32 v25, {WS_E}")
    a("s_mov_b64 exec, 1")
    a("buffer_store_dword v24, v25, s[32:35], 0 offen")
    a("s_mov_b64 exec, -1")
    a.label("L_noE")
    flush_stamps(a)

def main(out):
    hdr = open("cdna_kernels/" + NAME + ".s.ref").read().split("; Override launch")[0]
    txt = hdr + "; @launch grid=(256,1,1) block=(512,1,1) lds=163840\n"
    txt += '.amdgcn_target "amdgcn-amd-amdhsa--gfx950"\n.text\n'
    nm = NAME + "_kernel"
    a = Asm()
    a.label(nm)
    phase1(a)
    r, rare = phase2(a)
    body = a.lines[r[0]:r[1]]
    errs = check(body + body, "loop")
    phase3(a)
    a.label("L_end")
    a("s_endpgm")
    rare(a)
    a.lines, added = autonop(a.lines)
    errs += check(a.lines, nm)
    txt += f".globl {nm}\n.p2align 8\n.type {nm},@function\n" + a.text()
    txt += f""".section .rodata,"a"
.p2align 6
.amdhsa_kernel {nm}
  .amdhsa_next_free_vgpr 256
  .amdhsa_next_free_sgpr 102
  .amdhsa_accum_offset 256
  .amdhsa_group_segment_fixed_size 0
  .amdhsa_kernarg_size 88
  .amdhsa_user_sgpr_count 2
  .amdhsa_user_sgpr_kernarg_segment_ptr 1
  .amdhsa_system_sgpr_workgroup_id_x 1
.end_amdhsa_kernel
"""
    open(out, "w").write(txt)
    for e in errs: print("HAZARD", e)
    print("written", out, len(txt), "bytes;", len(errs), "hazards;", added, "auto nops")

if __name__ == "__main__":
    if "--stamps" in sys.argv:
        STAMPS = True; sys.argv.remove("--stamps")
    for x in list(sys.argv):
        if x.startswith("--o:"):
            k, v = x[4:].split("=")
            OPT[k] = eval(v); sys.argv.remove(x)
    main(sys.argv[1] if len(sys.argv) > 1 else "cdna_kernels/" + NAME + ".s")
```

```python
import sys, struct
from asmlib import *

NAME = "gated_mix__linear_kernel_hedgehog__mha_block__prompt"
WS_E, WS_F1, WS_F2, WS_F3, WS_GATE, WS_F4, WS_F5, WS_KVF = 0x0, 0x10000, 0x20000, 0x30000, 0x40000, 0x50000, 0x60000, 0x70000
WS_QB, WS_KB, WS_VB, WS_KVP, WS_OF = 0x200000, 0x400000, 0x600000, 0x800000, 0xA00000
WS_USED = 0x2100000
def f32(x): return "0x%08x" % struct.unpack("<I", struct.pack("<f", x))[0]
LOG2E = 1.4426950408889634
STAMPS = False
OPT = dict(st0=0, dbg=0, rot=1, touch=0, cyc=0, pre=0, jobs=(2,4,5,6,7,9,10,11,14), rp=1, pos=(1, 6, 11), thr=2.0**100)
SC = " sc1"
POLL_LIMIT = 200000
NST = 11

def mfma(a, d, A, B, C):
    a(f"v_mfma_f32_32x32x16_bf16 {vr(d,16)}, {vr(A,4)}, {vr(B,4)}, {C if isinstance(C,str) else vr(C,16)}")
def smfmac(a, d, A, B, idx):
    a(f"v_smfmac_f32_32x32x32_bf16 {vr(d,16)}, {vr(A,4)}, {vr(B,8)}, v{idx}")
def srd(a, s, lo, hi, nrec):
    a(f"s_mov_b32 s{s}, s{lo}")
    a(f"s_mov_b32 s{s+1}, s{hi}")
    a(f"s_mov_b32 s{s+2}, {nrec}")
    a(f"s_mov_b32 s{s+3}, 0x00020000")
_seen = set()
def stamp(a, j):
    if OPT["st0"] and j in _seen: return
    _seen.add(j)
    if STAMPS: a(f"s_mem{'' if OPT['cyc'] else 'real'}time s[{80+2*j}:{81+2*j}]")
def flush_stamps(a):
    if not STAMPS: return
    a("s_waitcnt vmcnt(0)")
    stamp(a, NST-1)
    a("s_waitcnt lgkmcnt(0)")
    a("s_lshl_b32 s70, s2, 3")
    a("s_add_u32 s70, s70, s44")
    a("s_lshl_b32 s70, s70, 6")
    a(f"s_add_u32 s70, s70, {0x2000000}")
    if OPT["dbg"]:
        a("s_load_dwordx2 s[4:5], s[0:1], 72")
        a(f"s_cmp_lg_u32 s2, {OPT['dbg']-1}")
        a("s_cbranch_scc1 L_end")
        a("s_cmp_lg_u32 s44, 0")
        a("s_cbranch_scc1 L_end")
        a("s_waitcnt lgkmcnt(0)")
        a("s_mov_b32 s6, 256")
        a("s_mov_b32 s7, 0x00020000")
        a("s_mov_b64 exec, 1")
        a("v_mov_b32 v1, 0")
        for j in range(NST):
            a(f"s_sub_u32 s70, s{80+2*j}, s80")
            a("v_mov_b32 v2, s70")
            a(f"buffer_store_dword v2, v1, s[4:7], 0 offen offset:{4*j}")
        return
    a("s_mov_b64 exec, 1")
    a("v_mov_b32 v1, 0")
    for j in range(NST):
        a(f"v_mov_b32 v2, s{80+2*j}")
        a(f"buffer_store_dword v2, v1, s[32:35], s70 offen offset:{4*j}")
def flag_store(a, soff, vtmp, wg=None):
    a(f"v_mov_b32 v{vtmp}, s40")
    a(f"v_mov_b32 v{vtmp+1}, 0")
    a("s_waitcnt vmcnt(0)")
    a.vm = []
    if wg:
        a("s_cmp_lg_u32 s44, 0")
        a("s_barrier")
        a(f"s_cbranch_scc1 {wg}")
        a("s_mov_b64 exec, 1")
        a(f"buffer_store_dword v{vtmp}, v{vtmp+1}, s[32:35], {soff} offen{SC}")
        a("s_mov_b64 exec, -1")
        a.label(wg)
        return
    a("s_mov_b64 exec, 1")
    a.vmem(f"buffer_store_dword v{vtmp}, v{vtmp+1}, s[32:35], {soff} offen{SC}", "flag")
    a("s_mov_b64 exec, -1")
def poll(a, lab, n, vaddr, vdst, soff, first_issued=False, landed=False):
    a(f"s_mov_b32 s70, {POLL_LIMIT}")
    if landed: a(f"s_branch {lab}_cmp")
    elif first_issued: a(f"s_branch {lab}_chk")
    a.label(lab)
    a(f"buffer_load_dword{'x2' if n==2 else ''} {vr(vdst,n)}, v{vaddr}, s[32:35], {soff} offen{SC}")
    a.label(lab + "_chk")
    a("s_waitcnt vmcnt(0)")
    a.label(lab + "_cmp")
    a(f"v_cmp_ne_u32 vcc, s40, v{vdst}")
    if n == 2:
        a(f"v_cmp_ne_u32 s[68:69], s40, v{vdst+1}")
        a("s_nop 1")
        a("s_or_b64 vcc, vcc, s[68:69]")
    else:
        a("s_nop 1")
    a(f"s_cbranch_vccz {lab}_ok")
    a("s_sub_u32 s70, s70, 1")
    a("s_cmp_eq_u32 s70, 0")
    a(f"s_cbranch_scc1 {lab}_ok")
    a("s_sleep 1")
    a(f"s_branch {lab}")
    a.label(lab + "_ok")
    a.vm = []

def phase1(a):
    SLOT = 40960
    ACC = [64, 80, 96]
    FR = [32, 48]
    VXR, VWR, VXD, VWD, BSEL = 8, 16, 18, 20, 112
    a("s_cmp_ge_u32 s2, 256")
    a("s_cbranch_scc1 L_end")
    stamp(a, 0)
    a("s_load_dwordx4 s[4:7], s[0:1], 0")
    a("s_load_dwordx2 s[10:11], s[0:1], 40")
    a("s_load_dwordx2 s[14:15], s[0:1], 80")
    a("s_load_dwordx2 s[8:9], s[0:1], 16")
    a("s_load_dwordx2 s[12:13], s[0:1], 56")
    a("s_load_dwordx2 s[76:77], s[0:1], 24")
    a("s_load_dwordx2 s[78:79], s[0:1], 48")
    a("s_load_dwordx2 s[74:75], s[0:1], 64")
    a("v_and_b32 v1, 63, v0")
    a("v_lshrrev_b32 v2, 6, v0")
    a("s_and_b32 s45, s2, 7")
    a("v_readfirstlane_b32 s44, v2")
    a("s_lshr_b32 s46, s2, 3")
    a("s_and_b32 s47, s46, 1")
    a("s_lshr_b32 s48, s46, 1")
    a("v_lshrrev_b32 v3, 3, v1")
    a("v_and_b32 v4, 7, v1")
    a("v_lshrrev_b32 v5, 1, v3")
    a("v_xor_b32 v6, v4, v5")
    a("v_lshlrev_b32 v6, 4, v6")
    a(f"v_lshl_add_u32 v{VXD}, v3, 10, v6")
    a("v_xor_b32 v6, 64, v6")
    a(f"v_lshl_add_u32 v{VXD+1}, v3, 10, v6")
    a(f"v_add_u32 v{VXD+1}, {8192-1024}, v{VXD+1}")
    a("v_lshrrev_b32 v6, 2, v1")
    a("v_and_b32 v6, 4, v6")
    a("v_xor_b32 v6, v4, v6")
    a("v_lshlrev_b32 v6, 4, v6")
    a("v_mul_u32_u24 v7, 3072, v3")
    a(f"v_add_u32 v{VWD}, v7, v6")
    a("v_lshlrev_b32 v21, 4, v1")
    a("s_lshl_b32 s49, s48, 17")
    a("s_lshl_b32 s50, s44, 14")
    a("s_add_u32 s49, s49, s50")
    a("s_mul_i32 s50, s44, 24576")
    a("s_lshl_b32 s51, s44, 11")
    a("s_mul_i32 s52, s44, 3072")
    a("s_add_u32 s52, s52, 16384")
    a("s_lshl_b32 s53, s45, 7")
    a("s_cmp_eq_u32 s47, 0")
    a("s_cselect_b32 s56, 1024, 0")
    a("s_cselect_b32 s57, 0, 1024")
    a("s_add_u32 s56, s56, s53")
    a("s_add_u32 s57, s57, s53")
    a("s_add_u32 s53, s53, 1024")
    a("s_sub_u32 s22, 0x180000, s56")
    a("s_sub_u32 s26, 0x180000, s53")
    a("s_sub_u32 s30, 0x180800, s57")
    a("s_mov_b32 s23, 0x00020000")
    a("s_mov_b32 s27, 0x00020000")
    a("s_mov_b32 s31, 0x00020000")
    a("s_mov_b32 s18, 0x200000")
    a("s_mov_b32 s19, 0x00020000")
    a("s_cmp_eq_u32 s47, 0")
    a("s_waitcnt lgkmcnt(0)")
    if OPT["st0"]: stamp(a, 3)
    a("s_cselect_b32 s58, s6, s10")
    a("s_cselect_b32 s59, s7, s11")
    a("s_mov_b32 s16, s4")
    a("s_mov_b32 s17, s5")
    a("s_add_u32 s20, s6, s56")
    a("s_addc_u32 s21, s7, 0")
    a("s_add_u32 s24, s58, s53")
    a("s_addc_u32 s25, s59, 0")
    a("s_add_u32 s28, s10, s57")
    a("s_addc_u32 s29, s11, 0")
    a("s_sub_u32 s28, s28, 2048")
    a("s_subb_u32 s29, s29, 0")
    def dma_part(c, p):
        sl = (c & 3) * SLOT
        if p == 0:
            a(f"s_add_u32 m0, s51, {sl}")
            if OPT["rot"]:
                a(f"s_add_u32 s59, s46, {c}")
                a("s_and_b32 s59, s59, 7")
                a("s_lshl_b32 s60, s59, 7")
                a("s_add_u32 s60, s60, s49")
            else:
                a(f"s_add_u32 s60, s49, {c*128}")
            a.vmem(f"buffer_load_dwordx4 v{VXD}, s[16:19], s60 offen lds", f"c{c}")
            a.vmem(f"buffer_load_dwordx4 v{VXD+1}, s[16:19], s60 offen offset:1024 lds", f"c{c}")
        else:
            if p == 1:
                a(f"s_add_u32 m0, s52, {sl}")
                if OPT["rot"]:
                    a("s_mul_i32 s61, s59, 196608")
                    a("s_add_u32 s61, s61, s50")
                else:
                    a(f"s_add_u32 s61, s50, {c*196608}")
            sg = p - 1
            a.vmem(f"buffer_load_dwordx4 v{VWD}, s[{20+4*sg}:{23+4*sg}], s61 offen offset:{1024*sg} lds", f"c{c}")
    def dma(c):
        for p in range(4): dma_part(c, p)
    dma(0)
    if OPT["st0"]:
        stamp(a, 4)
        a("s_waitcnt vmcnt(4)")
        stamp(a, 5)
        a("s_waitcnt vmcnt(2)")
        stamp(a, 6)
        a("s_waitcnt vmcnt(0)")
        stamp(a, 7)
    a(f"s_load_dword s40, s[14:15], {WS_E}")
    a("s_barrier")
    dma(1)
    srd(a, 32, 14, 15, WS_USED)
    srd(a, 36, 8, 9, 16384)
    a("v_and_b32 v3, 31, v1")
    a("v_lshrrev_b32 v4, 5, v1")
    a("v_bfe_u32 v5, v1, 1, 3")
    a("s_and_b32 s62, s44, 3")
    a("s_lshr_b32 s63, s44, 2")
    a("s_lshl_b32 s64, s62, 12")
    a("v_lshl_add_u32 v6, v3, 7, s64")
    for st in range(4):
        a(f"v_or_b32 v7, {2*st}, v4")
        a("v_xor_b32 v7, v7, v5")
        a(f"v_lshl_add_u32 v{VXR+st}, v7, 4, v6")
        a(f"v_add_u32 v{VXR+4+st}, {2*SLOT}, v{VXR+st}")
    a("v_mul_u32_u24 v6, 3072, v4")
    a("v_bfe_u32 v7, v1, 2, 2")
    a("v_lshl_add_u32 v6, v7, 7, v6")
    a("v_bfe_u32 v7, v1, 3, 1")
    a("v_xor_b32 v7, s63, v7")
    a("v_lshl_add_u32 v6, v7, 6, v6")
    a("v_bfe_u32 v7, v1, 4, 1")
    a("v_lshl_add_u32 v6, v7, 5, v6")
    a("v_and_b32 v7, 3, v1")
    a("v_lshl_add_u32 v6, v7, 3, v6")
    a(f"v_add_u32 v{VWR}, 16384, v6")
    a(f"v_add_u32 v{VWR+1}, {16384+2*SLOT}, v6")
    a("v_bfe_u32 v6, v1, 2, 2")
    a("v_lshl_add_u32 v6, v4, 2, v6")
    a("v_lshlrev_b32 v6, 5, v6")
    a("v_lshl_add_u32 v6, v7, 3, v6")
    a("s_lshl_b32 s64, s63, 10")
    a("v_add_u32 v22, s64, v6")
    a("v_lshlrev_b32 v6, 2, v4")
    a("v_sub_u32 v6, v3, v6")
    a("v_mov_b32 v23, 0x3f80")
    a("v_mov_b32 v24, 0x3f800000")
    for sg in range(2):
        for q in range(4):
            T0 = 16*sg + 8*((2*q)//4) + (2*q) % 4
            a(f"v_cmp_eq_u32 vcc, {T0}, v6")
            a(f"v_cmp_eq_u32 s[66:67], {T0+1}, v6")
            a(f"v_cndmask_b32 v7, 0, v23, vcc")
            a(f"v_cndmask_b32 v{BSEL+4*sg+q}, v7, v24, s[66:67]")
    for i in range(0, 48, 2): a(f"v_mov_b64 v[{64+i}:{65+i}], 0")
    a("s_lshl_b32 s64, s48, 2")
    a("s_add_u32 s64, s64, s62")
    a("s_lshl_b32 s65, s45, 2")
    a("s_lshl_b32 s66, s63, 1")
    a("s_add_u32 s65, s65, s66")
    a("s_lshl_b32 s66, s65, 16")
    a("s_lshl_b32 s67, s64, 10")
    a("s_add_u32 s66, s66, s67")
    a("s_cmp_eq_u32 s47, 0")
    a(f"s_cselect_b32 s54, {WS_QB}, 0")
    a(f"s_cselect_b32 s55, 0, {WS_KB}")
    a("s_cselect_b64 s[70:71], -1, 0")
    a("s_add_u32 s54, s54, s55")
    a("s_add_u32 s54, s54, s66")
    a("s_add_u32 s55, s54, 65536")
    a("v_and_b32 v6, 0x33, v1")
    a("v_bfe_u32 v7, v1, 2, 1")
    a("v_lshl_or_b32 v6, v7, 3, v6")
    a("v_bfe_u32 v7, v1, 3, 1")
    a("v_lshl_or_b32 v6, v7, 2, v6")
    a("v_cndmask_b32 v6, v6, v1, s[70:71]")
    a("v_lshlrev_b32 v25, 4, v6")
    a("v_bfe_u32 v6, v1, 4, 1")
    a("v_lshlrev_b32 v6, 16, v6")
    a("v_lshl_add_u32 v6, v4, 8, v6")
    a("v_and_b32 v7, 15, v1")
    a("v_lshl_add_u32 v30, v7, 4, v6")
    a("s_lshl_b32 s41, s45, 5")
    a("s_add_u32 s41, s41, s46")
    a("s_lshl_b32 s41, s41, 7")
    a(f"s_add_u32 s41, s41, {WS_F1}")
    a("s_lshl_b32 s42, s45, 4")
    a("s_add_u32 s42, s42, s48")
    a("s_lshl_b32 s42, s42, 7")
    a(f"s_add_u32 s42, s42, {WS_F2}")
    a("s_lshr_b32 s43, s2, 5")
    a("s_lshl_b32 s43, s43, 2")
    a("s_add_u32 s43, s43, s62")
    a("s_lshl_b32 s43, s43, 1")
    a("s_add_u32 s43, s43, s63")
    a("s_lshl_b32 s43, s43, 3")
    a("s_add_u32 s43, s43, s45")
    a("s_lshl_b32 s43, s43, 2")
    a("s_and_b32 s56, s46, 3")
    a("s_add_u32 s43, s43, s56")
    a("s_lshl_b32 s43, s43, 10")
    srd(a, 68, 12, 13, 1024)
    a.vmem("buffer_load_dwordx4 v[248:251], v21, s[16:19], s43 offen", "g")
    a.vmem("buffer_load_dwordx4 v[252:255], v21, s[68:71], 0 offen", "g")
    if OPT["touch"]:
        a("s_lshl_b32 s56, s45, 11")
        a("v_lshlrev_b32 v6, 5, v1")
        a.vmem("buffer_load_dword v244, v6, s[36:39], s56 offen", "t")
        a("v_and_b32 v6, 7, v1")
        a("v_lshlrev_b32 v6, 21, v6")
        a(f"s_mov_b32 s56, {0x1fff80}")
        a.vmem(f"buffer_load_dword v245, v6, s[32:35], s56 offen{SC}", "t")
        a("v_mov_b32 v6, 0")
        a.vmem("global_load_dword v246, v6, s[74:75]", "t")
        a.vmem("global_load_dword v247, v6, s[76:77]", "t")
        a.vmem("global_load_dword v243, v6, s[78:79]", "t")
    a("s_waitcnt lgkmcnt(0)")
    a("s_add_u32 s40, s40, 0x9e3779b1")

    def reads(c, st, buf):
        sl = c & 3
        f = FR[buf]
        a(f"ds_read_b128 {vr(f,4)}, v{VXR+4*(sl>>1)+st} offset:{(sl&1)*SLOT}")
        for s in range(3):
            o = st*6144 + s*1024 + (sl & 1)*SLOT
            a(f"ds_read_b64_tr_b16 {vr(f+4+4*s,2)}, v{VWR+(sl>>1)} offset:{o}")
            a(f"ds_read_b64_tr_b16 {vr(f+6+4*s,2)}, v{VWR+(sl>>1)} offset:{o+512}")
    def mm(buf):
        f = FR[buf]
        mfma(a, ACC[0], f+4, f, ACC[0])
        mfma(a, ACC[1], f, f+8, ACC[1])
        mfma(a, ACC[2], f+12, f, ACC[2])
    a.wait_vm("c0")
    a("s_barrier")
    stamp(a, 1)
    reads(0, 0, 0)
    def later(c, st):
        if c == 0:
            for p in ((0, 1), (2, 3))[st & 1]: dma_part(2 + (st >> 1), p)
        elif c + 3 < 8: dma_part(c + 3, st)
        elif c == 5 and st == 0:
            a("s_and_b32 s60, s44, 1")
            a("s_lshl_b32 s60, s60, 10")
            a("s_mov_b32 m0, s60")
            a("s_lshl_b32 s61, s45, 11")
            a("s_add_u32 s61, s61, s60")
            a.vmem("buffer_load_dwordx4 v21, s[36:39], s61 offen lds", "phi")
    for c in range(8):
        for st in range(3):
            reads(c, st+1, (st+1) & 1)
            a("s_waitcnt lgkmcnt(7)")
            mm(st & 1)
            later(c, st)
        if c < 7:
            if c == 6: a.wait_vm("c7", "phi", extra="lgkmcnt(0)")
            else: a.wait_vm(f"c{c+1}", extra="lgkmcnt(0)")
            a("s_barrier")
            reads(c+1, 0, 0)
        else:
            for e in range(2):
                a(f"ds_read_b64_tr_b16 {vr(136+4*e,2)}, v22 offset:{e*512}")
                a(f"ds_read_b64_tr_b16 {vr(138+4*e,2)}, v22 offset:{e*512+256}")
            a("s_waitcnt lgkmcnt(4)")
        mm(1)
        later(c, 3)
    stamp(a, 2)
    a(f"s_mov_b32 s68, {f32(0.25*LOG2E)}")
    a(f"s_mov_b32 s72, {f32(LOG2E)}")
    a(f"s_add_u32 s67, s66, {WS_VB}")
    a("s_cmp_eq_u32 s47, 0")
    for e in range(2):
        for q in range(4):
            a(f"v_cvt_pk_bf16_f32 v{144+4*e+q}, v{ACC[0]+8*e+2*q}, v{ACC[0]+8*e+2*q+1}")
    for g in range(2):
        for q in range(4):
            a(f"v_cvt_pk_bf16_f32 v{40+4*g+q}, v{ACC[1]+8*g+2*q}, v{ACC[1]+8*g+2*q+1}")
    a("s_waitcnt lgkmcnt(0)")
    PH = [160, 176]
    mfma(a, PH[0], 136, 144, "0")
    mfma(a, PH[1], 140, 148, "0")
    a("s_cbranch_scc1 L_p1_q")
    a(f"buffer_store_dwordx4 v[40:43], v30, s[32:35], s67 offen{SC}")
    a(f"buffer_store_dwordx4 v[44:47], v30, s[32:35], s67 offen offset:512{SC}")
    a("s_branch L_p1_qk")
    a.label("L_p1_q")
    for i in range(0, 16, 2): a(f"v_pk_mul_f32 v[{ACC[2]+i}:{ACC[2]+i+1}], v[{ACC[2]+i}:{ACC[2]+i+1}], s[68:69] op_sel_hi:[1,0]")
    a("s_nop 0")
    a.label("L_p1_qk")
    for e in range(2):
        for q in range(4):
            a(f"v_cvt_pk_bf16_f32 v{32+4*e+q}, v{ACC[2]+8*e+2*q}, v{ACC[2]+8*e+2*q+1}")
        a(f"buffer_store_dwordx4 {vr(32+4*e,4)}, v25, s[32:35], s{54+e} offen{SC}")
    E2 = range(2)
    EP = [64, 80]; T = [152, 156]
    if OPT["rp"]:
        for e in E2:
            for q in range(4): a(f"v_cvt_pk_bf16_f32 v{T[e]+q}, v{PH[e]+2*q}, v{PH[e]+2*q+1}")
        for e in E2:
            for q in range(4):
                a(f"v_lshlrev_b32 v{PH[e]+2*q}, 16, v{T[e]+q}")
                a(f"v_and_b32 v{PH[e]+2*q+1}, 0xffff0000, v{T[e]+q}")
    for e in E2:
        P = PH[e]; t = T[e]
        a(f"v_max3_f32 v{t}, v{P}, v{P+1}, v{P+2}")
        a(f"v_max3_f32 v{t+1}, -v{P}, -v{P+1}, -v{P+2}")
        a(f"v_max3_f32 v{t}, v{t}, v{P+3}, v{P+4}")
        a(f"v_max3_f32 v{t+1}, v{t+1}, -v{P+3}, -v{P+4}")
        a(f"v_max3_f32 v{t}, v{t}, v{P+5}, v{P+6}")
        a(f"v_max3_f32 v{t+1}, v{t+1}, -v{P+5}, -v{P+6}")
        a(f"v_max_f32 v{t}, v{t}, v{P+7}")
        a(f"v_max_f32_e64 v{t+1}, v{t+1}, -v{P+7}")
    for e in E2: a(f"v_permlane32_swap_b32 v{T[e]}, v{T[e]+1}")
    for e in E2: a(f"v_max_f32 v{T[e]}, v{T[e]}, v{T[e]+1}")
    for e in E2: a(f"v_mul_f32 v{T[e]}, {f32(-LOG2E)}, v{T[e]}")
    for e in E2: a(f"v_mov_b32 v{T[e]+1}, v{T[e]}")
    for e in E2: a(f"v_permlane32_swap_b32 v{T[e]}, v{T[e]+1}")
    for e in E2:
        for q in range(4):
            a(f"v_pk_fma_f32 {vr(EP[e]+2*q,2)}, {vr(PH[e]+2*q,2)}, s[72:73], {vr(T[e],2)} op_sel_hi:[1,0,0]")
            a(f"v_pk_fma_f32 {vr(EP[e]+8+2*q,2)}, {vr(PH[e]+2*q,2)}, s[72:73], {vr(T[e],2)} op_sel:[0,0,1] op_sel_hi:[1,0,1] neg_lo:[1,0,0] neg_hi:[1,0,0]")
    for e in E2:
        for j in range(16): a(f"v_exp_f32 v{EP[e]+j}, v{EP[e]+j}")
    flag_store(a, "s41", 26, wg="L_f1done")
    stamp(a, 3)
    for e in E2:
        P = PH[e]
        for sg in range(2):
            b = EP[e] + 8*sg
            a(f"v_pk_add_f32 {vr(P+4*sg,2)}, {vr(b,2)}, {vr(b+2,2)}")
            a(f"v_pk_add_f32 {vr(P+4*sg+2,2)}, {vr(b+4,2)}, {vr(b+6,2)}")
    for e in E2:
        for sg in range(2): a(f"v_pk_add_f32 {vr(PH[e]+4*sg,2)}, {vr(PH[e]+4*sg,2)}, {vr(PH[e]+4*sg+2,2)}")
    for e in E2:
        for sg in range(2): a(f"v_add_f32 v{T[e]+sg}, v{PH[e]+4*sg}, v{PH[e]+4*sg+1}")
    for e in E2: a(f"v_permlane32_swap_b32 v{T[e]}, v{T[e]+1}")
    for e in E2: a(f"v_add_f32 v{T[e]}, v{T[e]}, v{T[e]+1}")
    for e in E2: a(f"v_rcp_f32 v{T[e]}, v{T[e]}")
    for e in E2: a(f"v_mov_b32 v{T[e]+1}, v{T[e]}")
    for e in E2: a(f"v_permlane32_swap_b32 v{T[e]}, v{T[e]+1}")
    for e in E2:
        for q in range(4):
            a(f"v_pk_mul_f32 {vr(EP[e]+2*q,2)}, {vr(EP[e]+2*q,2)}, {vr(T[e],2)} op_sel_hi:[1,0]")
            a(f"v_pk_mul_f32 {vr(EP[e]+8+2*q,2)}, {vr(EP[e]+8+2*q,2)}, {vr(T[e],2)} op_sel:[0,1]")
    a("s_cmp_eq_u32 s47, 0")
    for e in E2:
        for q in range(8): a(f"v_cvt_pk_bf16_f32 v{232+8*e+q}, v{EP[e]+2*q}, v{EP[e]+2*q+1}")
    a("s_cbranch_scc0 L_p1_done")
    for e in E2:
        mfma(a, PH[e], 232+8*e, BSEL, "0")
        mfma(a, PH[e], 236+8*e, BSEL+4, PH[e])
    a("s_mov_b32 s70, 0x0000ffff")
    a("s_mov_b32 s71, 0x0000ffff")
    a("v_mov_b32 v23, 0x3f803f80")
    for q in range(8):
        a(f"v_cndmask_b32 v{208+q}, v23, v{40+q}, s[70:71]")
        a(f"v_cndmask_b32 v{216+q}, v{40+q}, v23, s[70:71]")
    for e in E2:
        for q in range(8): a(f"v_cvt_pk_bf16_f32 v{192+8*e+q}, v{PH[e]+2*q}, v{PH[e]+2*q+1}")
        mfma(a, 64+16*e, 192+8*e, 208+8*e, "0")
        mfma(a, 64+16*e, 196+8*e, 212+8*e, 64+16*e)
    a("s_lshl_b32 s60, s44, 13")
    a(f"s_add_u32 s60, s60, {SLOT}")
    a("v_add_u32 v6, s60, v21")
    a("s_lshl_b32 s60, s63, 15")
    a("s_lshl_b32 s61, s62, 11")
    a("s_add_u32 s60, s60, s61")
    a(f"s_add_u32 s60, s60, {SLOT}")
    a("v_add_u32 v7, s60, v21")
    a("s_lshr_b32 s56, s62, 1")
    a("s_and_b32 s57, s62, 1")
    a("v_bfe_u32 v26, v1, 4, 1")
    a("v_cmp_eq_u32 vcc, s56, v26")
    a("v_and_b32 v26, 15, v1")
    a("v_lshlrev_b32 v26, 4, v26")
    a("v_lshl_add_u32 v26, v4, 8, v26")
    a("s_lshl_b32 s58, s57, 10")
    a("v_add_u32 v26, s58, v26")
    for q in range(4): a(f"ds_write_b128 v6, {vr(64+4*q,4)} offset:{q*1024}")
    a("v_add_u32 v27, 512, v26")
    a("s_lshl_b32 s58, s57, 6")
    a("s_add_u32 s58, s58, 2048")
    a("v_lshl_add_u32 v28, v4, 4, s58")
    a("v_add_u32 v29, 32, v28")
    for q in range(4): a(f"ds_write_b128 v6, {vr(80+4*q,4)} offset:{4096+q*1024}")
    a("v_cndmask_b32 v240, v28, v26, vcc")
    a("v_cndmask_b32 v241, v29, v27, vcc")
    a("s_add_u32 s58, s65, s56")
    a("s_lshl_b32 s58, s58, 4")
    a("s_add_u32 s58, s58, s48")
    a("s_lshl_b32 s58, s58, 12")
    a(f"s_add_u32 s73, s58, {WS_KVP}")
    a("s_waitcnt lgkmcnt(0)")
    a("s_barrier")
    for w in range(4):
        for q in range(2):
            a(f"ds_read_b128 {vr(96+8*w+4*q,4)}, v7 offset:{w*8192+q*1024}")
    a("s_waitcnt lgkmcnt(4)")
    for j in range(0, 8, 2): a(f"v_pk_add_f32 {vr(96+j,2)}, {vr(96+j,2)}, {vr(104+j,2)}")
    a("s_waitcnt lgkmcnt(0)")
    for j in range(0, 8, 2): a(f"v_pk_add_f32 {vr(112+j,2)}, {vr(112+j,2)}, {vr(120+j,2)}")
    for j in range(0, 8, 2): a(f"v_pk_add_f32 {vr(232+j,2)}, {vr(96+j,2)}, {vr(112+j,2)}")
    a.label("L_p1_done")
    a("s_mov_b32 s36, s47")
    a("s_mov_b32 s37, s64")
    a("s_mov_b32 s38, s65")
    a("s_mov_b32 s39, s42")

Q = [8, 12]; C = [16, 32]; S4 = [[48, 200], [64, 216]]; O = [80, 96]
KB_ = [112, 116]; VA = [120, 128]; VBB = [124, 132]
IDX, VK, VV, VWO = 136, 137, 138, 139
VK0, VV0, VL8, VPOLL = 140, 141, 142, 144
SCR = 152
PHI = 232
XCH, FLAG = 131072, 150592

def maxtree(a, dst, src, first):
    if first:
        a(f"v_max3_f32 v{dst}, v{src}, v{src+1}, v{src+2}")
        for j in range(3, 15, 2): a(f"v_max3_f32 v{dst}, v{dst}, v{src+j}, v{src+j+1}")
        a(f"v_max_f32 v{dst}, v{dst}, v{src+15}")
    else:
        for j in range(0, 16, 2): a(f"v_max3_f32 v{dst}, v{dst}, v{src+j}, v{src+j+1}")

def kv_dma(a, tag="r"):
    a("s_mov_b32 m0, s54")
    a(f"s_add_u32 s67, s55, {WS_VB-WS_KB}")
    a.vmem(f"buffer_load_dwordx4 v3, s[32:35], s55 offen{SC} lds", tag)
    a("s_add_u32 m0, s54, 65536")
    a("s_add_u32 s54, s54, 4096")
    a.vmem(f"buffer_load_dwordx4 v3, s[32:35], s67 offen{SC} lds", tag)
    a("s_add_u32 s55, s55, 4096")

def wo_dma(a):
    a("s_mov_b32 m0, s58")
    a("s_nop 0")
    a(f"buffer_load_dwordx4 v{VWO}, s[16:19], s59 offen lds")
    a("s_add_u32 m0, s58, 65536")
    a("s_add_u32 s58, s58, 4096")
    a(f"buffer_load_dwordx4 v{VWO}, s[20:23], s59 offen lds")
    a("s_add_u32 s59, s59, 32768")

def phase2(a):
    M1, M2 = 146, 147
    a("s_lshl_b32 s45, s45, 2")
    a("s_and_b32 s47, s46, 3")
    a("s_add_u32 s45, s45, s47")
    a("s_lshr_b32 s46, s2, 5")
    a("s_and_b32 s47, s44, 3")
    a("s_lshr_b32 s48, s44, 2")
    a("v_lshlrev_b32 v3, 4, v1")
    a("s_lshl_b32 s49, s45, 16")
    a("s_lshl_b32 s50, s48, 5")
    a("s_add_u32 s50, s50, s47")
    a("s_lshl_b32 s50, s50, 10")
    a("s_add_u32 s51, s49, s50")
    a(f"s_add_u32 s51, s51, {WS_KB}")
    a("s_lshl_b32 s52, s46, 3")
    a("s_lshl_b32 s53, s47, 1")
    a("s_add_u32 s52, s52, s53")
    a("s_lshl_b32 s53, s52, 10")
    a("s_add_u32 s53, s53, s49")
    a(f"s_add_u32 s53, s53, {WS_QB}")
    a("s_add_u32 s56, s52, s48")
    a("s_lshl_b32 s57, s56, 5")
    a("s_add_u32 s57, s57, s45")
    a("s_and_b32 s43, s2, 7")
    a("s_lshl_b32 s41, s43, 12")
    a(f"s_add_u32 s41, s41, {WS_F1}")
    a("s_lshl_b32 s42, s43, 11")
    a(f"s_add_u32 s42, s42, {WS_F2}")
    a(f"v_and_b32 v{VL8}, 31, v1")
    a(f"v_lshlrev_b32 v{VL8}, 7, v{VL8}")
    a("s_mov_b32 s54, s50")
    a("s_mov_b32 s55, s51")
    a("s_cmp_lg_u32 s44, 0")
    a("s_cbranch_scc1 L_p2_nopoll")
    a(f"buffer_load_dword v{VPOLL}, v{VL8}, s[32:35], s41 offen{SC}")
    a.label("L_p2_nopoll")
    stamp(a, 4)
    gate_job(a)
    a("v_and_b32 v6, 7, v1")
    a("v_lshrrev_b32 v5, 2, v1")
    a("v_and_b32 v5, 4, v5")
    a("v_xor_b32 v5, v5, v6")
    a("v_lshlrev_b32 v5, 4, v5")
    a("v_lshrrev_b32 v6, 3, v1")
    a(f"v_lshl_add_u32 v{VWO}, v6, 10, v5")
    a(f"v_mov_b32 v{IDX}, 0xdddddddd")
    a("v_lshrrev_b32 v6, 5, v1")
    a("s_lshl_b32 s60, s48, 15")
    a(f"v_add_u32 v{VK0}, s60, v3")
    a("v_and_b32 v7, 15, v1")
    a("v_lshlrev_b32 v7, 4, v7")
    a("v_lshl_add_u32 v7, v6, 8, v7")
    a("s_add_u32 s60, s60, 65536")
    a(f"v_add_u32 v{VV0}, s60, v7")
    a("v_and_b32 v5, 27, v1")
    a("v_cmp_eq_u32 vcc, 16, v5")
    a("v_mov_b32 v5, 0x3f803f80")
    for i in range(16): a(f"v_cndmask_b32 v{VA[0]+i}, 0, v5, vcc")
    a("s_mov_b32 s62, 0x0000ffff")
    a("s_mov_b32 s63, 0x0000ffff")
    a("s_mov_b32 s65, 0")
    a("s_and_b32 s61, s2, 1")
    a("s_lshl_b32 s61, s61, 2")
    a("s_and_b32 s60, s45, 3")
    a("s_add_u32 s61, s61, s60")
    a("s_lshl_b32 s61, s61, 7")
    J = OPT["jobs"]
    a("s_cmp_eq_u32 s36, 0")
    a(f"s_cselect_b32 s66, 0, {(1 << J[5]) | (1 << J[6]) | (1 << J[7])}")
    a(f"s_cselect_b32 s60, {1 << J[0]}, {1 << J[8]}")
    a(f"s_cselect_b32 s72, 10, {10 | (1 << (J[8]-1))}")
    a("s_cmp_eq_u32 s44, 0")
    a("s_cselect_b32 s60, s60, 0")
    a("s_or_b32 s66, s66, s60")
    a("s_cmp_eq_u32 s44, s46")
    a(f"s_cselect_b32 s60, {(1 << J[1]) | (1 << J[2]) | (1 << J[3]) | (1 << J[4])}, 0")
    a("s_or_b32 s66, s66, s60")
    a("s_or_b32 s72, s72, s66")
    assert J[0] == 2 and J[8] % 2 == 0 and J[8] - 1 > J[7]
    def zero_acc():
        for i in range(0, 32, 2): a(f"v_mov_b64 v[{O[0]+i}:{O[0]+i+1}], 0")
        for i in range(8, 16, 2): a(f"v_mov_b64 v[{S4[1][1]+i}:{S4[1][1]+i+1}], 0")
        a(f"v_mov_b32 v{VK}, v{VK0}")
        a(f"v_mov_b32 v{VV}, v{VV0}")
        a("s_mov_b32 s58, s50")
        a("s_lshl_b32 s59, s50, 3")
        a("s_add_u32 s59, s59, s61")
        a("s_mov_b32 s64, 0")
    def prime_reads():
        a(f"ds_read_b128 {vr(KB_[0],4)}, v{VK}")
        a(f"ds_read_b128 {vr(KB_[1],4)}, v{VK} offset:1024")
        a("s_mov_b64 exec, s[62:63]")
        a(f"ds_read_b128 {vr(VA[0],4)}, v{VV}")
        a(f"ds_read_b128 {vr(VBB[0],4)}, v{VV} offset:512")
        a("s_mov_b64 exec, -1")
    zero_acc()
    a(f"v_mov_b32 v5, {FLAG}")
    a("v_mov_b32 v7, 0")
    a("s_lshl_b32 s60, s57, 2")
    a(f"s_add_u32 s60, s60, {WS_GATE}")
    a("s_cmp_lg_u32 s44, 0")
    a("s_cbranch_scc1 L_p2_go")
    poll(a, "L_pollF1", 1, VL8, VPOLL, "s41", first_issued=True)
    a.label("L_p2_go")
    a("s_barrier")
    stamp(a, 5)
    kv_dma(a, "r0")
    a.vmem(f"buffer_load_dwordx4 {vr(Q[0],4)}, v3, s[32:35], s53 offen{SC}", "q")
    a.vmem(f"buffer_load_dwordx4 {vr(Q[1],4)}, v3, s[32:35], s53 offen offset:1024{SC}", "q")
    a("ds_write_b32 v5, v7")
    kv_dma(a, "r1")
    a("s_mov_b64 exec, 1")
    a.vmem(f"buffer_store_dword v{SCR+12}, v7, s[32:35], s60 offen{SC}", "gs")
    a("s_mov_b64 exec, -1")
    srd(a, 16, 76, 77, 0x80000)
    srd(a, 20, 78, 79, 0x80000)
    a.wait_vm("q", "r0")
    a("s_barrier")
    stamp(a, 6)
    a(f"ds_read_b128 {vr(SCR+16,4)}, v3")
    prime_reads()
    a("s_cmp_lg_u32 s36, 0")
    a("s_cbranch_scc1 L_p2_nokvp")
    a(f"buffer_store_dwordx4 {vr(PHI,4)}, v240, s[32:35], s73 offen{SC}")
    a(f"buffer_store_dwordx4 {vr(PHI+4,4)}, v241, s[32:35], s73 offen{SC}")
    a.label("L_p2_nokvp")
    a("s_waitcnt lgkmcnt(4)")
    mfma(a, S4[0][0], SCR+16, Q[0], "0")
    mfma(a, S4[1][0], SCR+16, Q[1], "0")
    maxtree(a, M1, S4[0][0], True)
    maxtree(a, M2, S4[1][0], True)
    a.label("L_setmax")
    a.nop(2)
    a(f"v_permlane32_swap_b32 v{M1}, v{M2}")
    a(f"v_max_f32 v{M1}, v{M1}, v{M2}")
    a(f"v_sub_f32 v{M1}, 0, v{M1}")
    a(f"v_mov_b32 v{M2}, v{M1}")
    a(f"v_permlane32_swap_b32 v{M1}, v{M2}")
    for i in range(0, 16, 2): a(f"v_pk_mov_b32 {vr(C[0]+i,2)}, {vr(M1,2)}, {vr(M1,2)} op_sel:[0,0]")
    a("s_waitcnt lgkmcnt(0)")
    mfma(a, S4[0][0], KB_[0], Q[0], C[0])
    for i in range(0, 16, 2): a(f"v_pk_mov_b32 {vr(C[1]+i,2)}, {vr(M1,2)}, {vr(M1,2)} op_sel:[1,1]")
    mfma(a, S4[1][0], KB_[0], Q[1], C[1])
    a.nop(4)
    a.raw(".p2align 6")
    a.label("L_loop")
    loop_start = len(a.lines)
    p0, p1, p2 = OPT["pos"]
    for t in range(4):
        for qi in range(2):
            s = S4[qi][t & 1]
            for j in range(16):
                a(f"v_exp_f32 v{s+j}, v{s+j}")
                if j == p0:
                    tp = t if qi == 1 else t - 1
                    smfmac(a, O[1-qi], VBB[tp & 1], S4[1-qi][tp & 1]+8, IDX)
                    if qi == 1:
                        if t == 0:
                            a("s_bitcmp1_b32 s72, s64")
                            a("s_cbranch_scc1 L_job")
                            a.label("L_job_retA")
                            a("s_add_u32 s64, s64, 1")
                        if t == 2:
                            a("s_bitcmp1_b32 s72, s64")
                            a("s_cbranch_scc1 L_job")
                            a("s_waitcnt vmcnt(2)")
                            a.label("L_job_retB")
                            a("s_barrier")
                            a("s_cmp_lt_u32 s64, 12")
                            a("s_cbranch_scc0 L_nokv")
                            kv_dma(a)
                            a("s_cmp_eq_u32 s64, 1")
                            a("s_cbranch_scc1 L_nowo")
                            a.label("L_nokv")
                            wo_dma(a)
                            a.label("L_nowo")
                            a("s_add_u32 s64, s64, 1")
                        a(f"ds_read_b128 {vr(KB_[t&1],4)}, v{VK} offset:{(t+2)*1024}")
                        a("s_mov_b64 exec, s[62:63]")
                        a(f"ds_read_b128 {vr(VA[(t+1)&1],4)}, v{VV} offset:{(t+1)*1024}")
                        a(f"ds_read_b128 {vr(VBB[(t+1)&1],4)}, v{VV} offset:{(t+1)*1024+512}")
                        a("s_mov_b64 exec, -1")
                if j == p1:
                    if qi == 0: a("s_waitcnt lgkmcnt(0)")
                    mfma(a, S4[qi][(t+1) & 1], KB_[(t+1) & 1], Q[qi], C[qi])
                    if qi == 1 and t == 3:
                        a(f"v_add_u32 v{VK}, 4096, v{VK}")
                        a(f"v_add_u32 v{VV}, 4096, v{VV}")
                if j == p2:
                    smfmac(a, O[qi], VA[t & 1], s, IDX)
                    if qi == 1 and t == 3:
                        a("s_cmp_lg_u32 s64, 16")
    loop_end = len(a.lines)
    a("s_cbranch_scc1 L_loop")
    a.nop(2)
    smfmac(a, O[1], VBB[1], S4[1][1]+8, IDX)
    stamp(a, 7)
    SX = 48
    a("s_mul_i32 s67, s44, 2304")
    a(f"s_add_u32 s67, s67, {XCH}")
    a("v_add_u32 v5, s67, v3")
    a("v_lshl_add_u32 v6, v1, 2, s67")
    a("s_xor_b32 s68, s44, 4")
    a("s_mul_i32 s68, s68, 2304")
    a(f"s_add_u32 s68, s68, {XCH}")
    a("v_add_u32 v7, s68, v3")
    a("v_lshl_add_u32 v4, v1, 2, s68")
    a(f"v_mov_b32 v148, {FLAG}")
    a("s_lshl_b32 s70, s56, 16")
    a("s_lshl_b32 s71, s45, 10")
    a("s_add_u32 s71, s70, s71")
    a(f"s_add_u32 s71, s71, {WS_OF+32768}")
    a("s_cmp_eq_u32 s48, 0")
    a("s_waitcnt lgkmcnt(0)")
    a("s_cbranch_scc1 L_send1")
    a(f"ds_write_b128 v5, {vr(O[0],4)}")
    a(f"ds_write_b128 v5, {vr(O[0]+4,4)} offset:1024")
    a(f"ds_write_b32 v6, v{O[0]+8} offset:2048")
    a("s_branch L_sent")
    a.label("L_send1")
    a(f"ds_write_b128 v5, {vr(O[1],4)}")
    a(f"ds_write_b128 v5, {vr(O[1]+4,4)} offset:1024")
    a(f"ds_write_b32 v6, v{O[1]+8} offset:2048")
    a.label("L_sent")
    a(f"v_add_f32_e64 v{M1}, |v{O[0]}|, |v{O[0]+1}|")
    a(f"v_add_f32_e64 v{M2}, |v{O[1]}|, |v{O[1]+1}|")
    for i in range(2, 9):
        a(f"v_add_f32_e64 v{M1}, v{M1}, |v{O[0]+i}|")
        a(f"v_add_f32_e64 v{M2}, v{M2}, |v{O[1]+i}|")
    a(f"v_add_f32 v{M1}, v{M1}, v{M2}")
    a(f"v_mov_b32 v{M2}, {f32(OPT['thr'])}")
    a(f"v_cmp_nlt_f32 vcc, v{M1}, v{M2}")
    a(f"v_mov_b32 v{M2}, 1")
    a("s_nop 1")
    a("s_cbranch_vccz L_noflag")
    a(f"ds_write_b32 v148, v{M2}")
    a.label("L_noflag")
    a("s_cbranch_scc1 L_keep0")
    a("s_waitcnt lgkmcnt(0)")
    for i in range(0, 10, 2): a(f"v_mov_b64 v[{O[0]+i}:{O[0]+i+1}], v[{O[1]+i}:{O[1]+i+1}]")
    a.label("L_keep0")
    a("s_waitcnt lgkmcnt(0)")
    a("s_barrier")
    a(f"ds_read_b32 v{M2}, v148")
    a(f"ds_read_b32 v{SX+8}, v4 offset:2048")
    a(f"ds_read_b128 {vr(SX,4)}, v7")
    a(f"ds_read_b128 {vr(SX+4,4)}, v7 offset:1024")
    wo_dma(a)
    a("s_waitcnt lgkmcnt(2)")
    a(f"v_readfirstlane_b32 s69, v{M2}")
    a(f"v_add_f32 v{O[0]+8}, v{O[0]+8}, v{SX+8}")
    a(f"v_rcp_f32 v{M1}, v{O[0]+8}")
    a("s_cmp_lg_u32 s69, 0")
    a("s_cbranch_scc1 L_maybe_fb")
    a.label("L_fin")
    a("s_waitcnt lgkmcnt(0)")
    for i in range(0, 8, 2): a(f"v_pk_add_f32 {vr(O[0]+i,2)}, {vr(O[0]+i,2)}, {vr(SX+i,2)}")
    for i in range(0, 8, 2): a(f"v_pk_mul_f32 {vr(O[0]+i,2)}, {vr(O[0]+i,2)}, {vr(M1,2)} op_sel_hi:[1,0]")
    for q in range(4): a(f"v_cvt_pk_bf16_f32 v{248+q}, v{O[0]+2*q}, v{O[0]+2*q+1}")
    a(f"buffer_store_dwordx4 v[248:251], v3, s[32:35], s71 offen{SC}")

    def rare(a):
        PL, ZL = SCR, SCR + 16
        def ret():
            a("s_branch L_job_ret")
        a.label("L_job")
        a("s_waitcnt vmcnt(0)")
        a("s_bitcmp1_b32 s66, s64")
        a("s_cbranch_scc0 L_job_ret")
        names = ["f2", "p2", "ld", "red", "f5", "p5", "kv", "oa", "f4"]
        for n, nm in enumerate(names[1:], 1):
            a(f"s_cmp_eq_u32 s64, {J[n]}")
            a(f"s_cbranch_scc1 L_job_{nm}")
        flag_store(a, "s39", 4)
        a.label("L_job_ret")
        a("s_bitcmp1_b32 s64, 0")
        a("s_cbranch_scc1 L_job_retB")
        a("s_branch L_job_retA")
        a.label("L_job_p2")
        a(f"v_and_b32 v4, 0x7ff, v{VL8}")
        a(f"buffer_load_dword v{VPOLL}, v4, s[32:35], s42 offen{SC}")
        ret()
        a.label("L_job_ld")
        a(f"v_and_b32 v4, 0x7ff, v{VL8}")
        poll(a, "L_pollF2", 1, 4, VPOLL, "s42", first_issued=True)
        a("v_lshrrev_b32 v5, 4, v1")
        a("v_lshlrev_b32 v5, 14, v5")
        a("v_and_b32 v6, 15, v1")
        a("v_lshl_add_u32 v6, v6, 4, v5")
        a("s_lshl_b32 s68, s46, 8")
        a(f"s_add_u32 s67, s49, {WS_KVP}")
        a("s_add_u32 s68, s68, s67")
        a("s_lshl_b32 s69, s46, 4")
        a("s_add_u32 s67, s67, s69")
        for p in range(4):
            a(f"s_add_u32 s69, s68, {p*4096}")
            a(f"buffer_load_dwordx4 {vr(PL+4*p,4)}, v6, s[32:35], s69 offen{SC}")
        for p in range(4):
            a(f"s_add_u32 s69, s67, {p*4096+2048}")
            a(f"buffer_load_dwordx4 {vr(ZL+4*p,4)}, v5, s[32:35], s69 offen{SC}")
        ret()
        a.label("L_job_red")
        B2 = (PL, ZL)
        for base in B2:
            for j in (0, 2):
                a(f"v_pk_add_f32 {vr(base+j,2)}, {vr(base+j,2)}, {vr(base+4+j,2)}")
                a(f"v_pk_add_f32 {vr(base+8+j,2)}, {vr(base+8+j,2)}, {vr(base+12+j,2)}")
        for base in B2:
            for j in (0, 2): a(f"v_pk_add_f32 {vr(base+j,2)}, {vr(base+j,2)}, {vr(base+8+j,2)}")
        for sw in ("32", "16"):
            for base in B2:
                for j in (0, 2): a(f"v_mov_b64 {vr(base+4+j,2)}, {vr(base+j,2)}")
            for base in B2:
                for j in range(4): a(f"v_permlane{sw}_swap_b32 v{base+j}, v{base+4+j}")
            for base in B2:
                for j in (0, 2): a(f"v_pk_add_f32 {vr(base+j,2)}, {vr(base+j,2)}, {vr(base+4+j,2)}")
        for base in B2:
            a(f"v_cvt_pk_bf16_f32 v{base+4}, v{base}, v{base+1}")
            a(f"v_cvt_pk_bf16_f32 v{base+5}, v{base+2}, v{base+3}")
        a("v_cmp_eq_u32 vcc, 16, v1")
        a("s_lshr_b32 s67, s46, 2")
        a("s_mul_i32 s67, s67, 544")
        a(f"v_cndmask_b32 v{PL+4}, v{PL+4}, v{ZL+4}, vcc")
        a(f"v_cndmask_b32 v{PL+5}, v{PL+5}, v{ZL+5}, vcc")
        a("s_and_b32 s68, s46, 1")
        a("s_mul_i32 s68, s68, 272")
        a("s_add_u32 s67, s67, s68")
        a("s_and_b32 s68, s46, 2")
        a("s_lshl_b32 s68, s68, 2")
        a("s_add_u32 s67, s67, s68")
        a("s_lshl_b32 s68, s45, 11")
        a("s_add_u32 s67, s67, s68")
        a(f"s_add_u32 s67, s67, {WS_KVF}")
        a("s_mov_b64 exec, 0x1ffff")
        a(f"buffer_store_dwordx2 {vr(PL+4,2)}, v3, s[32:35], s67 offen{SC}")
        a("s_mov_b64 exec, -1")
        ret()
        a.label("L_job_f5")
        a("s_lshl_b32 s67, s45, 10")
        a("s_lshl_b32 s68, s46, 7")
        a("s_add_u32 s67, s67, s68")
        a(f"s_add_u32 s67, s67, {WS_F5}")
        flag_store(a, "s67", 4)
        ret()
        def f5addr():
            a(f"v_and_b32 v4, 0x7ff, v{VL8}")
            a("s_lshl_b32 s67, s38, 10")
            a(f"s_add_u32 s67, s67, {WS_F5}")
        a.label("L_job_p5")
        f5addr()
        a(f"buffer_load_dword v{VPOLL+1}, v4, s[32:35], s67 offen{SC}")
        ret()
        a.label("L_job_kv")
        f5addr()
        poll(a, "L_pollF5", 1, 4, VPOLL+1, "s67", first_issued=True)
        a("v_and_b32 v5, 31, v1")
        a("v_min_u32 v5, 16, v5")
        a("v_lshrrev_b32 v6, 5, v1")
        a("v_mul_u32_u24 v6, 272, v6")
        a("v_lshl_add_u32 v5, v5, 4, v6")
        a("s_lshl_b32 s67, s38, 11")
        a(f"s_add_u32 s67, s67, {WS_KVF}")
        for e in range(2):
            for sg in range(2):
                a(f"buffer_load_dwordx4 {vr(SCR+8*e+4*sg,4)}, v5, s[32:35], s67 offen offset:{e*2048+sg*544}{SC}")
        ret()
        a.label("L_job_oa")
        for e in range(2):
            mfma(a, SCR+16+16*e, SCR+8*e, PHI+8*e, "0")
            mfma(a, SCR+16+16*e, SCR+8*e+4, PHI+8*e+4, SCR+16+16*e)
        a("s_lshl_b32 s67, s37, 16")
        a("s_lshl_b32 s68, s38, 10")
        a("s_add_u32 s67, s67, s68")
        a(f"s_add_u32 s67, s67, {WS_OF}")
        for e in range(2):
            D = SCR+16+16*e
            a(f"v_add_f32 v{4+2*e}, {f32(1e-6)}, v{D+8}")
            a(f"v_rcp_f32 v{4+2*e}, v{4+2*e}")
            for i in range(0, 8, 2): a(f"v_pk_mul_f32 {vr(D+i,2)}, {vr(D+i,2)}, {vr(4+2*e,2)} op_sel_hi:[1,0]")
            for q in range(4): a(f"v_cvt_pk_bf16_f32 v{SCR+4*e+q}, v{D+2*q}, v{D+2*q+1}")
            a(f"buffer_store_dwordx4 {vr(SCR+4*e,4)}, v3, s[32:35], s67 offen offset:{e*1024}{SC}")
        ret()
        a.label("L_job_f4")
        a("s_lshr_b32 s67, s37, 2")
        a("s_lshl_b32 s67, s67, 3")
        a("s_and_b32 s68, s2, 7")
        a("s_add_u32 s67, s67, s68")
        a("s_lshl_b32 s67, s67, 7")
        a(f"s_add_u32 s67, s67, {WS_F4}")
        flag_store(a, "s67", 4)
        ret()
        a.label("L_maybe_fb")
        a("s_cmp_lg_u32 s65, 0")
        a("s_cbranch_scc1 L_fin")
        a("s_mov_b32 s65, 1")
        a("s_mov_b32 s72, 10")
        a("s_mov_b32 s54, s50")
        a("s_mov_b32 s55, s51")
        a("s_waitcnt vmcnt(0) lgkmcnt(0)")
        a("s_barrier")
        for rr in range(8): kv_dma(a)
        a("s_add_u32 s54, s50, 8192")
        a("s_add_u32 s55, s51, 8192")
        a(f"v_mov_b32 v{M1}, 0xff800000")
        a(f"v_mov_b32 v{M2}, 0xff800000")
        a("v_mov_b32 v4, v3")
        a("s_mov_b32 s66, 64")
        a("s_waitcnt vmcnt(0)")
        a("s_barrier")
        a.label("L_fbloop")
        a(f"ds_read_b128 {vr(SCR+16,4)}, v4")
        a("v_add_u32 v4, 1024, v4")
        a("s_waitcnt lgkmcnt(0)")
        mfma(a, S4[0][0], SCR+16, Q[0], "0")
        mfma(a, S4[1][0], SCR+16, Q[1], "0")
        a.nop(12)
        maxtree(a, M1, S4[0][0], False)
        maxtree(a, M2, S4[1][0], False)
        a("s_sub_u32 s66, s66, 1")
        a("s_cmp_lg_u32 s66, 0")
        a("s_cbranch_scc1 L_fbloop")
        zero_acc()
        prime_reads()
        a("s_branch L_setmax")
    return (loop_start, loop_end), rare

def gate_job(a):
    X, W, t = 248, 252, SCR+8
    for q in range(4):
        a(f"v_lshlrev_b32 v{t}, 16, v{X+q}")
        a(f"v_lshlrev_b32 v{t+2}, 16, v{W+q}")
        a(f"v_and_b32 v{t+1}, 0xffff0000, v{X+q}")
        a(f"v_and_b32 v{t+3}, 0xffff0000, v{W+q}")
        a(f"v_pk_mul_f32 {vr(t,2)}, {vr(t,2)}, {vr(t+2,2)}")
        a(f"v_cvt_pk_bf16_f32 v{t+2}, v{t}, v{t+1}")
        d = t+4 if q == 0 else t
        a(f"v_lshlrev_b32 v{d}, 16, v{t+2}")
        a(f"v_and_b32 v{d+1}, 0xffff0000, v{t+2}")
        if q: a(f"v_pk_add_f32 {vr(t+4,2)}, {vr(t+4,2)}, {vr(t,2)}")
    s = t+4
    a(f"v_add_f32 v{s}, v{s}, v{s+1}")
    for sw in ("32", "16"):
        a(f"v_mov_b32 v{s+1}, v{s}")
        a(f"v_permlane{sw}_swap_b32 v{s}, v{s+1}")
        a(f"v_add_f32 v{s}, v{s}, v{s+1}")
    for r in (8, 4, 2, 1):
        a(f"v_add_f32_dpp v{s}, v{s}, v{s} row_ror:{r} row_mask:0xf bank_mask:0xf")
    a(f"v_cvt_pk_bf16_f32 v{s}, v{s}, v{s}")
    a(f"v_lshlrev_b32 v{s}, 16, v{s}")
    a(f"v_mul_f32 v{s}, {f32(-LOG2E)}, v{s}")
    a(f"v_exp_f32 v{s}, v{s}")
    a(f"v_add_f32 v{s}, 1.0, v{s}")
    a(f"v_rcp_f32 v{s}, v{s}")
    a(f"v_cvt_pk_bf16_f32 v{s}, v{s}, v{s}")
    a(f"v_lshlrev_b32 v{s}, 16, v{s}")

def phase3(a):
    WO, OFR, ACC = 96, 224, 32
    a("s_lshl_b32 s42, s46, 12")
    a("s_lshl_b32 s41, s45, 7")
    a("s_add_u32 s41, s41, s42")
    a(f"s_add_u32 s41, s41, {WS_F3}")
    a("s_and_b32 s47, s44, 1")
    a("s_lshr_b32 s48, s44, 1")
    a("s_bfe_u32 s49, s2, 0x20001")
    a("s_lshl_b32 s50, s46, 2")
    a("s_add_u32 s49, s49, s50")
    a("s_lshl_b32 s49, s49, 1")
    a("s_add_u32 s49, s49, s47")
    a("s_lshl_b32 s50, s49, 7")
    a(f"s_add_u32 s51, s50, {WS_GATE}")
    a("s_lshr_b32 s43, s49, 2")
    a("s_lshl_b32 s43, s43, 10")
    a(f"s_add_u32 s43, s43, {WS_F4}")
    a(f"s_add_u32 s50, s42, {WS_F3}")
    a(f"v_mov_b32 v9, v{VL8}")
    a(f"v_and_b32 v7, 0x3ff, v{VL8}")
    a("s_lshl_b32 s52, s49, 16")
    a("s_lshl_b32 s53, s48, 13")
    a("s_add_u32 s52, s52, s53")
    a(f"s_add_u32 s52, s52, {WS_OF}")
    a("v_and_b32 v8, 31, v1")
    a("v_lshlrev_b32 v8, 2, v8")
    a("v_lshrrev_b32 v4, 5, v1")
    a("v_bfe_u32 v5, v1, 2, 2")
    a("v_lshl_add_u32 v5, v4, 2, v5")
    a("v_lshlrev_b32 v5, 7, v5")
    a("v_bfe_u32 v6, v1, 3, 1")
    a("v_lshl_add_u32 v5, v6, 6, v5")
    a("v_bfe_u32 v6, v1, 4, 1")
    a("v_lshl_add_u32 v5, v6, 5, v5")
    a("v_and_b32 v6, 3, v1")
    a("v_lshl_add_u32 v5, v6, 3, v5")
    a("s_lshl_b32 s53, s48, 14")
    a("v_add_u32 v10, s53, v5")
    a("v_xor_b32 v11, 64, v10")
    a("v_add_u32 v18, 65536, v10")
    a("v_add_u32 v19, 65536, v11")
    a(f"buffer_load_dword v12, v7, s[32:35], s43 offen{SC}")
    flag_store(a, "s41", 26, wg="L_f3done")
    stamp(a, 8)
    poll(a, "L_pollF4", 1, 7, 12, "s43", landed=True)
    def oloads(off):
        for i in range(8):
            if i == 0: a(f"s_add_u32 s53, s52, {off}")
            if i == 4: a(f"s_add_u32 s53, s52, {off+4096}")
            a.vmem(f"buffer_load_dwordx4 {vr(OFR+4*i,4)}, v3, s[32:35], s53 offen offset:{(i%4)*1024}{SC}", f"o{i}")
    oloads(0)
    for br in range(2):
        for i in range(8):
            for ct in range(2):
                f = WO + 64*br + 8*i + 4*ct
                a(f"ds_read_b64_tr_b16 {vr(f,2)}, v{10+8*br+ct} offset:{i*2048}")
                a(f"ds_read_b64_tr_b16 {vr(f+2,2)}, v{10+8*br+ct} offset:{i*2048+1024}")
            if i % 2 == 1: a("s_waitcnt lgkmcnt(4)")
    srd(a, 24, 74, 75, 0x200000)
    a("s_lshl_b32 s53, s47, 15")
    a("s_lshl_b32 s54, s48, 11")
    a("s_add_u32 s54, s54, s53")
    a("v_add_u32 v13, s54, v3")
    a("s_lshl_b32 s54, s48, 13")
    a("s_add_u32 s54, s54, s53")
    a("v_add_u32 v14, s54, v3")
    a("v_and_b32 v5, 31, v1")
    a("v_lshlrev_b32 v5, 10, v5")
    a("v_lshl_add_u32 v15, v4, 4, v5")
    a("s_lshl_b32 s55, s49, 15")
    a("s_add_u32 s55, s55, s61")
    a("s_lshl_b32 s54, s48, 5")
    a("s_add_u32 s55, s55, s54")
    for i in range(8):
        a.wait_vm(f"o{i}")
        for ct in range(2): mfma(a, ACC+16*ct, WO+8*i+4*ct, OFR+4*i, "0" if i == 0 else ACC+16*ct)
    a("s_waitcnt lgkmcnt(0)")
    a("s_cmp_lg_u32 s44, 0")
    a("s_cbranch_scc1 L_p3_go")
    poll(a, "L_pollF3", 1, 9, 12, "s50")
    a.label("L_p3_go")
    a("s_barrier")
    stamp(a, 9)
    a.vmem(f"buffer_load_dword v16, v8, s[32:35], s51 offen{SC}", "g")
    oloads(32768)
    a.wait_vm("g")
    a("v_sub_f32 v17, 1.0, v16")
    a("v_cvt_pk_bf16_f32 v17, v17, v17")
    a("v_lshlrev_b32 v17, 16, v17")
    for j in range(0, 32, 2): a(f"v_pk_mul_f32 {vr(ACC+j,2)}, {vr(ACC+j,2)}, v[16:17] op_sel_hi:[1,0]")
    for i in range(8):
        a.wait_vm(f"o{i}")
        for ct in range(2): mfma(a, ACC+32+16*ct, WO+64+8*i+4*ct, OFR+4*i, "0" if i == 0 else ACC+32+16*ct)
    for p in range(4):
        for j in range(0, 8, 2):
            r = ACC+8*p+j
            a(f"v_pk_fma_f32 {vr(r,2)}, {vr(r+32,2)}, v[16:17], {vr(r,2)} op_sel:[0,1,0]")
        for q in range(2): a(f"ds_write_b128 v13, {vr(ACC+8*p+4*q,4)} offset:{p*8192+q*1024}")
    a("s_waitcnt lgkmcnt(0)")
    a("s_barrier")
    for src in range(4):
        for q in range(2): a(f"ds_read_b128 {vr(64+8*src+4*q,4)}, v14 offset:{src*2048+q*1024}")
    a("s_waitcnt lgkmcnt(4)")
    for j in range(0, 8, 2): a(f"v_pk_add_f32 {vr(64+j,2)}, {vr(64+j,2)}, {vr(72+j,2)}")
    a("s_waitcnt lgkmcnt(0)")
    for j in range(0, 8, 2): a(f"v_pk_add_f32 {vr(80+j,2)}, {vr(80+j,2)}, {vr(88+j,2)}")
    for j in range(0, 8, 2): a(f"v_pk_add_f32 {vr(64+j,2)}, {vr(64+j,2)}, {vr(80+j,2)}")
    for q in range(4): a(f"v_cvt_pk_bf16_f32 v{20+q}, v{64+2*q}, v{64+2*q+1}")
    a("v_permlane32_swap_b32 v20, v22")
    a("v_permlane32_swap_b32 v21, v23")
    a("buffer_store_dwordx4 v[20:23], v15, s[24:27], s55 offen")
    a("s_or_b32 s54, s2, s44")
    a("s_cmp_lg_u32 s54, 0")
    a("s_cbranch_scc1 L_noE")
    a("v_mov_b32 v24, s40")
    a(f"v_mov_b32 v25, {WS_E}")
    a("s_mov_b64 exec, 1")
    a("buffer_store_dword v24, v25, s[32:35], 0 offen")
    a("s_mov_b64 exec, -1")
    a.label("L_noE")
    flush_stamps(a)

def main(out):
    hdr = open("cdna_kernels/" + NAME + ".s.ref").read().split("; Override launch")[0]
    txt = hdr + "; @launch grid=(256,1,1) block=(512,1,1) lds=163840\n"
    txt += '.amdgcn_target "amdgcn-amd-amdhsa--gfx950"\n.text\n'
    nm = NAME + "_kernel"
    a = Asm()
    a.label(nm)
    phase1(a)
    r, rare = phase2(a)
    body = a.lines[r[0]:r[1]]
    errs = check(body + body, "loop")
    phase3(a)
    a.label("L_end")
    a("s_endpgm")
    rare(a)
    a.lines, added = autonop(a.lines)
    errs += check(a.lines, nm)
    txt += f".globl {nm}\n.p2align 8\n.type {nm},@function\n" + a.text()
    txt += f""".section .rodata,"a"
.p2align 6
.amdhsa_kernel {nm}
  .amdhsa_next_free_vgpr 256
  .amdhsa_next_free_sgpr 102
  .amdhsa_accum_offset 256
  .amdhsa_group_segment_fixed_size 0
  .amdhsa_kernarg_size 88
  .amdhsa_user_sgpr_count 2
  .amdhsa_user_sgpr_kernarg_segment_ptr 1
  .amdhsa_system_sgpr_workgroup_id_x 1
.end_amdhsa_kernel
"""
    open(out, "w").write(txt)
    for e in errs: print("HAZARD", e)
    print("written", out, len(txt), "bytes;", len(errs), "hazards;", added, "auto nops")

if __name__ == "__main__":
    if "--stamps" in sys.argv:
        STAMPS = True; sys.argv.remove("--stamps")
    for x in list(sys.argv):
        if x.startswith("--o:"):
            k, v = x[4:].split("=")
            OPT[k] = eval(v); sys.argv.remove(x)
    main(sys.argv[1] if len(sys.argv) > 1 else "cdna_kernels/" + NAME + ".s")
```

```python
import sys, struct
from asmlib import *

NAME = "gated_mix__linear_kernel_hedgehog__mha_block__prompt"
WS_E, WS_F1, WS_F2, WS_F3, WS_GATE, WS_F4, WS_F5, WS_KVF = 0x0, 0x10000, 0x20000, 0x30000, 0x40000, 0x50000, 0x60000, 0x70000
WS_QB, WS_KB, WS_VB, WS_KVP, WS_OF = 0x200000, 0x400000, 0x600000, 0x800000, 0xA00000
WS_USED = 0x2100000
def f32(x): return "0x%08x" % struct.unpack("<I", struct.pack("<f", x))[0]
LOG2E = 1.4426950408889634
STAMPS = False
OPT = dict(st0=0, amp=None, dbg=0, rot=1, touch=0, cyc=0, pre=0, jobs=(2,4,5,6,7,9,10,11,14), rp=1, pos=(1, 6, 11), thr=2.0**100)
SC = " sc1"
POLL_LIMIT = 200000
NST = 11

def mfma(a, d, A, B, C):
    a(f"v_mfma_f32_32x32x16_bf16 {vr(d,16)}, {vr(A,4)}, {vr(B,4)}, {C if isinstance(C,str) else vr(C,16)}")
def smfmac(a, d, A, B, idx):
    a(f"v_smfmac_f32_32x32x32_bf16 {vr(d,16)}, {vr(A,4)}, {vr(B,8)}, v{idx}")
def srd(a, s, lo, hi, nrec):
    a(f"s_mov_b32 s{s}, s{lo}")
    a(f"s_mov_b32 s{s+1}, s{hi}")
    a(f"s_mov_b32 s{s+2}, {nrec}")
    a(f"s_mov_b32 s{s+3}, 0x00020000")
_seen = set()
def stamp(a, j):
    if OPT["st0"] and j in _seen: return
    _seen.add(j)
    if STAMPS: a(f"s_mem{'' if OPT['cyc'] else 'real'}time s[{80+2*j}:{81+2*j}]")
def flush_stamps(a):
    if not STAMPS: return
    a("s_waitcnt vmcnt(0)")
    stamp(a, NST-1)
    a("s_waitcnt lgkmcnt(0)")
    a("s_lshl_b32 s70, s2, 3")
    a("s_add_u32 s70, s70, s44")
    a("s_lshl_b32 s70, s70, 6")
    a(f"s_add_u32 s70, s70, {0x2000000}")
    if OPT["amp"]:
        j0, j1 = OPT["amp"]
        a("s_or_b32 s70, s2, s44")
        a("s_cmp_lg_u32 s70, 0")
        a("s_cbranch_scc1 L_end")
        a(f"s_sub_u32 s70, s{80+2*j1}, s{80+2*j0}")
        a("s_lshl_b32 s70, s70, 2")
        a.label("L_amp")
        a("s_memrealtime s[4:5]")
        a("s_waitcnt lgkmcnt(0)")
        a(f"s_sub_u32 s6, s4, s{80+2*(NST-1)}")
        a("s_cmp_lt_u32 s6, s70")
        a("s_cbranch_scc1 L_amp")
        return
    if OPT["dbg"]:
        a("s_load_dwordx2 s[4:5], s[0:1], 72")
        a(f"s_cmp_lg_u32 s2, {OPT['dbg']-1}")
        a("s_cbranch_scc1 L_end")
        a("s_cmp_lg_u32 s44, 0")
        a("s_cbranch_scc1 L_end")
        a("s_waitcnt lgkmcnt(0)")
        a("s_mov_b32 s6, 256")
        a("s_mov_b32 s7, 0x00020000")
        a("s_mov_b64 exec, 1")
        a("v_mov_b32 v1, 0")
        for j in range(NST):
            a(f"s_sub_u32 s70, s{80+2*j}, s80")
            a("v_mov_b32 v2, s70")
            a(f"buffer_store_dword v2, v1, s[4:7], 0 offen offset:{4*j}")
        return
    a("s_mov_b64 exec, 1")
    a("v_mov_b32 v1, 0")
    for j in range(NST):
        a(f"v_mov_b32 v2, s{80+2*j}")
        a(f"buffer_store_dword v2, v1, s[32:35], s70 offen offset:{4*j}")
def flag_store(a, soff, vtmp, wg=None):
    a(f"v_mov_b32 v{vtmp}, s40")
    a(f"v_mov_b32 v{vtmp+1}, 0")
    a("s_waitcnt vmcnt(0)")
    a.vm = []
    if wg:
        a("s_cmp_lg_u32 s44, 0")
        a("s_barrier")
        a(f"s_cbranch_scc1 {wg}")
        a("s_mov_b64 exec, 1")
        a(f"buffer_store_dword v{vtmp}, v{vtmp+1}, s[32:35], {soff} offen{SC}")
        a("s_mov_b64 exec, -1")
        a.label(wg)
        return
    a("s_mov_b64 exec, 1")
    a.vmem(f"buffer_store_dword v{vtmp}, v{vtmp+1}, s[32:35], {soff} offen{SC}", "flag")
    a("s_mov_b64 exec, -1")
def poll(a, lab, n, vaddr, vdst, soff, first_issued=False, landed=False):
    a(f"s_mov_b32 s70, {POLL_LIMIT}")
    if landed: a(f"s_branch {lab}_cmp")
    elif first_issued: a(f"s_branch {lab}_chk")
    a.label(lab)
    a(f"buffer_load_dword{'x2' if n==2 else ''} {vr(vdst,n)}, v{vaddr}, s[32:35], {soff} offen{SC}")
    a.label(lab + "_chk")
    a("s_waitcnt vmcnt(0)")
    a.label(lab + "_cmp")
    a(f"v_cmp_ne_u32 vcc, s40, v{vdst}")
    if n == 2:
        a(f"v_cmp_ne_u32 s[68:69], s40, v{vdst+1}")
        a("s_nop 1")
        a("s_or_b64 vcc, vcc, s[68:69]")
    else:
        a("s_nop 1")
    a(f"s_cbranch_vccz {lab}_ok")
    a("s_sub_u32 s70, s70, 1")
    a("s_cmp_eq_u32 s70, 0")
    a(f"s_cbranch_scc1 {lab}_ok")
    a("s_sleep 1")
    a(f"s_branch {lab}")
    a.label(lab + "_ok")
    a.vm = []

def phase1(a):
    SLOT = 40960
    ACC = [64, 80, 96]
    FR = [32, 48]
    VXR, VWR, VXD, VWD, BSEL = 8, 16, 18, 20, 112
    a("s_cmp_ge_u32 s2, 256")
    a("s_cbranch_scc1 L_end")
    stamp(a, 0)
    a("s_load_dwordx4 s[4:7], s[0:1], 0")
    a("s_load_dwordx2 s[10:11], s[0:1], 40")
    a("s_load_dwordx2 s[14:15], s[0:1], 80")
    a("s_load_dwordx2 s[8:9], s[0:1], 16")
    a("s_load_dwordx2 s[12:13], s[0:1], 56")
    a("s_load_dwordx2 s[76:77], s[0:1], 24")
    a("s_load_dwordx2 s[78:79], s[0:1], 48")
    a("s_load_dwordx2 s[74:75], s[0:1], 64")
    a("v_and_b32 v1, 63, v0")
    a("v_lshrrev_b32 v2, 6, v0")
    a("s_and_b32 s45, s2, 7")
    a("v_readfirstlane_b32 s44, v2")
    a("s_lshr_b32 s46, s2, 3")
    a("s_and_b32 s47, s46, 1")
    a("s_lshr_b32 s48, s46, 1")
    a("v_lshrrev_b32 v3, 3, v1")
    a("v_and_b32 v4, 7, v1")
    a("v_lshrrev_b32 v5, 1, v3")
    a("v_xor_b32 v6, v4, v5")
    a("v_lshlrev_b32 v6, 4, v6")
    a(f"v_lshl_add_u32 v{VXD}, v3, 10, v6")
    a("v_xor_b32 v6, 64, v6")
    a(f"v_lshl_add_u32 v{VXD+1}, v3, 10, v6")
    a(f"v_add_u32 v{VXD+1}, {8192-1024}, v{VXD+1}")
    a("v_lshrrev_b32 v6, 2, v1")
    a("v_and_b32 v6, 4, v6")
    a("v_xor_b32 v6, v4, v6")
    a("v_lshlrev_b32 v6, 4, v6")
    a("v_mul_u32_u24 v7, 3072, v3")
    a(f"v_add_u32 v{VWD}, v7, v6")
    a("v_lshlrev_b32 v21, 4, v1")
    a("s_lshl_b32 s49, s48, 17")
    a("s_lshl_b32 s50, s44, 14")
    a("s_add_u32 s49, s49, s50")
    a("s_mul_i32 s50, s44, 24576")
    a("s_lshl_b32 s51, s44, 11")
    a("s_mul_i32 s52, s44, 3072")
    a("s_add_u32 s52, s52, 16384")
    a("s_lshl_b32 s53, s45, 7")
    a("s_cmp_eq_u32 s47, 0")
    a("s_cselect_b32 s56, 1024, 0")
    a("s_cselect_b32 s57, 0, 1024")
    a("s_add_u32 s56, s56, s53")
    a("s_add_u32 s57, s57, s53")
    a("s_add_u32 s53, s53, 1024")
    a("s_sub_u32 s22, 0x180000, s56")
    a("s_sub_u32 s26, 0x180000, s53")
    a("s_sub_u32 s30, 0x180800, s57")
    a("s_mov_b32 s23, 0x00020000")
    a("s_mov_b32 s27, 0x00020000")
    a("s_mov_b32 s31, 0x00020000")
    a("s_mov_b32 s18, 0x200000")
    a("s_mov_b32 s19, 0x00020000")
    a("s_cmp_eq_u32 s47, 0")
    a("s_waitcnt lgkmcnt(0)")
    if OPT["st0"]: stamp(a, 3)
    a("s_cselect_b32 s58, s6, s10")
    a("s_cselect_b32 s59, s7, s11")
    a("s_mov_b32 s16, s4")
    a("s_mov_b32 s17, s5")
    a("s_add_u32 s20, s6, s56")
    a("s_addc_u32 s21, s7, 0")
    a("s_add_u32 s24, s58, s53")
    a("s_addc_u32 s25, s59, 0")
    a("s_add_u32 s28, s10, s57")
    a("s_addc_u32 s29, s11, 0")
    a("s_sub_u32 s28, s28, 2048")
    a("s_subb_u32 s29, s29, 0")
    def dma_part(c, p):
        sl = (c & 3) * SLOT
        if p == 0:
            a(f"s_add_u32 m0, s51, {sl}")
            if OPT["rot"]:
                a(f"s_add_u32 s59, s46, {c}")
                a("s_and_b32 s59, s59, 7")
                a("s_lshl_b32 s60, s59, 7")
                a("s_add_u32 s60, s60, s49")
            else:
                a(f"s_add_u32 s60, s49, {c*128}")
            a.vmem(f"buffer_load_dwordx4 v{VXD}, s[16:19], s60 offen lds", f"c{c}")
            a.vmem(f"buffer_load_dwordx4 v{VXD+1}, s[16:19], s60 offen offset:1024 lds", f"c{c}")
        else:
            if p == 1:
                a(f"s_add_u32 m0, s52, {sl}")
                if OPT["rot"]:
                    a("s_mul_i32 s61, s59, 196608")
                    a("s_add_u32 s61, s61, s50")
                else:
                    a(f"s_add_u32 s61, s50, {c*196608}")
            sg = p - 1
            a.vmem(f"buffer_load_dwordx4 v{VWD}, s[{20+4*sg}:{23+4*sg}], s61 offen offset:{1024*sg} lds", f"c{c}")
    def dma(c):
        for p in range(4): dma_part(c, p)
    dma(0)
    if OPT["st0"]:
        stamp(a, 4)
        a("s_waitcnt vmcnt(4)")
        stamp(a, 5)
        a("s_waitcnt vmcnt(2)")
        stamp(a, 6)
        a("s_waitcnt vmcnt(0)")
        stamp(a, 7)
    a(f"s_load_dword s40, s[14:15], {WS_E}")
    a("s_barrier")
    dma(1)
    srd(a, 32, 14, 15, WS_USED)
    srd(a, 36, 8, 9, 16384)
    a("v_and_b32 v3, 31, v1")
    a("v_lshrrev_b32 v4, 5, v1")
    a("v_bfe_u32 v5, v1, 1, 3")
    a("s_and_b32 s62, s44, 3")
    a("s_lshr_b32 s63, s44, 2")
    a("s_lshl_b32 s64, s62, 12")
    a("v_lshl_add_u32 v6, v3, 7, s64")
    for st in range(4):
        a(f"v_or_b32 v7, {2*st}, v4")
        a("v_xor_b32 v7, v7, v5")
        a(f"v_lshl_add_u32 v{VXR+st}, v7, 4, v6")
        a(f"v_add_u32 v{VXR+4+st}, {2*SLOT}, v{VXR+st}")
    a("v_mul_u32_u24 v6, 3072, v4")
    a("v_bfe_u32 v7, v1, 2, 2")
    a("v_lshl_add_u32 v6, v7, 7, v6")
    a("v_bfe_u32 v7, v1, 3, 1")
    a("v_xor_b32 v7, s63, v7")
    a("v_lshl_add_u32 v6, v7, 6, v6")
    a("v_bfe_u32 v7, v1, 4, 1")
    a("v_lshl_add_u32 v6, v7, 5, v6")
    a("v_and_b32 v7, 3, v1")
    a("v_lshl_add_u32 v6, v7, 3, v6")
    a(f"v_add_u32 v{VWR}, 16384, v6")
    a(f"v_add_u32 v{VWR+1}, {16384+2*SLOT}, v6")
    a("v_bfe_u32 v6, v1, 2, 2")
    a("v_lshl_add_u32 v6, v4, 2, v6")
    a("v_lshlrev_b32 v6, 5, v6")
    a("v_lshl_add_u32 v6, v7, 3, v6")
    a("s_lshl_b32 s64, s63, 10")
    a("v_add_u32 v22, s64, v6")
    a("v_lshlrev_b32 v6, 2, v4")
    a("v_sub_u32 v6, v3, v6")
    a("v_mov_b32 v23, 0x3f80")
    a("v_mov_b32 v24, 0x3f800000")
    for sg in range(2):
        for q in range(4):
            T0 = 16*sg + 8*((2*q)//4) + (2*q) % 4
            a(f"v_cmp_eq_u32 vcc, {T0}, v6")
            a(f"v_cmp_eq_u32 s[66:67], {T0+1}, v6")
            a(f"v_cndmask_b32 v7, 0, v23, vcc")
            a(f"v_cndmask_b32 v{BSEL+4*sg+q}, v7, v24, s[66:67]")
    for i in range(0, 48, 2): a(f"v_mov_b64 v[{64+i}:{65+i}], 0")
    a("s_lshl_b32 s64, s48, 2")
    a("s_add_u32 s64, s64, s62")
    a("s_lshl_b32 s65, s45, 2")
    a("s_lshl_b32 s66, s63, 1")
    a("s_add_u32 s65, s65, s66")
    a("s_lshl_b32 s66, s65, 16")
    a("s_lshl_b32 s67, s64, 10")
    a("s_add_u32 s66, s66, s67")
    a("s_cmp_eq_u32 s47, 0")
    a(f"s_cselect_b32 s54, {WS_QB}, 0")
    a(f"s_cselect_b32 s55, 0, {WS_KB}")
    a("s_cselect_b64 s[70:71], -1, 0")
    a("s_add_u32 s54, s54, s55")
    a("s_add_u32 s54, s54, s66")
    a("s_add_u32 s55, s54, 65536")
    a("v_and_b32 v6, 0x33, v1")
    a("v_bfe_u32 v7, v1, 2, 1")
    a("v_lshl_or_b32 v6, v7, 3, v6")
    a("v_bfe_u32 v7, v1, 3, 1")
    a("v_lshl_or_b32 v6, v7, 2, v6")
    a("v_cndmask_b32 v6, v6, v1, s[70:71]")
    a("v_lshlrev_b32 v25, 4, v6")
    a("v_bfe_u32 v6, v1, 4, 1")
    a("v_lshlrev_b32 v6, 16, v6")
    a("v_lshl_add_u32 v6, v4, 8, v6")
    a("v_and_b32 v7, 15, v1")
    a("v_lshl_add_u32 v30, v7, 4, v6")
    a("s_lshl_b32 s41, s45, 5")
    a("s_add_u32 s41, s41, s46")
    a("s_lshl_b32 s41, s41, 7")
    a(f"s_add_u32 s41, s41, {WS_F1}")
    a("s_lshl_b32 s42, s45, 4")
    a("s_add_u32 s42, s42, s48")
    a("s_lshl_b32 s42, s42, 7")
    a(f"s_add_u32 s42, s42, {WS_F2}")
    a("s_lshr_b32 s43, s2, 5")
    a("s_lshl_b32 s43, s43, 2")
    a("s_add_u32 s43, s43, s62")
    a("s_lshl_b32 s43, s43, 1")
    a("s_add_u32 s43, s43, s63")
    a("s_lshl_b32 s43, s43, 3")
    a("s_add_u32 s43, s43, s45")
    a("s_lshl_b32 s43, s43, 2")
    a("s_and_b32 s56, s46, 3")
    a("s_add_u32 s43, s43, s56")
    a("s_lshl_b32 s43, s43, 10")
    srd(a, 68, 12, 13, 1024)
    a.vmem("buffer_load_dwordx4 v[248:251], v21, s[16:19], s43 offen", "g")
    a.vmem("buffer_load_dwordx4 v[252:255], v21, s[68:71], 0 offen", "g")
    if OPT["touch"]:
        a("s_lshl_b32 s56, s45, 11")
        a("v_lshlrev_b32 v6, 5, v1")
        a.vmem("buffer_load_dword v244, v6, s[36:39], s56 offen", "t")
        a("v_and_b32 v6, 7, v1")
        a("v_lshlrev_b32 v6, 21, v6")
        a(f"s_mov_b32 s56, {0x1fff80}")
        a.vmem(f"buffer_load_dword v245, v6, s[32:35], s56 offen{SC}", "t")
        a("v_mov_b32 v6, 0")
        a.vmem("global_load_dword v246, v6, s[74:75]", "t")
        a.vmem("global_load_dword v247, v6, s[76:77]", "t")
        a.vmem("global_load_dword v243, v6, s[78:79]", "t")
    a("s_waitcnt lgkmcnt(0)")
    a("s_add_u32 s40, s40, 0x9e3779b1")

    def reads(c, st, buf):
        sl = c & 3
        f = FR[buf]
        a(f"ds_read_b128 {vr(f,4)}, v{VXR+4*(sl>>1)+st} offset:{(sl&1)*SLOT}")
        for s in range(3):
            o = st*6144 + s*1024 + (sl & 1)*SLOT
            a(f"ds_read_b64_tr_b16 {vr(f+4+4*s,2)}, v{VWR+(sl>>1)} offset:{o}")
            a(f"ds_read_b64_tr_b16 {vr(f+6+4*s,2)}, v{VWR+(sl>>1)} offset:{o+512}")
    def mm(buf):
        f = FR[buf]
        mfma(a, ACC[0], f+4, f, ACC[0])
        mfma(a, ACC[1], f, f+8, ACC[1])
        mfma(a, ACC[2], f+12, f, ACC[2])
    a.wait_vm("c0")
    a("s_barrier")
    stamp(a, 1)
    reads(0, 0, 0)
    def later(c, st):
        if c == 0:
            for p in ((0, 1), (2, 3))[st & 1]: dma_part(2 + (st >> 1), p)
        elif c + 3 < 8: dma_part(c + 3, st)
        elif c == 5 and st == 0:
            a("s_and_b32 s60, s44, 1")
            a("s_lshl_b32 s60, s60, 10")
            a("s_mov_b32 m0, s60")
            a("s_lshl_b32 s61, s45, 11")
            a("s_add_u32 s61, s61, s60")
            a.vmem("buffer_load_dwordx4 v21, s[36:39], s61 offen lds", "phi")
    for c in range(8):
        for st in range(3):
            reads(c, st+1, (st+1) & 1)
            a("s_waitcnt lgkmcnt(7)")
            mm(st & 1)
            later(c, st)
        if c < 7:
            if c == 6: a.wait_vm("c7", "phi", extra="lgkmcnt(0)")
            else: a.wait_vm(f"c{c+1}", extra="lgkmcnt(0)")
            a("s_barrier")
            reads(c+1, 0, 0)
        else:
            for e in range(2):
                a(f"ds_read_b64_tr_b16 {vr(136+4*e,2)}, v22 offset:{e*512}")
                a(f"ds_read_b64_tr_b16 {vr(138+4*e,2)}, v22 offset:{e*512+256}")
            a("s_waitcnt lgkmcnt(4)")
        mm(1)
        later(c, 3)
    stamp(a, 2)
    a(f"s_mov_b32 s68, {f32(0.25*LOG2E)}")
    a(f"s_mov_b32 s72, {f32(LOG2E)}")
    a(f"s_add_u32 s67, s66, {WS_VB}")
    a("s_cmp_eq_u32 s47, 0")
    for e in range(2):
        for q in range(4):
            a(f"v_cvt_pk_bf16_f32 v{144+4*e+q}, v{ACC[0]+8*e+2*q}, v{ACC[0]+8*e+2*q+1}")
    for g in range(2):
        for q in range(4):
            a(f"v_cvt_pk_bf16_f32 v{40+4*g+q}, v{ACC[1]+8*g+2*q}, v{ACC[1]+8*g+2*q+1}")
    a("s_waitcnt lgkmcnt(0)")
    PH = [160, 176]
    mfma(a, PH[0], 136, 144, "0")
    mfma(a, PH[1], 140, 148, "0")
    a("s_cbranch_scc1 L_p1_q")
    a(f"buffer_store_dwordx4 v[40:43], v30, s[32:35], s67 offen{SC}")
    a(f"buffer_store_dwordx4 v[44:47], v30, s[32:35], s67 offen offset:512{SC}")
    a("s_branch L_p1_qk")
    a.label("L_p1_q")
    for i in range(0, 16, 2): a(f"v_pk_mul_f32 v[{ACC[2]+i}:{ACC[2]+i+1}], v[{ACC[2]+i}:{ACC[2]+i+1}], s[68:69] op_sel_hi:[1,0]")
    a("s_nop 0")
    a.label("L_p1_qk")
    for e in range(2):
        for q in range(4):
            a(f"v_cvt_pk_bf16_f32 v{32+4*e+q}, v{ACC[2]+8*e+2*q}, v{ACC[2]+8*e+2*q+1}")
        a(f"buffer_store_dwordx4 {vr(32+4*e,4)}, v25, s[32:35], s{54+e} offen{SC}")
    E2 = range(2)
    EP = [64, 80]; T = [152, 156]
    if OPT["rp"]:
        for e in E2:
            for q in range(4): a(f"v_cvt_pk_bf16_f32 v{T[e]+q}, v{PH[e]+2*q}, v{PH[e]+2*q+1}")
        for e in E2:
            for q in range(4):
                a(f"v_lshlrev_b32 v{PH[e]+2*q}, 16, v{T[e]+q}")
                a(f"v_and_b32 v{PH[e]+2*q+1}, 0xffff0000, v{T[e]+q}")
    for e in E2:
        P = PH[e]; t = T[e]
        a(f"v_max3_f32 v{t}, v{P}, v{P+1}, v{P+2}")
        a(f"v_max3_f32 v{t+1}, -v{P}, -v{P+1}, -v{P+2}")
        a(f"v_max3_f32 v{t}, v{t}, v{P+3}, v{P+4}")
        a(f"v_max3_f32 v{t+1}, v{t+1}, -v{P+3}, -v{P+4}")
        a(f"v_max3_f32 v{t}, v{t}, v{P+5}, v{P+6}")
        a(f"v_max3_f32 v{t+1}, v{t+1}, -v{P+5}, -v{P+6}")
        a(f"v_max_f32 v{t}, v{t}, v{P+7}")
        a(f"v_max_f32_e64 v{t+1}, v{t+1}, -v{P+7}")
    for e in E2: a(f"v_permlane32_swap_b32 v{T[e]}, v{T[e]+1}")
    for e in E2: a(f"v_max_f32 v{T[e]}, v{T[e]}, v{T[e]+1}")
    for e in E2: a(f"v_mul_f32 v{T[e]}, {f32(-LOG2E)}, v{T[e]}")
    for e in E2: a(f"v_mov_b32 v{T[e]+1}, v{T[e]}")
    for e in E2: a(f"v_permlane32_swap_b32 v{T[e]}, v{T[e]+1}")
    for e in E2:
        for q in range(4):
            a(f"v_pk_fma_f32 {vr(EP[e]+2*q,2)}, {vr(PH[e]+2*q,2)}, s[72:73], {vr(T[e],2)} op_sel_hi:[1,0,0]")
            a(f"v_pk_fma_f32 {vr(EP[e]+8+2*q,2)}, {vr(PH[e]+2*q,2)}, s[72:73], {vr(T[e],2)} op_sel:[0,0,1] op_sel_hi:[1,0,1] neg_lo:[1,0,0] neg_hi:[1,0,0]")
    for e in E2:
        for j in range(16): a(f"v_exp_f32 v{EP[e]+j}, v{EP[e]+j}")
    flag_store(a, "s41", 26, wg="L_f1done")
    stamp(a, 3)
    for e in E2:
        P = PH[e]
        for sg in range(2):
            b = EP[e] + 8*sg
            a(f"v_pk_add_f32 {vr(P+4*sg,2)}, {vr(b,2)}, {vr(b+2,2)}")
            a(f"v_pk_add_f32 {vr(P+4*sg+2,2)}, {vr(b+4,2)}, {vr(b+6,2)}")
    for e in E2:
        for sg in range(2): a(f"v_pk_add_f32 {vr(PH[e]+4*sg,2)}, {vr(PH[e]+4*sg,2)}, {vr(PH[e]+4*sg+2,2)}")
    for e in E2:
        for sg in range(2): a(f"v_add_f32 v{T[e]+sg}, v{PH[e]+4*sg}, v{PH[e]+4*sg+1}")
    for e in E2: a(f"v_permlane32_swap_b32 v{T[e]}, v{T[e]+1}")
    for e in E2: a(f"v_add_f32 v{T[e]}, v{T[e]}, v{T[e]+1}")
    for e in E2: a(f"v_rcp_f32 v{T[e]}, v{T[e]}")
    for e in E2: a(f"v_mov_b32 v{T[e]+1}, v{T[e]}")
    for e in E2: a(f"v_permlane32_swap_b32 v{T[e]}, v{T[e]+1}")
    for e in E2:
        for q in range(4):
            a(f"v_pk_mul_f32 {vr(EP[e]+2*q,2)}, {vr(EP[e]+2*q,2)}, {vr(T[e],2)} op_sel_hi:[1,0]")
            a(f"v_pk_mul_f32 {vr(EP[e]+8+2*q,2)}, {vr(EP[e]+8+2*q,2)}, {vr(T[e],2)} op_sel:[0,1]")
    a("s_cmp_eq_u32 s47, 0")
    for e in E2:
        for q in range(8): a(f"v_cvt_pk_bf16_f32 v{232+8*e+q}, v{EP[e]+2*q}, v{EP[e]+2*q+1}")
    a("s_cbranch_scc0 L_p1_done")
    for e in E2:
        mfma(a, PH[e], 232+8*e, BSEL, "0")
        mfma(a, PH[e], 236+8*e, BSEL+4, PH[e])
    a("s_mov_b32 s70, 0x0000ffff")
    a("s_mov_b32 s71, 0x0000ffff")
    a("v_mov_b32 v23, 0x3f803f80")
    for q in range(8):
        a(f"v_cndmask_b32 v{208+q}, v23, v{40+q}, s[70:71]")
        a(f"v_cndmask_b32 v{216+q}, v{40+q}, v23, s[70:71]")
    for e in E2:
        for q in range(8): a(f"v_cvt_pk_bf16_f32 v{192+8*e+q}, v{PH[e]+2*q}, v{PH[e]+2*q+1}")
        mfma(a, 64+16*e, 192+8*e, 208+8*e, "0")
        mfma(a, 64+16*e, 196+8*e, 212+8*e, 64+16*e)
    a("s_lshl_b32 s60, s44, 13")
    a(f"s_add_u32 s60, s60, {SLOT}")
    a("v_add_u32 v6, s60, v21")
    a("s_lshl_b32 s60, s63, 15")
    a("s_lshl_b32 s61, s62, 11")
    a("s_add_u32 s60, s60, s61")
    a(f"s_add_u32 s60, s60, {SLOT}")
    a("v_add_u32 v7, s60, v21")
    a("s_lshr_b32 s56, s62, 1")
    a("s_and_b32 s57, s62, 1")
    a("v_bfe_u32 v26, v1, 4, 1")
    a("v_cmp_eq_u32 vcc, s56, v26")
    a("v_and_b32 v26, 15, v1")
    a("v_lshlrev_b32 v26, 4, v26")
    a("v_lshl_add_u32 v26, v4, 8, v26")
    a("s_lshl_b32 s58, s57, 10")
    a("v_add_u32 v26, s58, v26")
    for q in range(4): a(f"ds_write_b128 v6, {vr(64+4*q,4)} offset:{q*1024}")
    a("v_add_u32 v27, 512, v26")
    a("s_lshl_b32 s58, s57, 6")
    a("s_add_u32 s58, s58, 2048")
    a("v_lshl_add_u32 v28, v4, 4, s58")
    a("v_add_u32 v29, 32, v28")
    for q in range(4): a(f"ds_write_b128 v6, {vr(80+4*q,4)} offset:{4096+q*1024}")
    a("v_cndmask_b32 v240, v28, v26, vcc")
    a("v_cndmask_b32 v241, v29, v27, vcc")
    a("s_add_u32 s58, s65, s56")
    a("s_lshl_b32 s58, s58, 4")
    a("s_add_u32 s58, s58, s48")
    a("s_lshl_b32 s58, s58, 12")
    a(f"s_add_u32 s73, s58, {WS_KVP}")
    a("s_waitcnt lgkmcnt(0)")
    a("s_barrier")
    for w in range(4):
        for q in range(2):
            a(f"ds_read_b128 {vr(96+8*w+4*q,4)}, v7 offset:{w*8192+q*1024}")
    a("s_waitcnt lgkmcnt(4)")
    for j in range(0, 8, 2): a(f"v_pk_add_f32 {vr(96+j,2)}, {vr(96+j,2)}, {vr(104+j,2)}")
    a("s_waitcnt lgkmcnt(0)")
    for j in range(0, 8, 2): a(f"v_pk_add_f32 {vr(112+j,2)}, {vr(112+j,2)}, {vr(120+j,2)}")
    for j in range(0, 8, 2): a(f"v_pk_add_f32 {vr(232+j,2)}, {vr(96+j,2)}, {vr(112+j,2)}")
    a.label("L_p1_done")
    a("s_mov_b32 s36, s47")
    a("s_mov_b32 s37, s64")
    a("s_mov_b32 s38, s65")
    a("s_mov_b32 s39, s42")

Q = [8, 12]; C = [16, 32]; S4 = [[48, 200], [64, 216]]; O = [80, 96]
KB_ = [112, 116]; VA = [120, 128]; VBB = [124, 132]
IDX, VK, VV, VWO = 136, 137, 138, 139
VK0, VV0, VL8, VPOLL = 140, 141, 142, 144
SCR = 152
PHI = 232
XCH, FLAG = 131072, 150592

def maxtree(a, dst, src, first):
    if first:
        a(f"v_max3_f32 v{dst}, v{src}, v{src+1}, v{src+2}")
        for j in range(3, 15, 2): a(f"v_max3_f32 v{dst}, v{dst}, v{src+j}, v{src+j+1}")
        a(f"v_max_f32 v{dst}, v{dst}, v{src+15}")
    else:
        for j in range(0, 16, 2): a(f"v_max3_f32 v{dst}, v{dst}, v{src+j}, v{src+j+1}")

def kv_dma(a, tag="r"):
    a("s_mov_b32 m0, s54")
    a(f"s_add_u32 s67, s55, {WS_VB-WS_KB}")
    a.vmem(f"buffer_load_dwordx4 v3, s[32:35], s55 offen{SC} lds", tag)
    a("s_add_u32 m0, s54, 65536")
    a("s_add_u32 s54, s54, 4096")
    a.vmem(f"buffer_load_dwordx4 v3, s[32:35], s67 offen{SC} lds", tag)
    a("s_add_u32 s55, s55, 4096")

def wo_dma(a):
    a("s_mov_b32 m0, s58")
    a("s_nop 0")
    a(f"buffer_load_dwordx4 v{VWO}, s[16:19], s59 offen lds")
    a("s_add_u32 m0, s58, 65536")
    a("s_add_u32 s58, s58, 4096")
    a(f"buffer_load_dwordx4 v{VWO}, s[20:23], s59 offen lds")
    a("s_add_u32 s59, s59, 32768")

def phase2(a):
    M1, M2 = 146, 147
    a("s_lshl_b32 s45, s45, 2")
    a("s_and_b32 s47, s46, 3")
    a("s_add_u32 s45, s45, s47")
    a("s_lshr_b32 s46, s2, 5")
    a("s_and_b32 s47, s44, 3")
    a("s_lshr_b32 s48, s44, 2")
    a("v_lshlrev_b32 v3, 4, v1")
    a("s_lshl_b32 s49, s45, 16")
    a("s_lshl_b32 s50, s48, 5")
    a("s_add_u32 s50, s50, s47")
    a("s_lshl_b32 s50, s50, 10")
    a("s_add_u32 s51, s49, s50")
    a(f"s_add_u32 s51, s51, {WS_KB}")
    a("s_lshl_b32 s52, s46, 3")
    a("s_lshl_b32 s53, s47, 1")
    a("s_add_u32 s52, s52, s53")
    a("s_lshl_b32 s53, s52, 10")
    a("s_add_u32 s53, s53, s49")
    a(f"s_add_u32 s53, s53, {WS_QB}")
    a("s_add_u32 s56, s52, s48")
    a("s_lshl_b32 s57, s56, 5")
    a("s_add_u32 s57, s57, s45")
    a("s_and_b32 s43, s2, 7")
    a("s_lshl_b32 s41, s43, 12")
    a(f"s_add_u32 s41, s41, {WS_F1}")
    a("s_lshl_b32 s42, s43, 11")
    a(f"s_add_u32 s42, s42, {WS_F2}")
    a(f"v_and_b32 v{VL8}, 31, v1")
    a(f"v_lshlrev_b32 v{VL8}, 7, v{VL8}")
    a("s_mov_b32 s54, s50")
    a("s_mov_b32 s55, s51")
    a("s_cmp_lg_u32 s44, 0")
    a("s_cbranch_scc1 L_p2_nopoll")
    a(f"buffer_load_dword v{VPOLL}, v{VL8}, s[32:35], s41 offen{SC}")
    a.label("L_p2_nopoll")
    stamp(a, 4)
    gate_job(a)
    a("v_and_b32 v6, 7, v1")
    a("v_lshrrev_b32 v5, 2, v1")
    a("v_and_b32 v5, 4, v5")
    a("v_xor_b32 v5, v5, v6")
    a("v_lshlrev_b32 v5, 4, v5")
    a("v_lshrrev_b32 v6, 3, v1")
    a(f"v_lshl_add_u32 v{VWO}, v6, 10, v5")
    a(f"v_mov_b32 v{IDX}, 0xdddddddd")
    a("v_lshrrev_b32 v6, 5, v1")
    a("s_lshl_b32 s60, s48, 15")
    a(f"v_add_u32 v{VK0}, s60, v3")
    a("v_and_b32 v7, 15, v1")
    a("v_lshlrev_b32 v7, 4, v7")
    a("v_lshl_add_u32 v7, v6, 8, v7")
    a("s_add_u32 s60, s60, 65536")
    a(f"v_add_u32 v{VV0}, s60, v7")
    a("v_and_b32 v5, 27, v1")
    a("v_cmp_eq_u32 vcc, 16, v5")
    a("v_mov_b32 v5, 0x3f803f80")
    for i in range(16): a(f"v_cndmask_b32 v{VA[0]+i}, 0, v5, vcc")
    a("s_mov_b32 s62, 0x0000ffff")
    a("s_mov_b32 s63, 0x0000ffff")
    a("s_mov_b32 s65, 0")
    a("s_and_b32 s61, s2, 1")
    a("s_lshl_b32 s61, s61, 2")
    a("s_and_b32 s60, s45, 3")
    a("s_add_u32 s61, s61, s60")
    a("s_lshl_b32 s61, s61, 7")
    J = OPT["jobs"]
    a("s_cmp_eq_u32 s36, 0")
    a(f"s_cselect_b32 s66, 0, {(1 << J[5]) | (1 << J[6]) | (1 << J[7])}")
    a(f"s_cselect_b32 s60, {1 << J[0]}, {1 << J[8]}")
    a(f"s_cselect_b32 s72, 10, {10 | (1 << (J[8]-1))}")
    a("s_cmp_eq_u32 s44, 0")
    a("s_cselect_b32 s60, s60, 0")
    a("s_or_b32 s66, s66, s60")
    a("s_cmp_eq_u32 s44, s46")
    a(f"s_cselect_b32 s60, {(1 << J[1]) | (1 << J[2]) | (1 << J[3]) | (1 << J[4])}, 0")
    a("s_or_b32 s66, s66, s60")
    a("s_or_b32 s72, s72, s66")
    assert J[0] == 2 and J[8] % 2 == 0 and J[8] - 1 > J[7]
    def zero_acc():
        for i in range(0, 32, 2): a(f"v_mov_b64 v[{O[0]+i}:{O[0]+i+1}], 0")
        for i in range(8, 16, 2): a(f"v_mov_b64 v[{S4[1][1]+i}:{S4[1][1]+i+1}], 0")
        a(f"v_mov_b32 v{VK}, v{VK0}")
        a(f"v_mov_b32 v{VV}, v{VV0}")
        a("s_mov_b32 s58, s50")
        a("s_lshl_b32 s59, s50, 3")
        a("s_add_u32 s59, s59, s61")
        a("s_mov_b32 s64, 0")
    def prime_reads():
        a(f"ds_read_b128 {vr(KB_[0],4)}, v{VK}")
        a(f"ds_read_b128 {vr(KB_[1],4)}, v{VK} offset:1024")
        a("s_mov_b64 exec, s[62:63]")
        a(f"ds_read_b128 {vr(VA[0],4)}, v{VV}")
        a(f"ds_read_b128 {vr(VBB[0],4)}, v{VV} offset:512")
        a("s_mov_b64 exec, -1")
    zero_acc()
    a(f"v_mov_b32 v5, {FLAG}")
    a("v_mov_b32 v7, 0")
    a("s_lshl_b32 s60, s57, 2")
    a(f"s_add_u32 s60, s60, {WS_GATE}")
    a("s_cmp_lg_u32 s44, 0")
    a("s_cbranch_scc1 L_p2_go")
    poll(a, "L_pollF1", 1, VL8, VPOLL, "s41", first_issued=True)
    a.label("L_p2_go")
    a("s_barrier")
    stamp(a, 5)
    kv_dma(a, "r0")
    a.vmem(f"buffer_load_dwordx4 {vr(Q[0],4)}, v3, s[32:35], s53 offen{SC}", "q")
    a.vmem(f"buffer_load_dwordx4 {vr(Q[1],4)}, v3, s[32:35], s53 offen offset:1024{SC}", "q")
    a("ds_write_b32 v5, v7")
    kv_dma(a, "r1")
    a("s_mov_b64 exec, 1")
    a.vmem(f"buffer_store_dword v{SCR+12}, v7, s[32:35], s60 offen{SC}", "gs")
    a("s_mov_b64 exec, -1")
    srd(a, 16, 76, 77, 0x80000)
    srd(a, 20, 78, 79, 0x80000)
    a.wait_vm("q", "r0")
    a("s_barrier")
    stamp(a, 6)
    a(f"ds_read_b128 {vr(SCR+16,4)}, v3")
    prime_reads()
    a("s_cmp_lg_u32 s36, 0")
    a("s_cbranch_scc1 L_p2_nokvp")
    a(f"buffer_store_dwordx4 {vr(PHI,4)}, v240, s[32:35], s73 offen{SC}")
    a(f"buffer_store_dwordx4 {vr(PHI+4,4)}, v241, s[32:35], s73 offen{SC}")
    a.label("L_p2_nokvp")
    a("s_waitcnt lgkmcnt(4)")
    mfma(a, S4[0][0], SCR+16, Q[0], "0")
    mfma(a, S4[1][0], SCR+16, Q[1], "0")
    maxtree(a, M1, S4[0][0], True)
    maxtree(a, M2, S4[1][0], True)
    a.label("L_setmax")
    a.nop(2)
    a(f"v_permlane32_swap_b32 v{M1}, v{M2}")
    a(f"v_max_f32 v{M1}, v{M1}, v{M2}")
    a(f"v_sub_f32 v{M1}, 0, v{M1}")
    a(f"v_mov_b32 v{M2}, v{M1}")
    a(f"v_permlane32_swap_b32 v{M1}, v{M2}")
    for i in range(0, 16, 2): a(f"v_pk_mov_b32 {vr(C[0]+i,2)}, {vr(M1,2)}, {vr(M1,2)} op_sel:[0,0]")
    a("s_waitcnt lgkmcnt(0)")
    mfma(a, S4[0][0], KB_[0], Q[0], C[0])
    for i in range(0, 16, 2): a(f"v_pk_mov_b32 {vr(C[1]+i,2)}, {vr(M1,2)}, {vr(M1,2)} op_sel:[1,1]")
    mfma(a, S4[1][0], KB_[0], Q[1], C[1])
    a.nop(4)
    a.raw(".p2align 6")
    a.label("L_loop")
    loop_start = len(a.lines)
    p0, p1, p2 = OPT["pos"]
    for t in range(4):
        for qi in range(2):
            s = S4[qi][t & 1]
            for j in range(16):
                a(f"v_exp_f32 v{s+j}, v{s+j}")
                if j == p0:
                    tp = t if qi == 1 else t - 1
                    smfmac(a, O[1-qi], VBB[tp & 1], S4[1-qi][tp & 1]+8, IDX)
                    if qi == 1:
                        if t == 0:
                            a("s_bitcmp1_b32 s72, s64")
                            a("s_cbranch_scc1 L_job")
                            a.label("L_job_retA")
                            a("s_add_u32 s64, s64, 1")
                        if t == 2:
                            a("s_bitcmp1_b32 s72, s64")
                            a("s_cbranch_scc1 L_job")
                            a("s_waitcnt vmcnt(2)")
                            a.label("L_job_retB")
                            a("s_barrier")
                            a("s_cmp_lt_u32 s64, 12")
                            a("s_cbranch_scc0 L_nokv")
                            kv_dma(a)
                            a("s_cmp_eq_u32 s64, 1")
                            a("s_cbranch_scc1 L_nowo")
                            a.label("L_nokv")
                            wo_dma(a)
                            a.label("L_nowo")
                            a("s_add_u32 s64, s64, 1")
                        a(f"ds_read_b128 {vr(KB_[t&1],4)}, v{VK} offset:{(t+2)*1024}")
                        a("s_mov_b64 exec, s[62:63]")
                        a(f"ds_read_b128 {vr(VA[(t+1)&1],4)}, v{VV} offset:{(t+1)*1024}")
                        a(f"ds_read_b128 {vr(VBB[(t+1)&1],4)}, v{VV} offset:{(t+1)*1024+512}")
                        a("s_mov_b64 exec, -1")
                if j == p1:
                    if qi == 0: a("s_waitcnt lgkmcnt(0)")
                    mfma(a, S4[qi][(t+1) & 1], KB_[(t+1) & 1], Q[qi], C[qi])
                    if qi == 1 and t == 3:
                        a(f"v_add_u32 v{VK}, 4096, v{VK}")
                        a(f"v_add_u32 v{VV}, 4096, v{VV}")
                if j == p2:
                    smfmac(a, O[qi], VA[t & 1], s, IDX)
                    if qi == 1 and t == 3:
                        a("s_cmp_lg_u32 s64, 16")
    loop_end = len(a.lines)
    a("s_cbranch_scc1 L_loop")
    a.nop(2)
    smfmac(a, O[1], VBB[1], S4[1][1]+8, IDX)
    stamp(a, 7)
    SX = 48
    a("s_mul_i32 s67, s44, 2304")
    a(f"s_add_u32 s67, s67, {XCH}")
    a("v_add_u32 v5, s67, v3")
    a("v_lshl_add_u32 v6, v1, 2, s67")
    a("s_xor_b32 s68, s44, 4")
    a("s_mul_i32 s68, s68, 2304")
    a(f"s_add_u32 s68, s68, {XCH}")
    a("v_add_u32 v7, s68, v3")
    a("v_lshl_add_u32 v4, v1, 2, s68")
    a(f"v_mov_b32 v148, {FLAG}")
    a("s_lshl_b32 s70, s56, 16")
    a("s_lshl_b32 s71, s45, 10")
    a("s_add_u32 s71, s70, s71")
    a(f"s_add_u32 s71, s71, {WS_OF+32768}")
    a("s_cmp_eq_u32 s48, 0")
    a("s_waitcnt lgkmcnt(0)")
    a("s_cbranch_scc1 L_send1")
    a(f"ds_write_b128 v5, {vr(O[0],4)}")
    a(f"ds_write_b128 v5, {vr(O[0]+4,4)} offset:1024")
    a(f"ds_write_b32 v6, v{O[0]+8} offset:2048")
    a("s_branch L_sent")
    a.label("L_send1")
    a(f"ds_write_b128 v5, {vr(O[1],4)}")
    a(f"ds_write_b128 v5, {vr(O[1]+4,4)} offset:1024")
    a(f"ds_write_b32 v6, v{O[1]+8} offset:2048")
    a.label("L_sent")
    a(f"v_add_f32_e64 v{M1}, |v{O[0]}|, |v{O[0]+1}|")
    a(f"v_add_f32_e64 v{M2}, |v{O[1]}|, |v{O[1]+1}|")
    for i in range(2, 9):
        a(f"v_add_f32_e64 v{M1}, v{M1}, |v{O[0]+i}|")
        a(f"v_add_f32_e64 v{M2}, v{M2}, |v{O[1]+i}|")
    a(f"v_add_f32 v{M1}, v{M1}, v{M2}")
    a(f"v_mov_b32 v{M2}, {f32(OPT['thr'])}")
    a(f"v_cmp_nlt_f32 vcc, v{M1}, v{M2}")
    a(f"v_mov_b32 v{M2}, 1")
    a("s_nop 1")
    a("s_cbranch_vccz L_noflag")
    a(f"ds_write_b32 v148, v{M2}")
    a.label("L_noflag")
    a("s_cbranch_scc1 L_keep0")
    a("s_waitcnt lgkmcnt(0)")
    for i in range(0, 10, 2): a(f"v_mov_b64 v[{O[0]+i}:{O[0]+i+1}], v[{O[1]+i}:{O[1]+i+1}]")
    a.label("L_keep0")
    a("s_waitcnt lgkmcnt(0)")
    a("s_barrier")
    a(f"ds_read_b32 v{M2}, v148")
    a(f"ds_read_b32 v{SX+8}, v4 offset:2048")
    a(f"ds_read_b128 {vr(SX,4)}, v7")
    a(f"ds_read_b128 {vr(SX+4,4)}, v7 offset:1024")
    wo_dma(a)
    a("s_waitcnt lgkmcnt(2)")
    a(f"v_readfirstlane_b32 s69, v{M2}")
    a(f"v_add_f32 v{O[0]+8}, v{O[0]+8}, v{SX+8}")
    a(f"v_rcp_f32 v{M1}, v{O[0]+8}")
    a("s_cmp_lg_u32 s69, 0")
    a("s_cbranch_scc1 L_maybe_fb")
    a.label("L_fin")
    a("s_waitcnt lgkmcnt(0)")
    for i in range(0, 8, 2): a(f"v_pk_add_f32 {vr(O[0]+i,2)}, {vr(O[0]+i,2)}, {vr(SX+i,2)}")
    for i in range(0, 8, 2): a(f"v_pk_mul_f32 {vr(O[0]+i,2)}, {vr(O[0]+i,2)}, {vr(M1,2)} op_sel_hi:[1,0]")
    for q in range(4): a(f"v_cvt_pk_bf16_f32 v{248+q}, v{O[0]+2*q}, v{O[0]+2*q+1}")
    a(f"buffer_store_dwordx4 v[248:251], v3, s[32:35], s71 offen{SC}")

    def rare(a):
        PL, ZL = SCR, SCR + 16
        def ret():
            a("s_branch L_job_ret")
        a.label("L_job")
        a("s_waitcnt vmcnt(0)")
        a("s_bitcmp1_b32 s66, s64")
        a("s_cbranch_scc0 L_job_ret")
        names = ["f2", "p2", "ld", "red", "f5", "p5", "kv", "oa", "f4"]
        for n, nm in enumerate(names[1:], 1):
            a(f"s_cmp_eq_u32 s64, {J[n]}")
            a(f"s_cbranch_scc1 L_job_{nm}")
        flag_store(a, "s39", 4)
        a.label("L_job_ret")
        a("s_bitcmp1_b32 s64, 0")
        a("s_cbranch_scc1 L_job_retB")
        a("s_branch L_job_retA")
        a.label("L_job_p2")
        a(f"v_and_b32 v4, 0x7ff, v{VL8}")
        a(f"buffer_load_dword v{VPOLL}, v4, s[32:35], s42 offen{SC}")
        ret()
        a.label("L_job_ld")
        a(f"v_and_b32 v4, 0x7ff, v{VL8}")
        poll(a, "L_pollF2", 1, 4, VPOLL, "s42", first_issued=True)
        a("v_lshrrev_b32 v5, 4, v1")
        a("v_lshlrev_b32 v5, 14, v5")
        a("v_and_b32 v6, 15, v1")
        a("v_lshl_add_u32 v6, v6, 4, v5")
        a("s_lshl_b32 s68, s46, 8")
        a(f"s_add_u32 s67, s49, {WS_KVP}")
        a("s_add_u32 s68, s68, s67")
        a("s_lshl_b32 s69, s46, 4")
        a("s_add_u32 s67, s67, s69")
        for p in range(4):
            a(f"s_add_u32 s69, s68, {p*4096}")
            a(f"buffer_load_dwordx4 {vr(PL+4*p,4)}, v6, s[32:35], s69 offen{SC}")
        for p in range(4):
            a(f"s_add_u32 s69, s67, {p*4096+2048}")
            a(f"buffer_load_dwordx4 {vr(ZL+4*p,4)}, v5, s[32:35], s69 offen{SC}")
        ret()
        a.label("L_job_red")
        B2 = (PL, ZL)
        for base in B2:
            for j in (0, 2):
                a(f"v_pk_add_f32 {vr(base+j,2)}, {vr(base+j,2)}, {vr(base+4+j,2)}")
                a(f"v_pk_add_f32 {vr(base+8+j,2)}, {vr(base+8+j,2)}, {vr(base+12+j,2)}")
        for base in B2:
            for j in (0, 2): a(f"v_pk_add_f32 {vr(base+j,2)}, {vr(base+j,2)}, {vr(base+8+j,2)}")
        for sw in ("32", "16"):
            for base in B2:
                for j in (0, 2): a(f"v_mov_b64 {vr(base+4+j,2)}, {vr(base+j,2)}")
            for base in B2:
                for j in range(4): a(f"v_permlane{sw}_swap_b32 v{base+j}, v{base+4+j}")
            for base in B2:
                for j in (0, 2): a(f"v_pk_add_f32 {vr(base+j,2)}, {vr(base+j,2)}, {vr(base+4+j,2)}")
        for base in B2:
            a(f"v_cvt_pk_bf16_f32 v{base+4}, v{base}, v{base+1}")
            a(f"v_cvt_pk_bf16_f32 v{base+5}, v{base+2}, v{base+3}")
        a("v_cmp_eq_u32 vcc, 16, v1")
        a("s_lshr_b32 s67, s46, 2")
        a("s_mul_i32 s67, s67, 544")
        a(f"v_cndmask_b32 v{PL+4}, v{PL+4}, v{ZL+4}, vcc")
        a(f"v_cndmask_b32 v{PL+5}, v{PL+5}, v{ZL+5}, vcc")
        a("s_and_b32 s68, s46, 1")
        a("s_mul_i32 s68, s68, 272")
        a("s_add_u32 s67, s67, s68")
        a("s_and_b32 s68, s46, 2")
        a("s_lshl_b32 s68, s68, 2")
        a("s_add_u32 s67, s67, s68")
        a("s_lshl_b32 s68, s45, 11")
        a("s_add_u32 s67, s67, s68")
        a(f"s_add_u32 s67, s67, {WS_KVF}")
        a("s_mov_b64 exec, 0x1ffff")
        a(f"buffer_store_dwordx2 {vr(PL+4,2)}, v3, s[32:35], s67 offen{SC}")
        a("s_mov_b64 exec, -1")
        ret()
        a.label("L_job_f5")
        a("s_lshl_b32 s67, s45, 10")
        a("s_lshl_b32 s68, s46, 7")
        a("s_add_u32 s67, s67, s68")
        a(f"s_add_u32 s67, s67, {WS_F5}")
        flag_store(a, "s67", 4)
        ret()
        def f5addr():
            a(f"v_and_b32 v4, 0x7ff, v{VL8}")
            a("s_lshl_b32 s67, s38, 10")
            a(f"s_add_u32 s67, s67, {WS_F5}")
        a.label("L_job_p5")
        f5addr()
        a(f"buffer_load_dword v{VPOLL+1}, v4, s[32:35], s67 offen{SC}")
        ret()
        a.label("L_job_kv")
        f5addr()
        poll(a, "L_pollF5", 1, 4, VPOLL+1, "s67", first_issued=True)
        a("v_and_b32 v5, 31, v1")
        a("v_min_u32 v5, 16, v5")
        a("v_lshrrev_b32 v6, 5, v1")
        a("v_mul_u32_u24 v6, 272, v6")
        a("v_lshl_add_u32 v5, v5, 4, v6")
        a("s_lshl_b32 s67, s38, 11")
        a(f"s_add_u32 s67, s67, {WS_KVF}")
        for e in range(2):
            for sg in range(2):
                a(f"buffer_load_dwordx4 {vr(SCR+8*e+4*sg,4)}, v5, s[32:35], s67 offen offset:{e*2048+sg*544}{SC}")
        ret()
        a.label("L_job_oa")
        for e in range(2):
            mfma(a, SCR+16+16*e, SCR+8*e, PHI+8*e, "0")
            mfma(a, SCR+16+16*e, SCR+8*e+4, PHI+8*e+4, SCR+16+16*e)
        a("s_lshl_b32 s67, s37, 16")
        a("s_lshl_b32 s68, s38, 10")
        a("s_add_u32 s67, s67, s68")
        a(f"s_add_u32 s67, s67, {WS_OF}")
        for e in range(2):
            D = SCR+16+16*e
            a(f"v_add_f32 v{4+2*e}, {f32(1e-6)}, v{D+8}")
            a(f"v_rcp_f32 v{4+2*e}, v{4+2*e}")
            for i in range(0, 8, 2): a(f"v_pk_mul_f32 {vr(D+i,2)}, {vr(D+i,2)}, {vr(4+2*e,2)} op_sel_hi:[1,0]")
            for q in range(4): a(f"v_cvt_pk_bf16_f32 v{SCR+4*e+q}, v{D+2*q}, v{D+2*q+1}")
            a(f"buffer_store_dwordx4 {vr(SCR+4*e,4)}, v3, s[32:35], s67 offen offset:{e*1024}{SC}")
        ret()
        a.label("L_job_f4")
        a("s_lshr_b32 s67, s37, 2")
        a("s_lshl_b32 s67, s67, 3")
        a("s_and_b32 s68, s2, 7")
        a("s_add_u32 s67, s67, s68")
        a("s_lshl_b32 s67, s67, 7")
        a(f"s_add_u32 s67, s67, {WS_F4}")
        flag_store(a, "s67", 4)
        ret()
        a.label("L_maybe_fb")
        a("s_cmp_lg_u32 s65, 0")
        a("s_cbranch_scc1 L_fin")
        a("s_mov_b32 s65, 1")
        a("s_mov_b32 s72, 10")
        a("s_mov_b32 s54, s50")
        a("s_mov_b32 s55, s51")
        a("s_waitcnt vmcnt(0) lgkmcnt(0)")
        a("s_barrier")
        for rr in range(8): kv_dma(a)
        a("s_add_u32 s54, s50, 8192")
        a("s_add_u32 s55, s51, 8192")
        a(f"v_mov_b32 v{M1}, 0xff800000")
        a(f"v_mov_b32 v{M2}, 0xff800000")
        a("v_mov_b32 v4, v3")
        a("s_mov_b32 s66, 64")
        a("s_waitcnt vmcnt(0)")
        a("s_barrier")
        a.label("L_fbloop")
        a(f"ds_read_b128 {vr(SCR+16,4)}, v4")
        a("v_add_u32 v4, 1024, v4")
        a("s_waitcnt lgkmcnt(0)")
        mfma(a, S4[0][0], SCR+16, Q[0], "0")
        mfma(a, S4[1][0], SCR+16, Q[1], "0")
        a.nop(12)
        maxtree(a, M1, S4[0][0], False)
        maxtree(a, M2, S4[1][0], False)
        a("s_sub_u32 s66, s66, 1")
        a("s_cmp_lg_u32 s66, 0")
        a("s_cbranch_scc1 L_fbloop")
        zero_acc()
        prime_reads()
        a("s_branch L_setmax")
    return (loop_start, loop_end), rare

def gate_job(a):
    X, W, t = 248, 252, SCR+8
    for q in range(4):
        a(f"v_lshlrev_b32 v{t}, 16, v{X+q}")
        a(f"v_lshlrev_b32 v{t+2}, 16, v{W+q}")
        a(f"v_and_b32 v{t+1}, 0xffff0000, v{X+q}")
        a(f"v_and_b32 v{t+3}, 0xffff0000, v{W+q}")
        a(f"v_pk_mul_f32 {vr(t,2)}, {vr(t,2)}, {vr(t+2,2)}")
        a(f"v_cvt_pk_bf16_f32 v{t+2}, v{t}, v{t+1}")
        d = t+4 if q == 0 else t
        a(f"v_lshlrev_b32 v{d}, 16, v{t+2}")
        a(f"v_and_b32 v{d+1}, 0xffff0000, v{t+2}")
        if q: a(f"v_pk_add_f32 {vr(t+4,2)}, {vr(t+4,2)}, {vr(t,2)}")
    s = t+4
    a(f"v_add_f32 v{s}, v{s}, v{s+1}")
    for sw in ("32", "16"):
        a(f"v_mov_b32 v{s+1}, v{s}")
        a(f"v_permlane{sw}_swap_b32 v{s}, v{s+1}")
        a(f"v_add_f32 v{s}, v{s}, v{s+1}")
    for r in (8, 4, 2, 1):
        a(f"v_add_f32_dpp v{s}, v{s}, v{s} row_ror:{r} row_mask:0xf bank_mask:0xf")
    a(f"v_cvt_pk_bf16_f32 v{s}, v{s}, v{s}")
    a(f"v_lshlrev_b32 v{s}, 16, v{s}")
    a(f"v_mul_f32 v{s}, {f32(-LOG2E)}, v{s}")
    a(f"v_exp_f32 v{s}, v{s}")
    a(f"v_add_f32 v{s}, 1.0, v{s}")
    a(f"v_rcp_f32 v{s}, v{s}")
    a(f"v_cvt_pk_bf16_f32 v{s}, v{s}, v{s}")
    a(f"v_lshlrev_b32 v{s}, 16, v{s}")

def phase3(a):
    WO, OFR, ACC = 96, 224, 32
    a("s_lshl_b32 s42, s46, 12")
    a("s_lshl_b32 s41, s45, 7")
    a("s_add_u32 s41, s41, s42")
    a(f"s_add_u32 s41, s41, {WS_F3}")
    a("s_and_b32 s47, s44, 1")
    a("s_lshr_b32 s48, s44, 1")
    a("s_bfe_u32 s49, s2, 0x20001")
    a("s_lshl_b32 s50, s46, 2")
    a("s_add_u32 s49, s49, s50")
    a("s_lshl_b32 s49, s49, 1")
    a("s_add_u32 s49, s49, s47")
    a("s_lshl_b32 s50, s49, 7")
    a(f"s_add_u32 s51, s50, {WS_GATE}")
    a("s_lshr_b32 s43, s49, 2")
    a("s_lshl_b32 s43, s43, 10")
    a(f"s_add_u32 s43, s43, {WS_F4}")
    a(f"s_add_u32 s50, s42, {WS_F3}")
    a(f"v_mov_b32 v9, v{VL8}")
    a(f"v_and_b32 v7, 0x3ff, v{VL8}")
    a("s_lshl_b32 s52, s49, 16")
    a("s_lshl_b32 s53, s48, 13")
    a("s_add_u32 s52, s52, s53")
    a(f"s_add_u32 s52, s52, {WS_OF}")
    a("v_and_b32 v8, 31, v1")
    a("v_lshlrev_b32 v8, 2, v8")
    a("v_lshrrev_b32 v4, 5, v1")
    a("v_bfe_u32 v5, v1, 2, 2")
    a("v_lshl_add_u32 v5, v4, 2, v5")
    a("v_lshlrev_b32 v5, 7, v5")
    a("v_bfe_u32 v6, v1, 3, 1")
    a("v_lshl_add_u32 v5, v6, 6, v5")
    a("v_bfe_u32 v6, v1, 4, 1")
    a("v_lshl_add_u32 v5, v6, 5, v5")
    a("v_and_b32 v6, 3, v1")
    a("v_lshl_add_u32 v5, v6, 3, v5")
    a("s_lshl_b32 s53, s48, 14")
    a("v_add_u32 v10, s53, v5")
    a("v_xor_b32 v11, 64, v10")
    a("v_add_u32 v18, 65536, v10")
    a("v_add_u32 v19, 65536, v11")
    a(f"buffer_load_dword v12, v7, s[32:35], s43 offen{SC}")
    flag_store(a, "s41", 26, wg="L_f3done")
    stamp(a, 8)
    poll(a, "L_pollF4", 1, 7, 12, "s43", landed=True)
    def oloads(off):
        for i in range(8):
            if i == 0: a(f"s_add_u32 s53, s52, {off}")
            if i == 4: a(f"s_add_u32 s53, s52, {off+4096}")
            a.vmem(f"buffer_load_dwordx4 {vr(OFR+4*i,4)}, v3, s[32:35], s53 offen offset:{(i%4)*1024}{SC}", f"o{i}")
    oloads(0)
    for br in range(2):
        for i in range(8):
            for ct in range(2):
                f = WO + 64*br + 8*i + 4*ct
                a(f"ds_read_b64_tr_b16 {vr(f,2)}, v{10+8*br+ct} offset:{i*2048}")
                a(f"ds_read_b64_tr_b16 {vr(f+2,2)}, v{10+8*br+ct} offset:{i*2048+1024}")
            if i % 2 == 1: a("s_waitcnt lgkmcnt(4)")
    srd(a, 24, 74, 75, 0x200000)
    a("s_lshl_b32 s53, s47, 15")
    a("s_lshl_b32 s54, s48, 11")
    a("s_add_u32 s54, s54, s53")
    a("v_add_u32 v13, s54, v3")
    a("s_lshl_b32 s54, s48, 13")
    a("s_add_u32 s54, s54, s53")
    a("v_add_u32 v14, s54, v3")
    a("v_and_b32 v5, 31, v1")
    a("v_lshlrev_b32 v5, 10, v5")
    a("v_lshl_add_u32 v15, v4, 4, v5")
    a("s_lshl_b32 s55, s49, 15")
    a("s_add_u32 s55, s55, s61")
    a("s_lshl_b32 s54, s48, 5")
    a("s_add_u32 s55, s55, s54")
    for i in range(8):
        a.wait_vm(f"o{i}")
        for ct in range(2): mfma(a, ACC+16*ct, WO+8*i+4*ct, OFR+4*i, "0" if i == 0 else ACC+16*ct)
    a("s_waitcnt lgkmcnt(0)")
    a("s_cmp_lg_u32 s44, 0")
    a("s_cbranch_scc1 L_p3_go")
    poll(a, "L_pollF3", 1, 9, 12, "s50")
    a.label("L_p3_go")
    a("s_barrier")
    stamp(a, 9)
    a.vmem(f"buffer_load_dword v16, v8, s[32:35], s51 offen{SC}", "g")
    oloads(32768)
    a.wait_vm("g")
    a("v_sub_f32 v17, 1.0, v16")
    a("v_cvt_pk_bf16_f32 v17, v17, v17")
    a("v_lshlrev_b32 v17, 16, v17")
    for j in range(0, 32, 2): a(f"v_pk_mul_f32 {vr(ACC+j,2)}, {vr(ACC+j,2)}, v[16:17] op_sel_hi:[1,0]")
    for i in range(8):
        a.wait_vm(f"o{i}")
        for ct in range(2): mfma(a, ACC+32+16*ct, WO+64+8*i+4*ct, OFR+4*i, "0" if i == 0 else ACC+32+16*ct)
    for p in range(4):
        for j in range(0, 8, 2):
            r = ACC+8*p+j
            a(f"v_pk_fma_f32 {vr(r,2)}, {vr(r+32,2)}, v[16:17], {vr(r,2)} op_sel:[0,1,0]")
        for q in range(2): a(f"ds_write_b128 v13, {vr(ACC+8*p+4*q,4)} offset:{p*8192+q*1024}")
    a("s_waitcnt lgkmcnt(0)")
    a("s_barrier")
    for src in range(4):
        for q in range(2): a(f"ds_read_b128 {vr(64+8*src+4*q,4)}, v14 offset:{src*2048+q*1024}")
    a("s_waitcnt lgkmcnt(4)")
    for j in range(0, 8, 2): a(f"v_pk_add_f32 {vr(64+j,2)}, {vr(64+j,2)}, {vr(72+j,2)}")
    a("s_waitcnt lgkmcnt(0)")
    for j in range(0, 8, 2): a(f"v_pk_add_f32 {vr(80+j,2)}, {vr(80+j,2)}, {vr(88+j,2)}")
    for j in range(0, 8, 2): a(f"v_pk_add_f32 {vr(64+j,2)}, {vr(64+j,2)}, {vr(80+j,2)}")
    for q in range(4): a(f"v_cvt_pk_bf16_f32 v{20+q}, v{64+2*q}, v{64+2*q+1}")
    a("v_permlane32_swap_b32 v20, v22")
    a("v_permlane32_swap_b32 v21, v23")
    a("buffer_store_dwordx4 v[20:23], v15, s[24:27], s55 offen")
    a("s_or_b32 s54, s2, s44")
    a("s_cmp_lg_u32 s54, 0")
    a("s_cbranch_scc1 L_noE")
    a("v_mov_b32 v24, s40")
    a(f"v_mov_b32 v25, {WS_E}")
    a("s_mov_b64 exec, 1")
    a("buffer_store_dword v24, v25, s[32:35], 0 offen")
    a("s_mov_b64 exec, -1")
    a.label("L_noE")
    flush_stamps(a)

def main(out):
    hdr = open("cdna_kernels/" + NAME + ".s.ref").read().split("; Override launch")[0]
    txt = hdr + "; @launch grid=(256,1,1) block=(512,1,1) lds=163840\n"
    txt += '.amdgcn_target "amdgcn-amd-amdhsa--gfx950"\n.text\n'
    nm = NAME + "_kernel"
    a = Asm()
    a.label(nm)
    phase1(a)
    r, rare = phase2(a)
    body = a.lines[r[0]:r[1]]
    errs = check(body + body, "loop")
    phase3(a)
    a.label("L_end")
    a("s_endpgm")
    rare(a)
    a.lines, added = autonop(a.lines)
    errs += check(a.lines, nm)
    txt += f".globl {nm}\n.p2align 8\n.type {nm},@function\n" + a.text()
    txt += f""".section .rodata,"a"
.p2align 6
.amdhsa_kernel {nm}
  .amdhsa_next_free_vgpr 256
  .amdhsa_next_free_sgpr 102
  .amdhsa_accum_offset 256
  .amdhsa_group_segment_fixed_size 0
  .amdhsa_kernarg_size 88
  .amdhsa_user_sgpr_count 2
  .amdhsa_user_sgpr_kernarg_segment_ptr 1
  .amdhsa_system_sgpr_workgroup_id_x 1
.end_amdhsa_kernel
"""
    open(out, "w").write(txt)
    for e in errs: print("HAZARD", e)
    print("written", out, len(txt), "bytes;", len(errs), "hazards;", added, "auto nops")

if __name__ == "__main__":
    if "--stamps" in sys.argv:
        STAMPS = True; sys.argv.remove("--stamps")
    for x in list(sys.argv):
        if x.startswith("--o:"):
            k, v = x[4:].split("=")
            OPT[k] = eval(v); sys.argv.remove(x)
    main(sys.argv[1] if len(sys.argv) > 1 else "cdna_kernels/" + NAME + ".s")
```

```python
import sys, struct
from asmlib import *

NAME = "gated_mix__linear_kernel_hedgehog__mha_block__prompt"
WS_E, WS_F1, WS_F2, WS_F3, WS_GATE, WS_F4, WS_F5, WS_KVF = 0x0, 0x10000, 0x20000, 0x30000, 0x40000, 0x50000, 0x60000, 0x70000
WS_QB, WS_KB, WS_VB, WS_KVP, WS_OF = 0x200000, 0x400000, 0x600000, 0x800000, 0xA00000
WS_USED = 0x2100000
def f32(x): return "0x%08x" % struct.unpack("<I", struct.pack("<f", x))[0]
LOG2E = 1.4426950408889634
STAMPS = False
OPT = dict(osleep=2, cpf=1, p0fill=0, asplit=8, y_nojob=0, y_nowo=0, y_nobar=0, y_kvpre=0, x_pre=0, x_nolds=0, x_nodma=0, dmaspread=1, dmak=0, rsplit=(0,3,5,7), rp=1, pos=(1, 6, 11), thr=2.0**100, cyc=0, dbg=0, amp=None, f1pos=1, outsc="", fill=3,
           f2it=0, f4it=5, kvs=(0, 1), wos=(6, 7),
           sched={(1, 2): "p2", (1, 6): "ld", (2, 2): "red", (2, 4): "f5", (3, 4): "p5", (4, 0): "kv", (4, 3): "om0", (4, 4): "om1", (4, 5): "oa0", (4, 6): "oa1",
                  (6, 5): "p4", (7, 1): "c4", (7, 2): "la0", (7, 3): "la1", (7, 4): "la2", (7, 5): "la3"})
SC = " sc1"
POLL_LIMIT = 200000
NST = 11

TAG, F1OFF, F2OFF, F1POLL, W, HG, J, TY, RB16, XOFF, WOFF, MX, MW, VOFF, QK0, QK1, H, RB8, LDS0 = range(40, 59)
MASK = 62; KOFF, QOFF, ROLE = 64, 65, 66
L2E, KVPOFF = 72, 73
OFB = 3
OF3, OF3B, OUTOFF = 29, 30, 31
T1, H0, WOOFF, F4POLL = 36, 37, 38, 39
ATT, OWN1, GATE3 = 49, 50, 52
Q = [8, 12]; C = [16, 32]; S4 = [[48, 200], [64, 216]]; O = [80, 96]
KB_ = [112, 116]; VA = [120, 128]; VBB = [124, 132]
IDX, VK, VV, VWO, VL8, XW, XR, TR0, RW, RR, OUTA, G4 = range(136, 148)
M1, M2 = 150, 151
GV = 148
VP0, VP1 = 0, 2
SCR, PHI = 152, 232
XCH, FLAG = 131072, 155648
R_T0, R_T0W0, R_RED, R_T1, R_T1W0, R_ALL = range(6)

def mfma(a, d, A, B, Cc):
    a(f"v_mfma_f32_32x32x16_bf16 {vr(d,16)}, {vr(A,4)}, {vr(B,4)}, {Cc if isinstance(Cc,str) else vr(Cc,16)}")
def smfmac(a, d, A, B, idx):
    a(f"v_smfmac_f32_32x32x32_bf16 {vr(d,16)}, {vr(A,4)}, {vr(B,8)}, v{idx}")
def srd(a, s, lo, hi, nrec):
    a(f"s_mov_b32 s{s}, s{lo}")
    a(f"s_mov_b32 s{s+1}, s{hi}")
    a(f"s_mov_b32 s{s+2}, {nrec}")
    a(f"s_mov_b32 s{s+3}, 0x00020000")
def stamp(a, j):
    if STAMPS: a(f"s_mem{'' if OPT['cyc'] else 'real'}time s[{80+2*j}:{81+2*j}]")
def flush_stamps(a):
    if not STAMPS: return
    a("s_waitcnt vmcnt(0)")
    stamp(a, NST-1)
    a("s_waitcnt lgkmcnt(0)")
    if OPT["amp"]:
        j0, j1 = OPT["amp"]
        a(f"s_or_b32 s70, s2, s{W}")
        a("s_cmp_lg_u32 s70, 0")
        a("s_cbranch_scc1 L_end")
        a(f"s_sub_u32 s70, s{80+2*j1}, s{80+2*j0}")
        a("s_lshl_b32 s70, s70, 2")
        a.label("L_amp")
        a("s_memrealtime s[4:5]")
        a("s_waitcnt lgkmcnt(0)")
        a(f"s_sub_u32 s6, s4, s{80+2*(NST-1)}")
        a("s_cmp_lt_u32 s6, s70")
        a("s_cbranch_scc1 L_amp")
        return
    a("s_lshl_b32 s70, s2, 3")
    a(f"s_add_u32 s70, s70, s{W}")
    a("s_lshl_b32 s70, s70, 6")
    a(f"s_add_u32 s70, s70, {0x2000000}")
    a("s_mov_b64 exec, 1")
    a("v_mov_b32 v1, 0")
    for j in range(NST):
        a(f"v_mov_b32 v2, s{80+2*j}")
        a(f"buffer_store_dword v2, v1, s[32:35], s70 offen offset:{4*j}")
def pub(a, soff):
    a(f"v_mov_b32 v4, s{TAG}")
    a("v_mov_b32 v5, 0")
    a("s_mov_b64 exec, 1")
    a(f"buffer_store_dword v4, v5, s[32:35], {soff} offen{SC}")
    a("s_mov_b64 exec, -1")
def poll(a, lab, vaddr, vdst, soff, landed=False, own=None):
    a(f"s_mov_b32 s70, {POLL_LIMIT}")
    a(f"s_branch {lab}_{'cmp' if landed else 'chk'}")
    a.label(lab)
    a(f"buffer_load_dword v{vdst}, v{vaddr}, s[32:35], {soff} offen{SC}")
    a.label(lab + "_chk")
    a("s_waitcnt vmcnt(0)")
    a.label(lab + "_cmp")
    a(f"v_cmp_ne_u32 s[68:69], s{TAG}, v{vdst}")
    a("s_sub_u32 s70, s70, 1")
    a("s_or_b32 s68, s68, s69")
    if own is not None: a(f"s_and_b32 s68, s68, s{own}")
    a(f"s_cbranch_scc0 {lab}_ok")
    a("s_cmp_eq_u32 s70, 0")
    a(f"s_cbranch_scc1 {lab}_ok")
    a("s_sleep 1")
    a(f"s_branch {lab}")
    a.label(lab + "_ok")
    a.vm = []

SPINS = []
def check_flags(a, lab, vaddr_code, vdst, soff_code):
    a(f"v_cmp_ne_u32 vcc, s{TAG}, v{vdst}")
    a("s_nop 1")
    a(f"s_cbranch_vccnz {lab}_spin")
    a.label(f"{lab}_back")
    def spin(a):
        a.label(f"{lab}_spin")
        for l in vaddr_code + soff_code: a(l)
        poll(a, lab, 6, vdst, "s71", landed=True)
        a(f"s_branch {lab}_back")
    SPINS.append(spin)

class Fill:
    def __init__(self): self.g = []
    def __call__(self, *lines, after=0): self.g.append((after, list(lines)))
    def flush(self, a): self.pop(a, 10**6, 99)
    def pop(self, a, n, c):
        while n > 0 and self.g and self.g[0][0] <= c:
            _, ls = self.g.pop(0)
            for l in ls:
                if isinstance(l, tuple): a.vmem(*l)
                elif callable(l): l(a)
                else: a(l)
            n -= len(ls)

def gate_fill(f):
    X, Wt, t = 224, 228, 208
    f(lambda a: a.wait_vm("g") if "g" in a.vm else None, after=2)
    for q in range(4):
        f(f"v_lshlrev_b32 v{t}, 16, v{X+q}", f"v_lshlrev_b32 v{t+2}, 16, v{Wt+q}", f"v_and_b32 v{t+1}, 0xffff0000, v{X+q}")
        f(f"v_and_b32 v{t+3}, 0xffff0000, v{Wt+q}", f"v_pk_mul_f32 {vr(t,2)}, {vr(t,2)}, {vr(t+2,2)}", f"v_cvt_pk_bf16_f32 v{t+2}, v{t}, v{t+1}")
        d = t+4 if q == 0 else t
        f(f"v_lshlrev_b32 v{d}, 16, v{t+2}", f"v_and_b32 v{d+1}, 0xffff0000, v{t+2}")
        if q: f(f"v_pk_add_f32 {vr(t+4,2)}, {vr(t+4,2)}, {vr(t,2)}")
    s = t+4
    f(f"v_add_f32 v{s}, v{s}, v{s+1}")
    for sw in ("32", "16"):
        f(f"v_mov_b32 v{s+1}, v{s}")
        f(f"v_permlane{sw}_swap_b32 v{s}, v{s+1}", f"v_add_f32 v{s}, v{s}, v{s+1}")
    for r in (8, 4, 2, 1):
        f(f"v_add_f32_dpp v{s}, v{s}, v{s} row_ror:{r} row_mask:0xf bank_mask:0xf")
    f(f"v_cvt_pk_bf16_f32 v{s}, v{s}, v{s}", f"v_lshlrev_b32 v{s}, 16, v{s}", f"v_mul_f32 v{s}, {f32(-LOG2E)}, v{s}")
    f(f"v_exp_f32 v{s}, v{s}")
    f(f"v_add_f32 v{s}, 1.0, v{s}", f"v_rcp_f32 v{s}, v{s}")
    f(f"v_cvt_pk_bf16_f32 v{s}, v{s}, v{s}", f"v_lshlrev_b32 v{s}, 16, v{s}", f"v_mov_b32 v{s+1}, 0")
    f("s_lshr_b32 s67, s71, 8", f"s_add_u32 s67, s67, {WS_GATE}", "s_mov_b64 exec, 1",
      (f"buffer_store_dword v{s}, v{s+1}, s[32:35], s67 offen{SC}", "gs"), "s_mov_b64 exec, -1")

def phase1(a):
    SLOT = 40960
    ACC = [64, 80, 96]
    FR = [32, 48]
    VXR, VWR, VXD, VWD, HF, BSEL = 8, 16, 18, 20, 21, 112
    a("s_cmp_ge_u32 s2, 256")
    a("s_cbranch_scc1 L_end")
    stamp(a, 0)
    a("s_load_dwordx4 s[4:7], s[0:1], 0")
    a("s_load_dwordx2 s[10:11], s[0:1], 40")
    a("s_load_dwordx2 s[14:15], s[0:1], 80")
    a("s_load_dwordx2 s[8:9], s[0:1], 16")
    a("s_load_dwordx2 s[12:13], s[0:1], 56")
    a("s_load_dwordx2 s[76:77], s[0:1], 24")
    a("s_load_dwordx2 s[78:79], s[0:1], 48")
    a("s_load_dwordx2 s[74:75], s[0:1], 64")
    a("v_and_b32 v1, 63, v0")
    a("v_lshrrev_b32 v2, 6, v0")
    a(f"s_and_b32 s{HG}, s2, 7")
    a(f"v_readfirstlane_b32 s{W}, v2")
    a(f"s_lshr_b32 s{J}, s2, 3")
    a(f"s_and_b32 s{TY}, s{J}, 1")
    a(f"s_lshr_b32 s{RB16}, s{J}, 1")
    a("v_lshrrev_b32 v7, 3, v1")
    a("v_and_b32 v4, 7, v1")
    a("v_lshrrev_b32 v5, 1, v7")
    a("v_xor_b32 v6, v4, v5")
    a("v_lshlrev_b32 v6, 4, v6")
    a(f"v_lshl_add_u32 v{VXD}, v7, 10, v6")
    a("v_xor_b32 v6, 64, v6")
    a(f"v_lshl_add_u32 v{VXD+1}, v7, 10, v6")
    a(f"v_add_u32 v{VXD+1}, {8192-1024}, v{VXD+1}")
    a("v_lshrrev_b32 v6, 2, v1")
    a("v_and_b32 v6, 4, v6")
    a("v_xor_b32 v6, v4, v6")
    a("v_lshlrev_b32 v6, 4, v6")
    a(f"v_lshl_add_u32 v{VWO}, v7, 10, v6")
    a("v_mul_u32_u24 v7, 3072, v7")
    a(f"v_add_u32 v{VWD}, v7, v6")
    a(f"s_lshl_b32 s{XOFF}, s{RB16}, 17")
    a(f"s_lshl_b32 s67, s{W}, 14")
    a(f"s_add_u32 s{XOFF}, s{XOFF}, s67")
    a(f"s_mul_i32 s{WOFF}, s{W}, 24576")
    a(f"s_lshl_b32 s{MX}, s{W}, 11")
    a(f"s_mul_i32 s{MW}, s{W}, 3072")
    a(f"s_add_u32 s{MW}, s{MW}, 16384")
    a(f"s_lshl_b32 s67, s{HG}, 7")
    a(f"s_cmp_eq_u32 s{TY}, 0")
    a("s_cselect_b32 s68, 1024, 0")
    a("s_cselect_b32 s69, 0, 1024")
    a("s_add_u32 s68, s68, s67")
    a("s_add_u32 s69, s69, s67")
    a("s_add_u32 s67, s67, 1024")
    a("s_sub_u32 s22, 0x180000, s68")
    a("s_sub_u32 s26, 0x180000, s67")
    a("s_sub_u32 s30, 0x180800, s69")
    a("s_mov_b32 s23, 0x00020000")
    a("s_mov_b32 s27, 0x00020000")
    a("s_mov_b32 s31, 0x00020000")
    a("s_mov_b32 s18, 0x200000")
    a("s_mov_b32 s19, 0x00020000")
    a(f"s_cmp_eq_u32 s{TY}, 0")
    a("s_waitcnt lgkmcnt(0)")
    a("s_cselect_b32 s70, s6, s10")
    a("s_cselect_b32 s71, s7, s11")
    a("s_mov_b32 s16, s4")
    a("s_mov_b32 s17, s5")
    a("s_add_u32 s20, s6, s68")
    a("s_addc_u32 s21, s7, 0")
    a("s_add_u32 s24, s70, s67")
    a("s_addc_u32 s25, s71, 0")
    a("s_add_u32 s28, s10, s69")
    a("s_addc_u32 s29, s11, 0")
    a("s_sub_u32 s28, s28, 2048")
    a("s_subb_u32 s29, s29, 0")
    def dma_part(c, p):
        sl = (c & 3) * SLOT
        if p == 0:
            a(f"s_add_u32 m0, s{MX}, {sl}")
            a(f"s_add_u32 s59, s{J}, {c}")
            a("s_and_b32 s59, s59, 7")
            a("s_lshl_b32 s60, s59, 7")
            a(f"s_add_u32 s60, s60, s{XOFF}")
            a.vmem(f"buffer_load_dwordx4 v{VXD}, s[16:19], s60 offen lds", f"c{c}")
            a.vmem(f"buffer_load_dwordx4 v{VXD+1}, s[16:19], s60 offen offset:1024 lds", f"c{c}")
        else:
            if p == 1:
                a(f"s_add_u32 m0, s{MW}, {sl}")
                a("s_mul_i32 s61, s59, 196608")
                a(f"s_add_u32 s61, s61, s{WOFF}")
            sg = p - 1
            a.vmem(f"buffer_load_dwordx4 v{VWD}, s[{20+4*sg}:{23+4*sg}], s61 offen offset:{1024*sg} lds", f"c{c}")
    def dma(c):
        for p in range(4): dma_part(c, p)
    dma(0)
    if OPT["cpf"]:
        a(f"s_cmp_lg_u32 s{W}, 7")
        a("s_cbranch_scc1 L_nocpf")
        a("s_getpc_b64 s[68:69]")
        a.label("L_pc")
        a(f"s_lshl_b32 s67, s{J}, 10")
        a("v_lshl_add_u32 v6, v1, 4, s67")
        a("v_min_u32 v6, L_code_end-L_pc-16, v6")
        a("global_load_dwordx4 v[232:235], v6, s[68:69]")
        a.label("L_nocpf")
    a(f"s_load_dword s{TAG}, s[14:15], {WS_E}")
    a("s_barrier")
    dma(1)
    a("v_and_b32 v23, 31, v1")
    a(f"v_lshrrev_b32 v{HF}, 5, v1")
    a("v_bfe_u32 v5, v1, 1, 3")
    a(f"s_and_b32 s67, s{W}, 3")
    a(f"s_lshr_b32 s68, s{W}, 2")
    a("s_lshl_b32 s67, s67, 12")
    a("v_lshl_add_u32 v6, v23, 7, s67")
    for st in range(4):
        a(f"v_or_b32 v7, {2*st}, v{HF}")
        a("v_xor_b32 v7, v7, v5")
        a(f"v_lshl_add_u32 v{VXR+st}, v7, 4, v6")
    a("v_bfe_u32 v7, v1, 2, 2")
    a("v_lshlrev_b32 v24, 7, v7")
    a("v_bfe_u32 v7, v1, 4, 1")
    a("v_lshl_add_u32 v24, v7, 5, v24")
    a("v_and_b32 v7, 3, v1")
    a("v_lshl_add_u32 v24, v7, 3, v24")
    a("v_bfe_u32 v7, v1, 3, 1")
    a("v_xor_b32 v7, s68, v7")
    a("v_lshl_add_u32 v6, v7, 6, v24")
    a(f"v_mul_u32_u24 v7, 3072, v{HF}")
    a("v_add_u32 v6, v6, v7")
    a(f"v_add_u32 v{VWR}, 16384, v6")
    a("v_lshlrev_b32 v3, 4, v1")
    a(f"s_lshr_b32 s{RB8}, s2, 5")
    a(f"s_lshl_b32 s{H}, s{HG}, 2")
    a(f"s_and_b32 s69, s{J}, 3")
    a(f"s_add_u32 s{H}, s{H}, s69")
    a(f"s_lshl_b32 s71, s{RB8}, 2")
    a(f"s_and_b32 s69, s{W}, 3")
    a("s_add_u32 s71, s71, s69")
    a("s_lshl_b32 s71, s71, 1")
    a("s_add_u32 s71, s71, s68")
    a("s_lshl_b32 s71, s71, 5")
    a(f"s_add_u32 s71, s71, s{H}")
    a("s_lshl_b32 s71, s71, 10")
    srd(a, 36, 12, 13, 1024)
    a.vmem("buffer_load_dwordx4 v[224:227], v3, s[16:19], s71 offen", "g")
    a.vmem("buffer_load_dwordx4 v[228:231], v3, s[36:39], 0 offen", "g")

    f = Fill()
    f(*[f"v_add_u32 v{VXR+4+st}, {2*SLOT}, v{VXR+st}" for st in range(4)], f"v_add_u32 v{VWR+1}, {2*SLOT}, v{VWR}")
    f("s_mov_b32 s32, s14", "s_mov_b32 s33, s15", f"s_mov_b32 s34, {WS_USED}", "s_mov_b32 s35, 0x00020000")
    f("s_mov_b32 s36, s8", "s_mov_b32 s37, s9", "s_mov_b32 s38, 16384")
    f("s_lshr_b32 s67, s71, 15", f"s_lshl_b32 s{OFB}, s67, 16", f"s_lshl_b32 s67, s{H}, 10", f"s_add_u32 s{OFB}, s{OFB}, s67", f"s_add_u32 s{OFB}, s{OFB}, {WS_OF+32768}",
      "v_mov_b64 v[216:217], -1", "v_mov_b64 v[218:219], -1",
      (f"buffer_store_dwordx4 v[216:219], v3, s[32:35], s{OFB} offen{SC}", "z"))
    f("v_bfe_u32 v6, v1, 2, 2", f"v_lshl_add_u32 v6, v{HF}, 2, v6", "v_lshlrev_b32 v6, 5, v6")
    f("v_and_b32 v7, 3, v1", "v_lshl_add_u32 v6, v7, 3, v6", f"s_lshr_b32 s67, s{W}, 2", "s_lshl_b32 s67, s67, 10", "v_add_u32 v22, s67, v6")
    f(f"v_lshlrev_b32 v6, 2, v{HF}", "v_sub_u32 v31, v23, v6", "v_mov_b32 v29, 0x3f80", "v_mov_b32 v30, 0x3f800000")
    for sg in range(2):
        for q in range(4):
            T0 = 16*sg + 8*((2*q)//4) + (2*q) % 4
            f(f"v_cmp_eq_u32 vcc, {T0}, v31", f"v_cmp_eq_u32 s[68:69], {T0+1}, v31", "v_cndmask_b32 v7, 0, v29, vcc", f"v_cndmask_b32 v{BSEL+4*sg+q}, v7, v30, s[68:69]")
    f(f"s_lshl_b32 s70, s{RB16}, 2", f"s_and_b32 s67, s{W}, 3", "s_add_u32 s70, s70, s67",
      f"s_lshl_b32 s68, s{HG}, 2", f"s_lshr_b32 s67, s{W}, 2", "s_lshl_b32 s67, s67, 1", "s_add_u32 s68, s68, s67",
      "s_lshl_b32 s67, s68, 16", "s_lshl_b32 s69, s70, 10", "s_add_u32 s67, s67, s69", f"s_add_u32 s{VOFF}, s67, {WS_VB}",
      f"s_cmp_eq_u32 s{TY}, 0", f"s_cselect_b32 s{QK0}, 0, {WS_KB-WS_QB}", "s_cselect_b64 s[68:69], -1, 0",
      f"s_add_u32 s{QK0}, s{QK0}, s67", f"s_add_u32 s{QK0}, s{QK0}, {WS_QB}", f"s_add_u32 s{QK1}, s{QK0}, 65536",
      "v_and_b32 v6, 0x33, v1", "v_bfe_u32 v7, v1, 2, 1", "v_lshl_or_b32 v6, v7, 3, v6", "v_bfe_u32 v7, v1, 3, 1",
      "v_lshl_or_b32 v6, v7, 2, v6", "v_cndmask_b32 v6, v6, v1, s[68:69]", "v_lshlrev_b32 v25, 4, v6")
    f("v_and_b32 v7, 15, v1", "v_lshlrev_b32 v7, 4, v7", f"v_lshl_add_u32 v31, v{HF}, 8, v7")
    f("v_bfe_u32 v6, v1, 4, 1", "v_lshl_add_u32 v26, v6, 16, v31")
    f(f"s_lshl_b32 s{F1POLL}, s{HG}, 12", f"s_add_u32 s{F1POLL}, s{F1POLL}, {WS_F1}", f"s_lshl_b32 s67, s{J}, 7", f"s_add_u32 s{F1OFF}, s{F1POLL}, s67")
    f(f"v_lshlrev_b32 v{VL8}, 7, v23", f"v_lshlrev_b32 v{G4}, 2, v23", "v_lshlrev_b32 v6, 10, v23", f"v_lshl_add_u32 v{OUTA}, v{HF}, 4, v6")
    f(f"s_mov_b32 s{MASK}, 0x0000ffff", f"s_mov_b32 s{MASK+1}, 0x0000ffff", f"s_mov_b32 s{L2E}, {f32(LOG2E)}")
    f(f"s_lshr_b32 s67, s{W}, 1", "s_lshl_b32 s67, s67, 15", f"s_and_b32 s68, s{W}, 1", "s_lshl_b32 s68, s68, 13", "s_add_u32 s67, s67, s68", "s_add_u32 s67, s67, 8192", "v_add_u32 v27, s67, v3")
    if not OPT["p0fill"]: f.flush(a)
    gate_fill(f)
    g1 = Fill()
    g1(f"s_lshl_b32 s{OWN1}, 1, s{J}", f"s_not_b32 s{OWN1}, s{OWN1}")
    g1(f"s_lshr_b32 s67, s{W}, 2", f"s_lshl_b32 s{LDS0}, s67, 5", f"s_and_b32 s68, s{W}, 3", f"s_add_u32 s{LDS0}, s{LDS0}, s68", f"s_lshl_b32 s{LDS0}, s{LDS0}, 10",
       "s_lshl_b32 s67, s67, 15", f"v_add_u32 v{VK}, s67, v3", "s_add_u32 s67, s67, 65536", f"v_add_u32 v{VV}, s67, v31")
    g1(f"s_lshl_b32 s67, s{H}, 16", f"s_add_u32 s71, s67, {WS_KB}", f"s_add_u32 s{KOFF}, s71, s{LDS0}",
       f"s_lshl_b32 s68, s{RB8}, 2", f"s_and_b32 s69, s{W}, 3", "s_add_u32 s68, s68, s69", "s_lshl_b32 s68, s68, 11",
       f"s_add_u32 s{QOFF}, s67, s68", f"s_add_u32 s{QOFF}, s{QOFF}, {WS_QB}")
    g1(f"s_lshr_b32 s67, s{W}, 2", "s_lshl_b32 s67, s67, 16", f"s_and_b32 s68, s{W}, 3", "s_lshl_b32 s68, s68, 11", "s_add_u32 s67, s67, s68", "s_add_u32 s67, s67, 8192", "v_add_u32 v28, s67, v3")
    g1(f"s_bfe_u32 s67, s{W}, 0x10001", f"s_and_b32 s68, s{W}, 1", "v_bfe_u32 v6, v1, 4, 1", "v_cmp_eq_u32 vcc, s67, v6",
       "s_lshl_b32 s69, s68, 10", "v_add_u32 v6, s69, v31", "s_lshl_b32 s69, s68, 6", "s_add_u32 s69, s69, 2048",
       f"v_lshl_add_u32 v7, v{HF}, 4, s69", "v_cndmask_b32 v29, v7, v6, vcc", "v_add_u32 v6, 512, v6", "v_add_u32 v7, 32, v7", "v_cndmask_b32 v30, v7, v6, vcc",
       f"s_lshl_b32 s{H0}, s{HG}, 2", f"s_lshr_b32 s69, s{W}, 2", "s_lshl_b32 s69, s69, 1", f"s_add_u32 s{H0}, s{H0}, s69", f"s_add_u32 s68, s{H0}, s67",
       "s_lshl_b32 s68, s68, 4", f"s_add_u32 s68, s68, s{RB16}", "s_lshl_b32 s68, s68, 12", f"s_add_u32 s{KVPOFF}, s68, {WS_KVP}")
    g1("v_and_b32 v6, 27, v1", "v_cmp_eq_u32 vcc, 16, v6", "v_mov_b32 v6, 0x3f803f80", f"v_mov_b32 v{IDX}, 0xdddddddd", f"v_cndmask_b32 v{VA[0]}, 0, v6, vcc", f"v_mov_b32 v{VA[0]+1}, v{VA[0]}")
    g1(*[f"v_mov_b64 {vr(VA[0]+k,2)}, {vr(VA[0],2)}" for k in range(2, 16, 2)])
    g1("v_bfe_u32 v7, v1, 3, 1", "v_lshl_add_u32 v6, v7, 6, v24", f"v_lshl_add_u32 v6, v{HF}, 9, v6",
       f"s_lshr_b32 s67, s{W}, 1", "s_lshl_b32 s67, s67, 15", f"v_add_u32 v{TR0}, s67, v6")
    g2 = Fill()
    g2(f"s_lshl_b32 s{F2OFF}, s{HG}, 4", f"s_add_u32 s{F2OFF}, s{F2OFF}, s{RB16}", f"s_lshl_b32 s{F2OFF}, s{F2OFF}, 7", f"s_add_u32 s{F2OFF}, s{F2OFF}, {WS_F2}")
    g2(f"s_cmp_eq_u32 s{TY}, 0", f"s_cselect_b32 s{ROLE}, {1<<R_T0}, {1<<R_T1}", f"s_cselect_b32 s67, {1<<R_T0W0}, {1<<R_T1W0}",
       f"s_cmp_eq_u32 s{W}, 0", "s_cselect_b32 s67, s67, 0", f"s_or_b32 s{ROLE}, s{ROLE}, s67",
       f"s_cmp_eq_u32 s{W}, s{RB8}", f"s_cselect_b32 s67, {1<<R_RED}, 0", f"s_or_b32 s{ROLE}, s{ROLE}, s67")
    g2(f"s_mul_i32 s67, s{W}, 3072", f"s_add_u32 s67, s67, {XCH}", f"v_add_u32 v{XW}, s67, v3",
       f"s_xor_b32 s67, s{W}, 4", "s_mul_i32 s67, s67, 3072", f"s_add_u32 s67, s67, {XCH}", f"v_add_u32 v{XR}, s67, v3")
    g2(f"s_and_b32 s67, s{W}, 1", "s_lshl_b32 s67, s67, 13", f"s_lshr_b32 s68, s{W}, 1", "s_lshl_b32 s69, s68, 11", "s_add_u32 s69, s69, s67", f"v_add_u32 v{RW}, s69, v3",
       "s_lshl_b32 s69, s68, 15", "s_add_u32 s69, s69, s67", f"v_add_u32 v{RR}, s69, v3")
    g2("s_mov_b32 s16, s76", "s_mov_b32 s17, s77", "s_mov_b32 s18, 0x80000", "s_mov_b32 s20, s78", "s_mov_b32 s21, s79", "s_mov_b32 s22, 0x80000",
       "s_mov_b32 s24, s74", "s_mov_b32 s25, s75", "s_mov_b32 s26, 0x200000", f"s_mov_b32 s{ATT}, 0")
    g2(f"s_lshl_b32 s67, s{RB8}, 2", f"s_lshr_b32 s68, s{HG}, 1", "s_add_u32 s67, s67, s68", "s_lshl_b32 s67, s67, 1", f"s_and_b32 s68, s{W}, 1", "s_add_u32 s67, s67, s68",
       f"s_lshl_b32 s{GATE3}, s67, 7", f"s_add_u32 s{GATE3}, s{GATE3}, {WS_GATE}",
       f"s_lshl_b32 s{OF3}, s67, 16", f"s_lshr_b32 s68, s{W}, 1", "s_lshl_b32 s69, s68, 13", f"s_add_u32 s{OF3}, s{OF3}, s69", f"s_add_u32 s{OF3}, s{OF3}, {WS_OF}",
       f"s_add_u32 s{OF3B}, s{OF3}, 4096",
       f"s_lshl_b32 s{OUTOFF}, s67, 15", "s_lshl_b32 s69, s68, 5", f"s_add_u32 s{OUTOFF}, s{OUTOFF}, s69",
       "s_and_b32 s68, s2, 1", "s_lshl_b32 s68, s68, 2", f"s_and_b32 s69, s{J}, 3", "s_add_u32 s68, s68, s69", "s_lshl_b32 s61, s68, 7",
       f"s_add_u32 s{OUTOFF}, s{OUTOFF}, s61", "s_lshr_b32 s60, s67, 2",
       f"s_lshl_b32 s{F4POLL}, s60, 10", f"s_add_u32 s{F4POLL}, s{F4POLL}, {WS_F4}",
       f"s_lshr_b32 s67, s{W}, 2", f"s_lshl_b32 s{WOOFF}, s67, 4", f"s_and_b32 s68, s{W}, 3", f"s_add_u32 s{WOOFF}, s{WOOFF}, s68", f"s_lshl_b32 s{WOOFF}, s{WOOFF}, 13", f"s_add_u32 s{WOOFF}, s{WOOFF}, s61",
       f"s_lshl_b32 s{T1}, s{RB16}, 2", f"s_add_u32 s{T1}, s{T1}, s68")

    FR3 = [32, 48, 160]
    def rd(g):
        c, st = g >> 2, g & 3
        sl = c & 3
        fr = FR3[g % 3]
        L = [f"ds_read_b128 {vr(fr,4)}, v{VXR+4*(sl>>1)+st} offset:{(sl&1)*SLOT}"]
        for s in range(3):
            o = st*6144 + s*1024 + (sl & 1)*SLOT
            L.append(f"ds_read_b64_tr_b16 {vr(fr+4+4*s,2)}, v{VWR+(sl>>1)} offset:{o}")
            L.append(f"ds_read_b64_tr_b16 {vr(fr+6+4*s,2)}, v{VWR+(sl>>1)} offset:{o+512}")
        return L
    DM = {0: [(2, 0), (2, 1)], 1: [(2, 2), (2, 3)], 2: [(3, 0), (3, 1)], 3: [(3, 2), (3, 3)], 4: [(4, 0), (4, 1)], 5: [(4, 2), (4, 3)]}
    for c in (5, 6, 7):
        g0 = 4*(c-4) + 2
        if OPT["dmaspread"]:
            for p in range(4): DM[g0+p] = [(c, p)]
        else:
            DM[g0] = [(c, 0), (c, 1)]; DM[g0+1] = [(c, 2), (c, 3)]
    a.wait_vm("c0", extra="lgkmcnt(0)")
    a(f"s_add_u32 s{TAG}, s{TAG}, 0x9e3779b1")
    a("s_barrier")
    stamp(a, 1)
    for l in rd(0) + rd(1): a(l)
    if OPT["x_pre"]:
        OPT["fill"] = 1000
    for g in range(32):
        c, st = g >> 2, g & 3
        if st == 2 and c < 7:
            if c == 6: a.wait_vm("c7", "phi", extra="lgkmcnt(0)")
            else: a.wait_vm(f"c{c+1}", extra="lgkmcnt(0)")
            a("s_barrier")
        elif st == 3 and c < 7: pass
        else: a(f"s_waitcnt lgkmcnt({7 if g < 31 else 4})")
        if g + 2 < 32: R = rd(g + 2)
        elif g == 30:
            R = []
            for e in range(2):
                R.append(f"ds_read_b64_tr_b16 {vr(152+4*e,2)}, v22 offset:{e*512}")
                R.append(f"ds_read_b64_tr_b16 {vr(154+4*e,2)}, v22 offset:{e*512+256}")
        else: R = []
        fr = FR3[g % 3]
        split = OPT["rsplit"]
        for k, (A, B) in enumerate(((fr+4, fr), (fr, fr+8), (fr+12, fr))):
            mfma(a, ACC[k], A, B, "0" if g == 0 else ACC[k])
            for l in R[split[k]:split[k+1]]:
                if OPT["x_nolds"] and g < 30: continue
                a(l)
            if k == 2 - OPT["dmak"]:
                for cc, p in DM.get(g, []):
                    if OPT["x_nodma"]: a.vm.append(f"c{cc}")
                    else: dma_part(cc, p)
                if g == 18:
                    a(f"s_and_b32 s60, s{W}, 1")
                    a("s_lshl_b32 s60, s60, 10")
                    a("s_mov_b32 m0, s60")
                    a(f"s_lshl_b32 s61, s{HG}, 11")
                    a("s_add_u32 s61, s61, s60")
                    a.vmem("buffer_load_dwordx4 v3, s[36:39], s61 offen lds", "phi")
            f.pop(a, OPT["fill"], c)
    assert not f.g, f"{len(f.g)} filler groups left"
    stamp(a, 2)
    a(f"s_mov_b32 s68, {f32(0.25*LOG2E)}")
    a(f"s_cmp_eq_u32 s{TY}, 0")
    E2 = range(2)
    PH = [160, 176]; EP = [64, 80]; T = [200, 204]
    for e in E2:
        for q in range(4): a(f"v_cvt_pk_bf16_f32 v{192+4*e+q}, v{ACC[0]+8*e+2*q}, v{ACC[0]+8*e+2*q+1}")
    for g in range(2):
        for q in range(4): a(f"v_cvt_pk_bf16_f32 v{40+4*g+q}, v{ACC[1]+8*g+2*q}, v{ACC[1]+8*g+2*q+1}")
    a("s_waitcnt lgkmcnt(0)")
    mfma(a, PH[0], 152, 192, "0")
    mfma(a, PH[1], 156, 196, "0")
    a("s_cbranch_scc1 L_p1_q")
    a(f"buffer_store_dwordx4 v[40:43], v26, s[32:35], s{VOFF} offen{SC}")
    a(f"buffer_store_dwordx4 v[44:47], v26, s[32:35], s{VOFF} offen offset:512{SC}")
    a("s_branch L_p1_qk")
    a.label("L_p1_q")
    for i in range(0, 16, 2): a(f"v_pk_mul_f32 v[{ACC[2]+i}:{ACC[2]+i+1}], v[{ACC[2]+i}:{ACC[2]+i+1}], s[68:69] op_sel_hi:[1,0]")
    a("s_nop 0")
    a.label("L_p1_qk")
    for e in E2:
        for q in range(4): a(f"v_cvt_pk_bf16_f32 v{32+4*e+q}, v{ACC[2]+8*e+2*q}, v{ACC[2]+8*e+2*q+1}")
        a(f"buffer_store_dwordx4 {vr(32+4*e,4)}, v25, s[32:35], s{QK0+e} offen{SC}")
    def f1():
        a("s_waitcnt vmcnt(0)")
        a.vm = []
        a(f"s_cmp_lg_u32 s{W}, 0")
        a("s_barrier")
        a("s_cbranch_scc1 L_f1done")
        pub(a, f"s{F1OFF}")
        a.label("L_f1done")
        stamp(a, 3)
    if OPT["rp"]:
        for e in E2:
            for q in range(4): a(f"v_cvt_pk_bf16_f32 v{T[e]+q}, v{PH[e]+2*q}, v{PH[e]+2*q+1}")
        for e in E2:
            for q in range(4):
                a(f"v_lshlrev_b32 v{PH[e]+2*q}, 16, v{T[e]+q}")
                a(f"v_and_b32 v{PH[e]+2*q+1}, 0xffff0000, v{T[e]+q}")
    for e in E2:
        P = PH[e]; t = T[e]
        a(f"v_max3_f32 v{t}, v{P}, v{P+1}, v{P+2}")
        a(f"v_max3_f32 v{t+1}, -v{P}, -v{P+1}, -v{P+2}")
        a(f"v_max3_f32 v{t}, v{t}, v{P+3}, v{P+4}")
        a(f"v_max3_f32 v{t+1}, v{t+1}, -v{P+3}, -v{P+4}")
        a(f"v_max3_f32 v{t}, v{t}, v{P+5}, v{P+6}")
        a(f"v_max3_f32 v{t+1}, v{t+1}, -v{P+5}, -v{P+6}")
        a(f"v_max_f32 v{t}, v{t}, v{P+7}")
        a(f"v_max_f32_e64 v{t+1}, v{t+1}, -v{P+7}")
    for e in E2: a(f"v_permlane32_swap_b32 v{T[e]}, v{T[e]+1}")
    for e in E2: a(f"v_max_f32 v{T[e]}, v{T[e]}, v{T[e]+1}")
    for e in E2: a(f"v_mul_f32 v{T[e]}, {f32(-LOG2E)}, v{T[e]}")
    for e in E2: a(f"v_mov_b32 v{T[e]+1}, v{T[e]}")
    for e in E2: a(f"v_permlane32_swap_b32 v{T[e]}, v{T[e]+1}")
    for e in E2:
        for q in range(4):
            a(f"v_pk_fma_f32 {vr(EP[e]+2*q,2)}, {vr(PH[e]+2*q,2)}, s[{L2E}:{L2E+1}], {vr(T[e],2)} op_sel_hi:[1,0,0]")
            a(f"v_pk_fma_f32 {vr(EP[e]+8+2*q,2)}, {vr(PH[e]+2*q,2)}, s[{L2E}:{L2E+1}], {vr(T[e],2)} op_sel:[0,0,1] op_sel_hi:[1,0,1] neg_lo:[1,0,0] neg_hi:[1,0,0]")
    for e in E2:
        for j in range(16): a(f"v_exp_f32 v{EP[e]+j}, v{EP[e]+j}")
    if OPT["f1pos"] == 0: f1()
    for e in E2:
        P = PH[e]
        for sg in range(2):
            b = EP[e] + 8*sg
            a(f"v_pk_add_f32 {vr(P+4*sg,2)}, {vr(b,2)}, {vr(b+2,2)}")
            a(f"v_pk_add_f32 {vr(P+4*sg+2,2)}, {vr(b+4,2)}, {vr(b+6,2)}")
    for e in E2:
        for sg in range(2): a(f"v_pk_add_f32 {vr(PH[e]+4*sg,2)}, {vr(PH[e]+4*sg,2)}, {vr(PH[e]+4*sg+2,2)}")
    for e in E2:
        for sg in range(2): a(f"v_add_f32 v{T[e]+sg}, v{PH[e]+4*sg}, v{PH[e]+4*sg+1}")
    for e in E2: a(f"v_permlane32_swap_b32 v{T[e]}, v{T[e]+1}")
    for e in E2: a(f"v_add_f32 v{T[e]}, v{T[e]}, v{T[e]+1}")
    for e in E2: a(f"v_rcp_f32 v{T[e]}, v{T[e]}")
    for e in E2: a(f"v_mov_b32 v{T[e]+1}, v{T[e]}")
    for e in E2: a(f"v_permlane32_swap_b32 v{T[e]}, v{T[e]+1}")
    for e in E2:
        for q in range(4):
            a(f"v_pk_mul_f32 {vr(EP[e]+2*q,2)}, {vr(EP[e]+2*q,2)}, {vr(T[e],2)} op_sel_hi:[1,0]")
            a(f"v_pk_mul_f32 {vr(EP[e]+8+2*q,2)}, {vr(EP[e]+8+2*q,2)}, {vr(T[e],2)} op_sel:[0,1]")
    for e in E2:
        for q in range(8): a(f"v_cvt_pk_bf16_f32 v{PHI+8*e+q}, v{EP[e]+2*q}, v{EP[e]+2*q+1}")
    if OPT["f1pos"] == 1: f1()
    a(f"s_cmp_eq_u32 s{TY}, 0")
    a("s_cbranch_scc0 L_p1_done")
    for e in E2:
        mfma(a, PH[e], PHI+8*e, BSEL, "0")
        mfma(a, PH[e], PHI+4+8*e, BSEL+4, PH[e])
    a("v_mov_b32 v7, 0x3f803f80")
    for q in range(8):
        a(f"v_cndmask_b32 v{208+q}, v7, v{40+q}, s[{MASK}:{MASK+1}]")
        a(f"v_cndmask_b32 v{216+q}, v{40+q}, v7, s[{MASK}:{MASK+1}]")
    for e in E2:
        for q in range(8): a(f"v_cvt_pk_bf16_f32 v{192+8*e+q}, v{PH[e]+2*q}, v{PH[e]+2*q+1}")
        mfma(a, 64+16*e, 192+8*e, 208+8*e, "0")
        mfma(a, 64+16*e, 196+8*e, 212+8*e, 64+16*e)
    for e in E2:
        for q in range(4): a(f"ds_write_b128 v27, {vr(64+16*e+4*q,4)} offset:{e*4096+q*1024}")
    a.label("L_p1_done")
    return g1, g2

def maxtree(a, dst, src, first):
    if first:
        a(f"v_max3_f32 v{dst}, v{src}, v{src+1}, v{src+2}")
        for j in range(3, 15, 2): a(f"v_max3_f32 v{dst}, v{dst}, v{src+j}, v{src+j+1}")
        a(f"v_max_f32 v{dst}, v{dst}, v{src+15}")
    else:
        for j in range(0, 16, 2): a(f"v_max3_f32 v{dst}, v{dst}, v{src+j}, v{src+j+1}")
def kv_dma(a, rr, kind):
    a(f"s_add_u32 m0, s{LDS0}, {kind*65536+rr*4096}")
    a(f"s_add_u32 s67, s{KOFF}, {kind*(WS_VB-WS_KB)+rr*4096}")
    a.vmem(f"buffer_load_dwordx4 v3, s[32:35], s67 offen{SC} lds", f"r{rr}")
def wo_dma(a, rr, kind):
    a(f"s_add_u32 m0, s{LDS0}, {kind*65536+rr*4096}")
    a(f"s_add_u32 s67, s{WOOFF}, {kind*262144+(rr&3)*32768}")
    S = 16 if rr < 4 else 20
    a.vmem(f"buffer_load_dwordx4 v{VWO}, s[{S}:{S+3}], s67 offen lds", f"w{rr}")

def phase2(a, g1, g2):
    stamp(a, 4)
    a(f"s_cmp_lg_u32 s{W}, 0")
    a("s_cbranch_scc1 L_p2_np")
    a(f"buffer_load_dword v{VP0}, v{VL8}, s[32:35], s{F1POLL} offen{SC}")
    a.label("L_p2_np")
    g1.flush(a)
    a(f"s_cmp_lg_u32 s{W}, 0")
    a("s_cbranch_scc1 L_p2_go")
    poll(a, "L_pollF1", VL8, VP0, f"s{F1POLL}", own=OWN1)
    a.label("L_p2_go")
    a("s_waitcnt lgkmcnt(0)")
    a("s_barrier")
    stamp(a, 5)
    a.vmem(f"buffer_load_dwordx4 {vr(SCR,4)}, v3, s[32:35], s71 offen{SC}", "q")
    a.vmem(f"buffer_load_dwordx4 {vr(Q[0],4)}, v3, s[32:35], s{QOFF} offen{SC}", "q")
    a.vmem(f"buffer_load_dwordx4 {vr(Q[1],4)}, v3, s[32:35], s{QOFF} offen offset:1024{SC}", "q")
    kv_dma(a, 0, 0); kv_dma(a, 0, 1)
    a(f"v_mov_b32 v5, {FLAG}")
    a("v_mov_b32 v7, 0")
    a("ds_write_b32 v5, v7")
    for i in range(0, 32, 2): a(f"v_mov_b64 v[{O[0]+i}:{O[0]+i+1}], 0")
    g2.flush(a)
    a(f"s_cmp_eq_u32 s{TY}, 0")
    a("s_cbranch_scc0 L_p2_nokvp")
    for w in range(4):
        for q in range(2):
            a(f"ds_read_b128 {vr(160+8*w+4*q,4)}, v28 offset:{(w>>1)*32768+(w&1)*8192+q*1024}")
    a("s_waitcnt lgkmcnt(4)")
    for j in range(0, 8, 2): a(f"v_pk_add_f32 {vr(160+j,2)}, {vr(160+j,2)}, {vr(168+j,2)}")
    a("s_waitcnt lgkmcnt(0)")
    for j in range(0, 8, 2): a(f"v_pk_add_f32 {vr(176+j,2)}, {vr(176+j,2)}, {vr(184+j,2)}")
    for j in range(0, 8, 2): a(f"v_pk_add_f32 {vr(160+j,2)}, {vr(160+j,2)}, {vr(176+j,2)}")
    a(f"buffer_store_dwordx4 v[160:163], v29, s[32:35], s{KVPOFF} offen{SC}")
    a(f"buffer_store_dwordx4 v[164:167], v30, s[32:35], s{KVPOFF} offen{SC}")
    a("s_waitcnt vmcnt(4)")
    mfma(a, S4[0][0], SCR, Q[0], "0")
    mfma(a, S4[1][0], SCR, Q[1], "0")
    a("s_waitcnt vmcnt(2)")
    a("s_branch L_p2_qok")
    a.label("L_p2_nokvp")
    a("s_waitcnt vmcnt(2)")
    mfma(a, S4[0][0], SCR, Q[0], "0")
    mfma(a, S4[1][0], SCR, Q[1], "0")
    a("s_waitcnt vmcnt(0)")
    a.label("L_p2_qok")
    a.vm = []
    def zero_acc():
        for i in range(0, 32, 2): a(f"v_mov_b64 v[{O[0]+i}:{O[0]+i+1}], 0")
    def prime_reads():
        a(f"ds_read_b128 {vr(KB_[0],4)}, v{VK}")
        a(f"ds_read_b128 {vr(KB_[1],4)}, v{VK} offset:1024")
        a(f"s_mov_b64 exec, s[{MASK}:{MASK+1}]")
        a(f"ds_read_b128 {vr(VA[0],4)}, v{VV}")
        a(f"ds_read_b128 {vr(VBB[0],4)}, v{VV} offset:512")
        a("s_mov_b64 exec, -1")
    if OPT["y_kvpre"]:
        for rr in range(2, 8):
            kv_dma(a, rr, 0); kv_dma(a, rr, 1)
        a("s_waitcnt vmcnt(0)")
        a.vm = []
    a("s_barrier")
    stamp(a, 6)
    prime_reads()
    kv_dma(a, 1, 0); kv_dma(a, 1, 1)
    maxtree(a, M1, S4[0][0], True)
    maxtree(a, M2, S4[1][0], True)
    a.label("L_setmax")
    a.nop(2)
    a(f"v_permlane32_swap_b32 v{M1}, v{M2}")
    a(f"v_max_f32 v{M1}, v{M1}, v{M2}")
    a(f"v_sub_f32 v{M1}, 0, v{M1}")
    a(f"v_mov_b32 v{M2}, v{M1}")
    a(f"v_permlane32_swap_b32 v{M1}, v{M2}")
    for i in range(0, 16, 2): a(f"v_pk_mov_b32 {vr(C[0]+i,2)}, {vr(M1,2)}, {vr(M1,2)} op_sel:[0,0]")
    a("s_waitcnt lgkmcnt(0)")
    mfma(a, S4[0][0], KB_[0], Q[0], C[0])
    for i in range(0, 16, 2): a(f"v_pk_mov_b32 {vr(C[1]+i,2)}, {vr(M1,2)}, {vr(M1,2)} op_sel:[1,1]")
    mfma(a, S4[1][0], KB_[0], Q[1], C[1])
    nvm = [0]; marks = {}
    PL, ZL = SCR, SCR + 16
    A16 = [f"v_and_b32 v6, 0x7ff, v{VL8}"]; A8 = [f"v_and_b32 v6, 0x3ff, v{VL8}"]
    F2A = [f"s_lshl_b32 s71, s{HG}, 11", f"s_add_u32 s71, s71, {WS_F2}"]
    F5A = [f"s_lshl_b32 s71, s{H0}, 10", f"s_add_u32 s71, s71, {WS_F5}"]
    F4A = [f"s_mov_b32 s71, s{F4POLL}"]
    def wait_after(nm): a(f"s_waitcnt vmcnt({nvm[0]-marks[nm]})")
    def svm(txt):
        a.vmem(txt, "x"); nvm[0] += 1
    def j_drain(): a("s_waitcnt vmcnt(0)")
    def j_f2(): pub(a, f"s{F2OFF}")
    def j_p2():
        for l in A16 + F2A: a(l)
        a(f"buffer_load_dword v{VP0}, v6, s[32:35], s71 offen{SC}")
    def j_ld():
        wait_after("p2")
        check_flags(a, "L_pollF2", A16, VP0, F2A)
        a("v_lshrrev_b32 v5, 4, v1")
        a("v_lshlrev_b32 v5, 14, v5")
        a("v_and_b32 v6, 15, v1")
        a("v_lshl_add_u32 v6, v6, 4, v5")
        a(f"s_lshl_b32 s68, s{RB8}, 8")
        a(f"s_lshl_b32 s67, s{H}, 16")
        a(f"s_add_u32 s67, s67, {WS_KVP}")
        a("s_add_u32 s68, s68, s67")
        a(f"s_lshl_b32 s69, s{RB8}, 4")
        a("s_add_u32 s67, s67, s69")
        for p in range(4):
            a(f"s_add_u32 s69, s68, {p*4096}")
            a(f"buffer_load_dwordx4 {vr(PL+4*p,4)}, v6, s[32:35], s69 offen{SC}")
        for p in range(4):
            a(f"s_add_u32 s69, s67, {p*4096+2048}")
            a(f"buffer_load_dwordx4 {vr(ZL+4*p,4)}, v5, s[32:35], s69 offen{SC}")
    def j_red():
        wait_after("ld")
        B2 = (PL, ZL)
        for base in B2:
            for j in (0, 2):
                a(f"v_pk_add_f32 {vr(base+j,2)}, {vr(base+j,2)}, {vr(base+4+j,2)}")
                a(f"v_pk_add_f32 {vr(base+8+j,2)}, {vr(base+8+j,2)}, {vr(base+12+j,2)}")
        for base in B2:
            for j in (0, 2): a(f"v_pk_add_f32 {vr(base+j,2)}, {vr(base+j,2)}, {vr(base+8+j,2)}")
        for sw in ("32", "16"):
            for base in B2:
                for j in (0, 2): a(f"v_mov_b64 {vr(base+4+j,2)}, {vr(base+j,2)}")
            for base in B2:
                for j in range(4): a(f"v_permlane{sw}_swap_b32 v{base+j}, v{base+4+j}")
            for base in B2:
                for j in (0, 2): a(f"v_pk_add_f32 {vr(base+j,2)}, {vr(base+j,2)}, {vr(base+4+j,2)}")
        for base in B2:
            a(f"v_cvt_pk_bf16_f32 v{base+4}, v{base}, v{base+1}")
            a(f"v_cvt_pk_bf16_f32 v{base+5}, v{base+2}, v{base+3}")
        a("v_cmp_eq_u32 vcc, 16, v1")
        a(f"s_lshr_b32 s67, s{RB8}, 2")
        a("s_mul_i32 s67, s67, 544")
        a(f"v_cndmask_b32 v{PL+4}, v{PL+4}, v{ZL+4}, vcc")
        a(f"v_cndmask_b32 v{PL+5}, v{PL+5}, v{ZL+5}, vcc")
        a(f"s_and_b32 s68, s{RB8}, 1")
        a("s_mul_i32 s68, s68, 272")
        a("s_add_u32 s67, s67, s68")
        a(f"s_and_b32 s68, s{RB8}, 2")
        a("s_lshl_b32 s68, s68, 2")
        a("s_add_u32 s67, s67, s68")
        a(f"s_lshl_b32 s68, s{H}, 11")
        a("s_add_u32 s67, s67, s68")
        a(f"s_add_u32 s67, s67, {WS_KVF}")
        a("s_mov_b64 exec, 0x1ffff")
        a(f"buffer_store_dwordx2 {vr(PL+4,2)}, v3, s[32:35], s67 offen{SC}")
        a("s_mov_b64 exec, -1")
    def j_f5():
        a(f"s_lshl_b32 s67, s{H}, 10")
        a(f"s_lshl_b32 s68, s{RB8}, 7")
        a("s_add_u32 s67, s67, s68")
        a(f"s_add_u32 s67, s67, {WS_F5}")
        a("s_waitcnt vmcnt(0)")
        pub(a, "s67")
    def j_p5():
        for l in A16 + F5A: a(l)
        a(f"buffer_load_dword v{VP1}, v6, s[32:35], s71 offen{SC}")
    def j_kv():
        wait_after("p5")
        check_flags(a, "L_pollF5", A16, VP1, F5A)
        a("v_and_b32 v5, 31, v1")
        a("v_min_u32 v5, 16, v5")
        a("v_lshrrev_b32 v6, 5, v1")
        a("v_mul_u32_u24 v6, 272, v6")
        a("v_lshl_add_u32 v5, v5, 4, v6")
        a(f"s_lshl_b32 s67, s{H0}, 11")
        a(f"s_add_u32 s67, s67, {WS_KVF}")
        for e in range(2):
            for sg in range(2):
                a(f"buffer_load_dwordx4 {vr(SCR+8*e+4*sg,4)}, v5, s[32:35], s67 offen offset:{e*2048+sg*544}{SC}")
    def j_om(e):
        def f():
            if e == 0: wait_after("kv")
            mfma(a, SCR+16+16*e, SCR+8*e, PHI+8*e, "0")
            mfma(a, SCR+16+16*e, SCR+8*e+4, PHI+8*e+4, SCR+16+16*e)
        return f
    def j_oa(e):
        def f():
            D = SCR+16+16*e
            a(f"v_add_f32 v4, {f32(1e-6)}, v{D+8}")
            a("v_rcp_f32 v4, v4")
            a(f"s_lshl_b32 s67, s{T1}, 16")
            a(f"s_lshl_b32 s68, s{H0}, 10")
            a("s_add_u32 s67, s67, s68")
            a(f"s_add_u32 s67, s67, {WS_OF}")
            for i in range(0, 8, 2): a(f"v_pk_mul_f32 {vr(D+i,2)}, {vr(D+i,2)}, v[4:5] op_sel_hi:[1,0]")
            for q in range(4): a(f"v_cvt_pk_bf16_f32 v{SCR+4*e+q}, v{D+2*q}, v{D+2*q+1}")
            a(f"buffer_store_dwordx4 {vr(SCR+4*e,4)}, v3, s[32:35], s67 offen offset:{e*1024}{SC}")
        return f
    def j_f4():
        a(f"s_lshl_b32 s67, s{RB16}, 3")
        a(f"s_add_u32 s67, s67, s{HG}")
        a("s_lshl_b32 s67, s67, 7")
        a(f"s_add_u32 s67, s67, {WS_F4}")
        pub(a, "s67")
    def j_p4():
        for l in A8: a(l)
        svm(f"buffer_load_dword v{VP0}, v6, s[32:35], s{F4POLL} offen{SC}")
    def j_c4():
        wait_after("p4")
        check_flags(a, "L_pollF4", A8, VP0, F4A)
        svm(f"buffer_load_dword v{GV}, v{G4}, s[32:35], s{GATE3} offen{SC}")
    def j_la(i):
        def f():
            for k in (2*i, 2*i+1):
                svm(f"buffer_load_dwordx4 {vr(SCR+4*k,4)}, v3, s[32:35], s{OF3 if k < 4 else OF3B} offen offset:{(k%4)*1024}{SC}")
        return f
    JB = dict(d0=(R_T0, j_drain), d1=(R_T1, j_drain), f2=(R_T0W0, j_f2), f4=(R_T1W0, j_f4),
              p2=(R_RED, j_p2), ld=(R_RED, j_ld), red=(R_RED, j_red), f5=(R_RED, j_f5),
              p5=(R_T1, j_p5), kv=(R_T1, j_kv), om0=(R_T1, j_om(0)), om1=(R_T1, j_om(1)), oa0=(R_T1, j_oa(0)), oa1=(R_T1, j_oa(1)),
              p4=(None, j_p4), c4=(None, j_c4), la0=(None, j_la(0)), la1=(None, j_la(1)), la2=(None, j_la(2)), la3=(None, j_la(3)))
    def hook(name):
        role, body = JB[name]
        if role is not None:
            a(f"s_bitcmp1_b32 s{ROLE}, {role}")
            a(f"s_cbranch_scc0 L_skip_{name}")
        body()
        if role is not None: a.label(f"L_skip_{name}")
        marks[name] = nvm[0]
    JOBS = OPT["sched"]
    p0, p1, p2 = OPT["pos"]
    KVS, WOS = OPT["kvs"], OPT["wos"]
    for T in range(32):
        it, t = T >> 2, T & 3
        for qi in range(2):
            st = 2*t + qi
            s = S4[qi][T & 1]
            for j in range(16):
                a(f"v_exp_f32 v{s+j}, v{s+j}")
                if j == p0:
                    tp = T if qi == 1 else T - 1
                    if tp >= 0: smfmac(a, O[1-qi], VBB[tp & 1], S4[1-qi][tp & 1]+8, IDX)
                    if st == 5:
                        if it == OPT["f2it"]: hook("d0")
                        if it == OPT["f4it"]: hook("d1")
                        if it < 7 and f"r{it+1}" in a.vm: a.wait_vm(f"r{it+1}")
                        if not OPT["y_nobar"]: a("s_barrier")
                        if it == OPT["f2it"]: hook("f2")
                        if it == OPT["f4it"]: hook("f4")
                    if qi == 1:
                        if T + 2 < 32: a(f"ds_read_b128 {vr(KB_[T&1],4)}, v{VK} offset:{(T+2)*1024}")
                        if T + 1 < 32:
                            a(f"s_mov_b64 exec, s[{MASK}:{MASK+1}]")
                            a(f"ds_read_b128 {vr(VA[(T+1)&1],4)}, v{VV} offset:{(T+1)*1024}")
                            a(f"ds_read_b128 {vr(VBB[(T+1)&1],4)}, v{VV} offset:{(T+1)*1024+512}")
                            a("s_mov_b64 exec, -1")
                if j == p1:
                    if qi == 0: a("s_waitcnt lgkmcnt(0)")
                    if T + 1 < 32: mfma(a, S4[qi][(T+1) & 1], KB_[(T+1) & 1], Q[qi], C[qi])
                    if (it, st) in JOBS: hook(JOBS[(it, st)])
                if j == p2:
                    smfmac(a, O[qi], VA[T & 1], s, IDX)
                    if st in KVS and it + 2 < 8 and not OPT["y_kvpre"]:
                        kv_dma(a, it + 2, KVS.index(st)); nvm[0] += 1
                    if st in WOS and it >= 1 and not OPT["y_nowo"]:
                        wo_dma(a, it - 1, WOS.index(st)); nvm[0] += 1
    a(f"s_bitcmp1_b32 s{W}, 2")
    smfmac(a, O[1], VBB[1], S4[1][1]+8, IDX)
    stamp(a, 7)
    SX = 48
    a(f"v_add_f32_e64 v{M1}, |v{O[0]}|, |v{O[0]+1}|")
    for i in range(2, 9): a(f"v_add_f32_e64 v{M1}, v{M1}, |v{O[0]+i}|")
    a(f"v_mov_b32 v6, {FLAG}")
    a("v_mov_b32 v7, 1")
    a(f"v_mov_b32 v5, {f32(OPT['thr'])}")
    a("s_cbranch_scc0 L_send1")
    a(f"ds_write_b128 v{XW}, {vr(O[0],4)}")
    a(f"ds_write_b128 v{XW}, {vr(O[0]+4,4)} offset:1024")
    a(f"ds_write_b32 v{XW}, v{O[0]+8} offset:2048")
    a("s_branch L_sent")
    a.label("L_send1")
    a(f"ds_write_b128 v{XW}, {vr(O[1],4)}")
    a(f"ds_write_b128 v{XW}, {vr(O[1]+4,4)} offset:1024")
    a(f"ds_write_b32 v{XW}, v{O[1]+8} offset:2048")
    a.label("L_sent")
    for i in range(0, 9): a(f"v_add_f32_e64 v{M1}, v{M1}, |v{O[1]+i}|")
    a(f"v_cmp_nlt_f32 vcc, v{M1}, v5")
    a("s_nop 1")
    a("s_cbranch_vccz L_noflag")
    a("ds_write_b32 v6, v7")
    a.label("L_noflag")
    a("s_waitcnt lgkmcnt(0)")
    a("s_barrier")
    a(f"ds_read_b32 v{M2}, v6")
    a(f"ds_read_b32 v{SX+8}, v{XR} offset:2048")
    a(f"ds_read_b128 {vr(SX,4)}, v{XR}")
    a(f"ds_read_b128 {vr(SX+4,4)}, v{XR} offset:1024")
    a("s_cbranch_scc0 L_keep0")
    for i in range(0, 10, 2): a(f"v_mov_b64 v[{O[0]+i}:{O[0]+i+1}], v[{O[1]+i}:{O[1]+i+1}]")
    a.label("L_keep0")
    a("s_waitcnt lgkmcnt(2)")
    a(f"v_readfirstlane_b32 s69, v{M2}")
    a(f"v_add_f32 v{O[0]+8}, v{O[0]+8}, v{SX+8}")
    a(f"v_rcp_f32 v{M1}, v{O[0]+8}")
    a("s_cmp_lg_u32 s69, 0")
    a("s_cbranch_scc1 L_maybe_fb")
    a.label("L_fin")
    a("s_waitcnt lgkmcnt(0)")
    for i in range(0, 8, 2): a(f"v_pk_add_f32 {vr(O[0]+i,2)}, {vr(O[0]+i,2)}, {vr(SX+i,2)}")
    for i in range(0, 8, 2): a(f"v_pk_mul_f32 {vr(O[0]+i,2)}, {vr(O[0]+i,2)}, {vr(M1,2)} op_sel_hi:[1,0]")
    for q in range(4): a(f"v_cvt_pk_bf16_f32 v{20+q}, v{O[0]+2*q}, v{O[0]+2*q+1}")
    for q in range(4): a(f"v_min_u32 v{20+q}, -2, v{20+q}")
    a(f"buffer_store_dwordx4 v[20:23], v3, s[32:35], s{OFB} offen{SC}")
    wo_dma(a, 7, 0)
    wo_dma(a, 7, 1)
    n_la = nvm[0] - marks["la3"] + 3

    def rare(a):
        a.label("L_maybe_fb")
        a(f"s_cmp_lg_u32 s{ATT}, 0")
        a("s_cbranch_scc1 L_fin")
        a(f"s_mov_b32 s{ATT}, 1")
        a(f"s_mov_b32 s{ROLE}, 0")
        a("s_waitcnt vmcnt(0) lgkmcnt(0)")
        a("s_barrier")
        for rr in range(8):
            kv_dma(a, rr, 0); kv_dma(a, rr, 1)
        a(f"v_mov_b32 v{M1}, 0xff800000")
        a(f"v_mov_b32 v{M2}, 0xff800000")
        a("v_mov_b32 v4, v3")
        a("s_mov_b32 s60, 64")
        a("s_waitcnt vmcnt(0)")
        a("s_barrier")
        a.label("L_fbloop")
        a(f"ds_read_b128 {vr(KB_[0],4)}, v4")
        a("v_add_u32 v4, 1024, v4")
        a("s_waitcnt lgkmcnt(0)")
        mfma(a, S4[0][0], KB_[0], Q[0], "0")
        mfma(a, S4[1][0], KB_[0], Q[1], "0")
        a.nop(12)
        maxtree(a, M1, S4[0][0], False)
        maxtree(a, M2, S4[1][0], False)
        a("s_sub_u32 s60, s60, 1")
        a("s_cmp_lg_u32 s60, 0")
        a("s_cbranch_scc1 L_fbloop")
        zero_acc()
        prime_reads()
        a("s_branch L_setmax")
    return rare, n_la

def phase3(a, n_la):
    ACC, OFA, OFB_ = 32, SCR, 224
    WA = list(range(96, 136, 4)) + list(range(184, 208, 4))
    WB = list(range(208, 224, 4)) + list(range(96, 112, 4)) + list(range(152, 184, 4))
    a(f"v_xor_b32 v11, 64, v{TR0}")
    a(f"v_add_u32 v12, 65536, v{RW}")
    def trread(br, i):
        for ct in range(2):
            f = (WA, WB)[br][2*i+ct]
            ad = TR0 if ct == 0 else 11
            a(f"ds_read_b64_tr_b16 {vr(f,2)}, v{ad} offset:{br*16384+i*2048}")
            a(f"ds_read_b64_tr_b16 {vr(f+2,2)}, v{ad} offset:{br*16384+i*2048+1024}")
    def oload(k):
        return f"buffer_load_dwordx4 {vr(OFB_+4*k,4)}, v3, s[32:35], s{OF3 if k < 4 else OF3B} offen offset:{(k%4)*1024}{SC}"
    for i in range(2): trread(0, i)
    a(f"s_add_u32 s{OF3}, s{OF3}, 32768")
    a(f"s_add_u32 s{OF3B}, s{OF3B}, 32768")
    a(f"s_mov_b32 s70, {POLL_LIMIT}")
    a(f"s_waitcnt vmcnt({n_la})")
    a(f"v_sub_f32 v{GV+1}, 1.0, v{GV}")
    a(f"v_cvt_pk_bf16_f32 v{GV+1}, v{GV+1}, v{GV+1}")
    a(f"v_lshlrev_b32 v{GV+1}, 16, v{GV+1}")
    for i in range(8):
        if i + 2 < 8: trread(0, i + 2)
        a(f"s_waitcnt lgkmcnt({4*min(2, 7-i)})")
        for ct in range(2): mfma(a, ACC+16*ct, WA[2*i+ct], OFA+4*i, "0" if i == 0 else ACC+16*ct)
        if i == OPT["asplit"] - 1:
            stamp(a, 8)
            for k in range(8): a(oload(k))
    a("s_waitcnt vmcnt(8)")
    a("s_barrier")
    for i in range(8):
        trread(1, i)
        if i % 2 == 1: a("s_waitcnt lgkmcnt(4)")
    for j in range(0, 32, 2): a(f"v_pk_mul_f32 {vr(ACC+j,2)}, {vr(ACC+j,2)}, {vr(GV,2)} op_sel_hi:[1,0]")
    a("s_waitcnt lgkmcnt(0)")
    for i in range(8):
        o = OFB_ + 4*i
        a.label(f"L_ow{i}")
        a(f"s_waitcnt vmcnt({7-i})")
        a(f"v_max3_u32 v4, v{o}, v{o+1}, v{o+2}")
        a(f"v_max_u32 v4, v4, v{o+3}")
        a("v_cmp_eq_u32 vcc, -1, v4")
        a("s_nop 1")
        a(f"s_cbranch_vccnz L_or{i}")
        a.label(f"L_og{i}")
        for ct in range(2): mfma(a, ACC+32+16*ct, WB[2*i+ct], o, "0" if i == 0 else ACC+32+16*ct)
        def retry(a, i=i):
            a.label(f"L_or{i}")
            a("s_sub_u32 s70, s70, 1")
            a("s_cmp_lt_i32 s70, 1")
            a(f"s_cbranch_scc1 L_og{i}")
            a(f"s_sleep {OPT['osleep']}")
            for k in range(i, 8): a(oload(k))
            a(f"s_branch L_ow{i}")
        SPINS.append(retry)
    stamp(a, 9)
    for p in range(4):
        for j in range(0, 8, 2):
            r = ACC+8*p+j
            a(f"v_pk_fma_f32 {vr(r,2)}, {vr(r+32,2)}, {vr(GV,2)}, {vr(r,2)} op_sel:[0,1,0]")
        for q in range(2): a(f"ds_write_b128 v{RW if p < 2 else 12}, {vr(ACC+8*p+4*q,4)} offset:{(p&1)*32768+q*1024}")
    a("s_waitcnt lgkmcnt(0)")
    a("s_barrier")
    for src in range(4):
        for q in range(2): a(f"ds_read_b128 {vr(64+8*src+4*q,4)}, v{RR} offset:{src*2048+q*1024}")
    a("s_waitcnt lgkmcnt(4)")
    for j in range(0, 8, 2): a(f"v_pk_add_f32 {vr(64+j,2)}, {vr(64+j,2)}, {vr(72+j,2)}")
    a("s_waitcnt lgkmcnt(0)")
    for j in range(0, 8, 2): a(f"v_pk_add_f32 {vr(80+j,2)}, {vr(80+j,2)}, {vr(88+j,2)}")
    for j in range(0, 8, 2): a(f"v_pk_add_f32 {vr(64+j,2)}, {vr(64+j,2)}, {vr(80+j,2)}")
    for q in range(4): a(f"v_cvt_pk_bf16_f32 v{20+q}, v{64+2*q}, v{64+2*q+1}")
    a("v_permlane32_swap_b32 v20, v22")
    a("v_permlane32_swap_b32 v21, v23")
    a(f"buffer_store_dwordx4 v[20:23], v{OUTA}, s[24:27], s{OUTOFF} offen{OPT['outsc']}")
    a(f"s_or_b32 s67, s2, s{W}")
    a("s_cmp_lg_u32 s67, 0")
    a("s_cbranch_scc1 L_noE")
    a(f"v_mov_b32 v24, s{TAG}")
    a(f"v_mov_b32 v25, {WS_E}")
    a("s_mov_b64 exec, 1")
    a("buffer_store_dword v24, v25, s[32:35], 0 offen")
    a("s_mov_b64 exec, -1")
    a.label("L_noE")
    flush_stamps(a)

def main(out):
    hdr = open("cdna_kernels/" + NAME + ".s.ref").read().split("; Override launch")[0]
    txt = hdr + "; @launch grid=(256,1,1) block=(512,1,1) lds=163840\n"
    txt += '.amdgcn_target "amdgcn-amd-amdhsa--gfx950"\n.text\n'
    nm = NAME + "_kernel"
    a = Asm()
    a.label(nm)
    g1, g2 = phase1(a)
    rare, n_la = phase2(a, g1, g2)
    phase3(a, n_la)
    a.label("L_end")
    a("s_endpgm")
    for sp in SPINS: sp(a)
    rare(a)
    a.label("L_code_end")
    a("s_endpgm")
    a.lines, added = autonop(a.lines)
    errs = check(a.lines, nm)
    bare, skipping = [], None
    for l in a.lines:
        if skipping:
            if l.startswith(skipping + ":"): skipping = None
            continue
        bare.append(l)
        if "s_cbranch_scc0 L_skip_" in l: skipping = l.split()[-1]
    errs += check(bare, nm + "(jobs skipped)")
    txt += f".globl {nm}\n.p2align 8\n.type {nm},@function\n" + a.text()
    txt += f""".section .rodata,"a"
.p2align 6
.amdhsa_kernel {nm}
  .amdhsa_next_free_vgpr 256
  .amdhsa_next_free_sgpr 102
  .amdhsa_accum_offset 256
  .amdhsa_group_segment_fixed_size 0
  .amdhsa_kernarg_size 88
  .amdhsa_user_sgpr_count 2
  .amdhsa_user_sgpr_kernarg_segment_ptr 1
  .amdhsa_system_sgpr_workgroup_id_x 1
.end_amdhsa_kernel
"""
    open(out, "w").write(txt)
    for e in errs: print("HAZARD", e)
    print("written", out, len(txt), "bytes;", len(errs), "hazards;", added, "auto nops")

if __name__ == "__main__":
    if "--stamps" in sys.argv:
        STAMPS = True; sys.argv.remove("--stamps")
    for x in list(sys.argv):
        if x.startswith("--o:"):
            k, v = x[4:].split("=", 1)
            assert k in OPT, k
            OPT[k] = eval(v); sys.argv.remove(x)
    main(sys.argv[1] if len(sys.argv) > 1 else "cdna_kernels/" + NAME + ".s")
```

```python
import sys, struct
from asmlib import *

NAME = "gated_mix__linear_kernel_hedgehog__mha_block__prompt"
WS_E, WS_F1, WS_F2, WS_F3, WS_GATE, WS_F4, WS_F5, WS_KVF = 0x0, 0x10000, 0x20000, 0x30000, 0x40000, 0x50000, 0x60000, 0x70000
WS_QB, WS_KB, WS_VB, WS_KVP, WS_OF = 0x200000, 0x400000, 0x600000, 0x800000, 0xA00000
WS_USED = 0x2100000
def f32(x): return "0x%08x" % struct.unpack("<I", struct.pack("<f", x))[0]
LOG2E = 1.4426950408889634
STAMPS = False
OPT = dict(osleep=2, cpf=1, p0fill=0, asplit=8, y_nojob=0, y_nowo=0, y_nobar=0, y_kvpre=0, x_pre=0, x_nolds=0, x_nodma=0, dmaspread=1, dmak=0, rsplit=(0,3,5,7), rp=1, pos=(1, 6, 11), thr=2.0**100, cyc=0, dbg=0, amp=None, f1pos=1, outsc="", fill=3,
           f2it=0, f4it=5, kvs=(0, 1), wos=(6, 7),
           sched={(1, 2): "p2", (1, 6): "ld", (2, 2): "red", (2, 4): "f5", (3, 4): "p5", (4, 0): "kv", (4, 3): "om0", (4, 4): "om1", (4, 5): "oa0", (4, 6): "oa1",
                  (6, 5): "p4", (7, 1): "c4", (7, 2): "la0", (7, 3): "la1", (7, 4): "la2", (7, 5): "la3"})
SC = " sc1"
POLL_LIMIT = 200000
NST = 11

TAG, F1OFF, F2OFF, F1POLL, W, HG, J, TY, RB16, XOFF, WOFF, MX, MW, VOFF, QK0, QK1, H, RB8, LDS0 = range(40, 59)
MASK = 62; KOFF, QOFF, ROLE = 64, 65, 66
L2E, KVPOFF = 72, 73
OFB = 3
OF3, OF3B, OUTOFF = 29, 30, 31
T1, H0, WOOFF, F4POLL = 36, 37, 38, 39
ATT, OWN1, GATE3 = 49, 50, 52
Q = [8, 12]; C = [16, 32]; S4 = [[48, 200], [64, 216]]; O = [80, 96]
KB_ = [112, 116]; VA = [120, 128]; VBB = [124, 132]
IDX, VK, VV, VWO, VL8, XW, XR, TR0, RW, RR, OUTA, G4 = range(136, 148)
M1, M2 = 150, 151
GV = 148
VP0, VP1 = 0, 2
SCR, PHI = 152, 232
XCH, FLAG = 131072, 155648
R_T0, R_T0W0, R_RED, R_T1, R_T1W0, R_ALL = range(6)

def mfma(a, d, A, B, Cc):
    a(f"v_mfma_f32_32x32x16_bf16 {vr(d,16)}, {vr(A,4)}, {vr(B,4)}, {Cc if isinstance(Cc,str) else vr(Cc,16)}")
def smfmac(a, d, A, B, idx):
    a(f"v_smfmac_f32_32x32x32_bf16 {vr(d,16)}, {vr(A,4)}, {vr(B,8)}, v{idx}")
def srd(a, s, lo, hi, nrec):
    a(f"s_mov_b32 s{s}, s{lo}")
    a(f"s_mov_b32 s{s+1}, s{hi}")
    a(f"s_mov_b32 s{s+2}, {nrec}")
    a(f"s_mov_b32 s{s+3}, 0x00020000")
def stamp(a, j):
    if STAMPS: a(f"s_mem{'' if OPT['cyc'] else 'real'}time s[{80+2*j}:{81+2*j}]")
def flush_stamps(a):
    if not STAMPS: return
    a("s_waitcnt vmcnt(0)")
    stamp(a, NST-1)
    a("s_waitcnt lgkmcnt(0)")
    if OPT["amp"]:
        j0, j1 = OPT["amp"]
        a(f"s_or_b32 s70, s2, s{W}")
        a("s_cmp_lg_u32 s70, 0")
        a("s_cbranch_scc1 L_end")
        if j0 < 0: a(f"s_mov_b32 s70, {j1}")
        else:
            a(f"s_sub_u32 s70, s{80+2*j1}, s{80+2*j0}")
            a("s_lshl_b32 s70, s70, 4")
        a.label("L_amp")
        a("s_memrealtime s[4:5]")
        a("s_waitcnt lgkmcnt(0)")
        a(f"s_sub_u32 s6, s4, s{80+2*(NST-1)}")
        a("s_cmp_lt_u32 s6, s70")
        a("s_cbranch_scc1 L_amp")
        return
    a("s_lshl_b32 s70, s2, 3")
    a(f"s_add_u32 s70, s70, s{W}")
    a("s_lshl_b32 s70, s70, 6")
    a(f"s_add_u32 s70, s70, {0x2000000}")
    a("s_mov_b64 exec, 1")
    a("v_mov_b32 v1, 0")
    for j in range(NST):
        a(f"v_mov_b32 v2, s{80+2*j}")
        a(f"buffer_store_dword v2, v1, s[32:35], s70 offen offset:{4*j}")
def pub(a, soff):
    a(f"v_mov_b32 v4, s{TAG}")
    a("v_mov_b32 v5, 0")
    a("s_mov_b64 exec, 1")
    a(f"buffer_store_dword v4, v5, s[32:35], {soff} offen{SC}")
    a("s_mov_b64 exec, -1")
def poll(a, lab, vaddr, vdst, soff, landed=False, own=None):
    a(f"s_mov_b32 s70, {POLL_LIMIT}")
    a(f"s_branch {lab}_{'cmp' if landed else 'chk'}")
    a.label(lab)
    a(f"buffer_load_dword v{vdst}, v{vaddr}, s[32:35], {soff} offen{SC}")
    a.label(lab + "_chk")
    a("s_waitcnt vmcnt(0)")
    a.label(lab + "_cmp")
    a(f"v_cmp_ne_u32 s[68:69], s{TAG}, v{vdst}")
    a("s_sub_u32 s70, s70, 1")
    a("s_or_b32 s68, s68, s69")
    if own is not None: a(f"s_and_b32 s68, s68, s{own}")
    a(f"s_cbranch_scc0 {lab}_ok")
    a("s_cmp_eq_u32 s70, 0")
    a(f"s_cbranch_scc1 {lab}_ok")
    a("s_sleep 1")
    a(f"s_branch {lab}")
    a.label(lab + "_ok")
    a.vm = []

SPINS = []
def check_flags(a, lab, vaddr_code, vdst, soff_code):
    a(f"v_cmp_ne_u32 vcc, s{TAG}, v{vdst}")
    a("s_nop 1")
    a(f"s_cbranch_vccnz {lab}_spin")
    a.label(f"{lab}_back")
    def spin(a):
        a.label(f"{lab}_spin")
        for l in vaddr_code + soff_code: a(l)
        poll(a, lab, 6, vdst, "s71", landed=True)
        a(f"s_branch {lab}_back")
    SPINS.append(spin)

class Fill:
    def __init__(self): self.g = []
    def __call__(self, *lines, after=0): self.g.append((after, list(lines)))
    def flush(self, a): self.pop(a, 10**6, 99)
    def pop(self, a, n, c):
        while n > 0 and self.g and self.g[0][0] <= c:
            _, ls = self.g.pop(0)
            for l in ls:
                if isinstance(l, tuple): a.vmem(*l)
                elif callable(l): l(a)
                else: a(l)
            n -= len(ls)

def gate_fill(f):
    X, Wt, t = 224, 228, 208
    f(lambda a: a.wait_vm("g") if "g" in a.vm else None, after=2)
    for q in range(4):
        f(f"v_lshlrev_b32 v{t}, 16, v{X+q}", f"v_lshlrev_b32 v{t+2}, 16, v{Wt+q}", f"v_and_b32 v{t+1}, 0xffff0000, v{X+q}")
        f(f"v_and_b32 v{t+3}, 0xffff0000, v{Wt+q}", f"v_pk_mul_f32 {vr(t,2)}, {vr(t,2)}, {vr(t+2,2)}", f"v_cvt_pk_bf16_f32 v{t+2}, v{t}, v{t+1}")
        d = t+4 if q == 0 else t
        f(f"v_lshlrev_b32 v{d}, 16, v{t+2}", f"v_and_b32 v{d+1}, 0xffff0000, v{t+2}")
        if q: f(f"v_pk_add_f32 {vr(t+4,2)}, {vr(t+4,2)}, {vr(t,2)}")
    s = t+4
    f(f"v_add_f32 v{s}, v{s}, v{s+1}")
    for sw in ("32", "16"):
        f(f"v_mov_b32 v{s+1}, v{s}")
        f(f"v_permlane{sw}_swap_b32 v{s}, v{s+1}", f"v_add_f32 v{s}, v{s}, v{s+1}")
    for r in (8, 4, 2, 1):
        f(f"v_add_f32_dpp v{s}, v{s}, v{s} row_ror:{r} row_mask:0xf bank_mask:0xf")
    f(f"v_cvt_pk_bf16_f32 v{s}, v{s}, v{s}", f"v_lshlrev_b32 v{s}, 16, v{s}", f"v_mul_f32 v{s}, {f32(-LOG2E)}, v{s}")
    f(f"v_exp_f32 v{s}, v{s}")
    f(f"v_add_f32 v{s}, 1.0, v{s}", f"v_rcp_f32 v{s}, v{s}")
    f(f"v_cvt_pk_bf16_f32 v{s}, v{s}, v{s}", f"v_lshlrev_b32 v{s}, 16, v{s}", f"v_mov_b32 v{s+1}, 0")
    f("s_lshr_b32 s67, s71, 8", f"s_add_u32 s67, s67, {WS_GATE}", "s_mov_b64 exec, 1",
      (f"buffer_store_dword v{s}, v{s+1}, s[32:35], s67 offen{SC}", "gs"), "s_mov_b64 exec, -1")

def phase1(a):
    SLOT = 40960
    ACC = [64, 80, 96]
    FR = [32, 48]
    VXR, VWR, VXD, VWD, HF, BSEL = 8, 16, 18, 20, 21, 112
    a("s_cmp_ge_u32 s2, 256")
    a("s_cbranch_scc1 L_end")
    stamp(a, 0)
    a("s_load_dwordx4 s[4:7], s[0:1], 0")
    a("s_load_dwordx2 s[10:11], s[0:1], 40")
    a("s_load_dwordx2 s[14:15], s[0:1], 80")
    a("s_load_dwordx2 s[8:9], s[0:1], 16")
    a("s_load_dwordx2 s[12:13], s[0:1], 56")
    a("s_load_dwordx2 s[76:77], s[0:1], 24")
    a("s_load_dwordx2 s[78:79], s[0:1], 48")
    a("s_load_dwordx2 s[74:75], s[0:1], 64")
    a("v_and_b32 v1, 63, v0")
    a("v_lshrrev_b32 v2, 6, v0")
    a(f"s_and_b32 s{HG}, s2, 7")
    a(f"v_readfirstlane_b32 s{W}, v2")
    a(f"s_lshr_b32 s{J}, s2, 3")
    a(f"s_and_b32 s{TY}, s{J}, 1")
    a(f"s_lshr_b32 s{RB16}, s{J}, 1")
    a("v_lshrrev_b32 v7, 3, v1")
    a("v_and_b32 v4, 7, v1")
    a("v_lshrrev_b32 v5, 1, v7")
    a("v_xor_b32 v6, v4, v5")
    a("v_lshlrev_b32 v6, 4, v6")
    a(f"v_lshl_add_u32 v{VXD}, v7, 10, v6")
    a("v_xor_b32 v6, 64, v6")
    a(f"v_lshl_add_u32 v{VXD+1}, v7, 10, v6")
    a(f"v_add_u32 v{VXD+1}, {8192-1024}, v{VXD+1}")
    a("v_lshrrev_b32 v6, 2, v1")
    a("v_and_b32 v6, 4, v6")
    a("v_xor_b32 v6, v4, v6")
    a("v_lshlrev_b32 v6, 4, v6")
    a(f"v_lshl_add_u32 v{VWO}, v7, 10, v6")
    a("v_mul_u32_u24 v7, 3072, v7")
    a(f"v_add_u32 v{VWD}, v7, v6")
    a(f"s_lshl_b32 s{XOFF}, s{RB16}, 17")
    a(f"s_lshl_b32 s67, s{W}, 14")
    a(f"s_add_u32 s{XOFF}, s{XOFF}, s67")
    a(f"s_mul_i32 s{WOFF}, s{W}, 24576")
    a(f"s_lshl_b32 s{MX}, s{W}, 11")
    a(f"s_mul_i32 s{MW}, s{W}, 3072")
    a(f"s_add_u32 s{MW}, s{MW}, 16384")
    a(f"s_lshl_b32 s67, s{HG}, 7")
    a(f"s_cmp_eq_u32 s{TY}, 0")
    a("s_cselect_b32 s68, 1024, 0")
    a("s_cselect_b32 s69, 0, 1024")
    a("s_add_u32 s68, s68, s67")
    a("s_add_u32 s69, s69, s67")
    a("s_add_u32 s67, s67, 1024")
    a("s_sub_u32 s22, 0x180000, s68")
    a("s_sub_u32 s26, 0x180000, s67")
    a("s_sub_u32 s30, 0x180800, s69")
    a("s_mov_b32 s23, 0x00020000")
    a("s_mov_b32 s27, 0x00020000")
    a("s_mov_b32 s31, 0x00020000")
    a("s_mov_b32 s18, 0x200000")
    a("s_mov_b32 s19, 0x00020000")
    a(f"s_cmp_eq_u32 s{TY}, 0")
    a("s_waitcnt lgkmcnt(0)")
    a("s_cselect_b32 s70, s6, s10")
    a("s_cselect_b32 s71, s7, s11")
    a("s_mov_b32 s16, s4")
    a("s_mov_b32 s17, s5")
    a("s_add_u32 s20, s6, s68")
    a("s_addc_u32 s21, s7, 0")
    a("s_add_u32 s24, s70, s67")
    a("s_addc_u32 s25, s71, 0")
    a("s_add_u32 s28, s10, s69")
    a("s_addc_u32 s29, s11, 0")
    a("s_sub_u32 s28, s28, 2048")
    a("s_subb_u32 s29, s29, 0")
    def dma_part(c, p):
        sl = (c & 3) * SLOT
        if p == 0:
            a(f"s_add_u32 m0, s{MX}, {sl}")
            a(f"s_add_u32 s59, s{J}, {c}")
            a("s_and_b32 s59, s59, 7")
            a("s_lshl_b32 s60, s59, 7")
            a(f"s_add_u32 s60, s60, s{XOFF}")
            a.vmem(f"buffer_load_dwordx4 v{VXD}, s[16:19], s60 offen lds", f"c{c}")
            a.vmem(f"buffer_load_dwordx4 v{VXD+1}, s[16:19], s60 offen offset:1024 lds", f"c{c}")
        else:
            if p == 1:
                a(f"s_add_u32 m0, s{MW}, {sl}")
                a("s_mul_i32 s61, s59, 196608")
                a(f"s_add_u32 s61, s61, s{WOFF}")
            sg = p - 1
            a.vmem(f"buffer_load_dwordx4 v{VWD}, s[{20+4*sg}:{23+4*sg}], s61 offen offset:{1024*sg} lds", f"c{c}")
    def dma(c):
        for p in range(4): dma_part(c, p)
    dma(0)
    if OPT["cpf"]:
        a(f"s_cmp_lg_u32 s{W}, 7")
        a("s_cbranch_scc1 L_nocpf")
        a("s_getpc_b64 s[68:69]")
        a.label("L_pc")
        a(f"s_lshl_b32 s67, s{J}, 10")
        a("v_lshl_add_u32 v6, v1, 4, s67")
        a("v_min_u32 v6, L_code_end-L_pc-16, v6")
        a("global_load_dwordx4 v[232:235], v6, s[68:69]")
        a.label("L_nocpf")
    a(f"s_load_dword s{TAG}, s[14:15], {WS_E}")
    a("s_barrier")
    dma(1)
    a("v_and_b32 v23, 31, v1")
    a(f"v_lshrrev_b32 v{HF}, 5, v1")
    a("v_bfe_u32 v5, v1, 1, 3")
    a(f"s_and_b32 s67, s{W}, 3")
    a(f"s_lshr_b32 s68, s{W}, 2")
    a("s_lshl_b32 s67, s67, 12")
    a("v_lshl_add_u32 v6, v23, 7, s67")
    for st in range(4):
        a(f"v_or_b32 v7, {2*st}, v{HF}")
        a("v_xor_b32 v7, v7, v5")
        a(f"v_lshl_add_u32 v{VXR+st}, v7, 4, v6")
    a("v_bfe_u32 v7, v1, 2, 2")
    a("v_lshlrev_b32 v24, 7, v7")
    a("v_bfe_u32 v7, v1, 4, 1")
    a("v_lshl_add_u32 v24, v7, 5, v24")
    a("v_and_b32 v7, 3, v1")
    a("v_lshl_add_u32 v24, v7, 3, v24")
    a("v_bfe_u32 v7, v1, 3, 1")
    a("v_xor_b32 v7, s68, v7")
    a("v_lshl_add_u32 v6, v7, 6, v24")
    a(f"v_mul_u32_u24 v7, 3072, v{HF}")
    a("v_add_u32 v6, v6, v7")
    a(f"v_add_u32 v{VWR}, 16384, v6")
    a("v_lshlrev_b32 v3, 4, v1")
    a(f"s_lshr_b32 s{RB8}, s2, 5")
    a(f"s_lshl_b32 s{H}, s{HG}, 2")
    a(f"s_and_b32 s69, s{J}, 3")
    a(f"s_add_u32 s{H}, s{H}, s69")
    a(f"s_lshl_b32 s71, s{RB8}, 2")
    a(f"s_and_b32 s69, s{W}, 3")
    a("s_add_u32 s71, s71, s69")
    a("s_lshl_b32 s71, s71, 1")
    a("s_add_u32 s71, s71, s68")
    a("s_lshl_b32 s71, s71, 5")
    a(f"s_add_u32 s71, s71, s{H}")
    a("s_lshl_b32 s71, s71, 10")
    srd(a, 36, 12, 13, 1024)
    a.vmem("buffer_load_dwordx4 v[224:227], v3, s[16:19], s71 offen", "g")
    a.vmem("buffer_load_dwordx4 v[228:231], v3, s[36:39], 0 offen", "g")

    f = Fill()
    f(*[f"v_add_u32 v{VXR+4+st}, {2*SLOT}, v{VXR+st}" for st in range(4)], f"v_add_u32 v{VWR+1}, {2*SLOT}, v{VWR}")
    f("s_mov_b32 s32, s14", "s_mov_b32 s33, s15", f"s_mov_b32 s34, {WS_USED}", "s_mov_b32 s35, 0x00020000")
    f("s_mov_b32 s36, s8", "s_mov_b32 s37, s9", "s_mov_b32 s38, 16384")
    f("s_lshr_b32 s67, s71, 15", f"s_lshl_b32 s{OFB}, s67, 16", f"s_lshl_b32 s67, s{H}, 10", f"s_add_u32 s{OFB}, s{OFB}, s67", f"s_add_u32 s{OFB}, s{OFB}, {WS_OF+32768}",
      "v_mov_b64 v[216:217], -1", "v_mov_b64 v[218:219], -1",
      (f"buffer_store_dwordx4 v[216:219], v3, s[32:35], s{OFB} offen{SC}", "z"))
    f("v_bfe_u32 v6, v1, 2, 2", f"v_lshl_add_u32 v6, v{HF}, 2, v6", "v_lshlrev_b32 v6, 5, v6")
    f("v_and_b32 v7, 3, v1", "v_lshl_add_u32 v6, v7, 3, v6", f"s_lshr_b32 s67, s{W}, 2", "s_lshl_b32 s67, s67, 10", "v_add_u32 v22, s67, v6")
    f(f"v_lshlrev_b32 v6, 2, v{HF}", "v_sub_u32 v31, v23, v6", "v_mov_b32 v29, 0x3f80", "v_mov_b32 v30, 0x3f800000")
    for sg in range(2):
        for q in range(4):
            T0 = 16*sg + 8*((2*q)//4) + (2*q) % 4
            f(f"v_cmp_eq_u32 vcc, {T0}, v31", f"v_cmp_eq_u32 s[68:69], {T0+1}, v31", "v_cndmask_b32 v7, 0, v29, vcc", f"v_cndmask_b32 v{BSEL+4*sg+q}, v7, v30, s[68:69]")
    f(f"s_lshl_b32 s70, s{RB16}, 2", f"s_and_b32 s67, s{W}, 3", "s_add_u32 s70, s70, s67",
      f"s_lshl_b32 s68, s{HG}, 2", f"s_lshr_b32 s67, s{W}, 2", "s_lshl_b32 s67, s67, 1", "s_add_u32 s68, s68, s67",
      "s_lshl_b32 s67, s68, 16", "s_lshl_b32 s69, s70, 10", "s_add_u32 s67, s67, s69", f"s_add_u32 s{VOFF}, s67, {WS_VB}",
      f"s_cmp_eq_u32 s{TY}, 0", f"s_cselect_b32 s{QK0}, 0, {WS_KB-WS_QB}", "s_cselect_b64 s[68:69], -1, 0",
      f"s_add_u32 s{QK0}, s{QK0}, s67", f"s_add_u32 s{QK0}, s{QK0}, {WS_QB}", f"s_add_u32 s{QK1}, s{QK0}, 65536",
      "v_and_b32 v6, 0x33, v1", "v_bfe_u32 v7, v1, 2, 1", "v_lshl_or_b32 v6, v7, 3, v6", "v_bfe_u32 v7, v1, 3, 1",
      "v_lshl_or_b32 v6, v7, 2, v6", "v_cndmask_b32 v6, v6, v1, s[68:69]", "v_lshlrev_b32 v25, 4, v6")
    f("v_and_b32 v7, 15, v1", "v_lshlrev_b32 v7, 4, v7", f"v_lshl_add_u32 v31, v{HF}, 8, v7")
    f("v_bfe_u32 v6, v1, 4, 1", "v_lshl_add_u32 v26, v6, 16, v31")
    f(f"s_lshl_b32 s{F1POLL}, s{HG}, 12", f"s_add_u32 s{F1POLL}, s{F1POLL}, {WS_F1}", f"s_lshl_b32 s67, s{J}, 7", f"s_add_u32 s{F1OFF}, s{F1POLL}, s67")
    f(f"v_lshlrev_b32 v{VL8}, 7, v23", f"v_lshlrev_b32 v{G4}, 2, v23", "v_lshlrev_b32 v6, 10, v23", f"v_lshl_add_u32 v{OUTA}, v{HF}, 4, v6")
    f(f"s_mov_b32 s{MASK}, 0x0000ffff", f"s_mov_b32 s{MASK+1}, 0x0000ffff", f"s_mov_b32 s{L2E}, {f32(LOG2E)}")
    f(f"s_lshr_b32 s67, s{W}, 1", "s_lshl_b32 s67, s67, 15", f"s_and_b32 s68, s{W}, 1", "s_lshl_b32 s68, s68, 13", "s_add_u32 s67, s67, s68", "s_add_u32 s67, s67, 8192", "v_add_u32 v27, s67, v3")
    if not OPT["p0fill"]: f.flush(a)
    gate_fill(f)
    g1 = Fill()
    g1(f"s_lshl_b32 s{OWN1}, 1, s{J}", f"s_not_b32 s{OWN1}, s{OWN1}")
    g1(f"s_lshr_b32 s67, s{W}, 2", f"s_lshl_b32 s{LDS0}, s67, 5", f"s_and_b32 s68, s{W}, 3", f"s_add_u32 s{LDS0}, s{LDS0}, s68", f"s_lshl_b32 s{LDS0}, s{LDS0}, 10",
       "s_lshl_b32 s67, s67, 15", f"v_add_u32 v{VK}, s67, v3", "s_add_u32 s67, s67, 65536", f"v_add_u32 v{VV}, s67, v31")
    g1(f"s_lshl_b32 s67, s{H}, 16", f"s_add_u32 s71, s67, {WS_KB}", f"s_add_u32 s{KOFF}, s71, s{LDS0}",
       f"s_lshl_b32 s68, s{RB8}, 2", f"s_and_b32 s69, s{W}, 3", "s_add_u32 s68, s68, s69", "s_lshl_b32 s68, s68, 11",
       f"s_add_u32 s{QOFF}, s67, s68", f"s_add_u32 s{QOFF}, s{QOFF}, {WS_QB}")
    g1(f"s_lshr_b32 s67, s{W}, 2", "s_lshl_b32 s67, s67, 16", f"s_and_b32 s68, s{W}, 3", "s_lshl_b32 s68, s68, 11", "s_add_u32 s67, s67, s68", "s_add_u32 s67, s67, 8192", "v_add_u32 v28, s67, v3")
    g1(f"s_bfe_u32 s67, s{W}, 0x10001", f"s_and_b32 s68, s{W}, 1", "v_bfe_u32 v6, v1, 4, 1", "v_cmp_eq_u32 vcc, s67, v6",
       "s_lshl_b32 s69, s68, 10", "v_add_u32 v6, s69, v31", "s_lshl_b32 s69, s68, 6", "s_add_u32 s69, s69, 2048",
       f"v_lshl_add_u32 v7, v{HF}, 4, s69", "v_cndmask_b32 v29, v7, v6, vcc", "v_add_u32 v6, 512, v6", "v_add_u32 v7, 32, v7", "v_cndmask_b32 v30, v7, v6, vcc",
       f"s_lshl_b32 s{H0}, s{HG}, 2", f"s_lshr_b32 s69, s{W}, 2", "s_lshl_b32 s69, s69, 1", f"s_add_u32 s{H0}, s{H0}, s69", f"s_add_u32 s68, s{H0}, s67",
       "s_lshl_b32 s68, s68, 4", f"s_add_u32 s68, s68, s{RB16}", "s_lshl_b32 s68, s68, 12", f"s_add_u32 s{KVPOFF}, s68, {WS_KVP}")
    g1("v_and_b32 v6, 27, v1", "v_cmp_eq_u32 vcc, 16, v6", "v_mov_b32 v6, 0x3f803f80", f"v_mov_b32 v{IDX}, 0xdddddddd", f"v_cndmask_b32 v{VA[0]}, 0, v6, vcc", f"v_mov_b32 v{VA[0]+1}, v{VA[0]}")
    g1(*[f"v_mov_b64 {vr(VA[0]+k,2)}, {vr(VA[0],2)}" for k in range(2, 16, 2)])
    g1("v_bfe_u32 v7, v1, 3, 1", "v_lshl_add_u32 v6, v7, 6, v24", f"v_lshl_add_u32 v6, v{HF}, 9, v6",
       f"s_lshr_b32 s67, s{W}, 1", "s_lshl_b32 s67, s67, 15", f"v_add_u32 v{TR0}, s67, v6")
    g2 = Fill()
    g2(f"s_lshl_b32 s{F2OFF}, s{HG}, 4", f"s_add_u32 s{F2OFF}, s{F2OFF}, s{RB16}", f"s_lshl_b32 s{F2OFF}, s{F2OFF}, 7", f"s_add_u32 s{F2OFF}, s{F2OFF}, {WS_F2}")
    g2(f"s_cmp_eq_u32 s{TY}, 0", f"s_cselect_b32 s{ROLE}, {1<<R_T0}, {1<<R_T1}", f"s_cselect_b32 s67, {1<<R_T0W0}, {1<<R_T1W0}",
       f"s_cmp_eq_u32 s{W}, 0", "s_cselect_b32 s67, s67, 0", f"s_or_b32 s{ROLE}, s{ROLE}, s67",
       f"s_cmp_eq_u32 s{W}, s{RB8}", f"s_cselect_b32 s67, {1<<R_RED}, 0", f"s_or_b32 s{ROLE}, s{ROLE}, s67")
    g2(f"s_mul_i32 s67, s{W}, 3072", f"s_add_u32 s67, s67, {XCH}", f"v_add_u32 v{XW}, s67, v3",
       f"s_xor_b32 s67, s{W}, 4", "s_mul_i32 s67, s67, 3072", f"s_add_u32 s67, s67, {XCH}", f"v_add_u32 v{XR}, s67, v3")
    g2(f"s_and_b32 s67, s{W}, 1", "s_lshl_b32 s67, s67, 13", f"s_lshr_b32 s68, s{W}, 1", "s_lshl_b32 s69, s68, 11", "s_add_u32 s69, s69, s67", f"v_add_u32 v{RW}, s69, v3",
       "s_lshl_b32 s69, s68, 15", "s_add_u32 s69, s69, s67", f"v_add_u32 v{RR}, s69, v3")
    g2("s_mov_b32 s16, s76", "s_mov_b32 s17, s77", "s_mov_b32 s18, 0x80000", "s_mov_b32 s20, s78", "s_mov_b32 s21, s79", "s_mov_b32 s22, 0x80000",
       "s_mov_b32 s24, s74", "s_mov_b32 s25, s75", "s_mov_b32 s26, 0x200000", f"s_mov_b32 s{ATT}, 0")
    g2(f"s_lshl_b32 s67, s{RB8}, 2", f"s_lshr_b32 s68, s{HG}, 1", "s_add_u32 s67, s67, s68", "s_lshl_b32 s67, s67, 1", f"s_and_b32 s68, s{W}, 1", "s_add_u32 s67, s67, s68",
       f"s_lshl_b32 s{GATE3}, s67, 7", f"s_add_u32 s{GATE3}, s{GATE3}, {WS_GATE}",
       f"s_lshl_b32 s{OF3}, s67, 16", f"s_lshr_b32 s68, s{W}, 1", "s_lshl_b32 s69, s68, 13", f"s_add_u32 s{OF3}, s{OF3}, s69", f"s_add_u32 s{OF3}, s{OF3}, {WS_OF}",
       f"s_add_u32 s{OF3B}, s{OF3}, 4096",
       f"s_lshl_b32 s{OUTOFF}, s67, 15", "s_lshl_b32 s69, s68, 5", f"s_add_u32 s{OUTOFF}, s{OUTOFF}, s69",
       "s_and_b32 s68, s2, 1", "s_lshl_b32 s68, s68, 2", f"s_and_b32 s69, s{J}, 3", "s_add_u32 s68, s68, s69", "s_lshl_b32 s61, s68, 7",
       f"s_add_u32 s{OUTOFF}, s{OUTOFF}, s61", "s_lshr_b32 s60, s67, 2",
       f"s_lshl_b32 s{F4POLL}, s60, 10", f"s_add_u32 s{F4POLL}, s{F4POLL}, {WS_F4}",
       f"s_lshr_b32 s67, s{W}, 2", f"s_lshl_b32 s{WOOFF}, s67, 4", f"s_and_b32 s68, s{W}, 3", f"s_add_u32 s{WOOFF}, s{WOOFF}, s68", f"s_lshl_b32 s{WOOFF}, s{WOOFF}, 13", f"s_add_u32 s{WOOFF}, s{WOOFF}, s61",
       f"s_lshl_b32 s{T1}, s{RB16}, 2", f"s_add_u32 s{T1}, s{T1}, s68")

    FR3 = [32, 48, 160]
    def rd(g):
        c, st = g >> 2, g & 3
        sl = c & 3
        fr = FR3[g % 3]
        L = [f"ds_read_b128 {vr(fr,4)}, v{VXR+4*(sl>>1)+st} offset:{(sl&1)*SLOT}"]
        for s in range(3):
            o = st*6144 + s*1024 + (sl & 1)*SLOT
            L.append(f"ds_read_b64_tr_b16 {vr(fr+4+4*s,2)}, v{VWR+(sl>>1)} offset:{o}")
            L.append(f"ds_read_b64_tr_b16 {vr(fr+6+4*s,2)}, v{VWR+(sl>>1)} offset:{o+512}")
        return L
    DM = {0: [(2, 0), (2, 1)], 1: [(2, 2), (2, 3)], 2: [(3, 0), (3, 1)], 3: [(3, 2), (3, 3)], 4: [(4, 0), (4, 1)], 5: [(4, 2), (4, 3)]}
    for c in (5, 6, 7):
        g0 = 4*(c-4) + 2
        if OPT["dmaspread"]:
            for p in range(4): DM[g0+p] = [(c, p)]
        else:
            DM[g0] = [(c, 0), (c, 1)]; DM[g0+1] = [(c, 2), (c, 3)]
    a.wait_vm("c0", extra="lgkmcnt(0)")
    a(f"s_add_u32 s{TAG}, s{TAG}, 0x9e3779b1")
    a("s_barrier")
    stamp(a, 1)
    for l in rd(0) + rd(1): a(l)
    if OPT["x_pre"]:
        OPT["fill"] = 1000
    for g in range(32):
        c, st = g >> 2, g & 3
        if st == 2 and c < 7:
            if c == 6: a.wait_vm("c7", "phi", extra="lgkmcnt(0)")
            else: a.wait_vm(f"c{c+1}", extra="lgkmcnt(0)")
            a("s_barrier")
        elif st == 3 and c < 7: pass
        else: a(f"s_waitcnt lgkmcnt({7 if g < 31 else 4})")
        if g + 2 < 32: R = rd(g + 2)
        elif g == 30:
            R = []
            for e in range(2):
                R.append(f"ds_read_b64_tr_b16 {vr(152+4*e,2)}, v22 offset:{e*512}")
                R.append(f"ds_read_b64_tr_b16 {vr(154+4*e,2)}, v22 offset:{e*512+256}")
        else: R = []
        fr = FR3[g % 3]
        split = OPT["rsplit"]
        for k, (A, B) in enumerate(((fr+4, fr), (fr, fr+8), (fr+12, fr))):
            mfma(a, ACC[k], A, B, "0" if g == 0 else ACC[k])
            for l in R[split[k]:split[k+1]]:
                if OPT["x_nolds"] and g < 30: continue
                a(l)
            if k == 2 - OPT["dmak"]:
                for cc, p in DM.get(g, []):
                    if OPT["x_nodma"]: a.vm.append(f"c{cc}")
                    else: dma_part(cc, p)
                if g == 18:
                    a(f"s_and_b32 s60, s{W}, 1")
                    a("s_lshl_b32 s60, s60, 10")
                    a("s_mov_b32 m0, s60")
                    a(f"s_lshl_b32 s61, s{HG}, 11")
                    a("s_add_u32 s61, s61, s60")
                    a.vmem("buffer_load_dwordx4 v3, s[36:39], s61 offen lds", "phi")
            f.pop(a, OPT["fill"], c)
    assert not f.g, f"{len(f.g)} filler groups left"
    stamp(a, 2)
    a(f"s_mov_b32 s68, {f32(0.25*LOG2E)}")
    a(f"s_cmp_eq_u32 s{TY}, 0")
    E2 = range(2)
    PH = [160, 176]; EP = [64, 80]; T = [200, 204]
    for e in E2:
        for q in range(4): a(f"v_cvt_pk_bf16_f32 v{192+4*e+q}, v{ACC[0]+8*e+2*q}, v{ACC[0]+8*e+2*q+1}")
    for g in range(2):
        for q in range(4): a(f"v_cvt_pk_bf16_f32 v{40+4*g+q}, v{ACC[1]+8*g+2*q}, v{ACC[1]+8*g+2*q+1}")
    a("s_waitcnt lgkmcnt(0)")
    mfma(a, PH[0], 152, 192, "0")
    mfma(a, PH[1], 156, 196, "0")
    a("s_cbranch_scc1 L_p1_q")
    a(f"buffer_store_dwordx4 v[40:43], v26, s[32:35], s{VOFF} offen{SC}")
    a(f"buffer_store_dwordx4 v[44:47], v26, s[32:35], s{VOFF} offen offset:512{SC}")
    a("s_branch L_p1_qk")
    a.label("L_p1_q")
    for i in range(0, 16, 2): a(f"v_pk_mul_f32 v[{ACC[2]+i}:{ACC[2]+i+1}], v[{ACC[2]+i}:{ACC[2]+i+1}], s[68:69] op_sel_hi:[1,0]")
    a("s_nop 0")
    a.label("L_p1_qk")
    for e in E2:
        for q in range(4): a(f"v_cvt_pk_bf16_f32 v{32+4*e+q}, v{ACC[2]+8*e+2*q}, v{ACC[2]+8*e+2*q+1}")
        a(f"buffer_store_dwordx4 {vr(32+4*e,4)}, v25, s[32:35], s{QK0+e} offen{SC}")
    def f1():
        a("s_waitcnt vmcnt(0)")
        a.vm = []
        a(f"s_cmp_lg_u32 s{W}, 0")
        a("s_barrier")
        a("s_cbranch_scc1 L_f1done")
        pub(a, f"s{F1OFF}")
        a.label("L_f1done")
        stamp(a, 3)
    if OPT["rp"]:
        for e in E2:
            for q in range(4): a(f"v_cvt_pk_bf16_f32 v{T[e]+q}, v{PH[e]+2*q}, v{PH[e]+2*q+1}")
        for e in E2:
            for q in range(4):
                a(f"v_lshlrev_b32 v{PH[e]+2*q}, 16, v{T[e]+q}")
                a(f"v_and_b32 v{PH[e]+2*q+1}, 0xffff0000, v{T[e]+q}")
    for e in E2:
        P = PH[e]; t = T[e]
        a(f"v_max3_f32 v{t}, v{P}, v{P+1}, v{P+2}")
        a(f"v_max3_f32 v{t+1}, -v{P}, -v{P+1}, -v{P+2}")
        a(f"v_max3_f32 v{t}, v{t}, v{P+3}, v{P+4}")
        a(f"v_max3_f32 v{t+1}, v{t+1}, -v{P+3}, -v{P+4}")
        a(f"v_max3_f32 v{t}, v{t}, v{P+5}, v{P+6}")
        a(f"v_max3_f32 v{t+1}, v{t+1}, -v{P+5}, -v{P+6}")
        a(f"v_max_f32 v{t}, v{t}, v{P+7}")
        a(f"v_max_f32_e64 v{t+1}, v{t+1}, -v{P+7}")
    for e in E2: a(f"v_permlane32_swap_b32 v{T[e]}, v{T[e]+1}")
    for e in E2: a(f"v_max_f32 v{T[e]}, v{T[e]}, v{T[e]+1}")
    for e in E2: a(f"v_mul_f32 v{T[e]}, {f32(-LOG2E)}, v{T[e]}")
    for e in E2: a(f"v_mov_b32 v{T[e]+1}, v{T[e]}")
    for e in E2: a(f"v_permlane32_swap_b32 v{T[e]}, v{T[e]+1}")
    for e in E2:
        for q in range(4):
            a(f"v_pk_fma_f32 {vr(EP[e]+2*q,2)}, {vr(PH[e]+2*q,2)}, s[{L2E}:{L2E+1}], {vr(T[e],2)} op_sel_hi:[1,0,0]")
            a(f"v_pk_fma_f32 {vr(EP[e]+8+2*q,2)}, {vr(PH[e]+2*q,2)}, s[{L2E}:{L2E+1}], {vr(T[e],2)} op_sel:[0,0,1] op_sel_hi:[1,0,1] neg_lo:[1,0,0] neg_hi:[1,0,0]")
    for e in E2:
        for j in range(16): a(f"v_exp_f32 v{EP[e]+j}, v{EP[e]+j}")
    if OPT["f1pos"] == 0: f1()
    for e in E2:
        P = PH[e]
        for sg in range(2):
            b = EP[e] + 8*sg
            a(f"v_pk_add_f32 {vr(P+4*sg,2)}, {vr(b,2)}, {vr(b+2,2)}")
            a(f"v_pk_add_f32 {vr(P+4*sg+2,2)}, {vr(b+4,2)}, {vr(b+6,2)}")
    for e in E2:
        for sg in range(2): a(f"v_pk_add_f32 {vr(PH[e]+4*sg,2)}, {vr(PH[e]+4*sg,2)}, {vr(PH[e]+4*sg+2,2)}")
    for e in E2:
        for sg in range(2): a(f"v_add_f32 v{T[e]+sg}, v{PH[e]+4*sg}, v{PH[e]+4*sg+1}")
    for e in E2: a(f"v_permlane32_swap_b32 v{T[e]}, v{T[e]+1}")
    for e in E2: a(f"v_add_f32 v{T[e]}, v{T[e]}, v{T[e]+1}")
    for e in E2: a(f"v_rcp_f32 v{T[e]}, v{T[e]}")
    for e in E2: a(f"v_mov_b32 v{T[e]+1}, v{T[e]}")
    for e in E2: a(f"v_permlane32_swap_b32 v{T[e]}, v{T[e]+1}")
    for e in E2:
        for q in range(4):
            a(f"v_pk_mul_f32 {vr(EP[e]+2*q,2)}, {vr(EP[e]+2*q,2)}, {vr(T[e],2)} op_sel_hi:[1,0]")
            a(f"v_pk_mul_f32 {vr(EP[e]+8+2*q,2)}, {vr(EP[e]+8+2*q,2)}, {vr(T[e],2)} op_sel:[0,1]")
    for e in E2:
        for q in range(8): a(f"v_cvt_pk_bf16_f32 v{PHI+8*e+q}, v{EP[e]+2*q}, v{EP[e]+2*q+1}")
    if OPT["f1pos"] == 1: f1()
    a(f"s_cmp_eq_u32 s{TY}, 0")
    a("s_cbranch_scc0 L_p1_done")
    for e in E2:
        mfma(a, PH[e], PHI+8*e, BSEL, "0")
        mfma(a, PH[e], PHI+4+8*e, BSEL+4, PH[e])
    a("v_mov_b32 v7, 0x3f803f80")
    for q in range(8):
        a(f"v_cndmask_b32 v{208+q}, v7, v{40+q}, s[{MASK}:{MASK+1}]")
        a(f"v_cndmask_b32 v{216+q}, v{40+q}, v7, s[{MASK}:{MASK+1}]")
    for e in E2:
        for q in range(8): a(f"v_cvt_pk_bf16_f32 v{192+8*e+q}, v{PH[e]+2*q}, v{PH[e]+2*q+1}")
        mfma(a, 64+16*e, 192+8*e, 208+8*e, "0")
        mfma(a, 64+16*e, 196+8*e, 212+8*e, 64+16*e)
    for e in E2:
        for q in range(4): a(f"ds_write_b128 v27, {vr(64+16*e+4*q,4)} offset:{e*4096+q*1024}")
    a.label("L_p1_done")
    return g1, g2

def maxtree(a, dst, src, first):
    if first:
        a(f"v_max3_f32 v{dst}, v{src}, v{src+1}, v{src+2}")
        for j in range(3, 15, 2): a(f"v_max3_f32 v{dst}, v{dst}, v{src+j}, v{src+j+1}")
        a(f"v_max_f32 v{dst}, v{dst}, v{src+15}")
    else:
        for j in range(0, 16, 2): a(f"v_max3_f32 v{dst}, v{dst}, v{src+j}, v{src+j+1}")
def kv_dma(a, rr, kind):
    a(f"s_add_u32 m0, s{LDS0}, {kind*65536+rr*4096}")
    a(f"s_add_u32 s67, s{KOFF}, {kind*(WS_VB-WS_KB)+rr*4096}")
    a.vmem(f"buffer_load_dwordx4 v3, s[32:35], s67 offen{SC} lds", f"r{rr}")
def wo_dma(a, rr, kind):
    a(f"s_add_u32 m0, s{LDS0}, {kind*65536+rr*4096}")
    a(f"s_add_u32 s67, s{WOOFF}, {kind*262144+(rr&3)*32768}")
    S = 16 if rr < 4 else 20
    a.vmem(f"buffer_load_dwordx4 v{VWO}, s[{S}:{S+3}], s67 offen lds", f"w{rr}")

def phase2(a, g1, g2):
    stamp(a, 4)
    a(f"s_cmp_lg_u32 s{W}, 0")
    a("s_cbranch_scc1 L_p2_np")
    a(f"buffer_load_dword v{VP0}, v{VL8}, s[32:35], s{F1POLL} offen{SC}")
    a.label("L_p2_np")
    g1.flush(a)
    a(f"s_cmp_lg_u32 s{W}, 0")
    a("s_cbranch_scc1 L_p2_go")
    poll(a, "L_pollF1", VL8, VP0, f"s{F1POLL}", own=OWN1)
    a.label("L_p2_go")
    a("s_waitcnt lgkmcnt(0)")
    a("s_barrier")
    stamp(a, 5)
    a.vmem(f"buffer_load_dwordx4 {vr(SCR,4)}, v3, s[32:35], s71 offen{SC}", "q")
    a.vmem(f"buffer_load_dwordx4 {vr(Q[0],4)}, v3, s[32:35], s{QOFF} offen{SC}", "q")
    a.vmem(f"buffer_load_dwordx4 {vr(Q[1],4)}, v3, s[32:35], s{QOFF} offen offset:1024{SC}", "q")
    kv_dma(a, 0, 0); kv_dma(a, 0, 1)
    a(f"v_mov_b32 v5, {FLAG}")
    a("v_mov_b32 v7, 0")
    a("ds_write_b32 v5, v7")
    for i in range(0, 32, 2): a(f"v_mov_b64 v[{O[0]+i}:{O[0]+i+1}], 0")
    g2.flush(a)
    a(f"s_cmp_eq_u32 s{TY}, 0")
    a("s_cbranch_scc0 L_p2_nokvp")
    for w in range(4):
        for q in range(2):
            a(f"ds_read_b128 {vr(160+8*w+4*q,4)}, v28 offset:{(w>>1)*32768+(w&1)*8192+q*1024}")
    a("s_waitcnt lgkmcnt(4)")
    for j in range(0, 8, 2): a(f"v_pk_add_f32 {vr(160+j,2)}, {vr(160+j,2)}, {vr(168+j,2)}")
    a("s_waitcnt lgkmcnt(0)")
    for j in range(0, 8, 2): a(f"v_pk_add_f32 {vr(176+j,2)}, {vr(176+j,2)}, {vr(184+j,2)}")
    for j in range(0, 8, 2): a(f"v_pk_add_f32 {vr(160+j,2)}, {vr(160+j,2)}, {vr(176+j,2)}")
    a(f"buffer_store_dwordx4 v[160:163], v29, s[32:35], s{KVPOFF} offen{SC}")
    a(f"buffer_store_dwordx4 v[164:167], v30, s[32:35], s{KVPOFF} offen{SC}")
    a("s_waitcnt vmcnt(4)")
    mfma(a, S4[0][0], SCR, Q[0], "0")
    mfma(a, S4[1][0], SCR, Q[1], "0")
    a("s_waitcnt vmcnt(2)")
    a("s_branch L_p2_qok")
    a.label("L_p2_nokvp")
    a("s_waitcnt vmcnt(2)")
    mfma(a, S4[0][0], SCR, Q[0], "0")
    mfma(a, S4[1][0], SCR, Q[1], "0")
    a("s_waitcnt vmcnt(0)")
    a.label("L_p2_qok")
    a.vm = []
    def zero_acc():
        for i in range(0, 32, 2): a(f"v_mov_b64 v[{O[0]+i}:{O[0]+i+1}], 0")
    def prime_reads():
        a(f"ds_read_b128 {vr(KB_[0],4)}, v{VK}")
        a(f"ds_read_b128 {vr(KB_[1],4)}, v{VK} offset:1024")
        a(f"s_mov_b64 exec, s[{MASK}:{MASK+1}]")
        a(f"ds_read_b128 {vr(VA[0],4)}, v{VV}")
        a(f"ds_read_b128 {vr(VBB[0],4)}, v{VV} offset:512")
        a("s_mov_b64 exec, -1")
    if OPT["y_kvpre"]:
        for rr in range(2, 8):
            kv_dma(a, rr, 0); kv_dma(a, rr, 1)
        a("s_waitcnt vmcnt(0)")
        a.vm = []
    a("s_barrier")
    stamp(a, 6)
    prime_reads()
    kv_dma(a, 1, 0); kv_dma(a, 1, 1)
    maxtree(a, M1, S4[0][0], True)
    maxtree(a, M2, S4[1][0], True)
    a.label("L_setmax")
    a.nop(2)
    a(f"v_permlane32_swap_b32 v{M1}, v{M2}")
    a(f"v_max_f32 v{M1}, v{M1}, v{M2}")
    a(f"v_sub_f32 v{M1}, 0, v{M1}")
    a(f"v_mov_b32 v{M2}, v{M1}")
    a(f"v_permlane32_swap_b32 v{M1}, v{M2}")
    for i in range(0, 16, 2): a(f"v_pk_mov_b32 {vr(C[0]+i,2)}, {vr(M1,2)}, {vr(M1,2)} op_sel:[0,0]")
    a("s_waitcnt lgkmcnt(0)")
    mfma(a, S4[0][0], KB_[0], Q[0], C[0])
    for i in range(0, 16, 2): a(f"v_pk_mov_b32 {vr(C[1]+i,2)}, {vr(M1,2)}, {vr(M1,2)} op_sel:[1,1]")
    mfma(a, S4[1][0], KB_[0], Q[1], C[1])
    nvm = [0]; marks = {}
    PL, ZL = SCR, SCR + 16
    A16 = [f"v_and_b32 v6, 0x7ff, v{VL8}"]; A8 = [f"v_and_b32 v6, 0x3ff, v{VL8}"]
    F2A = [f"s_lshl_b32 s71, s{HG}, 11", f"s_add_u32 s71, s71, {WS_F2}"]
    F5A = [f"s_lshl_b32 s71, s{H0}, 10", f"s_add_u32 s71, s71, {WS_F5}"]
    F4A = [f"s_mov_b32 s71, s{F4POLL}"]
    def wait_after(nm): a(f"s_waitcnt vmcnt({nvm[0]-marks[nm]})")
    def svm(txt):
        a.vmem(txt, "x"); nvm[0] += 1
    def j_drain(): a("s_waitcnt vmcnt(0)")
    def j_f2(): pub(a, f"s{F2OFF}")
    def j_p2():
        for l in A16 + F2A: a(l)
        a(f"buffer_load_dword v{VP0}, v6, s[32:35], s71 offen{SC}")
    def j_ld():
        wait_after("p2")
        check_flags(a, "L_pollF2", A16, VP0, F2A)
        a("v_lshrrev_b32 v5, 4, v1")
        a("v_lshlrev_b32 v5, 14, v5")
        a("v_and_b32 v6, 15, v1")
        a("v_lshl_add_u32 v6, v6, 4, v5")
        a(f"s_lshl_b32 s68, s{RB8}, 8")
        a(f"s_lshl_b32 s67, s{H}, 16")
        a(f"s_add_u32 s67, s67, {WS_KVP}")
        a("s_add_u32 s68, s68, s67")
        a(f"s_lshl_b32 s69, s{RB8}, 4")
        a("s_add_u32 s67, s67, s69")
        for p in range(4):
            a(f"s_add_u32 s69, s68, {p*4096}")
            a(f"buffer_load_dwordx4 {vr(PL+4*p,4)}, v6, s[32:35], s69 offen{SC}")
        for p in range(4):
            a(f"s_add_u32 s69, s67, {p*4096+2048}")
            a(f"buffer_load_dwordx4 {vr(ZL+4*p,4)}, v5, s[32:35], s69 offen{SC}")
    def j_red():
        wait_after("ld")
        B2 = (PL, ZL)
        for base in B2:
            for j in (0, 2):
                a(f"v_pk_add_f32 {vr(base+j,2)}, {vr(base+j,2)}, {vr(base+4+j,2)}")
                a(f"v_pk_add_f32 {vr(base+8+j,2)}, {vr(base+8+j,2)}, {vr(base+12+j,2)}")
        for base in B2:
            for j in (0, 2): a(f"v_pk_add_f32 {vr(base+j,2)}, {vr(base+j,2)}, {vr(base+8+j,2)}")
        for sw in ("32", "16"):
            for base in B2:
                for j in (0, 2): a(f"v_mov_b64 {vr(base+4+j,2)}, {vr(base+j,2)}")
            for base in B2:
                for j in range(4): a(f"v_permlane{sw}_swap_b32 v{base+j}, v{base+4+j}")
            for base in B2:
                for j in (0, 2): a(f"v_pk_add_f32 {vr(base+j,2)}, {vr(base+j,2)}, {vr(base+4+j,2)}")
        for base in B2:
            a(f"v_cvt_pk_bf16_f32 v{base+4}, v{base}, v{base+1}")
            a(f"v_cvt_pk_bf16_f32 v{base+5}, v{base+2}, v{base+3}")
        a("v_cmp_eq_u32 vcc, 16, v1")
        a(f"s_lshr_b32 s67, s{RB8}, 2")
        a("s_mul_i32 s67, s67, 544")
        a(f"v_cndmask_b32 v{PL+4}, v{PL+4}, v{ZL+4}, vcc")
        a(f"v_cndmask_b32 v{PL+5}, v{PL+5}, v{ZL+5}, vcc")
        a(f"s_and_b32 s68, s{RB8}, 1")
        a("s_mul_i32 s68, s68, 272")
        a("s_add_u32 s67, s67, s68")
        a(f"s_and_b32 s68, s{RB8}, 2")
        a("s_lshl_b32 s68, s68, 2")
        a("s_add_u32 s67, s67, s68")
        a(f"s_lshl_b32 s68, s{H}, 11")
        a("s_add_u32 s67, s67, s68")
        a(f"s_add_u32 s67, s67, {WS_KVF}")
        a("s_mov_b64 exec, 0x1ffff")
        a(f"buffer_store_dwordx2 {vr(PL+4,2)}, v3, s[32:35], s67 offen{SC}")
        a("s_mov_b64 exec, -1")
    def j_f5():
        a(f"s_lshl_b32 s67, s{H}, 10")
        a(f"s_lshl_b32 s68, s{RB8}, 7")
        a("s_add_u32 s67, s67, s68")
        a(f"s_add_u32 s67, s67, {WS_F5}")
        a("s_waitcnt vmcnt(0)")
        pub(a, "s67")
    def j_p5():
        for l in A16 + F5A: a(l)
        a(f"buffer_load_dword v{VP1}, v6, s[32:35], s71 offen{SC}")
    def j_kv():
        wait_after("p5")
        check_flags(a, "L_pollF5", A16, VP1, F5A)
        a("v_and_b32 v5, 31, v1")
        a("v_min_u32 v5, 16, v5")
        a("v_lshrrev_b32 v6, 5, v1")
        a("v_mul_u32_u24 v6, 272, v6")
        a("v_lshl_add_u32 v5, v5, 4, v6")
        a(f"s_lshl_b32 s67, s{H0}, 11")
        a(f"s_add_u32 s67, s67, {WS_KVF}")
        for e in range(2):
            for sg in range(2):
                a(f"buffer_load_dwordx4 {vr(SCR+8*e+4*sg,4)}, v5, s[32:35], s67 offen offset:{e*2048+sg*544}{SC}")
    def j_om(e):
        def f():
            if e == 0: wait_after("kv")
            mfma(a, SCR+16+16*e, SCR+8*e, PHI+8*e, "0")
            mfma(a, SCR+16+16*e, SCR+8*e+4, PHI+8*e+4, SCR+16+16*e)
        return f
    def j_oa(e):
        def f():
            D = SCR+16+16*e
            a(f"v_add_f32 v4, {f32(1e-6)}, v{D+8}")
            a("v_rcp_f32 v4, v4")
            a(f"s_lshl_b32 s67, s{T1}, 16")
            a(f"s_lshl_b32 s68, s{H0}, 10")
            a("s_add_u32 s67, s67, s68")
            a(f"s_add_u32 s67, s67, {WS_OF}")
            for i in range(0, 8, 2): a(f"v_pk_mul_f32 {vr(D+i,2)}, {vr(D+i,2)}, v[4:5] op_sel_hi:[1,0]")
            for q in range(4): a(f"v_cvt_pk_bf16_f32 v{SCR+4*e+q}, v{D+2*q}, v{D+2*q+1}")
            a(f"buffer_store_dwordx4 {vr(SCR+4*e,4)}, v3, s[32:35], s67 offen offset:{e*1024}{SC}")
        return f
    def j_f4():
        a(f"s_lshl_b32 s67, s{RB16}, 3")
        a(f"s_add_u32 s67, s67, s{HG}")
        a("s_lshl_b32 s67, s67, 7")
        a(f"s_add_u32 s67, s67, {WS_F4}")
        pub(a, "s67")
    def j_p4():
        for l in A8: a(l)
        svm(f"buffer_load_dword v{VP0}, v6, s[32:35], s{F4POLL} offen{SC}")
    def j_c4():
        wait_after("p4")
        check_flags(a, "L_pollF4", A8, VP0, F4A)
        svm(f"buffer_load_dword v{GV}, v{G4}, s[32:35], s{GATE3} offen{SC}")
    def j_la(i):
        def f():
            for k in (2*i, 2*i+1):
                svm(f"buffer_load_dwordx4 {vr(SCR+4*k,4)}, v3, s[32:35], s{OF3 if k < 4 else OF3B} offen offset:{(k%4)*1024}{SC}")
        return f
    JB = dict(d0=(R_T0, j_drain), d1=(R_T1, j_drain), f2=(R_T0W0, j_f2), f4=(R_T1W0, j_f4),
              p2=(R_RED, j_p2), ld=(R_RED, j_ld), red=(R_RED, j_red), f5=(R_RED, j_f5),
              p5=(R_T1, j_p5), kv=(R_T1, j_kv), om0=(R_T1, j_om(0)), om1=(R_T1, j_om(1)), oa0=(R_T1, j_oa(0)), oa1=(R_T1, j_oa(1)),
              p4=(None, j_p4), c4=(None, j_c4), la0=(None, j_la(0)), la1=(None, j_la(1)), la2=(None, j_la(2)), la3=(None, j_la(3)))
    def hook(name):
        role, body = JB[name]
        if role is not None:
            a(f"s_bitcmp1_b32 s{ROLE}, {role}")
            a(f"s_cbranch_scc0 L_skip_{name}")
        body()
        if role is not None: a.label(f"L_skip_{name}")
        marks[name] = nvm[0]
    JOBS = OPT["sched"]
    p0, p1, p2 = OPT["pos"]
    KVS, WOS = OPT["kvs"], OPT["wos"]
    for T in range(32):
        it, t = T >> 2, T & 3
        for qi in range(2):
            st = 2*t + qi
            s = S4[qi][T & 1]
            for j in range(16):
                a(f"v_exp_f32 v{s+j}, v{s+j}")
                if j == p0:
                    tp = T if qi == 1 else T - 1
                    if tp >= 0: smfmac(a, O[1-qi], VBB[tp & 1], S4[1-qi][tp & 1]+8, IDX)
                    if st == 5:
                        if it == OPT["f2it"]: hook("d0")
                        if it == OPT["f4it"]: hook("d1")
                        if it < 7 and f"r{it+1}" in a.vm: a.wait_vm(f"r{it+1}")
                        if not OPT["y_nobar"]: a("s_barrier")
                        if it == OPT["f2it"]: hook("f2")
                        if it == OPT["f4it"]: hook("f4")
                    if qi == 1:
                        if T + 2 < 32: a(f"ds_read_b128 {vr(KB_[T&1],4)}, v{VK} offset:{(T+2)*1024}")
                        if T + 1 < 32:
                            a(f"s_mov_b64 exec, s[{MASK}:{MASK+1}]")
                            a(f"ds_read_b128 {vr(VA[(T+1)&1],4)}, v{VV} offset:{(T+1)*1024}")
                            a(f"ds_read_b128 {vr(VBB[(T+1)&1],4)}, v{VV} offset:{(T+1)*1024+512}")
                            a("s_mov_b64 exec, -1")
                if j == p1:
                    if qi == 0: a("s_waitcnt lgkmcnt(0)")
                    if T + 1 < 32: mfma(a, S4[qi][(T+1) & 1], KB_[(T+1) & 1], Q[qi], C[qi])
                    if (it, st) in JOBS: hook(JOBS[(it, st)])
                if j == p2:
                    smfmac(a, O[qi], VA[T & 1], s, IDX)
                    if st in KVS and it + 2 < 8 and not OPT["y_kvpre"]:
                        kv_dma(a, it + 2, KVS.index(st)); nvm[0] += 1
                    if st in WOS and it >= 1 and not OPT["y_nowo"]:
                        wo_dma(a, it - 1, WOS.index(st)); nvm[0] += 1
    a(f"s_bitcmp1_b32 s{W}, 2")
    smfmac(a, O[1], VBB[1], S4[1][1]+8, IDX)
    stamp(a, 7)
    SX = 48
    a(f"v_add_f32_e64 v{M1}, |v{O[0]}|, |v{O[0]+1}|")
    for i in range(2, 9): a(f"v_add_f32_e64 v{M1}, v{M1}, |v{O[0]+i}|")
    a(f"v_mov_b32 v6, {FLAG}")
    a("v_mov_b32 v7, 1")
    a(f"v_mov_b32 v5, {f32(OPT['thr'])}")
    a("s_cbranch_scc0 L_send1")
    a(f"ds_write_b128 v{XW}, {vr(O[0],4)}")
    a(f"ds_write_b128 v{XW}, {vr(O[0]+4,4)} offset:1024")
    a(f"ds_write_b32 v{XW}, v{O[0]+8} offset:2048")
    a("s_branch L_sent")
    a.label("L_send1")
    a(f"ds_write_b128 v{XW}, {vr(O[1],4)}")
    a(f"ds_write_b128 v{XW}, {vr(O[1]+4,4)} offset:1024")
    a(f"ds_write_b32 v{XW}, v{O[1]+8} offset:2048")
    a.label("L_sent")
    for i in range(0, 9): a(f"v_add_f32_e64 v{M1}, v{M1}, |v{O[1]+i}|")
    a(f"v_cmp_nlt_f32 vcc, v{M1}, v5")
    a("s_nop 1")
    a("s_cbranch_vccz L_noflag")
    a("ds_write_b32 v6, v7")
    a.label("L_noflag")
    a("s_waitcnt lgkmcnt(0)")
    a("s_barrier")
    a(f"ds_read_b32 v{M2}, v6")
    a(f"ds_read_b32 v{SX+8}, v{XR} offset:2048")
    a(f"ds_read_b128 {vr(SX,4)}, v{XR}")
    a(f"ds_read_b128 {vr(SX+4,4)}, v{XR} offset:1024")
    a("s_cbranch_scc0 L_keep0")
    for i in range(0, 10, 2): a(f"v_mov_b64 v[{O[0]+i}:{O[0]+i+1}], v[{O[1]+i}:{O[1]+i+1}]")
    a.label("L_keep0")
    a("s_waitcnt lgkmcnt(2)")
    a(f"v_readfirstlane_b32 s69, v{M2}")
    a(f"v_add_f32 v{O[0]+8}, v{O[0]+8}, v{SX+8}")
    a(f"v_rcp_f32 v{M1}, v{O[0]+8}")
    a("s_cmp_lg_u32 s69, 0")
    a("s_cbranch_scc1 L_maybe_fb")
    a.label("L_fin")
    a("s_waitcnt lgkmcnt(0)")
    for i in range(0, 8, 2): a(f"v_pk_add_f32 {vr(O[0]+i,2)}, {vr(O[0]+i,2)}, {vr(SX+i,2)}")
    for i in range(0, 8, 2): a(f"v_pk_mul_f32 {vr(O[0]+i,2)}, {vr(O[0]+i,2)}, {vr(M1,2)} op_sel_hi:[1,0]")
    for q in range(4): a(f"v_cvt_pk_bf16_f32 v{20+q}, v{O[0]+2*q}, v{O[0]+2*q+1}")
    for q in range(4): a(f"v_min_u32 v{20+q}, -2, v{20+q}")
    a(f"buffer_store_dwordx4 v[20:23], v3, s[32:35], s{OFB} offen{SC}")
    wo_dma(a, 7, 0)
    wo_dma(a, 7, 1)
    n_la = nvm[0] - marks["la3"] + 3

    def rare(a):
        a.label("L_maybe_fb")
        a(f"s_cmp_lg_u32 s{ATT}, 0")
        a("s_cbranch_scc1 L_fin")
        a(f"s_mov_b32 s{ATT}, 1")
        a(f"s_mov_b32 s{ROLE}, 0")
        a("s_waitcnt vmcnt(0) lgkmcnt(0)")
        a("s_barrier")
        for rr in range(8):
            kv_dma(a, rr, 0); kv_dma(a, rr, 1)
        a(f"v_mov_b32 v{M1}, 0xff800000")
        a(f"v_mov_b32 v{M2}, 0xff800000")
        a("v_mov_b32 v4, v3")
        a("s_mov_b32 s60, 64")
        a("s_waitcnt vmcnt(0)")
        a("s_barrier")
        a.label("L_fbloop")
        a(f"ds_read_b128 {vr(KB_[0],4)}, v4")
        a("v_add_u32 v4, 1024, v4")
        a("s_waitcnt lgkmcnt(0)")
        mfma(a, S4[0][0], KB_[0], Q[0], "0")
        mfma(a, S4[1][0], KB_[0], Q[1], "0")
        a.nop(12)
        maxtree(a, M1, S4[0][0], False)
        maxtree(a, M2, S4[1][0], False)
        a("s_sub_u32 s60, s60, 1")
        a("s_cmp_lg_u32 s60, 0")
        a("s_cbranch_scc1 L_fbloop")
        zero_acc()
        prime_reads()
        a("s_branch L_setmax")
    return rare, n_la

def phase3(a, n_la):
    ACC, OFA, OFB_ = 32, SCR, 224
    WA = list(range(96, 136, 4)) + list(range(184, 208, 4))
    WB = list(range(208, 224, 4)) + list(range(96, 112, 4)) + list(range(152, 184, 4))
    a(f"v_xor_b32 v11, 64, v{TR0}")
    a(f"v_add_u32 v12, 65536, v{RW}")
    def trread(br, i):
        for ct in range(2):
            f = (WA, WB)[br][2*i+ct]
            ad = TR0 if ct == 0 else 11
            a(f"ds_read_b64_tr_b16 {vr(f,2)}, v{ad} offset:{br*16384+i*2048}")
            a(f"ds_read_b64_tr_b16 {vr(f+2,2)}, v{ad} offset:{br*16384+i*2048+1024}")
    def oload(k):
        return f"buffer_load_dwordx4 {vr(OFB_+4*k,4)}, v3, s[32:35], s{OF3 if k < 4 else OF3B} offen offset:{(k%4)*1024}{SC}"
    for i in range(2): trread(0, i)
    a(f"s_add_u32 s{OF3}, s{OF3}, 32768")
    a(f"s_add_u32 s{OF3B}, s{OF3B}, 32768")
    a(f"s_mov_b32 s70, {POLL_LIMIT}")
    a(f"s_waitcnt vmcnt({n_la})")
    a(f"v_sub_f32 v{GV+1}, 1.0, v{GV}")
    a(f"v_cvt_pk_bf16_f32 v{GV+1}, v{GV+1}, v{GV+1}")
    a(f"v_lshlrev_b32 v{GV+1}, 16, v{GV+1}")
    for i in range(8):
        if i + 2 < 8: trread(0, i + 2)
        a(f"s_waitcnt lgkmcnt({4*min(2, 7-i)})")
        for ct in range(2): mfma(a, ACC+16*ct, WA[2*i+ct], OFA+4*i, "0" if i == 0 else ACC+16*ct)
        if i == OPT["asplit"] - 1:
            stamp(a, 8)
            for k in range(8): a(oload(k))
    a("s_waitcnt vmcnt(8)")
    a("s_barrier")
    for i in range(8):
        trread(1, i)
        if i % 2 == 1: a("s_waitcnt lgkmcnt(4)")
    for j in range(0, 32, 2): a(f"v_pk_mul_f32 {vr(ACC+j,2)}, {vr(ACC+j,2)}, {vr(GV,2)} op_sel_hi:[1,0]")
    a("s_waitcnt lgkmcnt(0)")
    for i in range(8):
        o = OFB_ + 4*i
        a.label(f"L_ow{i}")
        a(f"s_waitcnt vmcnt({7-i})")
        a(f"v_max3_u32 v4, v{o}, v{o+1}, v{o+2}")
        a(f"v_max_u32 v4, v4, v{o+3}")
        a("v_cmp_eq_u32 vcc, -1, v4")
        a("s_nop 1")
        a(f"s_cbranch_vccnz L_or{i}")
        a.label(f"L_og{i}")
        for ct in range(2): mfma(a, ACC+32+16*ct, WB[2*i+ct], o, "0" if i == 0 else ACC+32+16*ct)
        def retry(a, i=i):
            a.label(f"L_or{i}")
            a("s_sub_u32 s70, s70, 1")
            a("s_cmp_lt_i32 s70, 1")
            a(f"s_cbranch_scc1 L_og{i}")
            a(f"s_sleep {OPT['osleep']}")
            for k in range(i, 8): a(oload(k))
            a(f"s_branch L_ow{i}")
        SPINS.append(retry)
    stamp(a, 9)
    for p in range(4):
        for j in range(0, 8, 2):
            r = ACC+8*p+j
            a(f"v_pk_fma_f32 {vr(r,2)}, {vr(r+32,2)}, {vr(GV,2)}, {vr(r,2)} op_sel:[0,1,0]")
        for q in range(2): a(f"ds_write_b128 v{RW if p < 2 else 12}, {vr(ACC+8*p+4*q,4)} offset:{(p&1)*32768+q*1024}")
    a("s_waitcnt lgkmcnt(0)")
    a("s_barrier")
    for src in range(4):
        for q in range(2): a(f"ds_read_b128 {vr(64+8*src+4*q,4)}, v{RR} offset:{src*2048+q*1024}")
    a("s_waitcnt lgkmcnt(4)")
    for j in range(0, 8, 2): a(f"v_pk_add_f32 {vr(64+j,2)}, {vr(64+j,2)}, {vr(72+j,2)}")
    a("s_waitcnt lgkmcnt(0)")
    for j in range(0, 8, 2): a(f"v_pk_add_f32 {vr(80+j,2)}, {vr(80+j,2)}, {vr(88+j,2)}")
    for j in range(0, 8, 2): a(f"v_pk_add_f32 {vr(64+j,2)}, {vr(64+j,2)}, {vr(80+j,2)}")
    for q in range(4): a(f"v_cvt_pk_bf16_f32 v{20+q}, v{64+2*q}, v{64+2*q+1}")
    a("v_permlane32_swap_b32 v20, v22")
    a("v_permlane32_swap_b32 v21, v23")
    a(f"buffer_store_dwordx4 v[20:23], v{OUTA}, s[24:27], s{OUTOFF} offen{OPT['outsc']}")
    a(f"s_or_b32 s67, s2, s{W}")
    a("s_cmp_lg_u32 s67, 0")
    a("s_cbranch_scc1 L_noE")
    a(f"v_mov_b32 v24, s{TAG}")
    a(f"v_mov_b32 v25, {WS_E}")
    a("s_mov_b64 exec, 1")
    a("buffer_store_dword v24, v25, s[32:35], 0 offen")
    a("s_mov_b64 exec, -1")
    a.label("L_noE")
    flush_stamps(a)

def main(out):
    hdr = open("cdna_kernels/" + NAME + ".s.ref").read().split("; Override launch")[0]
    txt = hdr + "; @launch grid=(256,1,1) block=(512,1,1) lds=163840\n"
    txt += '.amdgcn_target "amdgcn-amd-amdhsa--gfx950"\n.text\n'
    nm = NAME + "_kernel"
    a = Asm()
    a.label(nm)
    g1, g2 = phase1(a)
    rare, n_la = phase2(a, g1, g2)
    phase3(a, n_la)
    a.label("L_end")
    a("s_endpgm")
    for sp in SPINS: sp(a)
    rare(a)
    a.label("L_code_end")
    a("s_endpgm")
    a.lines, added = autonop(a.lines)
    errs = check(a.lines, nm)
    bare, skipping = [], None
    for l in a.lines:
        if skipping:
            if l.startswith(skipping + ":"): skipping = None
            continue
        bare.append(l)
        if "s_cbranch_scc0 L_skip_" in l: skipping = l.split()[-1]
    errs += check(bare, nm + "(jobs skipped)")
    txt += f".globl {nm}\n.p2align 8\n.type {nm},@function\n" + a.text()
    txt += f""".section .rodata,"a"
.p2align 6
.amdhsa_kernel {nm}
  .amdhsa_next_free_vgpr 256
  .amdhsa_next_free_sgpr 102
  .amdhsa_accum_offset 256
  .amdhsa_group_segment_fixed_size 0
  .amdhsa_kernarg_size 88
  .amdhsa_user_sgpr_count 2
  .amdhsa_user_sgpr_kernarg_segment_ptr 1
  .amdhsa_system_sgpr_workgroup_id_x 1
.end_amdhsa_kernel
"""
    open(out, "w").write(txt)
    for e in errs: print("HAZARD", e)
    print("written", out, len(txt), "bytes;", len(errs), "hazards;", added, "auto nops")

if __name__ == "__main__":
    if "--stamps" in sys.argv:
        STAMPS = True; sys.argv.remove("--stamps")
    for x in list(sys.argv):
        if x.startswith("--o:"):
            k, v = x[4:].split("=", 1)
            assert k in OPT, k
            OPT[k] = eval(v); sys.argv.remove(x)
    main(sys.argv[1] if len(sys.argv) > 1 else "cdna_kernels/" + NAME + ".s")
```

```python
import sys, struct
from asmlib import *

NAME = "gated_mix__linear_kernel_hedgehog__mha_block__prompt"
WS_E, WS_F1, WS_F2, WS_GATE, WS_F4, WS_F5, WS_KVF = 0x0, 0x10000, 0x20000, 0x40000, 0x50000, 0x60000, 0x70000
WS_QB, WS_KB, WS_VB, WS_KVP, WS_OF = 0x200000, 0x400000, 0x600000, 0x800000, 0xA00000
WS_USED = 0x2100000
def f32(x): return "0x%08x" % struct.unpack("<I", struct.pack("<f", x))[0]
LOG2E = 1.4426950408889634
STAMPS = False
OPT = dict(gst=0, la=2, pre2=0, t0at=-2, f1g=24, zat=30, last='wb', t2at=26, tchat=5, phiat=19, ds0=(9,11,13,15,20,21,22,23), ds1={(2,0):0,(2,1):1,(3,0):2,(3,1):3,(4,0):4,(4,1):6,(5,0):8,(5,1):10,(6,0):12,(6,1):14,(7,0):16,(7,1):18}, map2d=1, pp=0, rot=4, rp=1, pos=(1, 6, 11), thr=2.0**100, cyc=0, amp=None, outsc="", fill=3, hga=4, osleep=8, cpf=1,
           rsplit=(0, 3, 5, 7), f1at=1, pollat=1, goat=4, y_skip=(),
           f2it=0, f4it=5, kvs=(0, 1), wos=(6, 7),
           sched={(1, 2): "p2", (1, 6): "ld", (2, 2): "red", (2, 4): "f5", (3, 6): "p5", (4, 0): "kv", (4, 6): "om", (4, 7): "oa0", (5, 0): "oa1",
                  (6, 6): "p4", (7, 0): "c4 la0", (7, 1): "la1", (7, 6): "la2", (7, 7): "la3"})
SC = " sc1"
POLL_LIMIT = 200000
NST = 11
SLOT = 32768
XCH, FLAG, PHIL = 131072, 155648, 8192
R_T0, R_T0W0, R_RED, R_T1, R_T1W0 = range(5)

W = 3
TAG, J, XOFF, WOFF, MX, MW, TY, ATT = range(36, 44)
L2E, MASK, VT = 10, 14, 46
TA, TB, TC, CNT = 4, 5, 6, 7
CP = 44
def stab():
    hA = OPT["hga"]
    d = dict(hg="(b&7)", j="(b>>3)", ty="((b>>3)&1)", rb16="(b>>4)", rb8="(b>>5)", qp="(w&3)", kh="(w>>2)", kq="(w>>1)", rt3="(w&1)")
    d["hg1"] = d["hg"]
    if OPT["map2d"]:
        d["hg1"] = "(((b&3)<<1)+((b>>4)&1))"
        d["rb16"] = "((((b>>2)&1)<<3)+(b>>5))"
    d["h"] = "(({hg}<<2)+({j}&3))".format(**d)
    d["t"] = "(({rb16}<<2)+{qp})".format(**d)
    d["hb0"] = "(({hg1}<<2)+({kh}<<1))".format(**d)
    d["ha0"] = "({hb0}^%d)".format(**d) % (hA*4)
    d["hr"] = "(((({h}+w)-1)&31)^%d)".format(**d) % (hA*4)
    d["T"] = "((({rb8}<<3)+({qp}<<1))+{kh})".format(**d)
    d["T3"] = "(((({rb8}<<2)+({hg}>>1))<<1)+{rt3})".format(**d)
    d["cb"] = "(((b&1)<<2)+({j}&3))".format(**d)
    d["lds0"] = "(({kh}<<15)+({qp}<<10))".format(**d)
    d["w0"] = "(((w-1)>>8)&1)"
    d["w12"] = "((((w-3)>>8)&1)-{w0})".format(**d)
    E = [
     ("F1OFF", "(%d+(((({hg1}<<5)+({rb16}<<1))+{ty})<<7))" % WS_F1),
     ("F1POLL", "(%d+({hg}<<12))" % WS_F1),
     ("F2OFF", "(%d+((({hg1}<<4)+{rb16})<<7))" % WS_F2),
     ("F2POLL", "(%d+({hg}<<11))" % WS_F2),
     ("VOFF", "((%d+({hb0}<<16))+({t}<<10))" % WS_VB),
     ("QK0", "(((%d+({ty}*%d))+({hb0}<<16))+({t}<<10))" % (WS_QB, WS_KB-WS_QB)),
     ("LDS0", "{lds0}"),
     ("KOFF", "((%d+({h}<<16))+{lds0})" % WS_KB),
     ("K0OFF", "(%d+({h}<<16))" % WS_KB),
     ("QOFF1", "((%d+({h}<<16))+({T}<<10))" % WS_QB),
     ("QOFF0", "((%d+({h}<<16))+(({T}^1)<<10))" % WS_QB),
     ("ROLE", "(((1-{ty})*((%d+({w0}*%d))+({w12}*%d)))+({ty}*(%d+({w0}*%d))))" % (1 << R_T0, 1 << R_T0W0, 1 << R_RED, 1 << R_T1, 1 << R_T1W0)),
     ("KVPOFF", "(%d+(((({ha0}+({qp}>>1))<<4)+{rb16})<<12))" % WS_KVP),
     ("OFB", "((%d+({T}<<16))+({h}<<10))" % (WS_OF+32768)),
     ("OF3", "((%d+({T3}<<16))+({kq}<<13))" % WS_OF),
     ("OF3B", "((%d+({T3}<<16))+({kq}<<13))" % (WS_OF+4096)),
     ("OUTOFF", "((({T3}<<15)+({cb}<<7))+({kq}<<5))"),
     ("WOOFF", "(((({kh}<<4)+{qp})<<13)+({cb}<<7))"),
     ("F4POLL", "(%d+({rb8}<<11))" % WS_F4),
     ("F4OFF", "(%d+((({rb16}<<3)+{hg1})<<7))" % WS_F4),
     ("OWN1", "(4294967295-((((({hg}^{hg1})-1)>>8)&1)<<(({rb16}<<1)+{ty})))"),
     ("GATE3", "(%d+({T3}<<7))" % WS_GATE),
     ("GATET", "(%d+({T}<<7))" % WS_GATE),
     ("GROW", "(((({rb16}<<7)+({hg1}<<4))+(w<<1))<<10)"),
     ("GOFF", "(%d+(((({rb16}<<7)+({hg1}<<4))+(w<<1))<<2))" % WS_GATE),
     ("PHIOFF", "((({hg1}^%d)<<11)+({rt3}<<10))" % hA),
     ("LDK", "((%d+({hr}<<16))+({rb8}<<8))" % WS_KVP),
     ("KVFW", "((((%d+({hr}<<11))+(({rb8}>>2)*544))+(({rb8}&1)*272))+(({rb8}&2)<<2))" % WS_KVF),
     ("F5OFF", "((%d+({hr}<<10))+({rb8}<<7))" % WS_F5),
     ("F5POLL", "(%d+({ha0}<<10))" % WS_F5),
     ("KVFR", "(%d+({ha0}<<11))" % WS_KVF),
     ("OAOFF", "((%d+({t}<<16))+({ha0}<<10))" % WS_OF),
    ]
    assert len(E) == 32
    return [(n, e.format(**d)) for n, e in E]
SR = {n: 48 + i for i, (n, _) in enumerate(stab())}
class _S:
    def __getattr__(self, n): return f"s{SR[n]}"
S = _S()

Q = [8, 12]; C = [16, 32]; S4 = [[48, 200], [64, 216]]; O = [80, 96]
KB_ = [112, 116]; VA = [120, 128]; VBB = [124, 132]
IDX, VK, VV, VWO, VL8, XW, XR, TR0, TR1, RR, OUTA, G4 = range(136, 148)
GV, M1, M2 = 148, 150, 151
VP0, VP1 = 0, 2
SCR, PHI = 152, 232
VXR, VWR, PHIA, VXD, VWD, BSEL = 8, 16, 18, 20, 22, 112
KO, VO, REDW, REDR, KVP0, KVP1, ONES = 24, 25, 26, 27, 28, 29, 30
def vtab():
    def trc(l): return ((l >> 2) & 3)*128 + ((l >> 4) & 1)*32 + (l & 3)*8
    def g0(w, l):
        r, hf = l & 31, l >> 5
        return [(w & 3)*4096 + r*128 + (((2*st + hf) ^ ((r >> 1) & 7))*16) for st in range(4)]
    def g2(w, l):
        hf = l >> 5
        v = trc(l) + (((w >> 2) ^ ((l >> 3) & 1))*64)
        return [16384 + hf*2048 + v, 16384 + hf*2048 + v + 2*SLOT, PHIL + (w >> 2)*1024 + (4*hf + ((l >> 2) & 3))*32 + (l & 3)*8, 131072 + hf*1024 + v]
    def g3(w, l):
        pi = (l & 0x33) | (((l >> 2) & 1) << 3) | (((l >> 3) & 1) << 2)
        return [pi*16, ((l >> 4) & 1)*65536 + (l >> 5)*256 + (l & 15)*16,
                (w >> 1)*32768 + 8192 + (w & 1)*8192 + l*16, (w >> 2)*65536 + 8192 + (w & 3)*2048 + l*16]
    def g4(w, l):
        own = ((l >> 4) & 1) == ((w >> 1) & 1); q0 = 2*(w & 1); hf = l >> 5
        k = [q*512 + hf*256 + (l & 15)*16 if own else 2048 + q*32 + hf*16 for q in (q0, q0+1)]
        one = 0x3f803f80 if (l & 27) == 16 else 0
        return k + [one, one]
    def bsel(sg):
        def g(w, l):
            t = (l & 31) - 4*(l >> 5) - 16*sg
            T = lambda j: 8*(j//4) + j % 4
            return [(0x3f80 if t == T(2*q) else 0) | (0x3f800000 if t == T(2*q+1) else 0) for q in range(4)]
        return g
    def g7(w, l):
        return [0xdddddddd, (w >> 2)*32768 + l*16, 65536 + (w >> 2)*32768 + (l >> 5)*256 + (l & 15)*16,
                (l >> 3)*1024 + (((l & 7) ^ ((l >> 2) & 4))*16)]
    def tr0(w, l): return (w >> 1)*32768 + (((l >> 5)*512 + ((l >> 3) & 1)*64 + trc(l)) ^ ((w >> 1)*32))
    def g8(w, l): return [(l & 31)*128, XCH + w*3072 + l*16, XCH + (w ^ 4)*3072 + l*16, tr0(w, l)]
    def g9(w, l): return [tr0(w, l) ^ 64, (w >> 1)*32768 + (w & 1)*8192 + l*16, (l & 31)*1024 + (l >> 5)*16, (l & 31)*4]
    return [(8, g0), (16, g2), (24, g3), (28, g4), (112, bsel(0)), (116, bsel(1)), (136, g7), (140, g8), (144, g9)]
NG = len(vtab())

def mfma(a, d, A, B, Cc):
    a(f"v_mfma_f32_32x32x16_bf16 {vr(d,16)}, {vr(A,4)}, {vr(B,4)}, {Cc if isinstance(Cc,str) else vr(Cc,16)}")
def smfmac(a, d, A, B, idx):
    a(f"v_smfmac_f32_32x32x32_bf16 {vr(d,16)}, {vr(A,4)}, {vr(B,8)}, v{idx}")
def stamp(a, j, g=False):
    if OPT["gst"] and not g and j not in (0, 1, NST-1): return
    if STAMPS: a(f"s_mem{'' if OPT['cyc'] else 'real'}time s[{80+2*j}:{81+2*j}]")
def flush_stamps(a):
    if not STAMPS: return
    a("s_waitcnt vmcnt(0)")
    stamp(a, NST-1)
    a("s_waitcnt lgkmcnt(0)")
    if OPT["amp"]:
        j0, j1 = OPT["amp"]
        a(f"s_or_b32 s7, s2, s{W}")
        a("s_cmp_lg_u32 s7, 0")
        a("s_cbranch_scc1 L_end")
        a(f"s_sub_u32 s7, s{80+2*j1}, s{80+2*j0}")
        a("s_lshl_b32 s7, s7, 4")
        a.label("L_amp")
        a("s_memrealtime s[4:5]")
        a("s_waitcnt lgkmcnt(0)")
        a(f"s_sub_u32 s6, s4, s{80+2*(NST-1)}")
        a("s_cmp_lt_u32 s6, s7")
        a("s_cbranch_scc1 L_amp")
        return
    a("s_lshl_b32 s7, s2, 3")
    a(f"s_add_u32 s7, s7, s{W}")
    a("s_lshl_b32 s7, s7, 6")
    a(f"s_add_u32 s7, s7, {0x2000000}")
    a("s_mov_b64 exec, 1")
    a("v_mov_b32 v1, 0")
    for j in range(NST):
        a(f"v_mov_b32 v2, s{80+2*j}")
        a(f"buffer_store_dword v2, v1, s[32:35], s7 offen offset:{4*j}")
def pub(a, soff):
    a(f"v_mov_b32 v4, s{TAG}")
    a("s_mov_b64 exec, 1")
    a(f"buffer_store_dword v4, v3, s[32:35], {soff} offen{SC}")
    a("s_mov_b64 exec, -1")
def poll(a, lab, vaddr, vdst, soff, landed=False, own=None):
    a(f"s_mov_b32 s{CNT}, {POLL_LIMIT}")
    a(f"s_branch {lab}_{'cmp' if landed else 'chk'}")
    a.label(lab)
    a(f"buffer_load_dword v{vdst}, v{vaddr}, s[32:35], {soff} offen{SC}")
    a.label(lab + "_chk")
    a("s_waitcnt vmcnt(0)")
    a.label(lab + "_cmp")
    a(f"v_cmp_ne_u32 s[{CP}:{CP+1}], s{TAG}, v{vdst}")
    a(f"s_sub_u32 s{CNT}, s{CNT}, 1")
    a(f"s_or_b32 s{CP}, s{CP}, s{CP+1}")
    if own is not None: a(f"s_and_b32 s{CP}, s{CP}, {own}")
    a(f"s_cbranch_scc0 {lab}_ok")
    a(f"s_cmp_eq_u32 s{CNT}, 0")
    a(f"s_cbranch_scc1 {lab}_ok")
    a("s_sleep 1")
    a(f"s_branch {lab}")
    a.label(lab + "_ok")
SPINS = []
def check_flags(a, lab, mask, vdst, soff):
    a(f"v_cmp_ne_u32 vcc, s{TAG}, v{vdst}")
    a("s_nop 1")
    a(f"s_cbranch_vccnz {lab}_spin")
    a.label(f"{lab}_back")
    def spin(a):
        a.label(f"{lab}_spin")
        a(f"v_and_b32 v6, {mask}, v{VL8}")
        poll(a, lab, 6, vdst, soff, landed=True)
        a(f"s_branch {lab}_back")
    SPINS.append(spin)

class Fill:
    def __init__(self): self.g = []
    def __call__(self, *lines, after=0): self.g.append((after, list(lines)))
    def pop(self, a, n, g):
        while n > 0 and self.g and self.g[0][0] <= g:
            _, ls = self.g.pop(0)
            for l in ls:
                if isinstance(l, tuple): a.vmem(*l)
                elif callable(l): l(a)
                else: a(l)
            n -= len(ls)

def gate(a):
    X, Wt, t = 96, 104, 56
    for q in range(8):
        u = t + 4*(q & 1)
        a(f"v_lshlrev_b32 v{u}, 16, v{X+q}")
        a(f"v_lshlrev_b32 v{u+2}, 16, v{Wt+q}")
        a(f"v_and_b32 v{u+1}, 0xffff0000, v{X+q}")
        a(f"v_and_b32 v{u+3}, 0xffff0000, v{Wt+q}")
        a(f"v_pk_mul_f32 {vr(u,2)}, {vr(u,2)}, {vr(u+2,2)}")
        a(f"v_cvt_pk_bf16_f32 v{u+2}, v{u}, v{u+1}")
        d = 52 if q == 0 else u
        a(f"v_lshlrev_b32 v{d}, 16, v{u+2}")
        a(f"v_and_b32 v{d+1}, 0xffff0000, v{u+2}")
        if q: a(f"v_pk_add_f32 v[52:53], v[52:53], {vr(u,2)}")
    s = 52
    a(f"v_add_f32 v{s}, v{s}, v{s+1}")
    a(f"v_mov_b32 v{s+1}, v{s}")
    a("v_lshrrev_b32 v6, 3, v1")
    a(f"v_permlane16_swap_b32 v{s}, v{s+1}")
    a(f"v_add_f32 v{s}, v{s}, v{s+1}")
    for r in (8, 4, 2, 1):
        a(f"v_add_f32_dpp v{s}, v{s}, v{s} row_ror:{r} row_mask:0xf bank_mask:0xf")
    a(f"v_cvt_pk_bf16_f32 v{s}, v{s}, v{s}")
    a(f"v_lshlrev_b32 v{s}, 16, v{s}")
    a(f"v_mul_f32 v{s}, {f32(-LOG2E)}, v{s}")
    a(f"v_exp_f32 v{s}, v{s}")
    a(f"v_add_f32 v{s}, 1.0, v{s}")
    a(f"v_rcp_f32 v{s}, v{s}")
    a(f"v_cvt_pk_bf16_f32 v{s}, v{s}, v{s}")
    a(f"v_lshlrev_b32 v{s}, 16, v{s}")

def maxtree(a, dst, src, first):
    if first:
        a(f"v_max3_f32 v{dst}, v{src}, v{src+1}, v{src+2}")
        for j in range(3, 15, 2): a(f"v_max3_f32 v{dst}, v{dst}, v{src+j}, v{src+j+1}")
        a(f"v_max_f32 v{dst}, v{dst}, v{src+15}")
    else:
        for j in range(0, 16, 2): a(f"v_max3_f32 v{dst}, v{dst}, v{src+j}, v{src+j+1}")
def kv_dma(a, rr, kind):
    a(f"s_add_u32 m0, {S.LDS0}, {kind*65536+rr*4096}")
    a(f"s_add_u32 s{TA}, {S.KOFF}, {kind*(WS_VB-WS_KB)+rr*4096}")
    a.vmem(f"buffer_load_dwordx4 v3, s[32:35], s{TA} offen{SC} lds", f"r{rr}")
def wo_dma(a, rr, kind):
    a(f"s_add_u32 m0, {S.LDS0}, {kind*65536+rr*4096}")
    a(f"s_add_u32 s{TA}, {S.WOOFF}, {kind*262144+(rr&3)*32768}")
    R = 16 if rr < 4 else 20
    a.vmem(f"buffer_load_dwordx4 v{VWO}, s[{R}:{R+3}], s{TA} offen lds", f"w{rr}")

def phase1(a):
    ACC = [64, 80, 96]
    a("s_cmp_ge_u32 s2, 256")
    a("s_cbranch_scc1 L_end")
    stamp(a, 0)
    a("s_load_dwordx4 s[4:7], s[0:1], 0")
    a("s_load_dwordx2 s[10:11], s[0:1], 40")
    a("s_load_dwordx2 s[32:33], s[0:1], 80")
    a("s_load_dwordx2 s[8:9], s[0:1], 16")
    a("s_load_dwordx2 s[12:13], s[0:1], 56")
    a(f"s_getpc_b64 s[{VT}:{VT+1}]")
    a.label("L_pc")
    a("v_lshrrev_b32 v2, 6, v0")
    a("v_and_b32 v1, 63, v0")
    a(f"s_lshr_b32 s{J}, s2, 3")
    a(f"v_readfirstlane_b32 s{W}, v2")
    a("v_lshlrev_b32 v3, 4, v1")
    a(f"s_mov_b64 s[14:15], s[{VT}:{VT+1}]")
    a(f"s_add_u32 s{VT}, s{VT}, L_vtab-L_pc")
    a(f"s_addc_u32 s{VT+1}, s{VT+1}, L_vtab@rel32@hi+12")
    if OPT["cpf"]:
        a(f"s_and_b32 s44, s{J}, 15")
        a("s_lshl_b32 s44, s44, 13")
        a("s_sub_u32 s45, s44, 32768")
        a("s_cselect_b32 s44, s44, s45")
        a(f"s_cselect_b64 s[14:15], s[14:15], s[{VT}:{VT+1}]")
        a(f"s_cselect_b32 s45, L_code_end-L_pc-16, -1")
        a("v_lshl_add_u32 v6, v0, 4, s44")
        a("v_min_u32 v6, s45, v6")
        a("global_load_dwordx4 v[112:115], v6, s[14:15]")
    a(f"v_mul_u32_u24 v23, {NG*1024}, v2")
    a("v_add_u32 v23, v23, v3")
    a.vmem(f"global_load_dwordx4 v[8:11], v23, s[{VT}:{VT+1}]", "t0")
    a.vmem(f"global_load_dwordx4 v[16:19], v23, s[{VT}:{VT+1}] offset:1024", "t0")
    a("v_lshrrev_b32 v7, 3, v1")
    a("v_and_b32 v4, 7, v1")
    a("v_lshrrev_b32 v5, 1, v7")
    a("v_xor_b32 v6, v4, v5")
    a("v_lshlrev_b32 v6, 4, v6")
    a(f"v_lshl_add_u32 v{VXD}, v7, 10, v6")
    a(f"v_xor_b32 v{VXD+1}, 64, v{VXD}")
    a(f"v_add_u32 v{VXD+1}, {8192-1024}, v{VXD+1}")
    a("v_lshrrev_b32 v6, 2, v1")
    a("v_and_b32 v6, 4, v6")
    a("v_xor_b32 v6, v4, v6")
    a("v_mul_u32_u24 v7, 3072, v7")
    a(f"v_lshl_add_u32 v{VWD}, v6, 4, v7")
    a(f"s_and_b32 s{TY}, s{J}, 1")
    if OPT["map2d"]:
        a(f"s_lshr_b32 s{XOFF}, s2, 5")
        a("s_and_b32 s44, s2, 4")
        a(f"s_lshl1_add_u32 s{XOFF}, s44, s{XOFF}")
    else:
        a(f"s_lshr_b32 s{XOFF}, s2, 4")
    if OPT["rot"] == 4:
        a(f"s_lshl1_add_u32 s{J}, s{J}, s{XOFF}")
    elif OPT["rot"] == 5:
        a(f"s_lshl1_add_u32 s{J}, s{J}, s{XOFF}")
        a(f"s_add_u32 s{J}, s{J}, s2")
    elif OPT["rot"] >= 1:
        a(f"s_lshl2_add_u32 s{J}, s{TY}, s{XOFF}")
    if OPT["rot"] == 2: a(f"s_add_u32 s{J}, s{J}, s2")
    if OPT["rot"] == 3:
        a("s_lshl_b32 s44, s2, 1")
        a(f"s_add_u32 s{J}, s{J}, s44")
    a(f"s_lshl3_add_u32 s{XOFF}, s{XOFF}, s{W}")
    a(f"s_lshl_b32 s{XOFF}, s{XOFF}, 14")
    a(f"s_mul_i32 s{WOFF}, s{W}, 24576")
    a(f"s_lshl_b32 s{MX}, s{W}, 11")
    a(f"s_lshl_b32 s{MW}, s{W}, 10")
    if OPT["map2d"]:
        a("s_and_b32 s44, s2, 3")
        a("s_bfe_u32 s45, s2, 0x10004")
        a("s_lshl1_add_u32 s44, s44, s45")
    else:
        a("s_and_b32 s44, s2, 7")
    a("s_lshl_b32 s44, s44, 7")
    a(f"s_xor_b32 s45, s44, {OPT['hga']*128}")
    a(f"s_lshl_b32 s14, s{TY}, 10")
    a("s_add_u32 s15, s14, s44")
    a("s_sub_u32 s14, s45, s14")
    a("s_add_u32 s14, s14, 1024")
    a(f"s_cmp_eq_u32 s{TY}, 0")
    a("s_cselect_b32 s44, s45, s44")
    a("s_add_u32 s44, s44, 1024")
    a("s_sub_u32 s22, 0x180000, s14")
    a("s_sub_u32 s26, 0x180000, s44")
    a("s_sub_u32 s30, 0x180000, s15")
    a("s_mov_b32 s23, 0x00020000")
    a("s_mov_b32 s27, 0x00020000")
    a("s_mov_b32 s31, 0x00020000")
    a("s_mov_b32 s18, 0x200000")
    a("s_mov_b32 s19, 0x00020000")
    a(f"s_cmp_eq_u32 s{TY}, 0")
    a("s_waitcnt lgkmcnt(0)")
    a("s_cselect_b64 s[24:25], s[6:7], s[10:11]")
    a("s_mov_b64 s[16:17], s[4:5]")
    a("s_add_u32 s20, s6, s14")
    a("s_addc_u32 s21, s7, 0")
    a("s_add_u32 s24, s24, s44")
    a("s_addc_u32 s25, s25, 0")
    a("s_add_u32 s28, s10, s15")
    a("s_addc_u32 s29, s11, 0")
    def dma_part(c, p):
        sl = (c & 3) * SLOT
        if p == 0:
            a(f"s_add_u32 m0, s{MX}, {sl}")
            a(f"s_add_u32 s{TA}, s{J}, {c}")
            a(f"s_and_b32 s{TA}, s{TA}, 7")
            a(f"s_lshl_b32 s{TB}, s{TA}, 7")
            a(f"s_add_u32 s{TB}, s{TB}, s{XOFF}")
            a.vmem(f"buffer_load_dwordx4 v{VXD}, s[16:19], s{TB} offen lds", f"c{c}")
            a.vmem(f"buffer_load_dwordx4 v{VXD+1}, s[16:19], s{TB} offen offset:1024 lds", f"c{c}")
        else:
            a(f"s_add_u32 m0, s{MX}, {sl+16384}")
            a(f"s_mul_i32 s{TC}, s{TA}, 196608")
            a(f"s_add_u32 s{TC}, s{TC}, s{WOFF}")
            a.vmem(f"buffer_load_dwordx4 v{VWD}, s[28:31], s{TC} offen lds", f"c{c}")
            a.vmem(f"buffer_load_dwordx4 v{VWD}, s[24:27], s{TC} offen offset:1024 lds", f"c{c}")
    W0L = [131072 + c*8192 for c in range(4)] + [16384, 24576, 49152, 57344]
    def dma_w0(c):
        a(f"s_add_u32 m0, s{MW}, {W0L[c]}")
        a(f"s_add_u32 s{TB}, s{J}, {c}")
        a(f"s_and_b32 s{TB}, s{TB}, 7")
        a(f"s_mul_i32 s{TB}, s{TB}, 196608")
        a(f"s_add_u32 s{TB}, s{TB}, s{WOFF}")
        a.vmem(f"buffer_load_dwordx4 v{VWD}, s[20:23], s{TB} offen lds", "wa" if c < 4 else "wb")
    def dma(c):
        for p in range(2): dma_part(c, p)
    dma(0)
    a(f"s_load_dword s{TAG}, s[32:33], {WS_E}")
    a(f"s_lshl3_add_u32 s44, s2, s{W}")
    a("s_lshl_b32 s44, s44, 7")
    a(f"s_add_u32 s44, s44, {8*NG*1024}")
    a(f"s_load_dwordx16 s[48:63], s[{VT}:{VT+1}], s44")
    a(f"s_load_dwordx16 s[64:79], s[{VT}:{VT+1}], s44 offset:64")
    a("s_barrier")
    dma(1)
    a(f"s_mov_b32 s34, {WS_USED}")
    a("s_mov_b32 s35, 0x00020000")
    a(f"s_mov_b32 s{MASK}, 0x0000ffff")
    a(f"s_mov_b32 s{MASK+1}, 0x0000ffff")
    a(f"s_mov_b32 s{L2E}, {f32(LOG2E)}")
    a(f"s_mov_b32 s{L2E+1}, {f32(0.25*LOG2E)}")
    a(f"s_mov_b32 s{ATT}, 0")
    if OPT["pre2"]: dma(2)
    XB = 120
    LA = OPT["la"]; NB = LA + 1
    def tl(k):
        r = vtab()[k][0]
        return f"global_load_dwordx4 {vr(r,4)}, v{23 if k < 4 else 7}, s[{VT}:{VT+1}] offset:{k*1024 if k < 4 else (k-8)*1024}"
    def rd(g):
        if g >= 32:
            g -= 32
            c, st = g >> 2, g & 3
            f = w0reg(g)
            ad, o = (19, W0L[c] - 131072) if c < 4 else (5, W0L[c] - 16384)
            return [f"ds_read_b64_tr_b16 {vr(f,2)}, v{ad} offset:{o+st*2048}", f"ds_read_b64_tr_b16 {vr(f+2,2)}, v{ad} offset:{o+st*2048+512}"]
        c, st = g >> 2, g & 3
        sl = c & 3
        fr = 32 + 8*(g % NB)
        L = [f"ds_read_b128 {vr(XB+4*g,4)}, v{VXR+4*(sl>>1)+st} offset:{(sl&1)*SLOT}"]
        for s in range(2):
            o = st*4096 + s*1024 + (sl & 1)*SLOT
            L.append(f"ds_read_b64_tr_b16 {vr(fr+4*s,2)}, v{VWR+(sl>>1)} offset:{o}")
            L.append(f"ds_read_b64_tr_b16 {vr(fr+2+4*s,2)}, v{VWR+(sl>>1)} offset:{o+512}")
        return L
    def w0reg(g): return [112, 116, 248, 252][g] if g < 4 else XB + 4*(g-4)
    EX = {}
    def ex(g, fn): EX.setdefault(g, []).append(fn)
    ex(0, lambda: [a(f"v_add_u32 v{VXR+4+st}, {2*SLOT}, v{VXR+st}") for st in range(4)])
    sched1 = OPT["ds1"]
    for (c, p), g in sched1.items(): ex(g, (lambda c=c, p=p: dma_part(c, p)))
    for c, g in enumerate(OPT["ds0"]): ex(g, (lambda c=c: dma_w0(c)))
    def phi_dma():
        a(f"s_and_b32 s{TB}, {S.PHIOFF}, 1024")
        a(f"s_add_u32 m0, s{TB}, {PHIL}")
        a(f"v_add_u32 v6, {S.PHIOFF}, v3")
        a.vmem("global_load_lds_dwordx4 v6, s[8:9]", "wb")
    ex(OPT["phiat"], phi_dma)
    ex(OPT["t2at"], lambda: a.vmem(tl(2), "t2"))
    def touch():
        a(f"v_add_u32 v6, {S.PHIOFF}, v3")
        a.vmem("global_load_dword v4, v6, s[8:9]", "x")
        a.vmem("global_load_dword v0, v3, s[12:13]", "x")
    if OPT["tchat"] >= 0: ex(OPT["tchat"], touch)
    def touch0():
        a(f"s_lshr_b32 s{TB}, s2, 5")
        a(f"s_mul_i32 s{TB}, s{TB}, 196608")
        a(f"s_add_u32 s{TB}, s{TB}, s{WOFF}")
        a.vmem(f"buffer_load_dword v2, v{VWD}, s[20:23], s{TB} offen", "x")
    if OPT["t0at"] == -1: touch0()
    elif OPT["t0at"] >= 0: ex(OPT["t0at"], touch0)
    def zst():
        a("v_mov_b64 v[56:57], -1")
        a("v_mov_b64 v[58:59], -1")
        a.vmem(f"buffer_store_dwordx4 v[56:59], v3, s[32:35], {S.OFB} offen{SC}", "st")
    ex(OPT["zat"], zst)
    ex(OPT["t2at"] - 2, lambda: a.vmem(tl(3), "t2"))
    assert LA == 2
    ex(OPT["phiat"] + 1, lambda: a(f"v_subrev_u32 v5, {131072-16384}, v19"))
    a.wait_vm("c0", extra="lgkmcnt(0)")
    a("s_barrier")
    stamp(a, 1)
    for g in range(LA):
        for l in rd(g): a(l)
    nowait = 0
    for g in range(32):
        c, st = g >> 2, g & 3
        if st == 4 - LA:
            a.wait_vm(f"c{c+1}" if c < 7 else OPT["last"], extra="lgkmcnt(0)")
            a("s_barrier")
            if OPT["gst"] == 1 and c < 7: stamp(a, 2+c, True)
            if c == 0: a(f"s_add_u32 s{TAG}, s{TAG}, 0x9e3779b1")
            nowait = LA - 1
        elif nowait: nowait -= 1
        else: a(f"s_waitcnt lgkmcnt({5*(LA-1)})")
        R = rd(g + LA)
        if g == 31:
            for k in range(LA, 4): R += rd(32 + k)
        fr = 32 + 8*(g % NB); x = XB + 4*g
        mfma(a, ACC[2], fr, x, "0" if g == 0 else ACC[2])
        for l in R[:3]: a(l)
        mfma(a, ACC[1], x, fr+4, "0" if g == 0 else ACC[1])
        for l in R[3:]: a(l)
        for fn in EX.get(g, []): fn()
    stamp(a, 2)
    if OPT["gst"] == 1: stamp(a, 9, True)
    def st2(j):
        if OPT["gst"] == 2: stamp(a, j, True)
    st2(2)
    E2 = range(2)
    PH = [160, 176]; EP = [64, 80]; T = [200, 204]
    def f1():
        a("s_waitcnt vmcnt(0)")
        a.vm = []
        a(f"s_cmp_lg_u32 s{W}, 0")
        a("s_barrier")
        a("s_cbranch_scc1 L_f1done")
        pub(a, S.F1OFF)
        a.label("L_f1done")
        stamp(a, 3)
    def st_v():
        for g in range(2):
            for q in range(4): a(f"v_cvt_pk_bf16_f32 v{40+4*g+q}, v{ACC[1]+8*g+2*q}, v{ACC[1]+8*g+2*q+1}")
        a(f"s_add_u32 s{TB}, {S.QK0}, 65536")
        a(f"s_cmp_eq_u32 s{TY}, 0")
        if "t2" in a.vm: a.wait_vm("t2")
        a("s_cbranch_scc1 L_p1_q")
        a(f"buffer_store_dwordx4 v[40:43], v{VO}, s[32:35], {S.VOFF} offen{SC}")
        a(f"buffer_store_dwordx4 v[44:47], v{VO}, s[32:35], {S.VOFF} offen offset:512{SC}")
        a("s_branch L_p1_qk")
        a.label("L_p1_q")
        for i in range(0, 16, 2): a(f"v_pk_mul_f32 v[{ACC[2]+i}:{ACC[2]+i+1}], v[{ACC[2]+i}:{ACC[2]+i+1}], s[{L2E}:{L2E+1}] op_sel:[0,1]")
        a(f"v_mov_b32 v{KO}, v3")
        a.label("L_p1_qk")
    def st_qk(e):
        for q in range(4): a(f"v_cvt_pk_bf16_f32 v{32+4*e+q}, v{ACC[2]+8*e+2*q}, v{ACC[2]+8*e+2*q+1}")
        a.vmem(f"buffer_store_dwordx4 {vr(32+4*e,4)}, v{KO}, s[32:35], {S.QK0 if e == 0 else 's%d' % TB} offen{SC}", "st")
    def gld():
        a("v_lshlrev_b32 v6, 5, v1")
        a("v_and_b32 v4, 0x3ff, v6")
        a(f"s_cmp_eq_u32 s{TY}, 0")
        a("s_cbranch_scc1 L_skip_gl")
        a("global_load_dwordx4 v[104:107], v4, s[12:13]")
        a("global_load_dwordx4 v[108:111], v4, s[12:13] offset:16")
        a(f"buffer_load_dwordx4 v[96:99], v6, s[16:19], {S.GROW} offen")
        a(f"buffer_load_dwordx4 v[100:103], v6, s[16:19], {S.GROW} offen offset:16")
        a.label("L_skip_gl")
    def ptrs():
        a("s_load_dwordx2 s[16:17], s[0:1], 24")
        a("s_load_dwordx2 s[20:21], s[0:1], 48")
        a("s_load_dwordx2 s[24:25], s[0:1], 64")
        a("s_mov_b32 s18, 0x80000")
        a("s_mov_b32 s22, 0x80000")
        a("s_mov_b32 s26, 0x200000")
    F = OPT["f1g"]
    E2X = {1: [st_v], 2: [lambda: st_qk(0)], 3: [lambda: st_qk(1)], 4: [lambda: a("v_add_u32 v7, 8192, v23")], 31: [ptrs]}
    for n, k in enumerate((7, 6, 8, 4, 5)): E2X.setdefault(F + n, []).append(lambda k=k: a.vmem(tl(k), "t3"))
    E2X.setdefault(F + 5, []).append(gld)
    assert F + 5 < 31
    def step2(g, fill=None):
        if g == 5: st2(3)
        if g == 12 and "wb" in a.vm:
            st2(4)
            a.wait_vm("wb")
            a("s_barrier")
            st2(5)
        if g == F:
            st2(6); f1(); st2(7)
        a(f"s_waitcnt lgkmcnt({(6 if g < 28 else 2*(31-g) + 4)})")
        mfma(a, ACC[0], w0reg(g), XB+4*g, "0" if g == 0 else ACC[0])
        if g + 4 < 32:
            for l in rd(32 + g + 4): a(l)
        if g == 27:
            for e in range(2):
                a(f"ds_read_b64_tr_b16 {vr(248+4*e,2)}, v{PHIA} offset:{e*512}")
                a(f"ds_read_b64_tr_b16 {vr(250+4*e,2)}, v{PHIA} offset:{e*512+256}")
        for fn in E2X.get(g, []): fn()
        if fill:
            for _ in range(fill[1]):
                if fill[0]: a(fill[0].pop(0))
    L = ["v_mov_b32 v6, 0x3f803f80"]
    for q in range(8):
        L.append(f"v_cndmask_b32 v{96+q}, v6, v{40+q}, s[{MASK}:{MASK+1}]")
        L.append(f"v_cndmask_b32 v{104+q}, v{40+q}, v6, s[{MASK}:{MASK+1}]")
    for g in range(32): step2(g, (L, 3) if g >= 5 else None)
    assert not L
    st2(8)
    for e in E2:
        for q in range(4): a(f"v_cvt_pk_bf16_f32 v{192+4*e+q}, v{ACC[0]+8*e+2*q}, v{ACC[0]+8*e+2*q+1}")
    a("s_waitcnt lgkmcnt(0)")
    mfma(a, PH[0], 248, 192, "0")
    mfma(a, PH[1], 252, 196, "0")
    st2(9)
    for k in range(0, 16, 2): a(f"v_mov_b64 {vr(VA[0]+k,2)}, {vr(ONES,2)}")
    def point(n):
        if n == OPT["pollat"]:
            a("s_waitcnt vmcnt(0)")
            a.vm = []
            a(f"s_cmp_lg_u32 s{W}, 0")
            a("s_cbranch_scc1 L_p2_np")
            a(f"buffer_load_dword v{VP0}, v{VL8}, s[32:35], {S.F1POLL} offen{SC}")
            a.label("L_p2_np")
        if n == OPT["goat"]:
            stamp(a, 4)
            a(f"s_cmp_lg_u32 s{W}, 0")
            a("s_cbranch_scc1 L_p2_go")
            poll(a, "L_pollF1", VL8, VP0, S.F1POLL, own=S.OWN1)
            a.label("L_p2_go")
            a("s_barrier")
            stamp(a, 5)
            a.vmem(f"buffer_load_dwordx4 {vr(SCR,4)}, v3, s[32:35], {S.K0OFF} offen{SC}", "q")
            a.vmem(f"buffer_load_dwordx4 {vr(Q[0],4)}, v3, s[32:35], {S.QOFF0} offen{SC}", "q")
            a.vmem(f"buffer_load_dwordx4 {vr(Q[1],4)}, v3, s[32:35], {S.QOFF1} offen{SC}", "q")
            kv_dma(a, 0, 0); kv_dma(a, 0, 1)
    point(0)
    if OPT["rp"]:
        for e in E2:
            for q in range(4): a(f"v_cvt_pk_bf16_f32 v{T[e]+q}, v{PH[e]+2*q}, v{PH[e]+2*q+1}")
        for e in E2:
            for q in range(4):
                a(f"v_lshlrev_b32 v{PH[e]+2*q}, 16, v{T[e]+q}")
                a(f"v_and_b32 v{PH[e]+2*q+1}, 0xffff0000, v{T[e]+q}")
    for e in E2:
        P = PH[e]; t = T[e]
        a(f"v_max3_f32 v{t}, v{P}, v{P+1}, v{P+2}")
        a(f"v_max3_f32 v{t+1}, -v{P}, -v{P+1}, -v{P+2}")
        a(f"v_max3_f32 v{t}, v{t}, v{P+3}, v{P+4}")
        a(f"v_max3_f32 v{t+1}, v{t+1}, -v{P+3}, -v{P+4}")
        a(f"v_max3_f32 v{t}, v{t}, v{P+5}, v{P+6}")
        a(f"v_max3_f32 v{t+1}, v{t+1}, -v{P+5}, -v{P+6}")
        a(f"v_max_f32 v{t}, v{t}, v{P+7}")
        a(f"v_max_f32_e64 v{t+1}, v{t+1}, -v{P+7}")
    point(1)
    for e in E2: a(f"v_permlane32_swap_b32 v{T[e]}, v{T[e]+1}")
    for e in E2: a(f"v_max_f32 v{T[e]}, v{T[e]}, v{T[e]+1}")
    for e in E2: a(f"v_mul_f32 v{T[e]}, {f32(-LOG2E)}, v{T[e]}")
    for e in E2: a(f"v_mov_b32 v{T[e]+1}, v{T[e]}")
    for e in E2: a(f"v_permlane32_swap_b32 v{T[e]}, v{T[e]+1}")
    for e in E2:
        for q in range(4):
            a(f"v_pk_fma_f32 {vr(EP[e]+2*q,2)}, {vr(PH[e]+2*q,2)}, s[{L2E}:{L2E+1}], {vr(T[e],2)} op_sel_hi:[1,0,0]")
            a(f"v_pk_fma_f32 {vr(EP[e]+8+2*q,2)}, {vr(PH[e]+2*q,2)}, s[{L2E}:{L2E+1}], {vr(T[e],2)} op_sel:[0,0,1] op_sel_hi:[1,0,1] neg_lo:[1,0,0] neg_hi:[1,0,0]")
    point(2)
    for j in range(16): a(f"v_exp_f32 v{EP[0]+j}, v{EP[0]+j}")
    point(3)
    for j in range(16): a(f"v_exp_f32 v{EP[1]+j}, v{EP[1]+j}")
    point(4)
    for e in E2:
        P = PH[e]
        for sg in range(2):
            b = EP[e] + 8*sg
            a(f"v_pk_add_f32 {vr(P+4*sg,2)}, {vr(b,2)}, {vr(b+2,2)}")
            a(f"v_pk_add_f32 {vr(P+4*sg+2,2)}, {vr(b+4,2)}, {vr(b+6,2)}")
    for e in E2:
        for sg in range(2): a(f"v_pk_add_f32 {vr(PH[e]+4*sg,2)}, {vr(PH[e]+4*sg,2)}, {vr(PH[e]+4*sg+2,2)}")
    for e in E2:
        for sg in range(2): a(f"v_add_f32 v{T[e]+sg}, v{PH[e]+4*sg}, v{PH[e]+4*sg+1}")
    for e in E2: a(f"v_permlane32_swap_b32 v{T[e]}, v{T[e]+1}")
    for e in E2: a(f"v_add_f32 v{T[e]}, v{T[e]}, v{T[e]+1}")
    for e in E2: a(f"v_rcp_f32 v{T[e]}, v{T[e]}")
    for e in E2: a(f"v_mov_b32 v{T[e]+1}, v{T[e]}")
    for e in E2: a(f"v_permlane32_swap_b32 v{T[e]}, v{T[e]+1}")
    point(5)
    for e in E2:
        for q in range(4):
            a(f"v_pk_mul_f32 {vr(EP[e]+2*q,2)}, {vr(EP[e]+2*q,2)}, {vr(T[e],2)} op_sel_hi:[1,0]")
            a(f"v_pk_mul_f32 {vr(EP[e]+8+2*q,2)}, {vr(EP[e]+8+2*q,2)}, {vr(T[e],2)} op_sel:[0,1]")
    for e in E2:
        for q in range(8): a(f"v_cvt_pk_bf16_f32 v{PHI+8*e+q}, v{EP[e]+2*q}, v{EP[e]+2*q+1}")
    point(6)
    a(f"s_cmp_eq_u32 s{TY}, 0")
    a("s_cbranch_scc0 L_skip_t0")
    for e in E2:
        mfma(a, PH[e], PHI+8*e, BSEL, "0")
        mfma(a, PH[e], PHI+4+8*e, BSEL+4, PH[e])
    for e in E2:
        for q in range(8): a(f"v_cvt_pk_bf16_f32 v{192+8*e+q}, v{PH[e]+2*q}, v{PH[e]+2*q+1}")
        mfma(a, 64+16*e, 192+8*e, 96+8*e, "0")
        mfma(a, 64+16*e, 196+8*e, 100+8*e, 64+16*e)
    for e in E2:
        for q in range(4): a(f"ds_write_b128 v{REDW}, {vr(64+16*e+4*q,4)} offset:{e*4096+q*1024}")
    a("s_branch L_p1_done")
    a.label("L_skip_t0")
    gate(a)
    a.label("L_p1_done")
    point(7)


def phase2(a):
    def zero_acc():
        for i in range(0, 32, 2): a(f"v_mov_b64 v[{O[0]+i}:{O[0]+i+1}], 0")
    def prime_reads():
        a(f"ds_read_b128 {vr(KB_[0],4)}, v{VK}")
        a(f"ds_read_b128 {vr(KB_[1],4)}, v{VK} offset:1024")
        a(f"s_mov_b64 exec, s[{MASK}:{MASK+1}]")
        a(f"ds_read_b128 {vr(VA[0],4)}, v{VV}")
        a(f"ds_read_b128 {vr(VBB[0],4)}, v{VV} offset:512")
        a("s_mov_b64 exec, -1")
    a(f"v_mov_b32 v5, {FLAG}")
    a("v_mov_b32 v7, 0")
    a("ds_write_b32 v5, v7")
    a.wait_vm("q")
    mfma(a, S4[0][1], SCR, Q[0], "0")
    mfma(a, S4[1][1], SCR, Q[1], "0")
    a("s_waitcnt lgkmcnt(0)")
    zero_acc()
    a(f"s_cmp_eq_u32 s{TY}, 0")
    a.wait_vm("r0")
    a("s_barrier")
    stamp(a, 6)
    prime_reads()
    a("s_cbranch_scc0 L_skip_r0")
    for w in range(4):
        for q in range(2):
            a(f"ds_read_b128 {vr(160+8*w+4*q,4)}, v{REDR} offset:{(w>>1)*32768+(w&1)*8192+q*1024}")
    a.label("L_skip_r0")
    kv_dma(a, 1, 0); kv_dma(a, 1, 1)
    maxtree(a, M1, S4[0][1], True)
    maxtree(a, M2, S4[1][1], True)
    a(f"s_cmp_eq_u32 s{TY}, 0")
    a("s_cbranch_scc0 L_skip_r1")
    a("s_waitcnt lgkmcnt(0)")
    for j in range(0, 8, 2): a(f"v_pk_add_f32 {vr(160+j,2)}, {vr(160+j,2)}, {vr(168+j,2)}")
    for j in range(0, 8, 2): a(f"v_pk_add_f32 {vr(176+j,2)}, {vr(176+j,2)}, {vr(184+j,2)}")
    for j in range(0, 8, 2): a(f"v_pk_add_f32 {vr(160+j,2)}, {vr(160+j,2)}, {vr(176+j,2)}")
    a(f"buffer_store_dwordx4 v[160:163], v{KVP0}, s[32:35], {S.KVPOFF} offen{SC}")
    a(f"buffer_store_dwordx4 v[164:167], v{KVP1}, s[32:35], {S.KVPOFF} offen{SC}")
    a("s_branch L_setmax")
    a.label("L_skip_r1")
    a("s_mov_b32 exec_lo, 1")
    a("s_mov_b32 exec_hi, 1")
    a(f"buffer_store_dword v52, v6, s[32:35], {S.GOFF} offen{SC}")
    a("s_mov_b64 exec, -1")
    a.label("L_setmax")
    a.nop(2)
    a(f"v_permlane32_swap_b32 v{M1}, v{M2}")
    a(f"v_max_f32 v{M1}, v{M1}, v{M2}")
    a(f"v_sub_f32 v{M1}, 0, v{M1}")
    a(f"v_mov_b32 v{M2}, v{M1}")
    a(f"v_permlane32_swap_b32 v{M1}, v{M2}")
    for i in range(0, 16, 2): a(f"v_pk_mov_b32 {vr(C[0]+i,2)}, {vr(M1,2)}, {vr(M1,2)} op_sel:[0,0]")
    a("s_waitcnt lgkmcnt(0)")
    mfma(a, S4[0][0], KB_[0], Q[0], C[0])
    for i in range(0, 16, 2): a(f"v_pk_mov_b32 {vr(C[1]+i,2)}, {vr(M1,2)}, {vr(M1,2)} op_sel:[1,1]")
    mfma(a, S4[1][0], KB_[0], Q[1], C[1])
    nvm = [0]; marks = {}
    PL, ZL = SCR, SCR + 16
    def wait_after(nm): a(f"s_waitcnt vmcnt({nvm[0]-marks[nm]})")
    def svm(txt):
        a.vmem(txt, "x"); nvm[0] += 1
    def j_drain(): a("s_waitcnt vmcnt(0)")
    def j_p2():
        a(f"v_and_b32 v6, 0x7ff, v{VL8}")
        a(f"buffer_load_dword v{VP0}, v6, s[32:35], {S.F2POLL} offen{SC}")
    def j_ld():
        wait_after("p2")
        check_flags(a, "L_pollF2", 0x7ff, VP0, S.F2POLL)
        a("v_lshrrev_b32 v5, 4, v1")
        a("v_lshlrev_b32 v5, 14, v5")
        a("v_and_b32 v6, 0xf0, v3")
        a("v_add_u32 v6, v6, v5")
        a(f"s_lshr_b32 s{TB}, s2, 5")
        a(f"s_mul_i32 s{TB}, s{TB}, 240")
        a(f"s_sub_u32 s{TB}, {S.LDK}, s{TB}")
        for p in range(4):
            a(f"s_add_u32 s{TC}, {S.LDK}, {p*4096}")
            a(f"buffer_load_dwordx4 {vr(PL+4*p,4)}, v6, s[32:35], s{TC} offen{SC}")
        for p in range(4):
            a(f"s_add_u32 s{TC}, s{TB}, {p*4096}")
            a(f"buffer_load_dwordx4 {vr(ZL+4*p,4)}, v5, s[32:35], s{TC} offen offset:2048{SC}")
    def j_red():
        wait_after("ld")
        B2 = (PL, ZL)
        for base in B2:
            for j in (0, 2):
                a(f"v_pk_add_f32 {vr(base+j,2)}, {vr(base+j,2)}, {vr(base+4+j,2)}")
                a(f"v_pk_add_f32 {vr(base+8+j,2)}, {vr(base+8+j,2)}, {vr(base+12+j,2)}")
        for base in B2:
            for j in (0, 2): a(f"v_pk_add_f32 {vr(base+j,2)}, {vr(base+j,2)}, {vr(base+8+j,2)}")
        for sw in ("32", "16"):
            for base in B2:
                for j in (0, 2): a(f"v_mov_b64 {vr(base+4+j,2)}, {vr(base+j,2)}")
            for base in B2:
                for j in range(4): a(f"v_permlane{sw}_swap_b32 v{base+j}, v{base+4+j}")
            for base in B2:
                for j in (0, 2): a(f"v_pk_add_f32 {vr(base+j,2)}, {vr(base+j,2)}, {vr(base+4+j,2)}")
        a("v_cmp_eq_u32 vcc, 16, v1")
        for base in B2:
            a(f"v_cvt_pk_bf16_f32 v{base+4}, v{base}, v{base+1}")
            a(f"v_cvt_pk_bf16_f32 v{base+5}, v{base+2}, v{base+3}")
        a(f"v_cndmask_b32 v{PL+4}, v{PL+4}, v{ZL+4}, vcc")
        a(f"v_cndmask_b32 v{PL+5}, v{PL+5}, v{ZL+5}, vcc")
        a("s_mov_b64 exec, 0x1ffff")
        a(f"buffer_store_dwordx2 {vr(PL+4,2)}, v3, s[32:35], {S.KVFW} offen{SC}")
        a("s_mov_b64 exec, -1")
    def j_f5():
        a("s_waitcnt vmcnt(0)")
        pub(a, S.F5OFF)
    def j_p5():
        a(f"v_and_b32 v6, 0x7ff, v{VL8}")
        a(f"buffer_load_dword v{VP1}, v6, s[32:35], {S.F5POLL} offen{SC}")
    def j_kv():
        wait_after("p5")
        check_flags(a, "L_pollF5", 0x7ff, VP1, S.F5POLL)
        a(f"v_min_u32 v5, 64, v{G4}")
        a("v_lshrrev_b32 v6, 5, v1")
        a("v_mul_u32_u24 v6, 272, v6")
        a("v_lshl_add_u32 v5, v5, 2, v6")
        for e in range(2):
            for sg in range(2):
                a(f"buffer_load_dwordx4 {vr(SCR+8*e+4*sg,4)}, v5, s[32:35], {S.KVFR} offen offset:{e*2048+sg*544}{SC}")
    def j_om():
        wait_after("kv")
        for sg in range(2):
            for e in range(2): mfma(a, SCR+16+16*e, SCR+8*e+4*sg, PHI+8*e+4*sg, "0" if sg == 0 else SCR+16+16*e)
    def j_oa(e):
        def f():
            D = SCR+16+16*e
            a(f"v_add_f32 v4, {f32(1e-6)}, v{D+8}")
            a("v_rcp_f32 v4, v4")
            for i in range(0, 8, 2): a(f"v_pk_mul_f32 {vr(D+i,2)}, {vr(D+i,2)}, v[4:5] op_sel_hi:[1,0]")
            for q in range(4): a(f"v_cvt_pk_bf16_f32 v{SCR+4*e+q}, v{D+2*q}, v{D+2*q+1}")
            a(f"buffer_store_dwordx4 {vr(SCR+4*e,4)}, v3, s[32:35], {S.OAOFF} offen offset:{e*1024}{SC}")
        return f
    def j_p4():
        a(f"v_and_b32 v6, 0x7ff, v{VL8}")
        svm(f"buffer_load_dword v{VP0}, v6, s[32:35], {S.F4POLL} offen{SC}")
    def j_c4():
        wait_after("p4")
        check_flags(a, "L_pollF4", 0x7ff, VP0, S.F4POLL)
        svm(f"buffer_load_dword v{GV}, v{G4}, s[32:35], {S.GATE3} offen{SC}")
        svm(f"buffer_load_dword v{GV+1}, v{G4}, s[32:35], {S.GATET} offen{SC}")
    def j_la(i):
        def f():
            for k in (2*i, 2*i+1):
                svm(f"buffer_load_dwordx4 {vr(SCR+4*k,4)}, v3, s[32:35], {S.OF3 if k < 4 else S.OF3B} offen offset:{(k%4)*1024}{SC}")
        return f
    JB = dict(d0=(R_T0, j_drain), d1=(R_T1, j_drain), f2=(R_T0W0, lambda: pub(a, S.F2OFF)), f4=(R_T1W0, lambda: pub(a, S.F4OFF)),
              p2=(R_RED, j_p2), ld=(R_RED, j_ld), red=(R_RED, j_red), f5=(R_RED, j_f5),
              p5=(R_T1, j_p5), kv=(R_T1, j_kv), om=(R_T1, j_om), oa0=(R_T1, j_oa(0)), oa1=(R_T1, j_oa(1)),
              p4=(None, j_p4), c4=(None, j_c4), la0=(None, j_la(0)), la1=(None, j_la(1)), la2=(None, j_la(2)), la3=(None, j_la(3)))
    def hook(name):
        role, body = JB[name]
        if name not in OPT["y_skip"]:
            if role is not None:
                a(f"s_bitcmp1_b32 {S.ROLE}, {role}")
                a(f"s_cbranch_scc0 L_skip_{name}")
            body()
            if role is not None: a.label(f"L_skip_{name}")
        marks[name] = nvm[0]
    JOBS = OPT["sched"]
    p0, p1, p2 = OPT["pos"]
    for T in range(32):
        it, t = T >> 2, T & 3
        KVS = OPT["kvs"] if it else OPT["wos"]
        WOS = OPT["wos"]
        for qi in range(2):
            st = 2*t + qi
            s = S4[qi][T & 1]
            for j in range(16):
                a(f"v_exp_f32 v{s+j}, v{s+j}")
                if j == p0:
                    tp = T if qi == 1 else T - 1
                    if tp >= 0: smfmac(a, O[1-qi], VBB[tp & 1], S4[1-qi][tp & 1]+8, IDX)
                    if st == 5:
                        if it == OPT["f2it"]: hook("d0")
                        if it == OPT["f4it"]: hook("d1")
                        if it < 7: a.wait_vm(f"r{it+1}")
                        a("s_barrier")
                        if it == OPT["f2it"]: hook("f2")
                        if it == OPT["f4it"]: hook("f4")
                    if qi == 1:
                        if T + 2 < 32: a(f"ds_read_b128 {vr(KB_[T&1],4)}, v{VK} offset:{(T+2)*1024}")
                        if T + 1 < 32:
                            a(f"s_mov_b64 exec, s[{MASK}:{MASK+1}]")
                            a(f"ds_read_b128 {vr(VA[(T+1)&1],4)}, v{VV} offset:{(T+1)*1024}")
                            a(f"ds_read_b128 {vr(VBB[(T+1)&1],4)}, v{VV} offset:{(T+1)*1024+512}")
                            a("s_mov_b64 exec, -1")
                if j == p1:
                    if qi == 0: a("s_waitcnt lgkmcnt(0)")
                    if T + 1 < 32: mfma(a, S4[qi][(T+1) & 1], KB_[(T+1) & 1], Q[qi], C[qi])
                    for nm in JOBS.get((it, st), "").split(): hook(nm)
                if j == p2:
                    smfmac(a, O[qi], VA[T & 1], s, IDX)
                    if st in KVS and it + 2 < 8:
                        kv_dma(a, it + 2, KVS.index(st)); nvm[0] += 1
                    if st in WOS and it >= 1:
                        wo_dma(a, it - 1, WOS.index(st)); nvm[0] += 1
    a(f"ds_write_b128 v{XW}, {vr(O[0],4)}")
    a(f"ds_write_b128 v{XW}, {vr(O[0]+4,4)} offset:1024")
    smfmac(a, O[1], VBB[1], S4[1][1]+8, IDX)
    a(f"ds_write_b32 v{XW}, v{O[0]+8} offset:2048")
    stamp(a, 7)
    SX = 64
    a(f"v_add_f32_e64 v{M1}, |v{O[0]}|, |v{O[0]+1}|")
    for i in range(2, 9): a(f"v_add_f32_e64 v{M1}, v{M1}, |v{O[0]+i}|")
    a(f"v_mov_b32 v6, {FLAG}")
    a("v_mov_b32 v7, 1")
    a(f"v_mov_b32 v5, {f32(OPT['thr'])}")
    for i in range(0, 9): a(f"v_add_f32_e64 v{M1}, v{M1}, |v{O[1]+i}|")
    a(f"v_cmp_nlt_f32 vcc, v{M1}, v5")
    a(f"s_waitcnt vmcnt({nvm[0]-marks['c4']})")
    a(f"v_sub_f32 v{GV+1}, 1.0, v{GV+1}")
    a("s_cbranch_vccz L_noflag")
    a("ds_write_b32 v6, v7")
    a.label("L_noflag")
    a("s_waitcnt lgkmcnt(0)")
    a("s_barrier")
    a(f"ds_read_b32 v{M2}, v6")
    a(f"ds_read_b32 v{SX+8}, v{XR} offset:2048")
    a(f"ds_read_b128 {vr(SX,4)}, v{XR}")
    a(f"ds_read_b128 {vr(SX+4,4)}, v{XR} offset:1024")
    a(f"v_cvt_pk_bf16_f32 v{GV+1}, v{GV+1}, v{GV+1}")
    a(f"v_lshlrev_b32 v{GV+1}, 16, v{GV+1}")
    a("s_waitcnt lgkmcnt(2)")
    a(f"v_readfirstlane_b32 s{TB}, v{M2}")
    a(f"v_add_f32 v{O[1]+8}, v{O[1]+8}, v{SX+8}")
    a(f"v_rcp_f32 v{M1}, v{O[1]+8}")
    a(f"s_cmp_lg_u32 s{TB}, 0")
    a("s_cbranch_scc1 L_maybe_fb")
    a.label("L_fin")
    a(f"v_mul_f32 v{M1}, v{M1}, v{GV+1}")
    a("s_waitcnt lgkmcnt(0)")
    for i in range(0, 8, 2): a(f"v_pk_add_f32 {vr(O[1]+i,2)}, {vr(O[1]+i,2)}, {vr(SX+i,2)}")
    for i in range(0, 8, 2): a(f"v_pk_mul_f32 {vr(O[1]+i,2)}, {vr(O[1]+i,2)}, {vr(M1,2)} op_sel_hi:[1,0]")
    for q in range(4): a(f"v_cvt_pk_bf16_f32 v{20+q}, v{O[1]+2*q}, v{O[1]+2*q+1}")
    for q in range(4): a(f"v_min_u32 v{20+q}, -2, v{20+q}")
    a(f"buffer_store_dwordx4 v[20:23], v3, s[32:35], {S.OFB} offen{SC}")
    wo_dma(a, 7, 0)
    wo_dma(a, 7, 1)

    def rare(a):
        a.label("L_maybe_fb")
        a(f"s_cmp_lg_u32 s{ATT}, 0")
        a("s_cbranch_scc1 L_fin")
        a(f"s_mov_b32 s{ATT}, 1")
        a(f"s_mov_b32 {S.ROLE}, 0")
        a("s_waitcnt vmcnt(0) lgkmcnt(0)")
        a("s_barrier")
        for rr in range(8):
            kv_dma(a, rr, 0); kv_dma(a, rr, 1)
        a(f"v_mov_b32 v{M1}, 0xff800000")
        a(f"v_mov_b32 v{M2}, 0xff800000")
        a("v_mov_b32 v4, v3")
        a(f"s_mov_b32 s{CNT}, 64")
        a("s_waitcnt vmcnt(0)")
        a("s_barrier")
        a.label("L_fbloop")
        a(f"ds_read_b128 {vr(KB_[0],4)}, v4")
        a("v_add_u32 v4, 1024, v4")
        a("s_waitcnt lgkmcnt(0)")
        mfma(a, S4[0][0], KB_[0], Q[0], "0")
        mfma(a, S4[1][0], KB_[0], Q[1], "0")
        a.nop(12)
        maxtree(a, M1, S4[0][0], False)
        maxtree(a, M2, S4[1][0], False)
        a(f"s_sub_u32 s{CNT}, s{CNT}, 1")
        a(f"s_cmp_lg_u32 s{CNT}, 0")
        a("s_cbranch_scc1 L_fbloop")
        zero_acc()
        prime_reads()
        a("s_branch L_setmax")
    return rare

def phase3(a):
    ACC, OFB_, PEND = 32, 224, TC
    WA = list(range(112, 136, 4)) + list(range(184, 224, 4))
    WB = list(range(64, 128, 4))
    def trread(br, i):
        for ct in range(2):
            f = (WA, WB)[br][2*i+ct]
            a(f"ds_read_b64_tr_b16 {vr(f,2)}, v{TR0+ct} offset:{br*16384+i*2048}")
            a(f"ds_read_b64_tr_b16 {vr(f+2,2)}, v{TR0+ct} offset:{br*16384+i*2048+1024}")
    def oload(k):
        return f"buffer_load_dwordx4 {vr(OFB_+4*k,4)}, v3, s[32:35], {S.OF3 if k < 4 else S.OF3B} offen offset:{(k%4)*1024}{SC}"
    stamp(a, 8)
    for i in range(2): trread(0, i)
    a(f"s_add_u32 {S.OF3}, {S.OF3}, 32768")
    a(f"s_add_u32 {S.OF3B}, {S.OF3B}, 32768")
    a(f"s_mov_b32 s{CNT}, {POLL_LIMIT}")
    a(f"s_mov_b32 s{PEND}, 0")
    for p in range(1, 4): a(f"v_xor_b32 v{12+p}, {p*32768}, v{RR}")
    a("s_waitcnt vmcnt(3)")
    for i in range(8):
        if i + 2 < 8: trread(0, i + 2)
        a(f"s_waitcnt lgkmcnt({4*min(2, 7-i)})")
        for ct in range(2): mfma(a, ACC+16*ct, WA[2*i+ct], SCR+4*i, "0" if i == 0 else ACC+16*ct)
    a("s_waitcnt vmcnt(0)")
    a("s_barrier")
    for k in range(8): a(oload(k))
    for i in range(8):
        trread(1, i)
        if i % 2 == 1: a("s_waitcnt lgkmcnt(4)")
    for j in range(0, 32, 2): a(f"v_pk_mul_f32 {vr(ACC+j,2)}, {vr(ACC+j,2)}, {vr(GV,2)} op_sel_hi:[1,0]")
    a("s_waitcnt lgkmcnt(0)")
    def test(a, o):
        a(f"v_max3_u32 v4, v{o}, v{o+1}, v{o+2}")
        a(f"v_max_u32 v4, v4, v{o+3}")
        a("v_cmp_eq_u32 vcc, -1, v4")
        a("s_nop 1")
    for i in range(8):
        o = OFB_ + 4*i
        a(f"s_waitcnt vmcnt({7-i})")
        test(a, o)
        a(f"s_cbranch_vccnz L_obad{i}")
        for ct in range(2): mfma(a, ACC+16*ct, WB[2*i+ct], o, ACC+16*ct)
        a.label(f"L_onext{i}")
    a(f"s_cmp_lg_u32 s{PEND}, 0")
    a("s_cbranch_scc1 L_oretry")
    a.label("L_odone")
    def retry(a):
        for i in range(8):
            a.label(f"L_obad{i}")
            a(f"s_bitset1_b32 s{PEND}, {i}")
            a(f"s_branch L_onext{i}")
        a.label("L_oretry")
        a(f"s_sub_u32 s{CNT}, s{CNT}, 1")
        a(f"s_cmp_lt_i32 s{CNT}, 1")
        a("s_cbranch_scc1 L_oexit")
        a(f"s_sleep {OPT['osleep']}")
        for i in range(8):
            a(f"s_bitcmp1_b32 s{PEND}, {i}")
            a(f"s_cbranch_scc0 L_ol{i}")
            a(oload(i))
            a.label(f"L_ol{i}")
        a("s_waitcnt vmcnt(0)")
        for i in range(8):
            o = OFB_ + 4*i
            a(f"s_bitcmp1_b32 s{PEND}, {i}")
            a(f"s_cbranch_scc0 L_oc{i}")
            test(a, o)
            a(f"s_cbranch_vccnz L_oc{i}")
            for ct in range(2): mfma(a, ACC+16*ct, WB[2*i+ct], o, ACC+16*ct)
            a(f"s_bitset0_b32 s{PEND}, {i}")
            a.label(f"L_oc{i}")
        a(f"s_cmp_lg_u32 s{PEND}, 0")
        a("s_cbranch_scc1 L_oretry")
        a.label("L_oexit")
        a.nop(10)
        a("s_branch L_odone")
    SPINS.append(retry)
    stamp(a, 9)
    for p in range(1, 4):
        for q in range(2): a(f"ds_write_b128 v{12+p}, {vr(ACC+8*p+4*q,4)} offset:{(p-1)*2048+q*1024}")
    a("s_waitcnt lgkmcnt(0)")
    a("s_barrier")
    for src in range(3):
        for q in range(2): a(f"ds_read_b128 {vr(64+8*src+4*q,4)}, v{RR} offset:{src*2048+q*1024}")
    a("s_waitcnt lgkmcnt(4)")
    for j in range(0, 8, 2): a(f"v_pk_add_f32 {vr(64+j,2)}, {vr(64+j,2)}, {vr(ACC+j,2)}")
    a("s_waitcnt lgkmcnt(0)")
    for j in range(0, 8, 2): a(f"v_pk_add_f32 {vr(72+j,2)}, {vr(72+j,2)}, {vr(80+j,2)}")
    for j in range(0, 8, 2): a(f"v_pk_add_f32 {vr(64+j,2)}, {vr(64+j,2)}, {vr(72+j,2)}")
    for q in range(4): a(f"v_cvt_pk_bf16_f32 v{20+q}, v{64+2*q}, v{64+2*q+1}")
    a("v_permlane32_swap_b32 v20, v22")
    a("v_permlane32_swap_b32 v21, v23")
    a(f"buffer_store_dwordx4 v[20:23], v{OUTA}, s[24:27], {S.OUTOFF} offen{OPT['outsc']}")
    a(f"s_or_b32 s{TA}, s2, s{W}")
    a(f"s_cmp_lg_u32 s{TA}, 0")
    a("s_cbranch_scc1 L_noE")
    a(f"v_mov_b32 v24, s{TAG}")
    a("s_mov_b64 exec, 1")
    a(f"buffer_store_dword v24, v3, s[32:35], 0 offen offset:{WS_E}")
    a("s_mov_b64 exec, -1")
    a.label("L_noE")
    flush_stamps(a)

def tables():
    t = ".p2align 8\nL_vtab:\n"
    for w in range(8):
        for r, fn in vtab():
            for l in range(0, 64, 2):
                t += ".long " + ",".join(str(x) for x in fn(w, l) + fn(w, l+1)) + "\n"
    t += ".set b, 0\n.rept 256\n.set w, 0\n.rept 8\n"
    for n, e in stab(): t += f".long {e}\n"
    t += ".set w, w+1\n.endr\n.set b, b+1\n.endr\n"
    return t

def main(out):
    hdr = open("cdna_kernels/" + NAME + ".s.ref").read().split("; Override launch")[0]
    txt = hdr + "; @launch grid=(256,1,1) block=(512,1,1) lds=163840\n"
    txt += '.amdgcn_target "amdgcn-amd-amdhsa--gfx950"\n.text\n'
    nm = NAME + "_kernel"
    a = Asm()
    a.label(nm)
    phase1(a)
    rare = phase2(a)
    phase3(a)
    a.label("L_end")
    a("s_endpgm")
    for sp in SPINS: sp(a)
    rare(a)
    a.label("L_code_end")
    a("s_endpgm")
    a.lines, added = autonop(a.lines)
    errs = check(a.lines, nm)
    bare, skipping = [], None
    for l in a.lines:
        if skipping:
            if l.startswith(skipping + ":"): skipping = None
            continue
        bare.append(l)
        if "s_cbranch_scc0 L_skip_" in l or "s_cbranch_scc1 L_skip_" in l: skipping = l.split()[-1]
    errs += check(bare, nm + "(optional blocks skipped)")
    txt += f".globl {nm}\n.p2align 8\n.type {nm},@function\n" + a.text()
    txt += f""".section .rodata,"a"
.p2align 6
.amdhsa_kernel {nm}
  .amdhsa_next_free_vgpr 256
  .amdhsa_next_free_sgpr 102
  .amdhsa_accum_offset 256
  .amdhsa_group_segment_fixed_size 0
  .amdhsa_kernarg_size 88
  .amdhsa_user_sgpr_count 2
  .amdhsa_user_sgpr_kernarg_segment_ptr 1
  .amdhsa_system_sgpr_workgroup_id_x 1
.end_amdhsa_kernel
""" + tables()
    open(out, "w").write(txt)
    for e in errs: print("HAZARD", e)
    print("written", out, len(txt), "bytes;", len(errs), "hazards;", added, "auto nops")

if __name__ == "__main__":
    if "--stamps" in sys.argv:
        STAMPS = True; sys.argv.remove("--stamps")
    for x in list(sys.argv):
        if x.startswith("--o:"):
            k, v = x[4:].split("=", 1)
            assert k in OPT, k
            OPT[k] = eval(v); sys.argv.remove(x)
    main(sys.argv[1] if len(sys.argv) > 1 else "cdna_kernels/" + NAME + ".s")
```

```python
import re

class Asm:
    def __init__(self):
        self.lines = []
        self.vm = []
    def __call__(self, s):
        for ln in s.split("\n"):
            ln = ln.strip()
            if ln:
                self.lines.append("    " + ln)
                ev = getattr(self, "every", None)
                if ev and ev[2] and ln.startswith("v_"):
                    ev[1] += 1
                    if ev[1] % ev[0] == 1 or ev[0] == 1:
                        ev[2].pop(0)()
    def label(self, l):
        self.lines.append(l + ":")
    def raw(self, s):
        self.lines.append(s)
    def c(self, s):
        self.lines.append("    ; " + s)
    def nop(self, n):
        while n > 0:
            k = min(n, 16)
            self(f"s_nop {k-1}")
            n -= k
    def vmem(self, s, tag):
        self(s); self.vm.append(tag)
    def wait_vm(self, *tags, extra=""):
        last = max(i for i, t in enumerate(self.vm) if t in tags)
        n = len(self.vm) - 1 - last
        assert n <= 63
        self(f"s_waitcnt vmcnt({n}) {extra}".strip())
        self.vm = self.vm[last+1:]
    def text(self):
        return "\n".join(self.lines) + "\n"

def vr(a, n=1):
    return f"v{a}" if n == 1 else f"v[{a}:{a+n-1}]"
def sr(a, n=1):
    return f"s{a}" if n == 1 else f"s[{a}:{a+n-1}]"

_reg = re.compile(r"^(-|abs\(|\|)?([vsa])(\d+|\[(\d+):(\d+)\])")
def regs_of(op):
    op = op.strip()
    op = op.lstrip("-").replace("abs(", "").replace("|", "").rstrip(")")
    if op in ("vcc",): return {("s", "vcc")}
    if op in ("exec",): return {("s", "exec")}
    if op == "m0": return {("s", "m0")}
    m = re.match(r"^([vsa])(\d+)$", op)
    if m: return {(m.group(1), int(m.group(2)))}
    m = re.match(r"^([vsa])\[(\d+):(\d+)\]$", op)
    if m: return {(m.group(1), i) for i in range(int(m.group(2)), int(m.group(3)) + 1)}
    return set()

TRANS = ("v_exp_f32", "v_rcp_f32", "v_log_f32", "v_rsq_f32", "v_sqrt_f32", "v_sin_f32", "v_cos_f32", "v_exp_f16")
def passes(op):
    if "32x32x16" in op or "32x32x32" in op: return 8
    if "16x16x32" in op or "16x16x64" in op: return 4
    raise ValueError(op)

class Ins:
    pass

def parse(line):
    s = line.split(";")[0].strip()
    if not s or s.endswith(":") or s.startswith("."): return None
    parts = s.split(None, 1)
    op = parts[0]
    rest = parts[1] if len(parts) > 1 else ""
    ops = [o.strip() for o in re.split(r",(?![^\[]*\])", rest)] if rest else []
    if ops:
        toks = ops[-1].split()
        mods = toks[1:]
        ops[-1] = toks[0] if toks else ""
    else:
        mods = []
    I = Ins(); I.op = op; I.text = s; I.mods = mods
    I.w = set(); I.r = set(); I.kind = "other"; I.srcC = set(); I.srcAB = set()
    R = [regs_of(o) for o in ops]
    base = op.replace("_e32", "").replace("_e64", "").replace("_dpp", "").replace("_sdwa", "")
    I.base = base
    I.dpp = op.endswith("_dpp") or any(m.startswith(("row_", "quad_perm")) for m in mods)
    if op.startswith("v_mfma"):
        I.kind = "mfma"; I.w = R[0]; I.srcAB = R[1] | R[2]; I.srcC = R[3]; I.r = I.srcAB | I.srcC; I.p = passes(op)
    elif op.startswith("v_smfmac"):
        I.kind = "mfma"; I.w = R[0]; I.srcAB = R[1] | R[2] | R[3]; I.srcC = R[0]; I.r = I.srcAB | I.srcC; I.p = passes(op)
    elif op.startswith("v_permlane") and "swap" in op:
        I.kind = "valu"; I.w = R[0] | R[1]; I.r = R[0] | R[1]
    elif op.startswith("v_"):
        I.kind = "valu"
        I.w = set(R[0]); srcs = R[1:]
        if base in ("v_add_co_u32", "v_sub_co_u32", "v_addc_co_u32", "v_subb_co_u32", "v_div_scale_f32"):
            I.w |= R[1]; srcs = R[2:]
        for x in srcs: I.r |= x
        if base in ("v_fmac_f32", "v_dot2c_f32_bf16", "v_pk_fmac_f16") or I.dpp or op.endswith("_sdwa"): I.r |= R[0]
        if base == "v_cndmask_b32" and len(ops) == 3: I.r |= {("s", "vcc")}
    elif op.startswith("ds_read") or op.startswith("ds_bpermute") or op.startswith("ds_swizzle"):
        I.kind = "ds"; I.w = R[0]
        for x in R[1:]: I.r |= x
    elif op.startswith("ds_"):
        I.kind = "ds"
        for x in R: I.r |= x
    elif op.startswith(("buffer_load", "global_load")):
        I.kind = "vmem"
        if "lds" in mods or "_lds_" in op:
            I.ldsdma = True
            for x in R: I.r |= x
            I.r |= {("s", "m0")}
        else:
            I.w = R[0]
            for x in R[1:]: I.r |= x
    elif op.startswith(("buffer_store", "global_store", "buffer_atomic", "global_atomic")):
        I.kind = "vmem"; I.store = True
        for x in R: I.r |= x
        if op.startswith("buffer_store"): I.sdata = R[0]
        elif op.startswith("global_store"): I.sdata = R[1]
        else: I.sdata = set()
        if "atomic" in op and "sc0" in mods: I.w = R[0]
    elif op.startswith("s_"):
        I.kind = "salu"
        if op.startswith(("s_cmp", "s_cbranch", "s_branch", "s_waitcnt", "s_nop", "s_barrier", "s_endpgm", "s_sleep", "s_setprio")):
            for x in R: I.r |= x
        else:
            if R: I.w = R[0]
            for x in R[1:]: I.r |= x
    I.ws = 1
    if op == "s_nop": I.ws = int(ops[0], 0) + 1
    return I

def check(lines, name=""):
    ins = [(n, parse(l)) for n, l in enumerate(lines)]
    ins = [(n, i) for n, i in ins if i is not None]
    errs = []
    D_RW = {2: 5, 4: 8, 8: 12, 16: 20}
    C_OV = {2: 4, 4: 6, 8: 10, 16: 18}
    C_WAR = {2: 1, 4: 3, 8: 7, 16: 15}
    def isv(s): return {x for x in s if x[0] in "va"}
    def iss(s): return {x for x in s if x[0] == "s"}
    for k, (n, c) in enumerate(ins):
        dist = 0
        for j in range(k - 1, max(-1, k - 30), -1):
            p = ins[j][1]
            need = 0; why = ""
            if p.op in ("s_branch", "s_endpgm"): break
            if p.kind == "valu":
                pw = isv(p.w); sw = iss(p.w)
                if c.kind == "mfma" and pw & c.r: need, why = 2, "valu->mfma"
                if c.kind == "valu":
                    if p.base in TRANS and c.base not in TRANS and pw & c.r: need, why = max(need, 1), "trans->valu"
                    if c.op.startswith("v_permlane") and pw & c.r: need, why = max(need, 2), "valu->permlane"
                    if c.dpp and pw & c.r: need, why = max(need, 2), "valu->dpp"
                    if c.base in ("v_readfirstlane_b32", "v_readlane_b32") and pw & c.r: need, why = max(need, 1), "valu->readlane"
                    if sw & c.r: need, why = max(need, 2), "valu sgpr->valu"
                    if (p.op.endswith("_sdwa") or any(m.startswith("op_sel") for m in p.mods)) and pw & (c.r | c.w): need, why = max(need, 1), "opsel"
                if c.kind == "vmem" and sw & c.r: need, why = max(need, 5), "valu sgpr->vmem"
                if p.base in TRANS and c.kind in ("vmem", "ds") and pw & c.r: need, why = max(need, 1), "trans->mem"
            if p.kind == "mfma":
                if c.kind == "mfma":
                    if p.w & c.srcAB: need, why = max(need, D_RW[p.p]), "mfma D->AB"
                    if p.w & c.srcC and not (p.w == c.srcC and p.p == c.p): need, why = max(need, C_OV[p.p]), "mfma D->C overlap"
                elif c.kind in ("valu", "vmem", "ds"):
                    if p.w & (c.r | c.w): need, why = max(need, D_RW[p.p]), "mfma D->rw"
                    if c.kind == "valu" and p.srcC & c.w: need, why = max(need, C_WAR[p.p]), "mfma C war"
            if p.kind == "salu" and ("s", "m0") in p.w and getattr(c, "ldsdma", False): need, why = max(need, 1), "m0->dma"
            if getattr(p, "store", False) and ("x4" in p.op or "x3" in p.op) and p.sdata & c.w:
                need, why = max(need, 2 if c.kind == "valu" else 1), "store data war"
            if need > dist:
                errs.append(f"{name} line {n}: [{why}] need {need} have {dist}:\n     {p.text}\n     {c.text}")
            dist += p.ws
            if dist >= 24: break
    return errs

def autonop(lines, maxiter=400):
    lines = list(lines)
    added = 0
    for _ in range(maxiter):
        errs = check(lines)
        if not errs: break
        m = re.match(r" line (\d+): \[.*?\] need (\d+) have (\d+)", errs[0])
        n, need, have = int(m.group(1)), int(m.group(2)), int(m.group(3))
        for e in errs:
            mm = re.match(r" line (\d+): \[.*?\] need (\d+) have (\d+)", e)
            if int(mm.group(1)) == n and int(mm.group(2)) - int(mm.group(3)) > need - have:
                need, have = int(mm.group(2)), int(mm.group(3))
        lines.insert(n, f"    s_nop {need-have-1}")
        added += 1
    return lines, added
```

```python
import sys, struct
from asmlib import *

NAME = "gated_mix__linear_kernel_hedgehog__mha_block__prompt"
WS_E, WS_F1, WS_F2, WS_GATE, WS_F4, WS_F5, WS_KVF = 0x0, 0x10000, 0x20000, 0x40000, 0x50000, 0x60000, 0x70000
WS_QB, WS_KB, WS_VB, WS_KVP, WS_OF = 0x200000, 0x400000, 0x600000, 0x800000, 0xA00000
WS_USED = 0x2100000
def f32(x): return "0x%08x" % struct.unpack("<I", struct.pack("<f", x))[0]
LOG2E = 1.4426950408889634
STAMPS = False
OPT = dict(outl=(1,2,4), bst=4, kat=(0,2), vat=(1,2), dmk=0, jk=1, lprio=1, pq=1, poff=2, p2prio=0, cnt=0, ciat=19, fb=-1, sprd=8, al=0, t0pos=0, bar0=1, gst=0, la=2, pre2=0, t0at=-2, f1g=26, zat=30, last='wb', t2at=26, tchat=5, phiat=19, ds0=(9,11,13,15,20,21,22,23), ds1={(2,0):0,(2,1):1,(3,0):2,(3,1):3,(4,0):4,(4,1):6,(5,0):8,(5,1):10,(6,0):12,(6,1):14,(7,0):16,(7,1):18}, map2d=1, pp=0, rot=4, rp=1, pos=(1, 6, 11), thr=2.0**100, cyc=0, amp=None, outsc="", fill=3, hga=4, osleep=8, cpf=1,
           rsplit=(0, 3, 5, 7), f1at=1, pollat=1, goat=4, y_skip=(),
           f2it=0, f4it=5, kvs=(0, 1), wos=(6, 7),
           sched={(0, 0): "kp", (0, 1): "tb6", (0, 2): "tb7", (1, 2): "p2", (1, 6): "ld", (2, 2): "red", (2, 4): "f5", (3, 6): "p5", (4, 0): "kv", (4, 6): "om", (4, 7): "oa0", (5, 0): "oa1",
                  (6, 6): "p4", (7, 0): "c4 la0", (7, 1): "la1", (7, 6): "la2", (7, 7): "la3"})
SC = " sc1"
POLL_LIMIT = 200000
NST = 11
SLOT = 32768
XCH, FLAG, PHIL, CNTW = 131072, 155648, 8192, 12288
R_T0, R_T0W0, R_RED, R_T1, R_T1W0, R_ANY = range(6)

W = 3
TAG, J, XOFF, WOFF, MX, MW, TY, ATT = range(36, 44)
L2E, MASK, VT = 10, 14, 46
TA, TB, TC, CNT = 4, 5, 6, 7
CP = 44
def stab():
    hA = OPT["hga"]
    d = dict(hg="(b&7)", j="(b>>3)", ty="((b>>3)&1)", rb16="(b>>4)", rb8="(b>>5)", qp="(w&3)", kh="(w>>2)", kq="(w>>1)", rt3="(w&1)")
    d["hg1"] = d["hg"]
    if OPT["map2d"]:
        d["hg1"] = "(((b&3)<<1)+((b>>4)&1))"
        d["rb16"] = "((((b>>2)&1)<<3)+(b>>5))"
    d["h"] = "(({hg}<<2)+({j}&3))".format(**d)
    d["t"] = "(({rb16}<<2)+{qp})".format(**d)
    d["hb0"] = "(({hg1}<<2)+({kh}<<1))".format(**d)
    d["ha0"] = "({hb0}^%d)".format(**d) % (hA*4)
    d["hr"] = "(((({h}+w)-1)&31)^%d)".format(**d) % (hA*4)
    d["T"] = "((({rb8}<<3)+({qp}<<1))+{kh})".format(**d)
    d["T3"] = "(((({rb8}<<2)+({hg}>>1))<<1)+{rt3})".format(**d)
    d["cb"] = "(((b&1)<<2)+({j}&3))".format(**d)
    d["lds0"] = "(({kh}<<15)+({qp}<<10))".format(**d)
    d["w0"] = "(((w-1)>>8)&1)"
    d["w12"] = "((((w-3)>>8)&1)-{w0})".format(**d)
    E = [
     ("F1OFF", "(%d+(((({hg1}<<5)+({rb16}<<1))+{ty})<<7))" % WS_F1),
     ("F1POLL", "(%d+({hg}<<12))" % WS_F1),
     ("F2OFF", "(%d+((({hg1}<<4)+{rb16})<<7))" % WS_F2),
     ("F2POLL", "(%d+({hg}<<11))" % WS_F2),
     ("VOFF", "((%d+({hb0}<<16))+({t}<<10))" % WS_VB),
     ("QK0", "(((%d+({ty}*%d))+({hb0}<<16))+({t}<<10))" % (WS_QB, WS_KB-WS_QB)),
     ("LDS0", "{lds0}"),
     ("KOFF", "((%d+({h}<<16))+{lds0})" % WS_KB),
     ("K0OFF", "(%d+({h}<<16))" % WS_KB),
     ("QOFF1", "((%d+({h}<<16))+({T}<<10))" % WS_QB),
     ("QOFF0", "((%d+({h}<<16))+(({T}^1)<<10))" % WS_QB),
     ("ROLE", "(((1-{ty})*((%d+({w0}*%d))+({w12}*%d)))+({ty}*(%d+({w0}*%d))))" % ((1 << R_T0) | (1 << R_ANY), 1 << R_T0W0, 1 << R_RED, (1 << R_T1) | (1 << R_ANY), 1 << R_T1W0)),
     ("KVPOFF", "(%d+(((({ha0}+({qp}>>1))<<4)+{rb16})<<12))" % WS_KVP),
     ("OFB", "((%d+({T}<<16))+({h}<<10))" % (WS_OF+32768)),
     ("OF3", "((%d+({T3}<<16))+({kq}<<13))" % WS_OF),
     ("OF3B", "((%d+({T3}<<16))+({kq}<<13))" % (WS_OF+4096)),
     ("OUTOFF", "((({T3}<<15)+({cb}<<7))+({kq}<<5))"),
     ("WOOFF", "(((({kh}<<4)+{qp})<<13)+({cb}<<7))"),
     ("F4POLL", "(%d+({rb8}<<11))" % WS_F4),
     ("F4OFF", "(%d+((({rb16}<<3)+{hg1})<<7))" % WS_F4),
     ("OWN1", "(4294967295-((((({hg}^{hg1})-1)>>8)&1)<<(({rb16}<<1)+{ty})))"),
     ("GATE3", "(%d+({T3}<<7))" % WS_GATE),
     ("GATET", "(%d+({T}<<7))" % WS_GATE),
     ("GROW", "(((({rb16}<<7)+({hg1}<<4))+(w<<1))<<10)"),
     ("GOFF", "(%d+(((({rb16}<<7)+({hg1}<<4))+(w<<1))<<2))" % WS_GATE),
     ("PHIOFF", "((({hg1}^%d)<<11)+({rt3}<<10))" % hA),
     ("LDK", "((%d+({hr}<<16))+({rb8}<<8))" % WS_KVP),
     ("KVFW", "((((%d+({hr}<<11))+(({rb8}>>2)*544))+(({rb8}&1)*272))+(({rb8}&2)<<2))" % WS_KVF),
     ("F5OFF", "((%d+({hr}<<10))+({rb8}<<7))" % WS_F5),
     ("F5POLL", "(%d+({ha0}<<10))" % WS_F5),
     ("KVFR", "(%d+({ha0}<<11))" % WS_KVF),
     ("OAOFF", "((%d+({t}<<16))+({ha0}<<10))" % WS_OF),
    ]
    assert len(E) == 32
    return [(n, e.format(**d)) for n, e in E]
SR = {n: 48 + i for i, (n, _) in enumerate(stab())}
class _S:
    def __getattr__(self, n): return f"s{SR[n]}"
S = _S()

Q = [8, 12]; C = [16, 32]; S4 = [[48, 200], [64, 216]]; O = [80, 96]
KB_ = [112, 116]; VA = [120, 128]; VBB = [124, 132]
IDX, VK, VV, VL8, VWO, XW, XR, TR0, TR1, RR, OUTA, G4 = range(136, 148)
GV, M1, M2 = 148, 150, 151
VP0, VP1 = 0, 2
SCR, PHI = 152, 232
VXR, VWR, PHIA, VXD, VWD, BSEL = 8, 16, 18, 20, 22, 56
KO, VO, REDW, REDR, KVP0, KVP1, ONES = 24, 25, 26, 27, 28, 29, 30
def vtab():
    def trc(l): return ((l >> 2) & 3)*128 + ((l >> 4) & 1)*32 + (l & 3)*8
    def g0(w, l):
        r, hf = l & 31, l >> 5
        return [(w & 3)*4096 + r*128 + (((2*st + hf) ^ ((r >> 1) & 7))*16) for st in range(4)]
    def g2(w, l):
        hf = l >> 5
        v = trc(l) + (((w >> 2) ^ ((l >> 3) & 1))*64)
        return [16384 + hf*2048 + v, 16384 + hf*2048 + v + 2*SLOT, PHIL + (w >> 2)*1024 + (4*hf + ((l >> 2) & 3))*32 + (l & 3)*8, 131072 + hf*1024 + v]
    def g3(w, l):
        pi = (l & 0x33) | (((l >> 2) & 1) << 3) | (((l >> 3) & 1) << 2)
        return [pi*16, ((l >> 4) & 1)*65536 + (l >> 5)*256 + (l & 15)*16,
                (w >> 1)*32768 + 8192 + (w & 1)*8192 + l*16, (w >> 2)*65536 + 8192 + (w & 3)*2048 + l*16]
    def g4(w, l):
        own = ((l >> 4) & 1) == ((w >> 1) & 1); q0 = 2*(w & 1); hf = l >> 5
        k = [q*512 + hf*256 + (l & 15)*16 if own else 2048 + q*32 + hf*16 for q in (q0, q0+1)]
        one = 0x3f803f80 if (l & 27) == 16 else 0
        return k + [one, one]
    def bsel(sg):
        def g(w, l):
            t = (l & 31) - 4*(l >> 5) - 16*sg
            T = lambda j: 8*(j//4) + j % 4
            return [(0x3f80 if t == T(2*q) else 0) | (0x3f800000 if t == T(2*q+1) else 0) for q in range(4)]
        return g
    def tr0(w, l): return (w >> 1)*32768 + (((l >> 5)*512 + ((l >> 3) & 1)*64 + trc(l)) ^ ((w >> 1)*32))
    def g8(w, l): return [(l >> 3)*1024 + (((l & 7) ^ ((l >> 2) & 4))*16), XCH + w*3072 + l*16, XCH + (w ^ 4)*3072 + l*16, tr0(w, l)]
    def g9(w, l): return [tr0(w, l) ^ 64, (w >> 1)*32768 + (w & 1)*8192 + l*16, (l & 31)*1024 + (l >> 5)*16, (l & 31)*4]
    return [(8, g0), (16, g2), (24, g3), (28, g4), (56, bsel(0)), (60, bsel(1)), (140, g8), (144, g9)]
NG = len(vtab())

def mfma(a, d, A, B, Cc):
    a(f"v_mfma_f32_32x32x16_bf16 {vr(d,16)}, {vr(A,4)}, {vr(B,4)}, {Cc if isinstance(Cc,str) else vr(Cc,16)}")
def smfmac(a, d, A, B, idx):
    a(f"v_smfmac_f32_32x32x32_bf16 {vr(d,16)}, {vr(A,4)}, {vr(B,8)}, v{idx}")
def stamp(a, j, g=False):
    if OPT["gst"] and not g and j not in (0, 1, NST-1): return
    if STAMPS: a(f"s_mem{'' if OPT['cyc'] else 'real'}time s[{80+2*j}:{81+2*j}]")
def flush_stamps(a):
    if not STAMPS: return
    a("s_waitcnt vmcnt(0)")
    stamp(a, NST-1)
    a("s_waitcnt lgkmcnt(0)")
    if OPT["amp"]:
        j0, j1 = OPT["amp"]
        a(f"s_or_b32 s7, s2, s{W}")
        a("s_cmp_lg_u32 s7, 0")
        a("s_cbranch_scc1 L_end")
        a(f"s_sub_u32 s7, s{80+2*j1}, s{80+2*j0}")
        a("s_lshl_b32 s7, s7, 4")
        a.label("L_amp")
        a("s_memrealtime s[4:5]")
        a("s_waitcnt lgkmcnt(0)")
        a(f"s_sub_u32 s6, s4, s{80+2*(NST-1)}")
        a("s_cmp_lt_u32 s6, s7")
        a("s_cbranch_scc1 L_amp")
        return
    a("s_lshl_b32 s7, s2, 3")
    a(f"s_add_u32 s7, s7, s{W}")
    a("s_lshl_b32 s7, s7, 6")
    a(f"s_add_u32 s7, s7, {0x2000000}")
    a("s_mov_b64 exec, 1")
    a("v_mov_b32 v1, 0")
    for j in range(NST):
        a(f"v_mov_b32 v2, s{80+2*j}")
        a(f"buffer_store_dword v2, v1, s[32:35], s7 offen offset:{4*j}")
def pub(a, soff):
    a(f"v_mov_b32 v4, s{TAG}")
    a("s_mov_b64 exec, 1")
    a(f"buffer_store_dword v4, v3, s[32:35], {soff} offen{SC}")
    a("s_mov_b64 exec, -1")
def poll(a, lab, vaddr, vdst, soff, landed=False, own=None):
    a(f"s_mov_b32 s{CNT}, {POLL_LIMIT}")
    a(f"s_branch {lab}_{'cmp' if landed else 'chk'}")
    a.label(lab)
    a(f"buffer_load_dword v{vdst}, v{vaddr}, s[32:35], {soff} offen{SC}")
    a.label(lab + "_chk")
    a("s_waitcnt vmcnt(0)")
    a.label(lab + "_cmp")
    a(f"v_cmp_ne_u32 s[{CP}:{CP+1}], s{TAG}, v{vdst}")
    a(f"s_sub_u32 s{CNT}, s{CNT}, 1")
    a(f"s_or_b32 s{CP}, s{CP}, s{CP+1}")
    if own is not None: a(f"s_and_b32 s{CP}, s{CP}, {own}")
    a(f"s_cbranch_scc0 {lab}_ok")
    a(f"s_cmp_eq_u32 s{CNT}, 0")
    a(f"s_cbranch_scc1 {lab}_ok")
    a("s_sleep 1")
    a(f"s_branch {lab}")
    a.label(lab + "_ok")
SPINS = []
def check_flags(a, lab, mask, vdst, soff):
    a(f"v_cmp_ne_u32 vcc, s{TAG}, v{vdst}")
    a("s_nop 1")
    a(f"s_cbranch_vccnz {lab}_spin")
    a.label(f"{lab}_back")
    def spin(a):
        a.label(f"{lab}_spin")
        a(f"v_and_b32 v6, {mask}, v{VL8}")
        poll(a, lab, 6, vdst, soff, landed=True)
        a(f"s_branch {lab}_back")
    SPINS.append(spin)

class Fill:
    def __init__(self): self.g = []
    def __call__(self, *lines, after=0): self.g.append((after, list(lines)))
    def pop(self, a, n, g):
        while n > 0 and self.g and self.g[0][0] <= g:
            _, ls = self.g.pop(0)
            for l in ls:
                if isinstance(l, tuple): a.vmem(*l)
                elif callable(l): l(a)
                else: a(l)
            n -= len(ls)

def gate(a):
    X, Wt, t = 96, 104, 56
    for q in range(8):
        u = t + 4*(q & 1)
        a(f"v_lshlrev_b32 v{u}, 16, v{X+q}")
        a(f"v_lshlrev_b32 v{u+2}, 16, v{Wt+q}")
        a(f"v_and_b32 v{u+1}, 0xffff0000, v{X+q}")
        a(f"v_and_b32 v{u+3}, 0xffff0000, v{Wt+q}")
        a(f"v_pk_mul_f32 {vr(u,2)}, {vr(u,2)}, {vr(u+2,2)}")
        a(f"v_cvt_pk_bf16_f32 v{u+2}, v{u}, v{u+1}")
        d = 52 if q == 0 else u
        a(f"v_lshlrev_b32 v{d}, 16, v{u+2}")
        a(f"v_and_b32 v{d+1}, 0xffff0000, v{u+2}")
        if q: a(f"v_pk_add_f32 v[52:53], v[52:53], {vr(u,2)}")
    s = 52
    a(f"v_add_f32 v{s}, v{s}, v{s+1}")
    a(f"v_mov_b32 v{s+1}, v{s}")
    a("v_lshrrev_b32 v6, 3, v1")
    a(f"v_permlane16_swap_b32 v{s}, v{s+1}")
    a(f"v_add_f32 v{s}, v{s}, v{s+1}")
    for r in (8, 4, 2, 1):
        a(f"v_add_f32_dpp v{s}, v{s}, v{s} row_ror:{r} row_mask:0xf bank_mask:0xf")
    a(f"v_cvt_pk_bf16_f32 v{s}, v{s}, v{s}")
    a(f"v_lshlrev_b32 v{s}, 16, v{s}")
    a(f"v_mul_f32 v{s}, {f32(-LOG2E)}, v{s}")
    a(f"v_exp_f32 v{s}, v{s}")
    a(f"v_add_f32 v{s}, 1.0, v{s}")
    a(f"v_rcp_f32 v{s}, v{s}")
    a(f"v_cvt_pk_bf16_f32 v{s}, v{s}, v{s}")
    a(f"v_lshlrev_b32 v{s}, 16, v{s}")

def maxtree(a, dst, src, first):
    if first:
        a(f"v_max3_f32 v{dst}, v{src}, v{src+1}, v{src+2}")
        for j in range(3, 15, 2): a(f"v_max3_f32 v{dst}, v{dst}, v{src+j}, v{src+j+1}")
        a(f"v_max_f32 v{dst}, v{dst}, v{src+15}")
    else:
        for j in range(0, 16, 2): a(f"v_max3_f32 v{dst}, v{dst}, v{src+j}, v{src+j+1}")
def kv_dma(a, rr, kind):
    a(f"s_add_u32 m0, {S.LDS0}, {kind*65536+rr*4096}")
    a(f"s_add_u32 s{TA}, {S.KOFF}, {kind*(WS_VB-WS_KB)+rr*4096}")
    a.vmem(f"buffer_load_dwordx4 v3, s[32:35], s{TA} offen{SC} lds", f"r{rr}")
def wo_dma(a, rr, kind):
    a(f"s_add_u32 m0, {S.LDS0}, {kind*65536+rr*4096}")
    a(f"s_add_u32 s{TA}, {S.WOOFF}, {kind*262144+(rr&3)*32768}")
    R = 16 if rr < 4 else 20
    a.vmem(f"buffer_load_dwordx4 v{VWO}, s[{R}:{R+3}], s{TA} offen lds", f"w{rr}")

def phase1(a):
    ACC = [64, 80, 96]
    a("s_cmp_ge_u32 s2, 256")
    a("s_cbranch_scc1 L_end")
    stamp(a, 0)
    a("s_load_dwordx4 s[4:7], s[0:1], 0")
    a("s_load_dwordx2 s[10:11], s[0:1], 40")
    a("s_load_dwordx2 s[32:33], s[0:1], 80")
    a("s_load_dwordx2 s[8:9], s[0:1], 16")
    a("s_load_dwordx2 s[12:13], s[0:1], 56")
    a(f"s_getpc_b64 s[{VT}:{VT+1}]")
    a.label("L_pc")
    a("v_lshrrev_b32 v2, 6, v0")
    a("v_and_b32 v1, 63, v0")
    a(f"s_lshr_b32 s{J}, s2, 3")
    a(f"v_readfirstlane_b32 s{W}, v2")
    a("v_lshlrev_b32 v3, 4, v1")
    a(f"s_mov_b64 s[14:15], s[{VT}:{VT+1}]")
    a(f"s_add_u32 s{VT}, s{VT}, L_vtab-L_pc")
    a(f"s_addc_u32 s{VT+1}, s{VT+1}, L_vtab@rel32@hi+12")
    def cpf_addr():
        a(f"s_and_b32 s44, s{J}, 15")
        a("s_lshl_b32 s44, s44, 13")
        a("s_sub_u32 s45, s44, 32768")
        a("s_cselect_b32 s44, s44, s45")
        a(f"s_cselect_b64 s[34:35], s[14:15], s[{VT}:{VT+1}]")
        a(f"s_cselect_b32 s45, L_code_end-L_pc-16, -1")
        a("v_lshl_add_u32 v24, v0, 4, s44")
        a("v_min_u32 v24, s45, v24")
    def cpf():
        a.vmem("global_load_dwordx4 v[112:115], v24, s[34:35]", "x")
    def t0():
        a.vmem(f"global_load_dwordx4 v[8:11], v23, s[{VT}:{VT+1}]", "t0")
        a.vmem(f"global_load_dwordx4 v[16:19], v23, s[{VT}:{VT+1}] offset:1024", "t0")
    if OPT["cpf"]: cpf_addr()
    if OPT["cpf"] == 1: cpf()
    a(f"v_mul_u32_u24 v23, {NG*1024}, v2")
    a("v_add_u32 v23, v23, v3")
    if OPT["t0pos"] == 0: t0()
    a("v_lshrrev_b32 v7, 3, v1")
    a("v_and_b32 v4, 7, v1")
    a("v_lshrrev_b32 v5, 1, v7")
    a("v_xor_b32 v6, v4, v5")
    a("v_lshlrev_b32 v6, 4, v6")
    a(f"v_lshl_add_u32 v{VXD}, v7, 10, v6")
    a(f"v_xor_b32 v{VXD+1}, 64, v{VXD}")
    a(f"v_add_u32 v{VXD+1}, {8192-1024}, v{VXD+1}")
    a("v_lshrrev_b32 v6, 2, v1")
    a("v_and_b32 v6, 4, v6")
    a("v_xor_b32 v6, v4, v6")
    a("v_mul_u32_u24 v7, 3072, v7")
    a(f"v_lshl_add_u32 v{VWD}, v6, 4, v7")
    a(f"s_and_b32 s{TY}, s{J}, 1")
    if OPT["map2d"]:
        a(f"s_lshr_b32 s{XOFF}, s2, 5")
        a("s_and_b32 s44, s2, 4")
        a(f"s_lshl1_add_u32 s{XOFF}, s44, s{XOFF}")
    else:
        a(f"s_lshr_b32 s{XOFF}, s2, 4")
    if OPT["rot"] == 4:
        a(f"s_lshl1_add_u32 s{J}, s{J}, s{XOFF}")
    elif OPT["rot"] == 5:
        a(f"s_lshl1_add_u32 s{J}, s{J}, s{XOFF}")
        a(f"s_add_u32 s{J}, s{J}, s2")
    elif OPT["rot"] >= 1:
        a(f"s_lshl2_add_u32 s{J}, s{TY}, s{XOFF}")
    if OPT["rot"] == 2: a(f"s_add_u32 s{J}, s{J}, s2")
    if OPT["rot"] == 3:
        a("s_lshl_b32 s44, s2, 1")
        a(f"s_add_u32 s{J}, s{J}, s44")
    a(f"s_lshl3_add_u32 s{XOFF}, s{XOFF}, s{W}")
    a(f"s_lshl_b32 s{XOFF}, s{XOFF}, 14")
    a(f"s_mul_i32 s{WOFF}, s{W}, 24576")
    a(f"s_lshl_b32 s{MX}, s{W}, 11")
    a(f"s_lshl_b32 s{MW}, s{W}, 10")
    if OPT["map2d"]:
        a("s_and_b32 s44, s2, 3")
        a("s_bfe_u32 s45, s2, 0x10004")
        a("s_lshl1_add_u32 s44, s44, s45")
    else:
        a("s_and_b32 s44, s2, 7")
    a("s_lshl_b32 s44, s44, 7")
    a(f"s_xor_b32 s45, s44, {OPT['hga']*128}")
    a(f"s_lshl_b32 s14, s{TY}, 10")
    a("s_add_u32 s15, s14, s44")
    a("s_sub_u32 s14, s45, s14")
    a("s_add_u32 s14, s14, 1024")
    a(f"s_cmp_eq_u32 s{TY}, 0")
    a("s_cselect_b32 s44, s45, s44")
    a("s_add_u32 s44, s44, 1024")
    a("s_sub_u32 s22, 0x180000, s14")
    a("s_sub_u32 s26, 0x180000, s44")
    a("s_sub_u32 s30, 0x180000, s15")
    a("s_mov_b32 s23, 0x00020000")
    a("s_mov_b32 s27, 0x00020000")
    a("s_mov_b32 s31, 0x00020000")
    a("s_mov_b32 s18, 0x200000")
    a("s_mov_b32 s19, 0x00020000")
    a(f"s_cmp_eq_u32 s{TY}, 0")
    a("s_waitcnt lgkmcnt(0)")
    a("s_cselect_b64 s[24:25], s[6:7], s[10:11]")
    a("s_mov_b64 s[16:17], s[4:5]")
    a("s_add_u32 s20, s6, s14")
    a("s_addc_u32 s21, s7, 0")
    a("s_add_u32 s24, s24, s44")
    a("s_addc_u32 s25, s25, 0")
    a("s_add_u32 s28, s10, s15")
    a("s_addc_u32 s29, s11, 0")
    def dma_part(c, p):
        sl = (c & 3) * SLOT
        if p == 0:
            a(f"s_add_u32 m0, s{MX}, {sl}")
            a(f"s_add_u32 s{TA}, s{J}, {c}")
            a(f"s_and_b32 s{TA}, s{TA}, 7")
            a(f"s_lshl_b32 s{TB}, s{TA}, 7")
            a(f"s_add_u32 s{TB}, s{TB}, s{XOFF}")
            a.vmem(f"buffer_load_dwordx4 v{VXD}, s[16:19], s{TB} offen lds", f"c{c}")
            a.vmem(f"buffer_load_dwordx4 v{VXD+1}, s[16:19], s{TB} offen offset:1024 lds", f"c{c}")
        else:
            a(f"s_add_u32 m0, s{MX}, {sl+16384}")
            a(f"s_mul_i32 s{TC}, s{TA}, 196608")
            a(f"s_add_u32 s{TC}, s{TC}, s{WOFF}")
            a.vmem(f"buffer_load_dwordx4 v{VWD}, s[28:31], s{TC} offen lds", f"c{c}")
            a.vmem(f"buffer_load_dwordx4 v{VWD}, s[24:27], s{TC} offen offset:1024 lds", f"c{c}")
    W0L = [131072 + c*8192 for c in range(4)] + [16384, 24576, 49152, 57344]
    def dma_w0(c):
        a(f"s_add_u32 m0, s{MW}, {W0L[c]}")
        a(f"s_add_u32 s{TB}, s{J}, {c}")
        a(f"s_and_b32 s{TB}, s{TB}, 7")
        a(f"s_mul_i32 s{TB}, s{TB}, 196608")
        a(f"s_add_u32 s{TB}, s{TB}, s{WOFF}")
        a.vmem(f"buffer_load_dwordx4 v{VWD}, s[20:23], s{TB} offen lds", "wa" if c < 4 else "wb")
    def dma(c):
        for p in range(2): dma_part(c, p)
    dma(0)
    if OPT["t0pos"] == 1: t0()
    if OPT["cpf"] == 2: cpf()
    a(f"s_load_dword s{TAG}, s[32:33], {WS_E}")
    a(f"s_lshl3_add_u32 s44, s2, s{W}")
    a("s_lshl_b32 s44, s44, 7")
    a(f"s_add_u32 s44, s44, {8*NG*1024}")
    a(f"s_load_dwordx16 s[48:63], s[{VT}:{VT+1}], s44")
    a(f"s_load_dwordx16 s[64:79], s[{VT}:{VT+1}], s44 offset:64")
    if OPT["bar0"]: a("s_barrier")
    dma(1)
    if OPT["cpf"] == 3: cpf()
    a(f"s_mov_b32 s34, {WS_USED}")
    a("s_mov_b32 s35, 0x00020000")
    a(f"s_mov_b32 s{MASK}, 0x0000ffff")
    a(f"s_mov_b32 s{MASK+1}, 0x0000ffff")
    a(f"s_mov_b32 s{L2E}, {f32(LOG2E)}")
    a(f"s_mov_b32 s{L2E+1}, {f32(0.25*LOG2E)}")
    a(f"s_mov_b32 s{ATT}, 0")
    if OPT["pre2"]: dma(2)
    XB = 120
    LA = OPT["la"]; NB = LA + 1
    def tl(k):
        r = vtab()[k][0]
        return f"global_load_dwordx4 {vr(r,4)}, v7, s[{VT}:{VT+1}] offset:{(k-4)*1024}"
    def rd(g):
        if g >= 32:
            g -= 32
            c, st = g >> 2, g & 3
            f = w0reg(g)
            ad, o = (19, W0L[c] - 131072) if c < 4 else (5, W0L[c] - 16384)
            return [f"ds_read_b64_tr_b16 {vr(f,2)}, v{ad} offset:{o+st*2048}", f"ds_read_b64_tr_b16 {vr(f+2,2)}, v{ad} offset:{o+st*2048+512}"]
        c, st = g >> 2, g & 3
        sl = c & 3
        fr = 32 + 8*(g % NB)
        L = [f"ds_read_b128 {vr(XB+4*g,4)}, v{VXR+4*(sl>>1)+st} offset:{(sl&1)*SLOT}"]
        for s in range(2):
            o = st*4096 + s*1024 + (sl & 1)*SLOT
            L.append(f"ds_read_b64_tr_b16 {vr(fr+4*s,2)}, v{VWR+(sl>>1)} offset:{o}")
            L.append(f"ds_read_b64_tr_b16 {vr(fr+2+4*s,2)}, v{VWR+(sl>>1)} offset:{o+512}")
        return L
    def w0reg(g): return [112, 116, 248, 252][g] if g < 4 else XB + 4*(g-4)
    EX = {}
    def ex(g, fn): EX.setdefault(g, []).append(fn)
    ex(0, lambda: [a(f"v_add_u32 v{VXR+4+st}, {2*SLOT}, v{VXR+st}") for st in range(4)])
    ex(0, lambda: a("v_add_u32 v7, 4096, v23"))
    sched1 = OPT["ds1"]
    for (c, p), g in sched1.items(): ex(g, (lambda c=c, p=p: dma_part(c, p)))
    for c, g in enumerate(OPT["ds0"]): ex(g, (lambda c=c: dma_w0(c)))
    def phi_dma():
        a(f"s_and_b32 s{TB}, {S.PHIOFF}, 1024")
        a(f"s_add_u32 m0, s{TB}, {PHIL}")
        a(f"v_add_u32 v6, {S.PHIOFF}, v3")
        a.vmem("global_load_lds_dwordx4 v6, s[8:9]", "wb")
    ex(OPT["phiat"], phi_dma)
    ex(OPT["t2at"], lambda: a.vmem(tl(2), "t2"))
    def touch():
        a(f"v_add_u32 v6, {S.PHIOFF}, v3")
        a.vmem("global_load_dword v4, v6, s[8:9]", "x")
        a.vmem("global_load_dword v0, v3, s[12:13]", "x")
    if OPT["tchat"] >= 0: ex(OPT["tchat"], touch)
    def touch0():
        a(f"s_lshr_b32 s{TB}, s2, 5")
        a(f"s_mul_i32 s{TB}, s{TB}, 196608")
        a(f"s_add_u32 s{TB}, s{TB}, s{WOFF}")
        a.vmem(f"buffer_load_dword v2, v{VWD}, s[20:23], s{TB} offen", "x")
    if OPT["t0at"] == -1: touch0()
    elif OPT["t0at"] >= 0: ex(OPT["t0at"], touch0)
    def zst():
        a("v_mov_b64 v[8:9], -1")
        a("v_mov_b64 v[10:11], -1")
        a.vmem(f"buffer_store_dwordx4 v[8:11], v3, s[32:35], {S.OFB} offen{SC}", "st")
    ex(OPT["zat"], zst)
    def cinit():
        a(f"s_mov_b32 m0, {CNTW}")
        a("s_mov_b32 s7, 0x200000")
        a.vmem("buffer_load_dword v3, s[16:19], s7 offen lds", "wb")
    if OPT["cnt"]: ex(OPT["ciat"], cinit)
    ex(OPT["t2at"] - 2, lambda: a.vmem(tl(3), "t2"))
    ex(OPT["t2at"] + 1, lambda: a.vmem(tl(4), "t3"))
    ex(OPT["t2at"] + 2, lambda: a.vmem(tl(5), "t3"))
    assert LA == 2
    ex(OPT["phiat"] + 1, lambda: a(f"v_subrev_u32 v5, {131072-16384}, v19"))
    a.wait_vm("c0", "t0", extra="lgkmcnt(0)")
    a("s_barrier")
    stamp(a, 1)
    for g in range(LA):
        for l in rd(g): a(l)
    nowait = 0
    for g in range(32):
        c, st = g >> 2, g & 3
        if st == 4 - LA:
            a.wait_vm(f"c{c+1}" if c < 7 else OPT["last"], extra="lgkmcnt(0)")
            a("s_barrier")
            if OPT["gst"] == 1 and c < 7: stamp(a, 2+c, True)
            if c == 0: a(f"s_add_u32 s{TAG}, s{TAG}, 0x9e3779b1")
            nowait = LA - 1
        elif nowait: nowait -= 1
        else: a(f"s_waitcnt lgkmcnt({5*(LA-1)})")
        R = rd(g + LA)
        if g == 31:
            for k in range(LA, 4): R += rd(32 + k)
        fr = 32 + 8*(g % NB); x = XB + 4*g
        if OPT["al"]: a.raw(".p2align 3")
        mfma(a, ACC[2], fr, x, "0" if g == 0 else ACC[2])
        for l in R[:3]: a(l)
        mfma(a, ACC[1], x, fr+4, "0" if g == 0 else ACC[1])
        for l in R[3:]: a(l)
        for fn in EX.get(g, []): fn()
    stamp(a, 2)
    if OPT["gst"] == 1: stamp(a, 9, True)
    def st2(j):
        if OPT["gst"] == 2: stamp(a, j, True)
    st2(2)
    if OPT["gst"] == 3: stamp(a, 2, True)
    E2 = range(2)
    PH = [160, 176]; EP = [64, 80]; T = [200, 204]
    def f1(half=None):
        tag = "" if half is None else "ab"[half]
        if half is not None:
            a(f"s_bitcmp1_b32 s{W}, 2")
            a(f"s_cbranch_scc{1-half} L_skip_f1{tag}")
        if OPT["cnt"]:
            a(f"v_mov_b32 v6, {CNTW}")
            a("v_mov_b32 v4, 1")
            a("s_waitcnt vmcnt(0)")
            a("s_mov_b64 exec, 1")
            a("ds_add_rtn_u32 v4, v6, v4")
            a("s_mov_b64 exec, -1")
            a("s_waitcnt lgkmcnt(0)")
            a(f"v_readfirstlane_b32 s{TB}, v4")
            a("s_nop 1")
            a(f"s_cmp_lg_u32 s{TB}, 7")
        else:
            a("s_waitcnt vmcnt(0)")
            a(f"s_cmp_lg_u32 s{W}, 0")
            a("s_barrier")
        a.vm = []
        a(f"s_cbranch_scc1 L_f1done{tag}")
        pub(a, S.F1OFF)
        a.label(f"L_f1done{tag}")
        stamp(a, 3)
        if half is not None:
            gld(tag)
            a.label(f"L_skip_f1{tag}")
    def st_v():
        for g in range(2):
            for q in range(4): a(f"v_cvt_pk_bf16_f32 v{40+4*g+q}, v{ACC[1]+8*g+2*q}, v{ACC[1]+8*g+2*q+1}")
        a(f"s_add_u32 s{TB}, {S.QK0}, 65536")
        a(f"s_cmp_eq_u32 s{TY}, 0")
        if "t2" in a.vm: a.wait_vm("t2")
        a("s_cbranch_scc1 L_p1_q")
        a(f"buffer_store_dwordx4 v[40:43], v{VO}, s[32:35], {S.VOFF} offen{SC}")
        a(f"buffer_store_dwordx4 v[44:47], v{VO}, s[32:35], {S.VOFF} offen offset:512{SC}")
        a("s_branch L_p1_qk")
        a.label("L_p1_q")
        for i in range(0, 16, 2): a(f"v_pk_mul_f32 v[{ACC[2]+i}:{ACC[2]+i+1}], v[{ACC[2]+i}:{ACC[2]+i+1}], s[{L2E}:{L2E+1}] op_sel:[0,1]")
        a(f"v_mov_b32 v{KO}, v3")
        a.label("L_p1_qk")
    def st_qk(e):
        for q in range(4): a(f"v_cvt_pk_bf16_f32 v{32+4*e+q}, v{ACC[2]+8*e+2*q}, v{ACC[2]+8*e+2*q+1}")
        a.vmem(f"buffer_store_dwordx4 {vr(32+4*e,4)}, v{KO}, s[32:35], {S.QK0 if e == 0 else 's%d' % TB} offen{SC}", "st")
    def gld(tag=""):
        a("v_lshlrev_b32 v6, 5, v1")
        a("v_and_b32 v4, 0x3ff, v6")
        a(f"s_cmp_eq_u32 s{TY}, 0")
        a(f"s_cbranch_scc1 L_skip_gl{tag}")
        a("global_load_dwordx4 v[104:107], v4, s[12:13]")
        a("global_load_dwordx4 v[108:111], v4, s[12:13] offset:16")
        a(f"buffer_load_dwordx4 v[96:99], v6, s[16:19], {S.GROW} offen")
        a(f"buffer_load_dwordx4 v[100:103], v6, s[16:19], {S.GROW} offen offset:16")
        a.label(f"L_skip_gl{tag}")
    def ptrs():
        a("s_load_dwordx2 s[16:17], s[0:1], 24")
        a("s_load_dwordx2 s[20:21], s[0:1], 48")
        a("s_load_dwordx2 s[24:25], s[0:1], 64")
        a("s_mov_b32 s18, 0x80000")
        a("s_mov_b32 s22, 0x80000")
        a("s_mov_b32 s26, 0x200000")
    F = OPT["f1g"]
    E2X = {1: [st_v], 2: [lambda: st_qk(0)], 3: [lambda: st_qk(1)]}
    if F < 32: E2X[F] = [gld]
    def step2(g, fill=None):
        if g == 5: st2(3)
        if g == 12 and "wb" in a.vm:
            st2(4)
            a.wait_vm("wb")
            a("s_barrier")
            st2(5)
        if g == F:
            st2(6); f1(); st2(7)
        if g == OPT["fb"]: f1(1)
        a(f"s_waitcnt lgkmcnt({(6 if g < 28 else 2*(31-g) + 4)})")
        if OPT["al"]: a.raw(".p2align 3")
        mfma(a, ACC[0], w0reg(g), XB+4*g, "0" if g == 0 else ACC[0])
        if g + 4 < 32:
            for l in rd(32 + g + 4): a(l)
        if g == 27:
            for e in range(2):
                a(f"ds_read_b64_tr_b16 {vr(248+4*e,2)}, v{PHIA} offset:{e*512}")
                a(f"ds_read_b64_tr_b16 {vr(250+4*e,2)}, v{PHIA} offset:{e*512+256}")
        for fn in E2X.get(g, []): fn()
        if fill:
            for _ in range(fill[1]):
                if fill[0]: a(fill[0].pop(0))
    L = ["v_mov_b32 v6, 0x3f803f80"]
    for q in range(8):
        L.append(f"v_cndmask_b32 v{96+q}, v6, v{40+q}, s[{MASK}:{MASK+1}]")
        L.append(f"v_cndmask_b32 v{104+q}, v{40+q}, v6, s[{MASK}:{MASK+1}]")
    if OPT["p2prio"]: a("s_setprio 2")
    for g in range(32): step2(g, (L, 3) if g >= 5 else None)
    if OPT["p2prio"]: a("s_setprio 0")
    assert not L
    st2(8)
    for e in E2:
        for q in range(4): a(f"v_cvt_pk_bf16_f32 v{192+4*e+q}, v{ACC[0]+8*e+2*q}, v{ACC[0]+8*e+2*q+1}")
    a("s_waitcnt lgkmcnt(0)")
    mfma(a, PH[0], 248, 192, "0")
    mfma(a, PH[1], 252, 196, "0")
    if F < 32: ptrs()
    st2(9)
    for k in range(0, 16, 2): a(f"v_mov_b64 {vr(VA[0]+k,2)}, {vr(ONES,2)}")
    a(f"s_and_b32 s{TB}, {S.LDS0}, 0x8000")
    a(f"v_mov_b32 v{IDX}, 0xdddddddd")
    a(f"v_add_u32 v{VK}, s{TB}, v3")
    a(f"s_add_u32 s{TB}, s{TB}, 65536")
    a(f"v_and_b32 v{VV}, 0x1ff, v{VO}")
    a(f"v_add_u32 v{VV}, s{TB}, v{VV}")
    a(f"v_and_b32 v{VL8}, 0x1f0, v3")
    a(f"v_lshlrev_b32 v{VL8}, 3, v{VL8}")
    a(f"v_mov_b32 v{GV}, v7")
    PEND = []
    def point(n):
        if OPT["gst"] == 3 and n in (0, 2, 4, 5, 6, 7): stamp(a, {0: 3, 2: 4, 4: 5, 5: 6, 6: 7, 7: 8}[n], True)
        if n == F - 32:
            if OPT["fb"] >= 0: f1(0)
            else:
                f1()
                gld()
            ptrs()
        if n == OPT["pollat"]:
            a(f"s_cmp_lg_u32 s{W}, 0")
            a("s_cbranch_scc1 L_p2_np")
            a(f"buffer_load_dword v{VP0}, v{VL8}, s[32:35], {S.F1POLL} offen{SC}")
            a.label("L_p2_np")
        if n == OPT["goat"]:
            stamp(a, 4)
            a(f"s_cmp_lg_u32 s{W}, 0")
            a("s_cbranch_scc1 L_p2_go")
            poll(a, "L_pollF1", VL8, VP0, S.F1POLL, own=S.OWN1)
            a.label("L_p2_go")
            a("s_barrier")
            stamp(a, 5)
            PEND.extend([lambda: a.vmem(f"buffer_load_dwordx4 {vr(SCR,4)}, v3, s[32:35], {S.K0OFF} offen{SC}", "q"),
                         lambda: a.vmem(f"buffer_load_dwordx4 {vr(Q[0],4)}, v3, s[32:35], {S.QOFF0} offen{SC}", "q"),
                         lambda: a.vmem(f"buffer_load_dwordx4 {vr(Q[1],4)}, v3, s[32:35], {S.QOFF1} offen{SC}", "q"),
                         lambda: kv_dma(a, 0, 0), lambda: kv_dma(a, 0, 1)])
            a.every = [OPT["sprd"], 0, PEND]
            if OPT["sprd"] == 0 or n >= 6:
                while PEND: PEND.pop(0)()
        if n == 6:
            while PEND: PEND.pop(0)()
            a(f"s_waitcnt vmcnt({len(a.vm)})")
    point(0)
    if OPT["rp"]:
        for e in E2:
            for q in range(4): a(f"v_cvt_pk_bf16_f32 v{T[e]+q}, v{PH[e]+2*q}, v{PH[e]+2*q+1}")
        for e in E2:
            for q in range(4):
                a(f"v_lshlrev_b32 v{PH[e]+2*q}, 16, v{T[e]+q}")
                a(f"v_and_b32 v{PH[e]+2*q+1}, 0xffff0000, v{T[e]+q}")
    for e in E2:
        P = PH[e]; t = T[e]
        a(f"v_max3_f32 v{t}, v{P}, v{P+1}, v{P+2}")
        a(f"v_max3_f32 v{t+1}, -v{P}, -v{P+1}, -v{P+2}")
        a(f"v_max3_f32 v{t}, v{t}, v{P+3}, v{P+4}")
        a(f"v_max3_f32 v{t+1}, v{t+1}, -v{P+3}, -v{P+4}")
        a(f"v_max3_f32 v{t}, v{t}, v{P+5}, v{P+6}")
        a(f"v_max3_f32 v{t+1}, v{t+1}, -v{P+5}, -v{P+6}")
        a(f"v_max_f32 v{t}, v{t}, v{P+7}")
        a(f"v_max_f32_e64 v{t+1}, v{t+1}, -v{P+7}")
    point(1)
    for e in E2: a(f"v_permlane32_swap_b32 v{T[e]}, v{T[e]+1}")
    for e in E2: a(f"v_max_f32 v{T[e]}, v{T[e]}, v{T[e]+1}")
    for e in E2: a(f"v_mul_f32 v{T[e]}, {f32(-LOG2E)}, v{T[e]}")
    for e in E2: a(f"v_mov_b32 v{T[e]+1}, v{T[e]}")
    for e in E2: a(f"v_permlane32_swap_b32 v{T[e]}, v{T[e]+1}")
    for e in E2:
        for q in range(4):
            a(f"v_pk_fma_f32 {vr(EP[e]+2*q,2)}, {vr(PH[e]+2*q,2)}, s[{L2E}:{L2E+1}], {vr(T[e],2)} op_sel_hi:[1,0,0]")
            a(f"v_pk_fma_f32 {vr(EP[e]+8+2*q,2)}, {vr(PH[e]+2*q,2)}, s[{L2E}:{L2E+1}], {vr(T[e],2)} op_sel:[0,0,1] op_sel_hi:[1,0,1] neg_lo:[1,0,0] neg_hi:[1,0,0]")
    point(2)
    for j in range(16): a(f"v_exp_f32 v{EP[0]+j}, v{EP[0]+j}")
    point(3)
    for j in range(16): a(f"v_exp_f32 v{EP[1]+j}, v{EP[1]+j}")
    point(4)
    for e in E2:
        P = PH[e]
        for sg in range(2):
            b = EP[e] + 8*sg
            a(f"v_pk_add_f32 {vr(P+4*sg,2)}, {vr(b,2)}, {vr(b+2,2)}")
            a(f"v_pk_add_f32 {vr(P+4*sg+2,2)}, {vr(b+4,2)}, {vr(b+6,2)}")
    for e in E2:
        for sg in range(2): a(f"v_pk_add_f32 {vr(PH[e]+4*sg,2)}, {vr(PH[e]+4*sg,2)}, {vr(PH[e]+4*sg+2,2)}")
    for e in E2:
        for sg in range(2): a(f"v_add_f32 v{T[e]+sg}, v{PH[e]+4*sg}, v{PH[e]+4*sg+1}")
    for e in E2: a(f"v_permlane32_swap_b32 v{T[e]}, v{T[e]+1}")
    for e in E2: a(f"v_add_f32 v{T[e]}, v{T[e]}, v{T[e]+1}")
    for e in E2: a(f"v_rcp_f32 v{T[e]}, v{T[e]}")
    for e in E2: a(f"v_mov_b32 v{T[e]+1}, v{T[e]}")
    for e in E2: a(f"v_permlane32_swap_b32 v{T[e]}, v{T[e]+1}")
    point(5)
    for e in E2:
        for q in range(4):
            a(f"v_pk_mul_f32 {vr(EP[e]+2*q,2)}, {vr(EP[e]+2*q,2)}, {vr(T[e],2)} op_sel_hi:[1,0]")
            a(f"v_pk_mul_f32 {vr(EP[e]+8+2*q,2)}, {vr(EP[e]+8+2*q,2)}, {vr(T[e],2)} op_sel:[0,1]")
    for e in E2:
        for q in range(8): a(f"v_cvt_pk_bf16_f32 v{PHI+8*e+q}, v{EP[e]+2*q}, v{EP[e]+2*q+1}")
    point(6)
    a(f"s_cmp_eq_u32 s{TY}, 0")
    a("s_cbranch_scc0 L_skip_t0")
    for e in E2:
        mfma(a, PH[e], PHI+8*e, BSEL, "0")
        mfma(a, PH[e], PHI+4+8*e, BSEL+4, PH[e])
    for e in E2:
        for q in range(8): a(f"v_cvt_pk_bf16_f32 v{192+8*e+q}, v{PH[e]+2*q}, v{PH[e]+2*q+1}")
        mfma(a, 64+16*e, 192+8*e, 96+8*e, "0")
        mfma(a, 64+16*e, 196+8*e, 100+8*e, 64+16*e)
    for e in E2:
        for q in range(4): a(f"ds_write_b128 v{REDW}, {vr(64+16*e+4*q,4)} offset:{e*4096+q*1024}")
    a("s_branch L_p1_done")
    a.label("L_skip_t0")
    gate(a)
    a.label("L_p1_done")
    point(7)


def phase2(a):
    def zero_acc():
        for i in range(0, 32, 2): a(f"v_mov_b64 v[{O[0]+i}:{O[0]+i+1}], 0")
    def prime_reads():
        a(f"ds_read_b128 {vr(KB_[0],4)}, v{VK}")
        a(f"ds_read_b128 {vr(KB_[1],4)}, v{VK} offset:1024")
        a(f"s_mov_b64 exec, s[{MASK}:{MASK+1}]")
        a(f"ds_read_b128 {vr(VA[0],4)}, v{VV}")
        a(f"ds_read_b128 {vr(VBB[0],4)}, v{VV} offset:512")
        a("s_mov_b64 exec, -1")
    def negmax():
        a(f"v_permlane32_swap_b32 v{M1}, v{M2}")
        a(f"v_max_f32 v{M1}, v{M1}, v{M2}")
        a(f"v_sub_f32 v{M1}, 0, v{M1}")
        a(f"v_mov_b32 v{M2}, v{M1}")
        a(f"v_permlane32_swap_b32 v{M1}, v{M2}")
    def cfill(q):
        for i in range(0, 16, 2): a(f"v_pk_mov_b32 {vr(C[q]+i,2)}, {vr(M1,2)}, {vr(M1,2)} op_sel:[{q},{q}]")
    a(f"v_mov_b32 v5, {FLAG}")
    a("v_mov_b32 v7, 0")
    a("v_mov_b64 v[196:197], 0")
    a("v_mov_b64 v[198:199], 0")
    a.wait_vm("q")
    mfma(a, S4[0][1], SCR, Q[0], "0")
    mfma(a, S4[1][1], SCR, Q[1], "0")
    a(f"v_mov_b64 v[156:157], v[{KVP0}:{KVP1}]")
    a(f"v_mov_b32 v158, v{REDR}")
    a("s_mov_b64 exec, 1")
    a("ds_write_b32 v5, v7")
    a("s_mov_b64 exec, -1")
    a("s_waitcnt lgkmcnt(0)")
    mfma(a, O[0], 196, 196, "0")
    mfma(a, O[1], 196, 196, "0")
    maxtree(a, M1, S4[0][1], True)
    maxtree(a, M2, S4[1][1], True)
    negmax(); cfill(0); cfill(1)
    a(f"s_cmp_eq_u32 s{TY}, 0")
    a.wait_vm("r0")
    a("s_barrier")
    stamp(a, 6)
    if OPT["gst"] == 3: stamp(a, 9, True)
    prime_reads()
    a("s_cbranch_scc0 L_skip_r0")
    for w in range(4):
        for q in range(2):
            a(f"ds_read_b128 {vr(160+8*w+4*q,4)}, v158 offset:{(w>>1)*32768+(w&1)*8192+q*1024}")
    a("s_waitcnt lgkmcnt(11)")
    a("s_branch L_first")
    a.label("L_skip_r0")
    a("s_mov_b32 exec_lo, 1")
    a("s_mov_b32 exec_hi, 1")
    a(f"buffer_store_dword v52, v6, s[32:35], {S.GOFF} offen{SC}")
    a("s_mov_b64 exec, -1")
    a.label("L_redo")
    a("s_waitcnt lgkmcnt(3)")
    a.label("L_first")
    mfma(a, S4[0][0], KB_[0], Q[0], C[0])
    mfma(a, S4[1][0], KB_[0], Q[1], C[1])
    kv_dma(a, 1, 0); kv_dma(a, 1, 1)
    nvm = [0]; marks = {}
    PL, ZL = SCR, SCR + 16
    def wait_after(nm): a(f"s_waitcnt vmcnt({nvm[0]-marks[nm]})")
    def svm(txt):
        a.vmem(txt, "x"); nvm[0] += 1
    def j_drain(): a("s_waitcnt vmcnt(0)")
    def j_kp():
        for j in range(0, 8, 2): a(f"v_pk_add_f32 {vr(160+j,2)}, {vr(160+j,2)}, {vr(168+j,2)}")
        for j in range(0, 8, 2): a(f"v_pk_add_f32 {vr(176+j,2)}, {vr(176+j,2)}, {vr(184+j,2)}")
        for j in range(0, 8, 2): a(f"v_pk_add_f32 {vr(160+j,2)}, {vr(160+j,2)}, {vr(176+j,2)}")
        a(f"buffer_store_dwordx4 v[160:163], v156, s[32:35], {S.KVPOFF} offen{SC}")
        a(f"buffer_store_dwordx4 v[164:167], v157, s[32:35], {S.KVPOFF} offen{SC}")
    def j_p2():
        a(f"v_and_b32 v6, 0x7ff, v{VL8}")
        a(f"buffer_load_dword v{VP0}, v6, s[32:35], {S.F2POLL} offen{SC}")
    def j_ld():
        wait_after("p2")
        check_flags(a, "L_pollF2", 0x7ff, VP0, S.F2POLL)
        a("v_lshrrev_b32 v5, 4, v1")
        a("v_lshlrev_b32 v5, 14, v5")
        a("v_and_b32 v6, 0xf0, v3")
        a("v_add_u32 v6, v6, v5")
        a(f"s_lshr_b32 s{TB}, s2, 5")
        a(f"s_mul_i32 s{TB}, s{TB}, 240")
        a(f"s_sub_u32 s{TB}, {S.LDK}, s{TB}")
        for p in range(4):
            a(f"s_add_u32 s{TC}, {S.LDK}, {p*4096}")
            a(f"buffer_load_dwordx4 {vr(PL+4*p,4)}, v6, s[32:35], s{TC} offen{SC}")
        for p in range(4):
            a(f"s_add_u32 s{TC}, s{TB}, {p*4096}")
            a(f"buffer_load_dwordx4 {vr(ZL+4*p,4)}, v5, s[32:35], s{TC} offen offset:2048{SC}")
    def j_red():
        wait_after("ld")
        B2 = (PL, ZL)
        for base in B2:
            for j in (0, 2):
                a(f"v_pk_add_f32 {vr(base+j,2)}, {vr(base+j,2)}, {vr(base+4+j,2)}")
                a(f"v_pk_add_f32 {vr(base+8+j,2)}, {vr(base+8+j,2)}, {vr(base+12+j,2)}")
        for base in B2:
            for j in (0, 2): a(f"v_pk_add_f32 {vr(base+j,2)}, {vr(base+j,2)}, {vr(base+8+j,2)}")
        for sw in ("32", "16"):
            for base in B2:
                for j in (0, 2): a(f"v_mov_b64 {vr(base+4+j,2)}, {vr(base+j,2)}")
            for base in B2:
                for j in range(4): a(f"v_permlane{sw}_swap_b32 v{base+j}, v{base+4+j}")
            for base in B2:
                for j in (0, 2): a(f"v_pk_add_f32 {vr(base+j,2)}, {vr(base+j,2)}, {vr(base+4+j,2)}")
        a("v_cmp_eq_u32 vcc, 16, v1")
        for base in B2:
            a(f"v_cvt_pk_bf16_f32 v{base+4}, v{base}, v{base+1}")
            a(f"v_cvt_pk_bf16_f32 v{base+5}, v{base+2}, v{base+3}")
        a(f"v_cndmask_b32 v{PL+4}, v{PL+4}, v{ZL+4}, vcc")
        a(f"v_cndmask_b32 v{PL+5}, v{PL+5}, v{ZL+5}, vcc")
        a("s_mov_b64 exec, 0x1ffff")
        a(f"buffer_store_dwordx2 {vr(PL+4,2)}, v3, s[32:35], {S.KVFW} offen{SC}")
        a("s_mov_b64 exec, -1")
    def j_f5():
        a("s_waitcnt vmcnt(0)")
        pub(a, S.F5OFF)
    def j_p5():
        a(f"v_and_b32 v6, 0x7ff, v{VL8}")
        a(f"buffer_load_dword v{VP1}, v6, s[32:35], {S.F5POLL} offen{SC}")
    def j_kv():
        wait_after("p5")
        check_flags(a, "L_pollF5", 0x7ff, VP1, S.F5POLL)
        a(f"v_min_u32 v5, 64, v{G4}")
        a("v_lshrrev_b32 v6, 5, v1")
        a("v_mul_u32_u24 v6, 272, v6")
        a("v_lshl_add_u32 v5, v5, 2, v6")
        for e in range(2):
            for sg in range(2):
                a(f"buffer_load_dwordx4 {vr(SCR+8*e+4*sg,4)}, v5, s[32:35], {S.KVFR} offen offset:{e*2048+sg*544}{SC}")
    def j_om():
        wait_after("kv")
        for sg in range(2):
            for e in range(2): mfma(a, SCR+16+16*e, SCR+8*e+4*sg, PHI+8*e+4*sg, "0" if sg == 0 else SCR+16+16*e)
    def j_oa(e):
        def f():
            D = SCR+16+16*e
            a(f"v_add_f32 v4, {f32(1e-6)}, v{D+8}")
            a("v_rcp_f32 v4, v4")
            for i in range(0, 8, 2): a(f"v_pk_mul_f32 {vr(D+i,2)}, {vr(D+i,2)}, v[4:5] op_sel_hi:[1,0]")
            for q in range(4): a(f"v_cvt_pk_bf16_f32 v{SCR+4*e+q}, v{D+2*q}, v{D+2*q+1}")
            a(f"buffer_store_dwordx4 {vr(SCR+4*e,4)}, v3, s[32:35], {S.OAOFF} offen offset:{e*1024}{SC}")
        return f
    def j_p4():
        a(f"v_and_b32 v6, 0x7ff, v{VL8}")
        svm(f"buffer_load_dword v{VP0}, v6, s[32:35], {S.F4POLL} offen{SC}")
    def j_c4():
        wait_after("p4")
        check_flags(a, "L_pollF4", 0x7ff, VP0, S.F4POLL)
        svm(f"buffer_load_dword v{GV}, v{G4}, s[32:35], {S.GATE3} offen{SC}")
        svm(f"buffer_load_dword v{GV+1}, v{G4}, s[32:35], {S.GATET} offen{SC}")
    def j_la(i):
        def f():
            for k in (2*i, 2*i+1):
                svm(f"buffer_load_dwordx4 {vr(SCR+4*k,4)}, v3, s[32:35], {S.OF3 if k < 4 else S.OF3B} offen offset:{(k%4)*1024}{SC}")
        return f
    def j_tb(k):
        return lambda: svm(f"global_load_dwordx4 {vr(vtab()[k][0],4)}, v{GV}, s[{VT}:{VT+1}] offset:{(k-4)*1024}")
    JB = dict(kp=(R_T0, j_kp), tb6=(R_ANY, j_tb(6)), tb7=(R_ANY, j_tb(7)), d0=(R_T0, j_drain), d1=(R_T1, j_drain), f2=(R_T0W0, lambda: pub(a, S.F2OFF)), f4=(R_T1W0, lambda: pub(a, S.F4OFF)),
              p2=(R_RED, j_p2), ld=(R_RED, j_ld), red=(R_RED, j_red), f5=(R_RED, j_f5),
              p5=(R_T1, j_p5), kv=(R_T1, j_kv), om=(R_T1, j_om), oa0=(R_T1, j_oa(0)), oa1=(R_T1, j_oa(1)),
              p4=(None, j_p4), c4=(None, j_c4), la0=(None, j_la(0)), la1=(None, j_la(1)), la2=(None, j_la(2)), la3=(None, j_la(3)))
    OUTL = []
    def hook(name):
        role, body = JB[name]
        if name not in OPT["y_skip"]:
            if role in OPT["outl"]:
                a(f"s_bitcmp1_b32 {S.ROLE}, {role}")
                a(f"s_cbranch_scc1 L_job_{name}")
                a.label(f"L_ret_{name}")
                keep = a.lines; a.lines = []
                a.label(f"L_job_{name}")
                body()
                a(f"s_branch L_ret_{name}")
                OUTL.extend(a.lines); a.lines = keep
            else:
                if role is not None:
                    a(f"s_bitcmp1_b32 {S.ROLE}, {role}")
                    a(f"s_cbranch_scc0 L_skip_{name}")
                body()
                if role is not None: a.label(f"L_skip_{name}")
        marks[name] = nvm[0]
    SPINS.append(lambda a: a.lines.extend(OUTL))
    JOBS = OPT["sched"]
    p0, p1, p2 = OPT["pos"]
    BST = OPT["bst"]
    for T in range(32):
        it, t = T >> 2, T & 3
        KVS = OPT["kvs"] if it else OPT["wos"]
        WOS = OPT["wos"]
        for qi in range(2):
            st = 2*t + qi
            s = S4[qi][T & 1]
            def extras(k):
                if (qi, k) == OPT["kat"] and T + 2 < 32: a(f"ds_read_b128 {vr(KB_[T&1],4)}, v{VK} offset:{(T+2)*1024}")
                if (qi, k) == OPT["vat"] and T + 1 < 32:
                    a(f"s_mov_b64 exec, s[{MASK}:{MASK+1}]")
                    a(f"ds_read_b128 {vr(VA[(T+1)&1],4)}, v{VV} offset:{(T+1)*1024}")
                    a(f"ds_read_b128 {vr(VBB[(T+1)&1],4)}, v{VV} offset:{(T+1)*1024+512}")
                    a("s_mov_b64 exec, -1")
                if k == OPT["dmk"]:
                    if st in KVS and it + 2 < 8:
                        kv_dma(a, it + 2, KVS.index(st)); nvm[0] += 1
                    if st in WOS and it >= 1:
                        wo_dma(a, it - 1, WOS.index(st)); nvm[0] += 1
                if k == OPT["jk"]:
                    for nm in JOBS.get((it, st), "").split(): hook(nm)
            if OPT["lprio"] and qi == OPT["pq"]: a(f"s_setprio {3 - ((T + OPT['poff']) % 4)}")
            for j in range(16):
                a(f"v_exp_f32 v{s+j}, v{s+j}")
                if j == p0:
                    tp = T if qi == 1 else T - 1
                    if tp >= 0: smfmac(a, O[1-qi], VBB[tp & 1], S4[1-qi][tp & 1]+8, IDX)
                    if st == BST:
                        if it == OPT["f2it"]: hook("d0")
                        if it == OPT["f4it"]: hook("d1")
                        if it < 7: a.wait_vm(f"r{it+1}")
                        a("s_barrier")
                        if it == OPT["f2it"]: hook("f2")
                        if it == OPT["f4it"]: hook("f4")
                    extras(0)
                if j == p1:
                    if qi == 0: a("s_waitcnt lgkmcnt(0)")
                    if T + 1 < 32: mfma(a, S4[qi][(T+1) & 1], KB_[(T+1) & 1], Q[qi], C[qi])
                    extras(1)
                if j == p2:
                    smfmac(a, O[qi], VA[T & 1], s, IDX)
                    extras(2)
    if OPT["lprio"]: a("s_setprio 0")
    a(f"ds_write_b128 v{XW}, {vr(O[0],4)}")
    a(f"ds_write_b128 v{XW}, {vr(O[0]+4,4)} offset:1024")
    smfmac(a, O[1], VBB[1], S4[1][1]+8, IDX)
    a(f"ds_write_b32 v{XW}, v{O[0]+8} offset:2048")
    stamp(a, 7)
    SX = 64
    a(f"v_add_f32_e64 v{M1}, |v{O[0]}|, |v{O[0]+1}|")
    for i in range(2, 9): a(f"v_add_f32_e64 v{M1}, v{M1}, |v{O[0]+i}|")
    a(f"v_mov_b32 v6, {FLAG}")
    a("v_mov_b32 v7, 1")
    a(f"v_mov_b32 v5, {f32(OPT['thr'])}")
    for i in range(0, 9): a(f"v_add_f32_e64 v{M1}, v{M1}, |v{O[1]+i}|")
    a(f"v_cmp_nlt_f32 vcc, v{M1}, v5")
    a(f"s_waitcnt vmcnt({nvm[0]-marks['c4']})")
    a(f"v_sub_f32 v{GV+1}, 1.0, v{GV+1}")
    a("s_cbranch_vccz L_noflag")
    a("ds_write_b32 v6, v7")
    a.label("L_noflag")
    a("s_waitcnt lgkmcnt(0)")
    a("s_barrier")
    a(f"ds_read_b32 v{M2}, v6")
    a(f"ds_read_b32 v{SX+8}, v{XR} offset:2048")
    a(f"ds_read_b128 {vr(SX,4)}, v{XR}")
    a(f"ds_read_b128 {vr(SX+4,4)}, v{XR} offset:1024")
    a(f"v_cvt_pk_bf16_f32 v{GV+1}, v{GV+1}, v{GV+1}")
    a(f"v_lshlrev_b32 v{GV+1}, 16, v{GV+1}")
    a("s_waitcnt lgkmcnt(2)")
    a(f"v_readfirstlane_b32 s{TB}, v{M2}")
    a(f"v_add_f32 v{O[1]+8}, v{O[1]+8}, v{SX+8}")
    a(f"v_rcp_f32 v{M1}, v{O[1]+8}")
    a(f"s_cmp_lg_u32 s{TB}, 0")
    a("s_cbranch_scc1 L_maybe_fb")
    a.label("L_fin")
    a(f"v_mul_f32 v{M1}, v{M1}, v{GV+1}")
    a("s_waitcnt lgkmcnt(0)")
    for i in range(0, 8, 2): a(f"v_pk_add_f32 {vr(O[1]+i,2)}, {vr(O[1]+i,2)}, {vr(SX+i,2)}")
    for i in range(0, 8, 2): a(f"v_pk_mul_f32 {vr(O[1]+i,2)}, {vr(O[1]+i,2)}, {vr(M1,2)} op_sel_hi:[1,0]")
    for q in range(4): a(f"v_cvt_pk_bf16_f32 v{20+q}, v{O[1]+2*q}, v{O[1]+2*q+1}")
    for q in range(4): a(f"v_min_u32 v{20+q}, -2, v{20+q}")
    a(f"buffer_store_dwordx4 v[20:23], v3, s[32:35], {S.OFB} offen{SC}")
    wo_dma(a, 7, 0)
    wo_dma(a, 7, 1)

    def rare(a):
        a.label("L_maybe_fb")
        a(f"s_cmp_lg_u32 s{ATT}, 0")
        a("s_cbranch_scc1 L_fin")
        a(f"s_mov_b32 s{ATT}, 1")
        a(f"s_mov_b32 {S.ROLE}, 0")
        a("s_waitcnt vmcnt(0) lgkmcnt(0)")
        a("s_barrier")
        for rr in range(8):
            kv_dma(a, rr, 0); kv_dma(a, rr, 1)
        a(f"v_mov_b32 v{M1}, 0xff800000")
        a(f"v_mov_b32 v{M2}, 0xff800000")
        a("v_mov_b32 v4, v3")
        a(f"s_mov_b32 s{CNT}, 64")
        a("s_waitcnt vmcnt(0)")
        a("s_barrier")
        a.label("L_fbloop")
        a(f"ds_read_b128 {vr(KB_[0],4)}, v4")
        a("v_add_u32 v4, 1024, v4")
        a("s_waitcnt lgkmcnt(0)")
        mfma(a, S4[0][0], KB_[0], Q[0], "0")
        mfma(a, S4[1][0], KB_[0], Q[1], "0")
        a.nop(12)
        maxtree(a, M1, S4[0][0], False)
        maxtree(a, M2, S4[1][0], False)
        a(f"s_sub_u32 s{CNT}, s{CNT}, 1")
        a(f"s_cmp_lg_u32 s{CNT}, 0")
        a("s_cbranch_scc1 L_fbloop")
        zero_acc()
        prime_reads()
        negmax(); cfill(0); cfill(1)
        a("s_nop 1")
        a("s_branch L_redo")
    return rare

def phase3(a):
    ACC, OFB_, PEND = 32, 224, TC
    WA = list(range(112, 136, 4)) + list(range(184, 224, 4))
    WB = list(range(64, 128, 4))
    def trread(br, i):
        for ct in range(2):
            f = (WA, WB)[br][2*i+ct]
            a(f"ds_read_b64_tr_b16 {vr(f,2)}, v{TR0+ct} offset:{br*16384+i*2048}")
            a(f"ds_read_b64_tr_b16 {vr(f+2,2)}, v{TR0+ct} offset:{br*16384+i*2048+1024}")
    def oload(k):
        return f"buffer_load_dwordx4 {vr(OFB_+4*k,4)}, v3, s[32:35], {S.OF3 if k < 4 else S.OF3B} offen offset:{(k%4)*1024}{SC}"
    stamp(a, 8)
    for i in range(2): trread(0, i)
    a(f"s_add_u32 {S.OF3}, {S.OF3}, 32768")
    a(f"s_add_u32 {S.OF3B}, {S.OF3B}, 32768")
    a(f"s_mov_b32 s{CNT}, {POLL_LIMIT}")
    a(f"s_mov_b32 s{PEND}, 0")
    for p in range(1, 4): a(f"v_xor_b32 v{12+p}, {p*32768}, v{RR}")
    a("s_waitcnt vmcnt(3)")
    for i in range(8):
        if i + 2 < 8: trread(0, i + 2)
        a(f"s_waitcnt lgkmcnt({4*min(2, 7-i)})")
        for ct in range(2): mfma(a, ACC+16*ct, WA[2*i+ct], SCR+4*i, "0" if i == 0 else ACC+16*ct)
    a("s_waitcnt vmcnt(0)")
    a("s_barrier")
    for k in range(8): a(oload(k))
    for i in range(8):
        trread(1, i)
        if i % 2 == 1: a("s_waitcnt lgkmcnt(4)")
    for j in range(0, 32, 2): a(f"v_pk_mul_f32 {vr(ACC+j,2)}, {vr(ACC+j,2)}, {vr(GV,2)} op_sel_hi:[1,0]")
    a("s_waitcnt lgkmcnt(0)")
    def test(a, o):
        a(f"v_max3_u32 v4, v{o}, v{o+1}, v{o+2}")
        a(f"v_max_u32 v4, v4, v{o+3}")
        a("v_cmp_eq_u32 vcc, -1, v4")
        a("s_nop 1")
    for i in range(8):
        o = OFB_ + 4*i
        a(f"s_waitcnt vmcnt({7-i})")
        test(a, o)
        a(f"s_cbranch_vccnz L_obad{i}")
        for ct in range(2): mfma(a, ACC+16*ct, WB[2*i+ct], o, ACC+16*ct)
        a.label(f"L_onext{i}")
    a(f"s_cmp_lg_u32 s{PEND}, 0")
    a("s_cbranch_scc1 L_oretry")
    a.label("L_odone")
    def retry(a):
        for i in range(8):
            a.label(f"L_obad{i}")
            a(f"s_bitset1_b32 s{PEND}, {i}")
            a(f"s_branch L_onext{i}")
        a.label("L_oretry")
        a(f"s_sub_u32 s{CNT}, s{CNT}, 1")
        a(f"s_cmp_lt_i32 s{CNT}, 1")
        a("s_cbranch_scc1 L_oexit")
        a(f"s_sleep {OPT['osleep']}")
        for i in range(8):
            a(f"s_bitcmp1_b32 s{PEND}, {i}")
            a(f"s_cbranch_scc0 L_ol{i}")
            a(oload(i))
            a.label(f"L_ol{i}")
        a("s_waitcnt vmcnt(0)")
        for i in range(8):
            o = OFB_ + 4*i
            a(f"s_bitcmp1_b32 s{PEND}, {i}")
            a(f"s_cbranch_scc0 L_oc{i}")
            test(a, o)
            a(f"s_cbranch_vccnz L_oc{i}")
            for ct in range(2): mfma(a, ACC+16*ct, WB[2*i+ct], o, ACC+16*ct)
            a(f"s_bitset0_b32 s{PEND}, {i}")
            a.label(f"L_oc{i}")
        a(f"s_cmp_lg_u32 s{PEND}, 0")
        a("s_cbranch_scc1 L_oretry")
        a.label("L_oexit")
        a.nop(10)
        a("s_branch L_odone")
    SPINS.append(retry)
    stamp(a, 9)
    for p in range(1, 4):
        for q in range(2): a(f"ds_write_b128 v{12+p}, {vr(ACC+8*p+4*q,4)} offset:{(p-1)*2048+q*1024}")
    a("s_waitcnt lgkmcnt(0)")
    a("s_barrier")
    for src in range(3):
        for q in range(2): a(f"ds_read_b128 {vr(64+8*src+4*q,4)}, v{RR} offset:{src*2048+q*1024}")
    a("s_waitcnt lgkmcnt(4)")
    for j in range(0, 8, 2): a(f"v_pk_add_f32 {vr(64+j,2)}, {vr(64+j,2)}, {vr(ACC+j,2)}")
    a("s_waitcnt lgkmcnt(0)")
    for j in range(0, 8, 2): a(f"v_pk_add_f32 {vr(72+j,2)}, {vr(72+j,2)}, {vr(80+j,2)}")
    for j in range(0, 8, 2): a(f"v_pk_add_f32 {vr(64+j,2)}, {vr(64+j,2)}, {vr(72+j,2)}")
    for q in range(4): a(f"v_cvt_pk_bf16_f32 v{20+q}, v{64+2*q}, v{64+2*q+1}")
    a("v_permlane32_swap_b32 v20, v22")
    a("v_permlane32_swap_b32 v21, v23")
    a(f"buffer_store_dwordx4 v[20:23], v{OUTA}, s[24:27], {S.OUTOFF} offen{OPT['outsc']}")
    a(f"s_or_b32 s{TA}, s2, s{W}")
    a(f"s_cmp_lg_u32 s{TA}, 0")
    a("s_cbranch_scc1 L_noE")
    a(f"v_mov_b32 v24, s{TAG}")
    a("s_mov_b64 exec, 1")
    a(f"buffer_store_dword v24, v3, s[32:35], 0 offen offset:{WS_E}")
    a("s_mov_b64 exec, -1")
    a.label("L_noE")
    flush_stamps(a)

def tables():
    t = ".p2align 8\nL_vtab:\n"
    for w in range(8):
        for r, fn in vtab():
            for l in range(0, 64, 2):
                t += ".long " + ",".join(str(x) for x in fn(w, l) + fn(w, l+1)) + "\n"
    t += ".set b, 0\n.rept 256\n.set w, 0\n.rept 8\n"
    for n, e in stab(): t += f".long {e}\n"
    t += ".set w, w+1\n.endr\n.set b, b+1\n.endr\n"
    return t

def main(out):
    hdr = open("cdna_kernels/" + NAME + ".s.ref").read().split("; Override launch")[0]
    txt = hdr + "; @launch grid=(256,1,1) block=(512,1,1) lds=163840\n"
    txt += '.amdgcn_target "amdgcn-amd-amdhsa--gfx950"\n.text\n'
    nm = NAME + "_kernel"
    a = Asm()
    a.label(nm)
    phase1(a)
    rare = phase2(a)
    phase3(a)
    a.label("L_end")
    a("s_endpgm")
    for sp in SPINS: sp(a)
    rare(a)
    a.label("L_code_end")
    a("s_endpgm")
    a.lines, added = autonop(a.lines)
    errs = check(a.lines, nm)
    bare, skipping = [], None
    for l in a.lines:
        if skipping:
            if l.startswith(skipping + ":"): skipping = None
            continue
        bare.append(l)
        if "s_cbranch_scc0 L_skip_" in l or "s_cbranch_scc1 L_skip_" in l: skipping = l.split()[-1]
    errs += check(bare, nm + "(optional blocks skipped)")
    txt += f".globl {nm}\n.p2align 8\n.type {nm},@function\n" + a.text()
    txt += f""".section .rodata,"a"
.p2align 6
.amdhsa_kernel {nm}
  .amdhsa_next_free_vgpr 256
  .amdhsa_next_free_sgpr 102
  .amdhsa_accum_offset 256
  .amdhsa_group_segment_fixed_size 0
  .amdhsa_kernarg_size 88
  .amdhsa_user_sgpr_count 2
  .amdhsa_user_sgpr_kernarg_segment_ptr 1
  .amdhsa_system_sgpr_workgroup_id_x 1
.end_amdhsa_kernel
""" + tables()
    open(out, "w").write(txt)
    for e in errs: print("HAZARD", e)
    print("written", out, len(txt), "bytes;", len(errs), "hazards;", added, "auto nops")

if __name__ == "__main__":
    if "--stamps" in sys.argv:
        STAMPS = True; sys.argv.remove("--stamps")
    for x in list(sys.argv):
        if x.startswith("--o:"):
            k, v = x[4:].split("=", 1)
            assert k in OPT, k
            OPT[k] = eval(v); sys.argv.remove(x)
    main(sys.argv[1] if len(sys.argv) > 1 else "cdna_kernels/" + NAME + ".s")
```

```python
import sys, struct
from asmlib import *

NAME = "gated_mix__linear_kernel_hedgehog__mha_block__prompt"
WS_E, WS_F1, WS_F2, WS_GATE, WS_F4, WS_F5, WS_KVF = 0x0, 0x10000, 0x20000, 0x40000, 0x50000, 0x60000, 0x70000
WS_QB, WS_KB, WS_VB, WS_KVP, WS_OF = 0x200000, 0x400000, 0x600000, 0x800000, 0xA00000
WS_USED = 0x2100000
def f32(x): return "0x%08x" % struct.unpack("<I", struct.pack("<f", x))[0]
LOG2E = 1.4426950408889634
STAMPS = False
OPT = dict(opos=9, outl=(1,2,4), bst=4, kat=(0,2), vat=(1,2), dmk=0, jk=1, lprio=1, pq=1, poff=2, p2prio=0, cnt=0, ciat=19, fb=-1, sprd=8, al=0, t0pos=0, bar0=1, gst=0, la=2, pre2=0, t0at=-2, f1g=26, zat=30, last='wb', t2at=26, tchat=5, phiat=19, ds0=(9,11,13,15,20,21,22,23), ds1={(2,0):0,(2,1):1,(3,0):2,(3,1):3,(4,0):4,(4,1):6,(5,0):8,(5,1):10,(6,0):12,(6,1):14,(7,0):16,(7,1):18}, map2d=1, pp=0, rot=4, rp=1, pos=(1, 6, 11), thr=2.0**100, cyc=0, amp=None, outsc="", fill=3, hga=4, osleep=2, cpf=1,
           rsplit=(0, 3, 5, 7), f1at=1, pollat=1, goat=4, y_skip=(),
           f2it=0, f4it=5, kvs=(0, 1), wos=(6, 7),
           sched={(0, 0): "kp", (0, 5): "tb6 tb7", (1, 2): "p2", (1, 6): "ld", (2, 2): "red", (2, 5): "f5", (3, 4): "p5", (4, 0): "kv", (4, 5): "om", (4, 6): "oa0", (4, 7): "oa1",
                  (6, 4): "p4", (7, 0): "c4 la0", (7, 2): "la1", (7, 4): "la2", (7, 6): "la3"})
SC = " sc1"
POLL_LIMIT = 200000
NST = 11
SLOT = 32768
XCH, FLAG, PHIL, CNTW = 131072, 155648, 8192, 12288
R_T0, R_T0W0, R_RED, R_T1, R_T1W0, R_ANY = range(6)

W = 3
TAG, J, XOFF, WOFF, MX, MW, TY, ATT = range(36, 44)
L2E, MASK, VT = 10, 14, 46
TA, TB, TC, CNT = 4, 5, 6, 7
CP = 44
def stab():
    hA = OPT["hga"]
    d = dict(hg="(b&7)", j="(b>>3)", ty="((b>>3)&1)", rb16="(b>>4)", rb8="(b>>5)", qp="(w&3)", kh="(w>>2)", kq="(w>>1)", rt3="(w&1)")
    d["hg1"] = d["hg"]
    if OPT["map2d"]:
        d["hg1"] = "(((b&3)<<1)+((b>>4)&1))"
        d["rb16"] = "((((b>>2)&1)<<3)+(b>>5))"
    d["h"] = "(({hg}<<2)+({j}&3))".format(**d)
    d["t"] = "(({rb16}<<2)+{qp})".format(**d)
    d["hb0"] = "(({hg1}<<2)+({kh}<<1))".format(**d)
    d["ha0"] = "({hb0}^%d)".format(**d) % (hA*4)
    d["hr"] = "(((({h}+w)-1)&31)^%d)".format(**d) % (hA*4)
    d["T"] = "((({rb8}<<3)+({qp}<<1))+{kh})".format(**d)
    d["T3"] = "(((({rb8}<<2)+({hg}>>1))<<1)+{rt3})".format(**d)
    d["cb"] = "(((b&1)<<2)+({j}&3))".format(**d)
    d["lds0"] = "(({kh}<<15)+({qp}<<10))".format(**d)
    d["w0"] = "(((w-1)>>8)&1)"
    d["w12"] = "((((w-3)>>8)&1)-{w0})".format(**d)
    E = [
     ("F1OFF", "(%d+(((({hg1}<<5)+({rb16}<<1))+{ty})<<7))" % WS_F1),
     ("F1POLL", "(%d+({hg}<<12))" % WS_F1),
     ("F2OFF", "(%d+((({hg1}<<4)+{rb16})<<7))" % WS_F2),
     ("F2POLL", "(%d+({hg}<<11))" % WS_F2),
     ("VOFF", "((%d+({hb0}<<16))+({t}<<10))" % WS_VB),
     ("QK0", "(((%d+({ty}*%d))+({hb0}<<16))+({t}<<10))" % (WS_QB, WS_KB-WS_QB)),
     ("LDS0", "{lds0}"),
     ("KOFF", "((%d+({h}<<16))+{lds0})" % WS_KB),
     ("K0OFF", "(%d+({h}<<16))" % WS_KB),
     ("QOFF1", "((%d+({h}<<16))+({T}<<10))" % WS_QB),
     ("QOFF0", "((%d+({h}<<16))+(({T}^1)<<10))" % WS_QB),
     ("ROLE", "(((1-{ty})*((%d+({w0}*%d))+({w12}*%d)))+({ty}*(%d+({w0}*%d))))" % ((1 << R_T0) | (1 << R_ANY), 1 << R_T0W0, 1 << R_RED, (1 << R_T1) | (1 << R_ANY), 1 << R_T1W0)),
     ("KVPOFF", "(%d+(((({ha0}+({qp}>>1))<<4)+{rb16})<<12))" % WS_KVP),
     ("OFB", "((%d+({T}<<16))+({h}<<10))" % (WS_OF+32768)),
     ("OF3", "((%d+({T3}<<16))+({kq}<<13))" % WS_OF),
     ("OF3B", "((%d+({T3}<<16))+({kq}<<13))" % (WS_OF+4096)),
     ("OUTOFF", "((({T3}<<15)+({cb}<<7))+({kq}<<5))"),
     ("WOOFF", "(((({kh}<<4)+{qp})<<13)+({cb}<<7))"),
     ("F4POLL", "(%d+({rb8}<<11))" % WS_F4),
     ("F4OFF", "(%d+((({rb16}<<3)+{hg1})<<7))" % WS_F4),
     ("OWN1", "(4294967295-((((({hg}^{hg1})-1)>>8)&1)<<(({rb16}<<1)+{ty})))"),
     ("GATE3", "(%d+({T3}<<7))" % WS_GATE),
     ("GATET", "(%d+({T}<<7))" % WS_GATE),
     ("GROW", "(((({rb16}<<7)+({hg1}<<4))+(w<<1))<<10)"),
     ("GOFF", "(%d+(((({rb16}<<7)+({hg1}<<4))+(w<<1))<<2))" % WS_GATE),
     ("PHIOFF", "((({hg1}^%d)<<11)+({rt3}<<10))" % hA),
     ("LDK", "((%d+({hr}<<16))+({rb8}<<8))" % WS_KVP),
     ("KVFW", "((((%d+({hr}<<11))+(({rb8}>>2)*544))+(({rb8}&1)*272))+(({rb8}&2)<<2))" % WS_KVF),
     ("F5OFF", "((%d+({hr}<<10))+({rb8}<<7))" % WS_F5),
     ("F5POLL", "(%d+({ha0}<<10))" % WS_F5),
     ("KVFR", "(%d+({ha0}<<11))" % WS_KVF),
     ("OAOFF", "((%d+({t}<<16))+({ha0}<<10))" % WS_OF),
    ]
    assert len(E) == 32
    return [(n, e.format(**d)) for n, e in E]
SR = {n: 48 + i for i, (n, _) in enumerate(stab())}
class _S:
    def __getattr__(self, n): return f"s{SR[n]}"
S = _S()

Q = [8, 12]; C = [16, 32]; S4 = [[48, 200], [64, 216]]; O = [80, 96]
KB_ = [112, 116]; VA = [120, 128]; VBB = [124, 132]
IDX, VK, VV, VL8, VWO, XW, XR, TR0, TR1, RR, OUTA, G4 = range(136, 148)
GV, M1, M2 = 148, 150, 151
VP0, VP1 = 0, 2
SCR, PHI = 152, 232
VXR, VWR, PHIA, VXD, VWD, BSEL = 8, 16, 18, 20, 22, 56
KO, VO, REDW, REDR, KVP0, KVP1, ONES = 24, 25, 26, 27, 28, 29, 30
def vtab():
    def trc(l): return ((l >> 2) & 3)*128 + ((l >> 4) & 1)*32 + (l & 3)*8
    def g0(w, l):
        r, hf = l & 31, l >> 5
        return [(w & 3)*4096 + r*128 + (((2*st + hf) ^ ((r >> 1) & 7))*16) for st in range(4)]
    def g2(w, l):
        hf = l >> 5
        v = trc(l) + (((w >> 2) ^ ((l >> 3) & 1))*64)
        return [16384 + hf*2048 + v, 16384 + hf*2048 + v + 2*SLOT, PHIL + (w >> 2)*1024 + (4*hf + ((l >> 2) & 3))*32 + (l & 3)*8, 131072 + hf*1024 + v]
    def g3(w, l):
        pi = (l & 0x33) | (((l >> 2) & 1) << 3) | (((l >> 3) & 1) << 2)
        return [pi*16, ((l >> 4) & 1)*65536 + (l >> 5)*256 + (l & 15)*16,
                (w >> 1)*32768 + 8192 + (w & 1)*8192 + l*16, (w >> 2)*65536 + 8192 + (w & 3)*2048 + l*16]
    def g4(w, l):
        own = ((l >> 4) & 1) == ((w >> 1) & 1); q0 = 2*(w & 1); hf = l >> 5
        k = [q*512 + hf*256 + (l & 15)*16 if own else 2048 + q*32 + hf*16 for q in (q0, q0+1)]
        one = 0x3f803f80 if (l & 27) == 16 else 0
        return k + [one, one]
    def bsel(sg):
        def g(w, l):
            t = (l & 31) - 4*(l >> 5) - 16*sg
            T = lambda j: 8*(j//4) + j % 4
            return [(0x3f80 if t == T(2*q) else 0) | (0x3f800000 if t == T(2*q+1) else 0) for q in range(4)]
        return g
    def tr0(w, l): return (w >> 1)*32768 + (((l >> 5)*512 + ((l >> 3) & 1)*64 + trc(l)) ^ ((w >> 1)*32))
    def g8(w, l): return [(l >> 3)*1024 + (((l & 7) ^ ((l >> 2) & 4))*16), XCH + w*3072 + l*16, XCH + (w ^ 4)*3072 + l*16, tr0(w, l)]
    def g9(w, l): return [tr0(w, l) ^ 64, (w >> 1)*32768 + (w & 1)*8192 + l*16, (l & 31)*1024 + (l >> 5)*16, (l & 31)*4]
    return [(8, g0), (16, g2), (24, g3), (28, g4), (56, bsel(0)), (60, bsel(1)), (140, g8), (144, g9)]
NG = len(vtab())

def mfma(a, d, A, B, Cc):
    a(f"v_mfma_f32_32x32x16_bf16 {vr(d,16)}, {vr(A,4)}, {vr(B,4)}, {Cc if isinstance(Cc,str) else vr(Cc,16)}")
def smfmac(a, d, A, B, idx):
    a(f"v_smfmac_f32_32x32x32_bf16 {vr(d,16)}, {vr(A,4)}, {vr(B,8)}, v{idx}")
def stamp(a, j, g=False):
    if OPT["gst"] and not g and j not in (0, 1, NST-1): return
    if STAMPS: a(f"s_mem{'' if OPT['cyc'] else 'real'}time s[{80+2*j}:{81+2*j}]")
def flush_stamps(a):
    if not STAMPS: return
    a("s_waitcnt vmcnt(0)")
    stamp(a, NST-1)
    a("s_waitcnt lgkmcnt(0)")
    if OPT["amp"]:
        j0, j1 = OPT["amp"]
        a(f"s_or_b32 s7, s2, s{W}")
        a("s_cmp_lg_u32 s7, 0")
        a("s_cbranch_scc1 L_end")
        a(f"s_sub_u32 s7, s{80+2*j1}, s{80+2*j0}")
        a("s_lshl_b32 s7, s7, 4")
        a.label("L_amp")
        a("s_memrealtime s[4:5]")
        a("s_waitcnt lgkmcnt(0)")
        a(f"s_sub_u32 s6, s4, s{80+2*(NST-1)}")
        a("s_cmp_lt_u32 s6, s7")
        a("s_cbranch_scc1 L_amp")
        return
    a("s_lshl_b32 s7, s2, 3")
    a(f"s_add_u32 s7, s7, s{W}")
    a("s_lshl_b32 s7, s7, 6")
    a(f"s_add_u32 s7, s7, {0x2000000}")
    a("s_mov_b64 exec, 1")
    a("v_mov_b32 v1, 0")
    for j in range(NST):
        a(f"v_mov_b32 v2, s{80+2*j}")
        a(f"buffer_store_dword v2, v1, s[32:35], s7 offen offset:{4*j}")
def pub(a, soff):
    a(f"v_mov_b32 v4, s{TAG}")
    a("s_mov_b64 exec, 1")
    a(f"buffer_store_dword v4, v3, s[32:35], {soff} offen{SC}")
    a("s_mov_b64 exec, -1")
def poll(a, lab, vaddr, vdst, soff, landed=False, own=None):
    a(f"s_mov_b32 s{CNT}, {POLL_LIMIT}")
    a(f"s_branch {lab}_{'cmp' if landed else 'chk'}")
    a.label(lab)
    a(f"buffer_load_dword v{vdst}, v{vaddr}, s[32:35], {soff} offen{SC}")
    a.label(lab + "_chk")
    a("s_waitcnt vmcnt(0)")
    a.label(lab + "_cmp")
    a(f"v_cmp_ne_u32 s[{CP}:{CP+1}], s{TAG}, v{vdst}")
    a(f"s_sub_u32 s{CNT}, s{CNT}, 1")
    a(f"s_or_b32 s{CP}, s{CP}, s{CP+1}")
    if own is not None: a(f"s_and_b32 s{CP}, s{CP}, {own}")
    a(f"s_cbranch_scc0 {lab}_ok")
    a(f"s_cmp_eq_u32 s{CNT}, 0")
    a(f"s_cbranch_scc1 {lab}_ok")
    a("s_sleep 1")
    a(f"s_branch {lab}")
    a.label(lab + "_ok")
SPINS = []
def check_flags(a, lab, mask, vdst, soff):
    a(f"v_cmp_ne_u32 vcc, s{TAG}, v{vdst}")
    a("s_nop 1")
    a(f"s_cbranch_vccnz {lab}_spin")
    a.label(f"{lab}_back")
    def spin(a):
        a.label(f"{lab}_spin")
        a(f"v_and_b32 v6, {mask}, v{VL8}")
        poll(a, lab, 6, vdst, soff, landed=True)
        a(f"s_branch {lab}_back")
    SPINS.append(spin)

class Fill:
    def __init__(self): self.g = []
    def __call__(self, *lines, after=0): self.g.append((after, list(lines)))
    def pop(self, a, n, g):
        while n > 0 and self.g and self.g[0][0] <= g:
            _, ls = self.g.pop(0)
            for l in ls:
                if isinstance(l, tuple): a.vmem(*l)
                elif callable(l): l(a)
                else: a(l)
            n -= len(ls)

def gate(a):
    X, Wt, t = 96, 104, 56
    for q in range(8):
        u = t + 4*(q & 1)
        a(f"v_lshlrev_b32 v{u}, 16, v{X+q}")
        a(f"v_lshlrev_b32 v{u+2}, 16, v{Wt+q}")
        a(f"v_and_b32 v{u+1}, 0xffff0000, v{X+q}")
        a(f"v_and_b32 v{u+3}, 0xffff0000, v{Wt+q}")
        a(f"v_pk_mul_f32 {vr(u,2)}, {vr(u,2)}, {vr(u+2,2)}")
        a(f"v_cvt_pk_bf16_f32 v{u+2}, v{u}, v{u+1}")
        d = 52 if q == 0 else u
        a(f"v_lshlrev_b32 v{d}, 16, v{u+2}")
        a(f"v_and_b32 v{d+1}, 0xffff0000, v{u+2}")
        if q: a(f"v_pk_add_f32 v[52:53], v[52:53], {vr(u,2)}")
    s = 52
    a(f"v_add_f32 v{s}, v{s}, v{s+1}")
    a(f"v_mov_b32 v{s+1}, v{s}")
    a("v_lshrrev_b32 v6, 3, v1")
    a(f"v_permlane16_swap_b32 v{s}, v{s+1}")
    a(f"v_add_f32 v{s}, v{s}, v{s+1}")
    for r in (8, 4, 2, 1):
        a(f"v_add_f32_dpp v{s}, v{s}, v{s} row_ror:{r} row_mask:0xf bank_mask:0xf")
    a(f"v_cvt_pk_bf16_f32 v{s}, v{s}, v{s}")
    a(f"v_lshlrev_b32 v{s}, 16, v{s}")
    a(f"v_mul_f32 v{s}, {f32(-LOG2E)}, v{s}")
    a(f"v_exp_f32 v{s}, v{s}")
    a(f"v_add_f32 v{s}, 1.0, v{s}")
    a(f"v_rcp_f32 v{s}, v{s}")
    a(f"v_cvt_pk_bf16_f32 v{s}, v{s}, v{s}")
    a(f"v_lshlrev_b32 v{s}, 16, v{s}")

def maxtree(a, dst, src, first):
    if first:
        a(f"v_max3_f32 v{dst}, v{src}, v{src+1}, v{src+2}")
        for j in range(3, 15, 2): a(f"v_max3_f32 v{dst}, v{dst}, v{src+j}, v{src+j+1}")
        a(f"v_max_f32 v{dst}, v{dst}, v{src+15}")
    else:
        for j in range(0, 16, 2): a(f"v_max3_f32 v{dst}, v{dst}, v{src+j}, v{src+j+1}")
def kv_dma(a, rr, kind):
    a(f"s_add_u32 m0, {S.LDS0}, {kind*65536+rr*4096}")
    a(f"s_add_u32 s{TA}, {S.KOFF}, {kind*(WS_VB-WS_KB)+rr*4096}")
    a.vmem(f"buffer_load_dwordx4 v3, s[32:35], s{TA} offen{SC} lds", f"r{rr}")
def wo_dma(a, rr, kind):
    a(f"s_add_u32 m0, {S.LDS0}, {kind*65536+rr*4096}")
    a(f"s_add_u32 s{TA}, {S.WOOFF}, {kind*262144+(rr&3)*32768}")
    R = 16 if rr < 4 else 20
    a.vmem(f"buffer_load_dwordx4 v{VWO}, s[{R}:{R+3}], s{TA} offen lds", f"w{rr}")

def phase1(a):
    ACC = [64, 80, 96]
    a("s_cmp_ge_u32 s2, 256")
    a("s_cbranch_scc1 L_end")
    stamp(a, 0)
    a("s_load_dwordx4 s[4:7], s[0:1], 0")
    a("s_load_dwordx2 s[10:11], s[0:1], 40")
    a("s_load_dwordx2 s[32:33], s[0:1], 80")
    a("s_load_dwordx2 s[8:9], s[0:1], 16")
    a("s_load_dwordx2 s[12:13], s[0:1], 56")
    a(f"s_getpc_b64 s[{VT}:{VT+1}]")
    a.label("L_pc")
    a("v_lshrrev_b32 v2, 6, v0")
    a("v_and_b32 v1, 63, v0")
    a(f"s_lshr_b32 s{J}, s2, 3")
    a(f"v_readfirstlane_b32 s{W}, v2")
    a("v_lshlrev_b32 v3, 4, v1")
    a(f"s_mov_b64 s[14:15], s[{VT}:{VT+1}]")
    a(f"s_add_u32 s{VT}, s{VT}, L_vtab-L_pc")
    a(f"s_addc_u32 s{VT+1}, s{VT+1}, L_vtab@rel32@hi+12")
    def cpf_addr():
        a(f"s_and_b32 s44, s{J}, 15")
        a("s_lshl_b32 s44, s44, 13")
        a("s_sub_u32 s45, s44, 32768")
        a("s_cselect_b32 s44, s44, s45")
        a(f"s_cselect_b64 s[34:35], s[14:15], s[{VT}:{VT+1}]")
        a(f"s_cselect_b32 s45, L_code_end-L_pc-16, -1")
        a("v_lshl_add_u32 v24, v0, 4, s44")
        a("v_min_u32 v24, s45, v24")
    def cpf():
        a.vmem("global_load_dwordx4 v[112:115], v24, s[34:35]", "x")
    def t0():
        a.vmem(f"global_load_dwordx4 v[8:11], v23, s[{VT}:{VT+1}]", "t0")
        a.vmem(f"global_load_dwordx4 v[16:19], v23, s[{VT}:{VT+1}] offset:1024", "t0")
    if OPT["cpf"]: cpf_addr()
    if OPT["cpf"] == 1: cpf()
    a(f"v_mul_u32_u24 v23, {NG*1024}, v2")
    a("v_add_u32 v23, v23, v3")
    if OPT["t0pos"] == 0: t0()
    a("v_lshrrev_b32 v7, 3, v1")
    a("v_and_b32 v4, 7, v1")
    a("v_lshrrev_b32 v5, 1, v7")
    a("v_xor_b32 v6, v4, v5")
    a("v_lshlrev_b32 v6, 4, v6")
    a(f"v_lshl_add_u32 v{VXD}, v7, 10, v6")
    a(f"v_xor_b32 v{VXD+1}, 64, v{VXD}")
    a(f"v_add_u32 v{VXD+1}, {8192-1024}, v{VXD+1}")
    a("v_lshrrev_b32 v6, 2, v1")
    a("v_and_b32 v6, 4, v6")
    a("v_xor_b32 v6, v4, v6")
    a("v_mul_u32_u24 v7, 3072, v7")
    a(f"v_lshl_add_u32 v{VWD}, v6, 4, v7")
    a(f"s_and_b32 s{TY}, s{J}, 1")
    if OPT["map2d"]:
        a(f"s_lshr_b32 s{XOFF}, s2, 5")
        a("s_and_b32 s44, s2, 4")
        a(f"s_lshl1_add_u32 s{XOFF}, s44, s{XOFF}")
    else:
        a(f"s_lshr_b32 s{XOFF}, s2, 4")
    if OPT["rot"] == 4:
        a(f"s_lshl1_add_u32 s{J}, s{J}, s{XOFF}")
    elif OPT["rot"] == 5:
        a(f"s_lshl1_add_u32 s{J}, s{J}, s{XOFF}")
        a(f"s_add_u32 s{J}, s{J}, s2")
    elif OPT["rot"] >= 1:
        a(f"s_lshl2_add_u32 s{J}, s{TY}, s{XOFF}")
    if OPT["rot"] == 2: a(f"s_add_u32 s{J}, s{J}, s2")
    if OPT["rot"] == 3:
        a("s_lshl_b32 s44, s2, 1")
        a(f"s_add_u32 s{J}, s{J}, s44")
    a(f"s_lshl3_add_u32 s{XOFF}, s{XOFF}, s{W}")
    a(f"s_lshl_b32 s{XOFF}, s{XOFF}, 14")
    a(f"s_mul_i32 s{WOFF}, s{W}, 24576")
    a(f"s_lshl_b32 s{MX}, s{W}, 11")
    a(f"s_lshl_b32 s{MW}, s{W}, 10")
    if OPT["map2d"]:
        a("s_and_b32 s44, s2, 3")
        a("s_bfe_u32 s45, s2, 0x10004")
        a("s_lshl1_add_u32 s44, s44, s45")
    else:
        a("s_and_b32 s44, s2, 7")
    a("s_lshl_b32 s44, s44, 7")
    a(f"s_xor_b32 s45, s44, {OPT['hga']*128}")
    a(f"s_lshl_b32 s14, s{TY}, 10")
    a("s_add_u32 s15, s14, s44")
    a("s_sub_u32 s14, s45, s14")
    a("s_add_u32 s14, s14, 1024")
    a(f"s_cmp_eq_u32 s{TY}, 0")
    a("s_cselect_b32 s44, s45, s44")
    a("s_add_u32 s44, s44, 1024")
    a("s_sub_u32 s22, 0x180000, s14")
    a("s_sub_u32 s26, 0x180000, s44")
    a("s_sub_u32 s30, 0x180000, s15")
    a("s_mov_b32 s23, 0x00020000")
    a("s_mov_b32 s27, 0x00020000")
    a("s_mov_b32 s31, 0x00020000")
    a("s_mov_b32 s18, 0x200000")
    a("s_mov_b32 s19, 0x00020000")
    a(f"s_cmp_eq_u32 s{TY}, 0")
    a("s_waitcnt lgkmcnt(0)")
    a("s_cselect_b64 s[24:25], s[6:7], s[10:11]")
    a("s_mov_b64 s[16:17], s[4:5]")
    a("s_add_u32 s20, s6, s14")
    a("s_addc_u32 s21, s7, 0")
    a("s_add_u32 s24, s24, s44")
    a("s_addc_u32 s25, s25, 0")
    a("s_add_u32 s28, s10, s15")
    a("s_addc_u32 s29, s11, 0")
    def dma_part(c, p):
        sl = (c & 3) * SLOT
        if p == 0:
            a(f"s_add_u32 m0, s{MX}, {sl}")
            a(f"s_add_u32 s{TA}, s{J}, {c}")
            a(f"s_and_b32 s{TA}, s{TA}, 7")
            a(f"s_lshl_b32 s{TB}, s{TA}, 7")
            a(f"s_add_u32 s{TB}, s{TB}, s{XOFF}")
            a.vmem(f"buffer_load_dwordx4 v{VXD}, s[16:19], s{TB} offen lds", f"c{c}")
            a.vmem(f"buffer_load_dwordx4 v{VXD+1}, s[16:19], s{TB} offen offset:1024 lds", f"c{c}")
        else:
            a(f"s_add_u32 m0, s{MX}, {sl+16384}")
            a(f"s_mul_i32 s{TC}, s{TA}, 196608")
            a(f"s_add_u32 s{TC}, s{TC}, s{WOFF}")
            a.vmem(f"buffer_load_dwordx4 v{VWD}, s[28:31], s{TC} offen lds", f"c{c}")
            a.vmem(f"buffer_load_dwordx4 v{VWD}, s[24:27], s{TC} offen offset:1024 lds", f"c{c}")
    W0L = [131072 + c*8192 for c in range(4)] + [16384, 24576, 49152, 57344]
    def dma_w0(c):
        a(f"s_add_u32 m0, s{MW}, {W0L[c]}")
        a(f"s_add_u32 s{TB}, s{J}, {c}")
        a(f"s_and_b32 s{TB}, s{TB}, 7")
        a(f"s_mul_i32 s{TB}, s{TB}, 196608")
        a(f"s_add_u32 s{TB}, s{TB}, s{WOFF}")
        a.vmem(f"buffer_load_dwordx4 v{VWD}, s[20:23], s{TB} offen lds", "wa" if c < 4 else "wb")
    def dma(c):
        for p in range(2): dma_part(c, p)
    dma(0)
    if OPT["t0pos"] == 1: t0()
    if OPT["cpf"] == 2: cpf()
    a(f"s_load_dword s{TAG}, s[32:33], {WS_E}")
    a(f"s_lshl3_add_u32 s44, s2, s{W}")
    a("s_lshl_b32 s44, s44, 7")
    a(f"s_add_u32 s44, s44, {8*NG*1024}")
    a(f"s_load_dwordx16 s[48:63], s[{VT}:{VT+1}], s44")
    a(f"s_load_dwordx16 s[64:79], s[{VT}:{VT+1}], s44 offset:64")
    if OPT["bar0"]: a("s_barrier")
    dma(1)
    if OPT["cpf"] == 3: cpf()
    a(f"s_mov_b32 s34, {WS_USED}")
    a("s_mov_b32 s35, 0x00020000")
    a(f"s_mov_b32 s{MASK}, 0x0000ffff")
    a(f"s_mov_b32 s{MASK+1}, 0x0000ffff")
    a(f"s_mov_b32 s{L2E}, {f32(LOG2E)}")
    a(f"s_mov_b32 s{L2E+1}, {f32(0.25*LOG2E)}")
    a(f"s_mov_b32 s{ATT}, 0")
    if OPT["pre2"]: dma(2)
    XB = 120
    LA = OPT["la"]; NB = LA + 1
    def tl(k):
        r = vtab()[k][0]
        return f"global_load_dwordx4 {vr(r,4)}, v7, s[{VT}:{VT+1}] offset:{(k-4)*1024}"
    def rd(g):
        if g >= 32:
            g -= 32
            c, st = g >> 2, g & 3
            f = w0reg(g)
            ad, o = (19, W0L[c] - 131072) if c < 4 else (5, W0L[c] - 16384)
            return [f"ds_read_b64_tr_b16 {vr(f,2)}, v{ad} offset:{o+st*2048}", f"ds_read_b64_tr_b16 {vr(f+2,2)}, v{ad} offset:{o+st*2048+512}"]
        c, st = g >> 2, g & 3
        sl = c & 3
        fr = 32 + 8*(g % NB)
        L = [f"ds_read_b128 {vr(XB+4*g,4)}, v{VXR+4*(sl>>1)+st} offset:{(sl&1)*SLOT}"]
        for s in range(2):
            o = st*4096 + s*1024 + (sl & 1)*SLOT
            L.append(f"ds_read_b64_tr_b16 {vr(fr+4*s,2)}, v{VWR+(sl>>1)} offset:{o}")
            L.append(f"ds_read_b64_tr_b16 {vr(fr+2+4*s,2)}, v{VWR+(sl>>1)} offset:{o+512}")
        return L
    def w0reg(g): return [112, 116, 248, 252][g] if g < 4 else XB + 4*(g-4)
    EX = {}
    def ex(g, fn): EX.setdefault(g, []).append(fn)
    ex(0, lambda: [a(f"v_add_u32 v{VXR+4+st}, {2*SLOT}, v{VXR+st}") for st in range(4)])
    ex(0, lambda: a("v_add_u32 v7, 4096, v23"))
    sched1 = OPT["ds1"]
    for (c, p), g in sched1.items(): ex(g, (lambda c=c, p=p: dma_part(c, p)))
    for c, g in enumerate(OPT["ds0"]): ex(g, (lambda c=c: dma_w0(c)))
    def phi_dma():
        a(f"s_and_b32 s{TB}, {S.PHIOFF}, 1024")
        a(f"s_add_u32 m0, s{TB}, {PHIL}")
        a(f"v_add_u32 v6, {S.PHIOFF}, v3")
        a.vmem("global_load_lds_dwordx4 v6, s[8:9]", "wb")
    ex(OPT["phiat"], phi_dma)
    ex(OPT["t2at"], lambda: a.vmem(tl(2), "t2"))
    def touch():
        a(f"v_add_u32 v6, {S.PHIOFF}, v3")
        a.vmem("global_load_dword v4, v6, s[8:9]", "x")
        a.vmem("global_load_dword v0, v3, s[12:13]", "x")
    if OPT["tchat"] >= 0: ex(OPT["tchat"], touch)
    def touch0():
        a(f"s_lshr_b32 s{TB}, s2, 5")
        a(f"s_mul_i32 s{TB}, s{TB}, 196608")
        a(f"s_add_u32 s{TB}, s{TB}, s{WOFF}")
        a.vmem(f"buffer_load_dword v2, v{VWD}, s[20:23], s{TB} offen", "x")
    if OPT["t0at"] == -1: touch0()
    elif OPT["t0at"] >= 0: ex(OPT["t0at"], touch0)
    def zst():
        a("v_mov_b64 v[8:9], -1")
        a("v_mov_b64 v[10:11], -1")
        a.vmem(f"buffer_store_dwordx4 v[8:11], v3, s[32:35], {S.OFB} offen{SC}", "st")
    ex(OPT["zat"], zst)
    def cinit():
        a(f"s_mov_b32 m0, {CNTW}")
        a("s_mov_b32 s7, 0x200000")
        a.vmem("buffer_load_dword v3, s[16:19], s7 offen lds", "wb")
    if OPT["cnt"]: ex(OPT["ciat"], cinit)
    ex(OPT["t2at"] - 2, lambda: a.vmem(tl(3), "t2"))
    ex(OPT["t2at"] + 1, lambda: a.vmem(tl(4), "t3"))
    ex(OPT["t2at"] + 2, lambda: a.vmem(tl(5), "t3"))
    assert LA == 2
    ex(OPT["phiat"] + 1, lambda: a(f"v_subrev_u32 v5, {131072-16384}, v19"))
    a.wait_vm("c0", "t0", extra="lgkmcnt(0)")
    a("s_barrier")
    stamp(a, 1)
    for g in range(LA):
        for l in rd(g): a(l)
    nowait = 0
    for g in range(32):
        c, st = g >> 2, g & 3
        if st == 4 - LA:
            a.wait_vm(f"c{c+1}" if c < 7 else OPT["last"], extra="lgkmcnt(0)")
            a("s_barrier")
            if OPT["gst"] == 1 and c < 7: stamp(a, 2+c, True)
            if c == 0: a(f"s_add_u32 s{TAG}, s{TAG}, 0x9e3779b1")
            nowait = LA - 1
        elif nowait: nowait -= 1
        else: a(f"s_waitcnt lgkmcnt({5*(LA-1)})")
        R = rd(g + LA)
        if g == 31:
            for k in range(LA, 4): R += rd(32 + k)
        fr = 32 + 8*(g % NB); x = XB + 4*g
        if OPT["al"]: a.raw(".p2align 3")
        mfma(a, ACC[2], fr, x, "0" if g == 0 else ACC[2])
        for l in R[:3]: a(l)
        mfma(a, ACC[1], x, fr+4, "0" if g == 0 else ACC[1])
        for l in R[3:]: a(l)
        for fn in EX.get(g, []): fn()
    stamp(a, 2)
    if OPT["gst"] == 1: stamp(a, 9, True)
    def st2(j):
        if OPT["gst"] == 2: stamp(a, j, True)
    st2(2)
    if OPT["gst"] == 3: stamp(a, 2, True)
    E2 = range(2)
    PH = [160, 176]; EP = [64, 80]; T = [200, 204]
    def f1(half=None):
        tag = "" if half is None else "ab"[half]
        if half is not None:
            a(f"s_bitcmp1_b32 s{W}, 2")
            a(f"s_cbranch_scc{1-half} L_skip_f1{tag}")
        if OPT["cnt"]:
            a(f"v_mov_b32 v6, {CNTW}")
            a("v_mov_b32 v4, 1")
            a("s_waitcnt vmcnt(0)")
            a("s_mov_b64 exec, 1")
            a("ds_add_rtn_u32 v4, v6, v4")
            a("s_mov_b64 exec, -1")
            a("s_waitcnt lgkmcnt(0)")
            a(f"v_readfirstlane_b32 s{TB}, v4")
            a("s_nop 1")
            a(f"s_cmp_lg_u32 s{TB}, 7")
        else:
            a("s_waitcnt vmcnt(0)")
            a(f"s_cmp_lg_u32 s{W}, 0")
            a("s_barrier")
        a.vm = []
        a(f"s_cbranch_scc1 L_f1done{tag}")
        pub(a, S.F1OFF)
        a.label(f"L_f1done{tag}")
        stamp(a, 3)
        if half is not None:
            gld(tag)
            a.label(f"L_skip_f1{tag}")
    def st_v():
        for g in range(2):
            for q in range(4): a(f"v_cvt_pk_bf16_f32 v{40+4*g+q}, v{ACC[1]+8*g+2*q}, v{ACC[1]+8*g+2*q+1}")
        a(f"s_add_u32 s{TB}, {S.QK0}, 65536")
        a(f"s_cmp_eq_u32 s{TY}, 0")
        if "t2" in a.vm: a.wait_vm("t2")
        a("s_cbranch_scc1 L_p1_q")
        a(f"buffer_store_dwordx4 v[40:43], v{VO}, s[32:35], {S.VOFF} offen{SC}")
        a(f"buffer_store_dwordx4 v[44:47], v{VO}, s[32:35], {S.VOFF} offen offset:512{SC}")
        a("s_branch L_p1_qk")
        a.label("L_p1_q")
        for i in range(0, 16, 2): a(f"v_pk_mul_f32 v[{ACC[2]+i}:{ACC[2]+i+1}], v[{ACC[2]+i}:{ACC[2]+i+1}], s[{L2E}:{L2E+1}] op_sel:[0,1]")
        a(f"v_mov_b32 v{KO}, v3")
        a.label("L_p1_qk")
    def st_qk(e):
        for q in range(4): a(f"v_cvt_pk_bf16_f32 v{32+4*e+q}, v{ACC[2]+8*e+2*q}, v{ACC[2]+8*e+2*q+1}")
        a.vmem(f"buffer_store_dwordx4 {vr(32+4*e,4)}, v{KO}, s[32:35], {S.QK0 if e == 0 else 's%d' % TB} offen{SC}", "st")
    def gld(tag=""):
        a("v_lshlrev_b32 v6, 5, v1")
        a("v_and_b32 v4, 0x3ff, v6")
        a(f"s_cmp_eq_u32 s{TY}, 0")
        a(f"s_cbranch_scc1 L_skip_gl{tag}")
        a("global_load_dwordx4 v[104:107], v4, s[12:13]")
        a("global_load_dwordx4 v[108:111], v4, s[12:13] offset:16")
        a(f"buffer_load_dwordx4 v[96:99], v6, s[16:19], {S.GROW} offen")
        a(f"buffer_load_dwordx4 v[100:103], v6, s[16:19], {S.GROW} offen offset:16")
        a.label(f"L_skip_gl{tag}")
    def ptrs():
        a("s_load_dwordx2 s[16:17], s[0:1], 24")
        a("s_load_dwordx2 s[20:21], s[0:1], 48")
        a("s_load_dwordx2 s[24:25], s[0:1], 64")
        a("s_mov_b32 s18, 0x80000")
        a("s_mov_b32 s22, 0x80000")
        a("s_mov_b32 s26, 0x200000")
    F = OPT["f1g"]
    E2X = {1: [st_v], 2: [lambda: st_qk(0)], 3: [lambda: st_qk(1)]}
    if F < 32: E2X[F] = [gld]
    def step2(g, fill=None):
        if g == 5: st2(3)
        if g == 12 and "wb" in a.vm:
            st2(4)
            a.wait_vm("wb")
            a("s_barrier")
            st2(5)
        if g == F:
            st2(6); f1(); st2(7)
        if g == OPT["fb"]: f1(1)
        a(f"s_waitcnt lgkmcnt({(6 if g < 28 else 2*(31-g) + 4)})")
        if OPT["al"]: a.raw(".p2align 3")
        mfma(a, ACC[0], w0reg(g), XB+4*g, "0" if g == 0 else ACC[0])
        if g + 4 < 32:
            for l in rd(32 + g + 4): a(l)
        if g == 27:
            for e in range(2):
                a(f"ds_read_b64_tr_b16 {vr(248+4*e,2)}, v{PHIA} offset:{e*512}")
                a(f"ds_read_b64_tr_b16 {vr(250+4*e,2)}, v{PHIA} offset:{e*512+256}")
        for fn in E2X.get(g, []): fn()
        if fill:
            for _ in range(fill[1]):
                if fill[0]: a(fill[0].pop(0))
    L = ["v_mov_b32 v6, 0x3f803f80"]
    for q in range(8):
        L.append(f"v_cndmask_b32 v{96+q}, v6, v{40+q}, s[{MASK}:{MASK+1}]")
        L.append(f"v_cndmask_b32 v{104+q}, v{40+q}, v6, s[{MASK}:{MASK+1}]")
    if OPT["p2prio"]: a("s_setprio 2")
    for g in range(32): step2(g, (L, 3) if g >= 5 else None)
    if OPT["p2prio"]: a("s_setprio 0")
    assert not L
    st2(8)
    for e in E2:
        for q in range(4): a(f"v_cvt_pk_bf16_f32 v{192+4*e+q}, v{ACC[0]+8*e+2*q}, v{ACC[0]+8*e+2*q+1}")
    a("s_waitcnt lgkmcnt(0)")
    mfma(a, PH[0], 248, 192, "0")
    mfma(a, PH[1], 252, 196, "0")
    if F < 32: ptrs()
    st2(9)
    for k in range(0, 16, 2): a(f"v_mov_b64 {vr(VA[0]+k,2)}, {vr(ONES,2)}")
    a(f"s_and_b32 s{TB}, {S.LDS0}, 0x8000")
    a(f"v_mov_b32 v{IDX}, 0xdddddddd")
    a(f"v_add_u32 v{VK}, s{TB}, v3")
    a(f"s_add_u32 s{TB}, s{TB}, 65536")
    a(f"v_and_b32 v{VV}, 0x1ff, v{VO}")
    a(f"v_add_u32 v{VV}, s{TB}, v{VV}")
    a(f"v_and_b32 v{VL8}, 0x1f0, v3")
    a(f"v_lshlrev_b32 v{VL8}, 3, v{VL8}")
    a(f"v_mov_b32 v{GV}, v7")
    PEND = []
    def point(n):
        if OPT["gst"] == 3 and n in (0, 2, 4, 5, 6, 7): stamp(a, {0: 3, 2: 4, 4: 5, 5: 6, 6: 7, 7: 8}[n], True)
        if n == F - 32:
            if OPT["fb"] >= 0: f1(0)
            else:
                f1()
                gld()
            ptrs()
        if n == OPT["pollat"]:
            a(f"s_cmp_lg_u32 s{W}, 0")
            a("s_cbranch_scc1 L_p2_np")
            a(f"buffer_load_dword v{VP0}, v{VL8}, s[32:35], {S.F1POLL} offen{SC}")
            a.label("L_p2_np")
        if n == OPT["goat"]:
            stamp(a, 4)
            a(f"s_cmp_lg_u32 s{W}, 0")
            a("s_cbranch_scc1 L_p2_go")
            poll(a, "L_pollF1", VL8, VP0, S.F1POLL, own=S.OWN1)
            a.label("L_p2_go")
            a("s_barrier")
            stamp(a, 5)
            PEND.extend([lambda: a.vmem(f"buffer_load_dwordx4 {vr(SCR,4)}, v3, s[32:35], {S.K0OFF} offen{SC}", "q"),
                         lambda: a.vmem(f"buffer_load_dwordx4 {vr(Q[0],4)}, v3, s[32:35], {S.QOFF0} offen{SC}", "q"),
                         lambda: a.vmem(f"buffer_load_dwordx4 {vr(Q[1],4)}, v3, s[32:35], {S.QOFF1} offen{SC}", "q"),
                         lambda: kv_dma(a, 0, 0), lambda: kv_dma(a, 0, 1)])
            a.every = [OPT["sprd"], 0, PEND]
            if OPT["sprd"] == 0 or n >= 6:
                while PEND: PEND.pop(0)()
        if n == 6:
            while PEND: PEND.pop(0)()
            a(f"s_waitcnt vmcnt({len(a.vm)})")
    point(0)
    if OPT["rp"]:
        for e in E2:
            for q in range(4): a(f"v_cvt_pk_bf16_f32 v{T[e]+q}, v{PH[e]+2*q}, v{PH[e]+2*q+1}")
        for e in E2:
            for q in range(4):
                a(f"v_lshlrev_b32 v{PH[e]+2*q}, 16, v{T[e]+q}")
                a(f"v_and_b32 v{PH[e]+2*q+1}, 0xffff0000, v{T[e]+q}")
    for e in E2:
        P = PH[e]; t = T[e]
        a(f"v_max3_f32 v{t}, v{P}, v{P+1}, v{P+2}")
        a(f"v_max3_f32 v{t+1}, -v{P}, -v{P+1}, -v{P+2}")
        a(f"v_max3_f32 v{t}, v{t}, v{P+3}, v{P+4}")
        a(f"v_max3_f32 v{t+1}, v{t+1}, -v{P+3}, -v{P+4}")
        a(f"v_max3_f32 v{t}, v{t}, v{P+5}, v{P+6}")
        a(f"v_max3_f32 v{t+1}, v{t+1}, -v{P+5}, -v{P+6}")
        a(f"v_max_f32 v{t}, v{t}, v{P+7}")
        a(f"v_max_f32_e64 v{t+1}, v{t+1}, -v{P+7}")
    point(1)
    for e in E2: a(f"v_permlane32_swap_b32 v{T[e]}, v{T[e]+1}")
    for e in E2: a(f"v_max_f32 v{T[e]}, v{T[e]}, v{T[e]+1}")
    for e in E2: a(f"v_mul_f32 v{T[e]}, {f32(-LOG2E)}, v{T[e]}")
    for e in E2: a(f"v_mov_b32 v{T[e]+1}, v{T[e]}")
    for e in E2: a(f"v_permlane32_swap_b32 v{T[e]}, v{T[e]+1}")
    for e in E2:
        for q in range(4):
            a(f"v_pk_fma_f32 {vr(EP[e]+2*q,2)}, {vr(PH[e]+2*q,2)}, s[{L2E}:{L2E+1}], {vr(T[e],2)} op_sel_hi:[1,0,0]")
            a(f"v_pk_fma_f32 {vr(EP[e]+8+2*q,2)}, {vr(PH[e]+2*q,2)}, s[{L2E}:{L2E+1}], {vr(T[e],2)} op_sel:[0,0,1] op_sel_hi:[1,0,1] neg_lo:[1,0,0] neg_hi:[1,0,0]")
    point(2)
    for j in range(16): a(f"v_exp_f32 v{EP[0]+j}, v{EP[0]+j}")
    point(3)
    for j in range(16): a(f"v_exp_f32 v{EP[1]+j}, v{EP[1]+j}")
    point(4)
    for e in E2:
        P = PH[e]
        for sg in range(2):
            b = EP[e] + 8*sg
            a(f"v_pk_add_f32 {vr(P+4*sg,2)}, {vr(b,2)}, {vr(b+2,2)}")
            a(f"v_pk_add_f32 {vr(P+4*sg+2,2)}, {vr(b+4,2)}, {vr(b+6,2)}")
    for e in E2:
        for sg in range(2): a(f"v_pk_add_f32 {vr(PH[e]+4*sg,2)}, {vr(PH[e]+4*sg,2)}, {vr(PH[e]+4*sg+2,2)}")
    for e in E2:
        for sg in range(2): a(f"v_add_f32 v{T[e]+sg}, v{PH[e]+4*sg}, v{PH[e]+4*sg+1}")
    for e in E2: a(f"v_permlane32_swap_b32 v{T[e]}, v{T[e]+1}")
    for e in E2: a(f"v_add_f32 v{T[e]}, v{T[e]}, v{T[e]+1}")
    for e in E2: a(f"v_rcp_f32 v{T[e]}, v{T[e]}")
    for e in E2: a(f"v_mov_b32 v{T[e]+1}, v{T[e]}")
    for e in E2: a(f"v_permlane32_swap_b32 v{T[e]}, v{T[e]+1}")
    point(5)
    for e in E2:
        for q in range(4):
            a(f"v_pk_mul_f32 {vr(EP[e]+2*q,2)}, {vr(EP[e]+2*q,2)}, {vr(T[e],2)} op_sel_hi:[1,0]")
            a(f"v_pk_mul_f32 {vr(EP[e]+8+2*q,2)}, {vr(EP[e]+8+2*q,2)}, {vr(T[e],2)} op_sel:[0,1]")
    for e in E2:
        for q in range(8): a(f"v_cvt_pk_bf16_f32 v{PHI+8*e+q}, v{EP[e]+2*q}, v{EP[e]+2*q+1}")
    point(6)
    a(f"s_cmp_eq_u32 s{TY}, 0")
    a("s_cbranch_scc0 L_skip_t0")
    for e in E2:
        mfma(a, PH[e], PHI+8*e, BSEL, "0")
        mfma(a, PH[e], PHI+4+8*e, BSEL+4, PH[e])
    for e in E2:
        for q in range(8): a(f"v_cvt_pk_bf16_f32 v{192+8*e+q}, v{PH[e]+2*q}, v{PH[e]+2*q+1}")
        mfma(a, 64+16*e, 192+8*e, 96+8*e, "0")
        mfma(a, 64+16*e, 196+8*e, 100+8*e, 64+16*e)
    for e in E2:
        for q in range(4): a(f"ds_write_b128 v{REDW}, {vr(64+16*e+4*q,4)} offset:{e*4096+q*1024}")
    a("s_branch L_p1_done")
    a.label("L_skip_t0")
    gate(a)
    a.label("L_p1_done")
    point(7)


def phase2(a):
    def zero_acc():
        for i in range(0, 32, 2): a(f"v_mov_b64 v[{O[0]+i}:{O[0]+i+1}], 0")
    def prime_reads():
        a(f"ds_read_b128 {vr(KB_[0],4)}, v{VK}")
        a(f"ds_read_b128 {vr(KB_[1],4)}, v{VK} offset:1024")
        a(f"s_mov_b64 exec, s[{MASK}:{MASK+1}]")
        a(f"ds_read_b128 {vr(VA[0],4)}, v{VV}")
        a(f"ds_read_b128 {vr(VBB[0],4)}, v{VV} offset:512")
        a("s_mov_b64 exec, -1")
    def negmax():
        a(f"v_permlane32_swap_b32 v{M1}, v{M2}")
        a(f"v_max_f32 v{M1}, v{M1}, v{M2}")
        a(f"v_sub_f32 v{M1}, 0, v{M1}")
        a(f"v_mov_b32 v{M2}, v{M1}")
        a(f"v_permlane32_swap_b32 v{M1}, v{M2}")
    def cfill(q):
        for i in range(0, 16, 2): a(f"v_pk_mov_b32 {vr(C[q]+i,2)}, {vr(M1,2)}, {vr(M1,2)} op_sel:[{q},{q}]")
    a(f"v_mov_b32 v5, {FLAG}")
    a("v_mov_b32 v7, 0")
    a("v_mov_b64 v[196:197], 0")
    a("v_mov_b64 v[198:199], 0")
    a.wait_vm("q")
    mfma(a, S4[0][1], SCR, Q[0], "0")
    mfma(a, S4[1][1], SCR, Q[1], "0")
    a(f"v_mov_b64 v[156:157], v[{KVP0}:{KVP1}]")
    a(f"v_mov_b32 v158, v{REDR}")
    a("s_mov_b64 exec, 1")
    a("ds_write_b32 v5, v7")
    a("s_mov_b64 exec, -1")
    a("s_waitcnt lgkmcnt(0)")
    mfma(a, O[0], 196, 196, "0")
    mfma(a, O[1], 196, 196, "0")
    maxtree(a, M1, S4[0][1], True)
    maxtree(a, M2, S4[1][1], True)
    negmax(); cfill(0); cfill(1)
    a(f"s_cmp_eq_u32 s{TY}, 0")
    a.wait_vm("r0")
    a("s_barrier")
    stamp(a, 6)
    if OPT["gst"] == 3: stamp(a, 9, True)
    prime_reads()
    a("s_cbranch_scc0 L_skip_r0")
    for w in range(4):
        for q in range(2):
            a(f"ds_read_b128 {vr(160+8*w+4*q,4)}, v158 offset:{(w>>1)*32768+(w&1)*8192+q*1024}")
    a("s_waitcnt lgkmcnt(11)")
    a("s_branch L_first")
    a.label("L_skip_r0")
    a("s_mov_b32 exec_lo, 1")
    a("s_mov_b32 exec_hi, 1")
    a(f"buffer_store_dword v52, v6, s[32:35], {S.GOFF} offen{SC}")
    a("s_mov_b64 exec, -1")
    a.label("L_redo")
    a("s_waitcnt lgkmcnt(3)")
    a.label("L_first")
    mfma(a, S4[0][0], KB_[0], Q[0], C[0])
    mfma(a, S4[1][0], KB_[0], Q[1], C[1])
    kv_dma(a, 1, 0); kv_dma(a, 1, 1)
    nvm = [0]; marks = {}
    PL, ZL = SCR, SCR + 16
    def wait_after(nm): a(f"s_waitcnt vmcnt({nvm[0]-marks[nm]})")
    def svm(txt):
        a.vmem(txt, "x"); nvm[0] += 1
    def j_drain(): a("s_waitcnt vmcnt(0)")
    def j_kp():
        for j in range(0, 8, 2): a(f"v_pk_add_f32 {vr(160+j,2)}, {vr(160+j,2)}, {vr(168+j,2)}")
        for j in range(0, 8, 2): a(f"v_pk_add_f32 {vr(176+j,2)}, {vr(176+j,2)}, {vr(184+j,2)}")
        for j in range(0, 8, 2): a(f"v_pk_add_f32 {vr(160+j,2)}, {vr(160+j,2)}, {vr(176+j,2)}")
        a(f"buffer_store_dwordx4 v[160:163], v156, s[32:35], {S.KVPOFF} offen{SC}")
        a(f"buffer_store_dwordx4 v[164:167], v157, s[32:35], {S.KVPOFF} offen{SC}")
    def j_p2():
        a(f"v_and_b32 v6, 0x7ff, v{VL8}")
        a(f"buffer_load_dword v{VP0}, v6, s[32:35], {S.F2POLL} offen{SC}")
    def j_ld():
        wait_after("p2")
        check_flags(a, "L_pollF2", 0x7ff, VP0, S.F2POLL)
        a("v_lshrrev_b32 v5, 4, v1")
        a("v_lshlrev_b32 v5, 14, v5")
        a("v_and_b32 v6, 0xf0, v3")
        a("v_add_u32 v6, v6, v5")
        a(f"s_lshr_b32 s{TB}, s2, 5")
        a(f"s_mul_i32 s{TB}, s{TB}, 240")
        a(f"s_sub_u32 s{TB}, {S.LDK}, s{TB}")
        for p in range(4):
            a(f"s_add_u32 s{TC}, {S.LDK}, {p*4096}")
            a(f"buffer_load_dwordx4 {vr(PL+4*p,4)}, v6, s[32:35], s{TC} offen{SC}")
        for p in range(4):
            a(f"s_add_u32 s{TC}, s{TB}, {p*4096}")
            a(f"buffer_load_dwordx4 {vr(ZL+4*p,4)}, v5, s[32:35], s{TC} offen offset:2048{SC}")
    def j_red():
        wait_after("ld")
        B2 = (PL, ZL)
        for base in B2:
            for j in (0, 2):
                a(f"v_pk_add_f32 {vr(base+j,2)}, {vr(base+j,2)}, {vr(base+4+j,2)}")
                a(f"v_pk_add_f32 {vr(base+8+j,2)}, {vr(base+8+j,2)}, {vr(base+12+j,2)}")
        for base in B2:
            for j in (0, 2): a(f"v_pk_add_f32 {vr(base+j,2)}, {vr(base+j,2)}, {vr(base+8+j,2)}")
        for sw in ("32", "16"):
            for base in B2:
                for j in (0, 2): a(f"v_mov_b64 {vr(base+4+j,2)}, {vr(base+j,2)}")
            for base in B2:
                for j in range(4): a(f"v_permlane{sw}_swap_b32 v{base+j}, v{base+4+j}")
            for base in B2:
                for j in (0, 2): a(f"v_pk_add_f32 {vr(base+j,2)}, {vr(base+j,2)}, {vr(base+4+j,2)}")
        a("v_cmp_eq_u32 vcc, 16, v1")
        for base in B2:
            a(f"v_cvt_pk_bf16_f32 v{base+4}, v{base}, v{base+1}")
            a(f"v_cvt_pk_bf16_f32 v{base+5}, v{base+2}, v{base+3}")
        a(f"v_cndmask_b32 v{PL+4}, v{PL+4}, v{ZL+4}, vcc")
        a(f"v_cndmask_b32 v{PL+5}, v{PL+5}, v{ZL+5}, vcc")
        a("s_mov_b64 exec, 0x1ffff")
        a(f"buffer_store_dwordx2 {vr(PL+4,2)}, v3, s[32:35], {S.KVFW} offen{SC}")
        a("s_mov_b64 exec, -1")
    def j_f5():
        a("s_waitcnt vmcnt(0)")
        pub(a, S.F5OFF)
    def j_p5():
        a(f"v_and_b32 v6, 0x7ff, v{VL8}")
        a(f"buffer_load_dword v{VP1}, v6, s[32:35], {S.F5POLL} offen{SC}")
    def j_kv():
        wait_after("p5")
        check_flags(a, "L_pollF5", 0x7ff, VP1, S.F5POLL)
        a(f"v_min_u32 v5, 64, v{G4}")
        a("v_lshrrev_b32 v6, 5, v1")
        a("v_mul_u32_u24 v6, 272, v6")
        a("v_lshl_add_u32 v5, v5, 2, v6")
        for e in range(2):
            for sg in range(2):
                a(f"buffer_load_dwordx4 {vr(SCR+8*e+4*sg,4)}, v5, s[32:35], {S.KVFR} offen offset:{e*2048+sg*544}{SC}")
    def j_om():
        wait_after("kv")
        for sg in range(2):
            for e in range(2): mfma(a, SCR+16+16*e, SCR+8*e+4*sg, PHI+8*e+4*sg, "0" if sg == 0 else SCR+16+16*e)
    def j_oa(e):
        def f():
            D = SCR+16+16*e
            a(f"v_add_f32 v4, {f32(1e-6)}, v{D+8}")
            a("v_rcp_f32 v4, v4")
            for i in range(0, 8, 2): a(f"v_pk_mul_f32 {vr(D+i,2)}, {vr(D+i,2)}, v[4:5] op_sel_hi:[1,0]")
            for q in range(4): a(f"v_cvt_pk_bf16_f32 v{SCR+4*e+q}, v{D+2*q}, v{D+2*q+1}")
            a(f"buffer_store_dwordx4 {vr(SCR+4*e,4)}, v3, s[32:35], {S.OAOFF} offen offset:{e*1024}{SC}")
        return f
    def j_p4():
        a(f"v_and_b32 v6, 0x7ff, v{VL8}")
        svm(f"buffer_load_dword v{VP0}, v6, s[32:35], {S.F4POLL} offen{SC}")
    def j_c4():
        wait_after("p4")
        check_flags(a, "L_pollF4", 0x7ff, VP0, S.F4POLL)
        svm(f"buffer_load_dword v{GV}, v{G4}, s[32:35], {S.GATE3} offen{SC}")
        svm(f"buffer_load_dword v{GV+1}, v{G4}, s[32:35], {S.GATET} offen{SC}")
    def j_la(i):
        def f():
            for k in (2*i, 2*i+1):
                svm(f"buffer_load_dwordx4 {vr(SCR+4*k,4)}, v3, s[32:35], {S.OF3 if k < 4 else S.OF3B} offen offset:{(k%4)*1024}{SC}")
        return f
    def j_tb(k):
        return lambda: svm(f"global_load_dwordx4 {vr(vtab()[k][0],4)}, v{GV}, s[{VT}:{VT+1}] offset:{(k-4)*1024}")
    JB = dict(kp=(R_T0, j_kp), tb6=(R_ANY, j_tb(6)), tb7=(R_ANY, j_tb(7)), d0=(R_T0, j_drain), d1=(R_T1, j_drain), f2=(R_T0W0, lambda: pub(a, S.F2OFF)), f4=(R_T1W0, lambda: pub(a, S.F4OFF)),
              p2=(R_RED, j_p2), ld=(R_RED, j_ld), red=(R_RED, j_red), f5=(R_RED, j_f5),
              p5=(R_T1, j_p5), kv=(R_T1, j_kv), om=(R_T1, j_om), oa0=(R_T1, j_oa(0)), oa1=(R_T1, j_oa(1)),
              p4=(None, j_p4), c4=(None, j_c4), la0=(None, j_la(0)), la1=(None, j_la(1)), la2=(None, j_la(2)), la3=(None, j_la(3)))
    OUTL = []
    def hook(name):
        role, body = JB[name]
        if name not in OPT["y_skip"]:
            if role in OPT["outl"]:
                a(f"s_bitcmp1_b32 {S.ROLE}, {role}")
                a(f"s_cbranch_scc1 L_job_{name}")
                a.label(f"L_ret_{name}")
                keep = a.lines; a.lines = []
                a.label(f"L_job_{name}")
                body()
                a(f"s_branch L_ret_{name}")
                OUTL.extend(a.lines); a.lines = keep
            else:
                if role is not None:
                    a(f"s_bitcmp1_b32 {S.ROLE}, {role}")
                    a(f"s_cbranch_scc0 L_skip_{name}")
                body()
                if role is not None: a.label(f"L_skip_{name}")
        marks[name] = nvm[0]
    SPINS.append(lambda a: a.lines.extend(OUTL))
    JOBS = OPT["sched"]
    p0, p1, p2 = OPT["pos"]
    BST = OPT["bst"]
    for T in range(32):
        it, t = T >> 2, T & 3
        KVS = OPT["kvs"] if it else OPT["wos"]
        WOS = OPT["wos"]
        for qi in range(2):
            st = 2*t + qi
            s = S4[qi][T & 1]
            def extras(k):
                if (qi, k) == OPT["kat"] and T + 2 < 32: a(f"ds_read_b128 {vr(KB_[T&1],4)}, v{VK} offset:{(T+2)*1024}")
                if (qi, k) == OPT["vat"] and T + 1 < 32:
                    a(f"s_mov_b64 exec, s[{MASK}:{MASK+1}]")
                    a(f"ds_read_b128 {vr(VA[(T+1)&1],4)}, v{VV} offset:{(T+1)*1024}")
                    a(f"ds_read_b128 {vr(VBB[(T+1)&1],4)}, v{VV} offset:{(T+1)*1024+512}")
                    a("s_mov_b64 exec, -1")
                if k == OPT["dmk"]:
                    if st in KVS and it + 2 < 8:
                        kv_dma(a, it + 2, KVS.index(st)); nvm[0] += 1
                    if st in WOS and it >= 1:
                        wo_dma(a, it - 1, WOS.index(st)); nvm[0] += 1
                if k == OPT["jk"]:
                    for nm in JOBS.get((it, st), "").split(): hook(nm)
            if OPT["lprio"] and qi == OPT["pq"]: a(f"s_setprio {3 - ((T + OPT['poff']) % 4)}")
            for j in range(16):
                a(f"v_exp_f32 v{s+j}, v{s+j}")
                if j == p0:
                    tp = T if qi == 1 else T - 1
                    if tp >= 0: smfmac(a, O[1-qi], VBB[tp & 1], S4[1-qi][tp & 1]+8, IDX)
                    if st == BST:
                        if it == OPT["f2it"]: hook("d0")
                        if it == OPT["f4it"]: hook("d1")
                        if it < 7: a.wait_vm(f"r{it+1}")
                        a("s_barrier")
                        if it == OPT["f2it"]: hook("f2")
                        if it == OPT["f4it"]: hook("f4")
                    extras(0)
                if j == p1:
                    if qi == 0: a("s_waitcnt lgkmcnt(0)")
                    if T + 1 < 32: mfma(a, S4[qi][(T+1) & 1], KB_[(T+1) & 1], Q[qi], C[qi])
                    extras(1)
                if j == p2:
                    smfmac(a, O[qi], VA[T & 1], s, IDX)
                    extras(2)
    if OPT["lprio"]: a("s_setprio 0")
    a(f"ds_write_b128 v{XW}, {vr(O[0],4)}")
    a(f"ds_write_b128 v{XW}, {vr(O[0]+4,4)} offset:1024")
    smfmac(a, O[1], VBB[1], S4[1][1]+8, IDX)
    a(f"ds_write_b32 v{XW}, v{O[0]+8} offset:2048")
    stamp(a, 7)
    SX = 64
    a(f"v_add_f32_e64 v{M1}, |v{O[0]}|, |v{O[0]+1}|")
    for i in range(2, 9): a(f"v_add_f32_e64 v{M1}, v{M1}, |v{O[0]+i}|")
    a(f"v_mov_b32 v6, {FLAG}")
    a("v_mov_b32 v7, 1")
    a(f"v_mov_b32 v5, {f32(OPT['thr'])}")
    for i in range(0, 9): a(f"v_add_f32_e64 v{M1}, v{M1}, |v{O[1]+i}|")
    a(f"v_cmp_nlt_f32 vcc, v{M1}, v5")
    a(f"s_waitcnt vmcnt({nvm[0]-marks['c4']})")
    a(f"v_sub_f32 v{GV+1}, 1.0, v{GV+1}")
    a("s_cbranch_vccz L_noflag")
    a("ds_write_b32 v6, v7")
    a.label("L_noflag")
    a("s_waitcnt lgkmcnt(0)")
    a("s_barrier")
    a(f"ds_read_b32 v{M2}, v6")
    a(f"ds_read_b32 v{SX+8}, v{XR} offset:2048")
    a(f"ds_read_b128 {vr(SX,4)}, v{XR}")
    a(f"ds_read_b128 {vr(SX+4,4)}, v{XR} offset:1024")
    a(f"v_cvt_pk_bf16_f32 v{GV+1}, v{GV+1}, v{GV+1}")
    a(f"v_lshlrev_b32 v{GV+1}, 16, v{GV+1}")
    a("s_waitcnt lgkmcnt(2)")
    a(f"v_readfirstlane_b32 s{TB}, v{M2}")
    a(f"v_add_f32 v{O[1]+8}, v{O[1]+8}, v{SX+8}")
    a(f"v_rcp_f32 v{M1}, v{O[1]+8}")
    a(f"s_cmp_lg_u32 s{TB}, 0")
    a("s_cbranch_scc1 L_maybe_fb")
    a.label("L_fin")
    a(f"v_mul_f32 v{M1}, v{M1}, v{GV+1}")
    a("s_waitcnt lgkmcnt(0)")
    for i in range(0, 8, 2): a(f"v_pk_add_f32 {vr(O[1]+i,2)}, {vr(O[1]+i,2)}, {vr(SX+i,2)}")
    for i in range(0, 8, 2): a(f"v_pk_mul_f32 {vr(O[1]+i,2)}, {vr(O[1]+i,2)}, {vr(M1,2)} op_sel_hi:[1,0]")
    for q in range(4): a(f"v_cvt_pk_bf16_f32 v{20+q}, v{O[1]+2*q}, v{O[1]+2*q+1}")
    for q in range(4): a(f"v_min_u32 v{20+q}, -2, v{20+q}")
    a(f"buffer_store_dwordx4 v[20:23], v3, s[32:35], {S.OFB} offen{SC}")
    wo_dma(a, 7, 0)
    wo_dma(a, 7, 1)

    def rare(a):
        a.label("L_maybe_fb")
        a(f"s_cmp_lg_u32 s{ATT}, 0")
        a("s_cbranch_scc1 L_fin")
        a(f"s_mov_b32 s{ATT}, 1")
        a(f"s_mov_b32 {S.ROLE}, 0")
        a("s_waitcnt vmcnt(0) lgkmcnt(0)")
        a("s_barrier")
        for rr in range(8):
            kv_dma(a, rr, 0); kv_dma(a, rr, 1)
        a(f"v_mov_b32 v{M1}, 0xff800000")
        a(f"v_mov_b32 v{M2}, 0xff800000")
        a("v_mov_b32 v4, v3")
        a(f"s_mov_b32 s{CNT}, 64")
        a("s_waitcnt vmcnt(0)")
        a("s_barrier")
        a.label("L_fbloop")
        a(f"ds_read_b128 {vr(KB_[0],4)}, v4")
        a("v_add_u32 v4, 1024, v4")
        a("s_waitcnt lgkmcnt(0)")
        mfma(a, S4[0][0], KB_[0], Q[0], "0")
        mfma(a, S4[1][0], KB_[0], Q[1], "0")
        a.nop(12)
        maxtree(a, M1, S4[0][0], False)
        maxtree(a, M2, S4[1][0], False)
        a(f"s_sub_u32 s{CNT}, s{CNT}, 1")
        a(f"s_cmp_lg_u32 s{CNT}, 0")
        a("s_cbranch_scc1 L_fbloop")
        zero_acc()
        prime_reads()
        negmax(); cfill(0); cfill(1)
        a("s_nop 1")
        a("s_branch L_redo")
    return rare

def phase3(a):
    ACC, OFB_, PEND = 32, 224, TC
    WA = list(range(112, 136, 4)) + list(range(184, 224, 4))
    WB = list(range(64, 128, 4))
    def trread(br, i):
        for ct in range(2):
            f = (WA, WB)[br][2*i+ct]
            a(f"ds_read_b64_tr_b16 {vr(f,2)}, v{TR0+ct} offset:{br*16384+i*2048}")
            a(f"ds_read_b64_tr_b16 {vr(f+2,2)}, v{TR0+ct} offset:{br*16384+i*2048+1024}")
    def oload(k):
        return f"buffer_load_dwordx4 {vr(OFB_+4*k,4)}, v3, s[32:35], {S.OF3 if k < 4 else S.OF3B} offen offset:{(k%4)*1024}{SC}"
    stamp(a, 8)
    for i in range(2): trread(0, i)
    a(f"s_add_u32 {S.OF3}, {S.OF3}, 32768")
    a(f"s_add_u32 {S.OF3B}, {S.OF3B}, 32768")
    a(f"s_mov_b32 s{CNT}, {POLL_LIMIT}")
    a(f"s_mov_b32 s{PEND}, 0")
    for p in range(1, 4): a(f"v_xor_b32 v{12+p}, {p*32768}, v{RR}")
    a("s_waitcnt vmcnt(3)")
    OP = OPT["opos"]
    if OP < 8: a("s_barrier")
    for i in range(8):
        if i == OP:
            for k in range(8): a(oload(k))
        if i + 2 < 8: trread(0, i + 2)
        a(f"s_waitcnt lgkmcnt({4*min(2, 7-i)})")
        for ct in range(2): mfma(a, ACC+16*ct, WA[2*i+ct], SCR+4*i, "0" if i == 0 else ACC+16*ct)
        if OP == -1: a(oload(i))
    if OP == 8:
        for k in range(8): a(oload(k))
    a(f"s_waitcnt vmcnt({0 if OP == 9 else 8})")
    a("s_barrier")
    if OP == 9:
        for k in range(8): a(oload(k))
    for i in range(8):
        trread(1, i)
        if i % 2 == 1: a("s_waitcnt lgkmcnt(4)")
    for j in range(0, 32, 2): a(f"v_pk_mul_f32 {vr(ACC+j,2)}, {vr(ACC+j,2)}, {vr(GV,2)} op_sel_hi:[1,0]")
    a("s_waitcnt lgkmcnt(0)")
    def test(a, o):
        a(f"v_max3_u32 v4, v{o}, v{o+1}, v{o+2}")
        a(f"v_max_u32 v4, v4, v{o+3}")
        a("v_cmp_eq_u32 vcc, -1, v4")
        a("s_nop 1")
    for i in range(8):
        o = OFB_ + 4*i
        a(f"s_waitcnt vmcnt({7-i})")
        test(a, o)
        a(f"s_cbranch_vccnz L_obad{i}")
        for ct in range(2): mfma(a, ACC+16*ct, WB[2*i+ct], o, ACC+16*ct)
        a.label(f"L_onext{i}")
    a(f"s_cmp_lg_u32 s{PEND}, 0")
    a("s_cbranch_scc1 L_oretry")
    a.label("L_odone")
    def retry(a):
        for i in range(8):
            a.label(f"L_obad{i}")
            a(f"s_bitset1_b32 s{PEND}, {i}")
            a(f"s_branch L_onext{i}")
        a.label("L_oretry")
        a(f"s_sub_u32 s{CNT}, s{CNT}, 1")
        a(f"s_cmp_lt_i32 s{CNT}, 1")
        a("s_cbranch_scc1 L_oexit")
        a(f"s_sleep {OPT['osleep']}")
        for i in range(8):
            a(f"s_bitcmp1_b32 s{PEND}, {i}")
            a(f"s_cbranch_scc0 L_ol{i}")
            a(oload(i))
            a.label(f"L_ol{i}")
        a("s_waitcnt vmcnt(0)")
        for i in range(8):
            o = OFB_ + 4*i
            a(f"s_bitcmp1_b32 s{PEND}, {i}")
            a(f"s_cbranch_scc0 L_oc{i}")
            test(a, o)
            a(f"s_cbranch_vccnz L_oc{i}")
            for ct in range(2): mfma(a, ACC+16*ct, WB[2*i+ct], o, ACC+16*ct)
            a(f"s_bitset0_b32 s{PEND}, {i}")
            a.label(f"L_oc{i}")
        a(f"s_cmp_lg_u32 s{PEND}, 0")
        a("s_cbranch_scc1 L_oretry")
        a.label("L_oexit")
        a.nop(10)
        a("s_branch L_odone")
    SPINS.append(retry)
    stamp(a, 9)
    for p in range(1, 4):
        for q in range(2): a(f"ds_write_b128 v{12+p}, {vr(ACC+8*p+4*q,4)} offset:{(p-1)*2048+q*1024}")
    a("s_waitcnt lgkmcnt(0)")
    a("s_barrier")
    for src in range(3):
        for q in range(2): a(f"ds_read_b128 {vr(64+8*src+4*q,4)}, v{RR} offset:{src*2048+q*1024}")
    a("s_waitcnt lgkmcnt(4)")
    for j in range(0, 8, 2): a(f"v_pk_add_f32 {vr(64+j,2)}, {vr(64+j,2)}, {vr(ACC+j,2)}")
    a("s_waitcnt lgkmcnt(0)")
    for j in range(0, 8, 2): a(f"v_pk_add_f32 {vr(72+j,2)}, {vr(72+j,2)}, {vr(80+j,2)}")
    for j in range(0, 8, 2): a(f"v_pk_add_f32 {vr(64+j,2)}, {vr(64+j,2)}, {vr(72+j,2)}")
    for q in range(4): a(f"v_cvt_pk_bf16_f32 v{20+q}, v{64+2*q}, v{64+2*q+1}")
    a("v_permlane32_swap_b32 v20, v22")
    a("v_permlane32_swap_b32 v21, v23")
    a(f"buffer_store_dwordx4 v[20:23], v{OUTA}, s[24:27], {S.OUTOFF} offen{OPT['outsc']}")
    a(f"s_or_b32 s{TA}, s2, s{W}")
    a(f"s_cmp_lg_u32 s{TA}, 0")
    a("s_cbranch_scc1 L_noE")
    a(f"v_mov_b32 v24, s{TAG}")
    a("s_mov_b64 exec, 1")
    a(f"buffer_store_dword v24, v3, s[32:35], 0 offen offset:{WS_E}")
    a("s_mov_b64 exec, -1")
    a.label("L_noE")
    flush_stamps(a)

def tables():
    t = ".p2align 8\nL_vtab:\n"
    for w in range(8):
        for r, fn in vtab():
            for l in range(0, 64, 2):
                t += ".long " + ",".join(str(x) for x in fn(w, l) + fn(w, l+1)) + "\n"
    t += ".set b, 0\n.rept 256\n.set w, 0\n.rept 8\n"
    for n, e in stab(): t += f".long {e}\n"
    t += ".set w, w+1\n.endr\n.set b, b+1\n.endr\n"
    return t

def main(out):
    hdr = open("cdna_kernels/" + NAME + ".s.ref").read().split("; Override launch")[0]
    txt = hdr + "; @launch grid=(256,1,1) block=(512,1,1) lds=163840\n"
    txt += '.amdgcn_target "amdgcn-amd-amdhsa--gfx950"\n.text\n'
    nm = NAME + "_kernel"
    a = Asm()
    a.label(nm)
    phase1(a)
    rare = phase2(a)
    phase3(a)
    a.label("L_end")
    a("s_endpgm")
    for sp in SPINS: sp(a)
    rare(a)
    a.label("L_code_end")
    a("s_endpgm")
    a.lines, added = autonop(a.lines)
    errs = check(a.lines, nm)
    bare, skipping = [], None
    for l in a.lines:
        if skipping:
            if l.startswith(skipping + ":"): skipping = None
            continue
        bare.append(l)
        if "s_cbranch_scc0 L_skip_" in l or "s_cbranch_scc1 L_skip_" in l: skipping = l.split()[-1]
    errs += check(bare, nm + "(optional blocks skipped)")
    txt += f".globl {nm}\n.p2align 8\n.type {nm},@function\n" + a.text()
    txt += f""".section .rodata,"a"
.p2align 6
.amdhsa_kernel {nm}
  .amdhsa_next_free_vgpr 256
  .amdhsa_next_free_sgpr 102
  .amdhsa_accum_offset 256
  .amdhsa_group_segment_fixed_size 0
  .amdhsa_kernarg_size 88
  .amdhsa_user_sgpr_count 2
  .amdhsa_user_sgpr_kernarg_segment_ptr 1
  .amdhsa_system_sgpr_workgroup_id_x 1
.end_amdhsa_kernel
""" + tables()
    open(out, "w").write(txt)
    for e in errs: print("HAZARD", e)
    print("written", out, len(txt), "bytes;", len(errs), "hazards;", added, "auto nops")

if __name__ == "__main__":
    if "--stamps" in sys.argv:
        STAMPS = True; sys.argv.remove("--stamps")
    for x in list(sys.argv):
        if x.startswith("--o:"):
            k, v = x[4:].split("=", 1)
            assert k in OPT, k
            OPT[k] = eval(v); sys.argv.remove(x)
    main(sys.argv[1] if len(sys.argv) > 1 else "cdna_kernels/" + NAME + ".s")
```

```python
import sys, struct
from asmlib import *

NAME = "gated_mix__linear_kernel_hedgehog__mha_block__prompt"
WS_E, WS_F1, WS_F2, WS_GATE, WS_F4, WS_F5, WS_KVF = 0x0, 0x10000, 0x20000, 0x40000, 0x50000, 0x60000, 0x70000
WS_QB, WS_KB, WS_VB, WS_KVP, WS_OF = 0x200000, 0x400000, 0x600000, 0x800000, 0xA00000
WS_USED = 0x2100000
def f32(x): return "0x%08x" % struct.unpack("<I", struct.pack("<f", x))[0]
LOG2E = 1.4426950408889634
STAMPS = False
OPT = dict(npre=5, nb0=2, det=1, p1prio=0, opos=9, outl=(1,2,4), bst=4, kat=(0,2), vat=(1,2), dmk=0, jk=1, lprio=1, pq=1, poff=2, p2prio=0, cnt=0, ciat=19, fb=-1, sprd=8, al=0, t0pos=0, bar0=1, gst=0, la=2, pre2=0, t0at=-2, f1g=26, zat=30, last='wb', t2at=26, tchat=5, phiat=19, ds0=(9,11,13,15,20,21,22,23), ds1={(2,0):0,(2,1):1,(3,0):2,(3,1):3,(4,0):4,(4,1):6,(5,0):8,(5,1):10,(6,0):12,(6,1):14,(7,0):16,(7,1):18}, map2d=1, pp=0, rot=4, rp=1, pos=(1, 6, 11), thr=2.0**100, cyc=0, amp=None, outsc="", fill=3, hga=4, osleep=2, cpf=1,
           rsplit=(0, 3, 5, 7), f1at=1, pollat=1, goat=4, y_skip=(),
           f2it=0, f4it=5, kvs=(0, 1), wos=(6, 7),
           sched={(0, 0): "kp", (0, 5): "tb6 tb7", (1, 2): "p2", (1, 6): "ld", (2, 2): "red", (2, 5): "f5", (3, 4): "p5", (4, 0): "kv", (4, 5): "om", (4, 6): "oa0", (4, 7): "oa1",
                  (6, 4): "p4", (7, 0): "c4 la0", (7, 2): "la1", (7, 4): "la2", (7, 6): "la3"})
SC = " sc1"
POLL_LIMIT = 200000
NST = 11
SLOT = 32768
XCH, FLAG, PHIL, CNTW = 131072, 155648, 8192, 12288
R_T0, R_T0W0, R_RED, R_T1, R_T1W0, R_ANY = range(6)

W = 3
TAG, J, XOFF, WOFF, MX, MW, TY, ATT = range(36, 44)
L2E, MASK, VT = 10, 14, 46
TA, TB, TC, CNT = 4, 5, 6, 7
CP = 44
def stab():
    hA = OPT["hga"]
    d = dict(hg="(b&7)", j="(b>>3)", ty="((b>>3)&1)", rb16="(b>>4)", rb8="(b>>5)", qp="(w&3)", kh="(w>>2)", kq="(w>>1)", rt3="(w&1)")
    d["hg1"] = d["hg"]
    if OPT["map2d"]:
        d["hg1"] = "(((b&3)<<1)+((b>>4)&1))"
        d["rb16"] = "((((b>>2)&1)<<3)+(b>>5))"
    d["h"] = "(({hg}<<2)+({j}&3))".format(**d)
    d["t"] = "(({rb16}<<2)+{qp})".format(**d)
    d["hb0"] = "(({hg1}<<2)+({kh}<<1))".format(**d)
    d["ha0"] = "({hb0}^%d)".format(**d) % (hA*4)
    d["hr"] = "(((({h}+w)-1)&31)^%d)".format(**d) % (hA*4)
    d["T"] = "((({rb8}<<3)+({qp}<<1))+{kh})".format(**d)
    d["T3"] = "(((({rb8}<<2)+({hg}>>1))<<1)+{rt3})".format(**d)
    d["cb"] = "(((b&1)<<2)+({j}&3))".format(**d)
    d["lds0"] = "(({kh}<<15)+({qp}<<10))".format(**d)
    d["w0"] = "(((w-1)>>8)&1)"
    d["w12"] = "((((w-3)>>8)&1)-{w0})".format(**d)
    E = [
     ("F1OFF", "(%d+(((({hg1}<<5)+({rb16}<<1))+{ty})<<7))" % WS_F1),
     ("F1POLL", "(%d+({hg}<<12))" % WS_F1),
     ("F2OFF", "(%d+((({hg1}<<4)+{rb16})<<7))" % WS_F2),
     ("F2POLL", "(%d+({hg}<<11))" % WS_F2),
     ("VOFF", "((%d+({hb0}<<16))+({t}<<10))" % WS_VB),
     ("QK0", "(((%d+({ty}*%d))+({hb0}<<16))+({t}<<10))" % (WS_QB, WS_KB-WS_QB)),
     ("LDS0", "{lds0}"),
     ("KOFF", "((%d+({h}<<16))+{lds0})" % WS_KB),
     ("K0OFF", "(%d+({h}<<16))" % WS_KB),
     ("QOFF1", "((%d+({h}<<16))+({T}<<10))" % WS_QB),
     ("QOFF0", "((%d+({h}<<16))+(({T}^1)<<10))" % WS_QB),
     ("ROLE", "(((1-{ty})*((%d+({w0}*%d))+({w12}*%d)))+({ty}*(%d+({w0}*%d))))" % ((1 << R_T0) | (1 << R_ANY), 1 << R_T0W0, 1 << R_RED, (1 << R_T1) | (1 << R_ANY), 1 << R_T1W0)),
     ("KVPOFF", "(%d+(((({ha0}+({qp}>>1))<<4)+{rb16})<<12))" % WS_KVP),
     ("OFB", "((%d+({T}<<16))+({h}<<10))" % (WS_OF+32768)),
     ("OF3", "((%d+({T3}<<16))+({kq}<<13))" % WS_OF),
     ("OF3B", "((%d+({T3}<<16))+({kq}<<13))" % (WS_OF+4096)),
     ("OUTOFF", "((({T3}<<15)+({cb}<<7))+({kq}<<5))"),
     ("WOOFF", "(((({kh}<<4)+{qp})<<13)+({cb}<<7))"),
     ("F4POLL", "(%d+({rb8}<<11))" % WS_F4),
     ("F4OFF", "(%d+((({rb16}<<3)+{hg1})<<7))" % WS_F4),
     ("OWN1", "(4294967295-((((({hg}^{hg1})-1)>>8)&1)<<(({rb16}<<1)+{ty})))"),
     ("GATE3", "(%d+({T3}<<7))" % WS_GATE),
     ("GATET", "(%d+({T}<<7))" % WS_GATE),
     ("GROW", "(((({rb16}<<7)+({hg1}<<4))+(w<<1))<<10)"),
     ("GOFF", "(%d+(((({rb16}<<7)+({hg1}<<4))+(w<<1))<<2))" % WS_GATE),
     ("PHIOFF", "((({hg1}^%d)<<11)+({rt3}<<10))" % hA),
     ("LDK", "((%d+({hr}<<16))+({rb8}<<8))" % WS_KVP),
     ("KVFW", "((((%d+({hr}<<11))+(({rb8}>>2)*544))+(({rb8}&1)*272))+(({rb8}&2)<<2))" % WS_KVF),
     ("F5OFF", "((%d+({hr}<<10))+({rb8}<<7))" % WS_F5),
     ("F5POLL", "(%d+({ha0}<<10))" % WS_F5),
     ("KVFR", "(%d+({ha0}<<11))" % WS_KVF),
     ("OAOFF", "((%d+({t}<<16))+({ha0}<<10))" % WS_OF),
    ]
    assert len(E) == 32
    return [(n, e.format(**d)) for n, e in E]
SR = {n: 48 + i for i, (n, _) in enumerate(stab())}
class _S:
    def __getattr__(self, n): return f"s{SR[n]}"
S = _S()

Q = [8, 12]; C = [16, 32]; S4 = [[48, 200], [64, 216]]; O = [80, 96]
KB_ = [112, 116]; VA = [120, 128]; VBB = [124, 132]
IDX, VK, VV, VL8, VWO, XW, XR, TR0, TR1, RR, OUTA, G4 = range(136, 148)
GV, M1, M2 = 148, 150, 151
VP0, VP1 = 0, 2
SCR, PHI = 152, 232
VXR, VWR, PHIA, VXD, VWD, BSEL = 8, 16, 18, 20, 22, 56
KO, VO, REDW, REDR, KVP0, KVP1, ONES = 24, 25, 26, 27, 28, 29, 30
def vtab():
    def trc(l): return ((l >> 2) & 3)*128 + ((l >> 4) & 1)*32 + (l & 3)*8
    def g0(w, l):
        r, hf = l & 31, l >> 5
        return [(w & 3)*4096 + r*128 + (((2*st + hf) ^ ((r >> 1) & 7))*16) for st in range(4)]
    def g2(w, l):
        hf = l >> 5
        v = trc(l) + (((w >> 2) ^ ((l >> 3) & 1))*64)
        return [16384 + hf*2048 + v, 16384 + hf*2048 + v + 2*SLOT, PHIL + (w >> 2)*1024 + (4*hf + ((l >> 2) & 3))*32 + (l & 3)*8, 131072 + hf*1024 + v]
    def g3(w, l):
        pi = (l & 0x33) | (((l >> 2) & 1) << 3) | (((l >> 3) & 1) << 2)
        return [pi*16, ((l >> 4) & 1)*65536 + (l >> 5)*256 + (l & 15)*16,
                (w >> 1)*32768 + 8192 + (w & 1)*8192 + l*16, (w >> 2)*65536 + 8192 + (w & 3)*2048 + l*16]
    def g4(w, l):
        own = ((l >> 4) & 1) == ((w >> 1) & 1); q0 = 2*(w & 1); hf = l >> 5
        k = [q*512 + hf*256 + (l & 15)*16 if own else 2048 + q*32 + hf*16 for q in (q0, q0+1)]
        one = 0x3f803f80 if (l & 27) == 16 else 0
        return k + [one, one]
    def bsel(sg):
        def g(w, l):
            t = (l & 31) - 4*(l >> 5) - 16*sg
            T = lambda j: 8*(j//4) + j % 4
            return [(0x3f80 if t == T(2*q) else 0) | (0x3f800000 if t == T(2*q+1) else 0) for q in range(4)]
        return g
    def tr0(w, l): return (w >> 1)*32768 + (((l >> 5)*512 + ((l >> 3) & 1)*64 + trc(l)) ^ ((w >> 1)*32))
    def g8(w, l): return [(l >> 3)*1024 + (((l & 7) ^ ((l >> 2) & 4))*16), XCH + w*3072 + l*16, XCH + (w ^ 4)*3072 + l*16, tr0(w, l)]
    def g9(w, l): return [tr0(w, l) ^ 64, (w >> 1)*32768 + (w & 1)*8192 + l*16, (l & 31)*1024 + (l >> 5)*16, (l & 31)*4]
    return [(8, g0), (16, g2), (24, g3), (28, g4), (56, bsel(0)), (60, bsel(1)), (140, g8), (144, g9)]
NG = len(vtab())

def mfma(a, d, A, B, Cc):
    a(f"v_mfma_f32_32x32x16_bf16 {vr(d,16)}, {vr(A,4)}, {vr(B,4)}, {Cc if isinstance(Cc,str) else vr(Cc,16)}")
def smfmac(a, d, A, B, idx):
    a(f"v_smfmac_f32_32x32x32_bf16 {vr(d,16)}, {vr(A,4)}, {vr(B,8)}, v{idx}")
def stamp(a, j, g=False):
    if OPT["gst"] and not g and j not in (0, 1, NST-1): return
    if STAMPS: a(f"s_mem{'' if OPT['cyc'] else 'real'}time s[{80+2*j}:{81+2*j}]")
def st4(a, j):
    if OPT["gst"] == 4: stamp(a, j, True)
def flush_stamps(a):
    if not STAMPS: return
    a("s_waitcnt vmcnt(0)")
    stamp(a, NST-1)
    a("s_waitcnt lgkmcnt(0)")
    if OPT["amp"]:
        j0, j1 = OPT["amp"]
        a(f"s_or_b32 s7, s2, s{W}")
        a("s_cmp_lg_u32 s7, 0")
        a("s_cbranch_scc1 L_end")
        a(f"s_sub_u32 s7, s{80+2*j1}, s{80+2*j0}")
        a("s_lshl_b32 s7, s7, 4")
        a.label("L_amp")
        a("s_memrealtime s[4:5]")
        a("s_waitcnt lgkmcnt(0)")
        a(f"s_sub_u32 s6, s4, s{80+2*(NST-1)}")
        a("s_cmp_lt_u32 s6, s7")
        a("s_cbranch_scc1 L_amp")
        return
    a("s_lshl_b32 s7, s2, 3")
    a(f"s_add_u32 s7, s7, s{W}")
    a("s_lshl_b32 s7, s7, 6")
    a(f"s_add_u32 s7, s7, {0x2000000}")
    a("s_mov_b64 exec, 1")
    a("v_mov_b32 v1, 0")
    for j in range(NST):
        a(f"v_mov_b32 v2, s{80+2*j}")
        a(f"buffer_store_dword v2, v1, s[32:35], s7 offen offset:{4*j}")
def pub(a, soff):
    a(f"v_mov_b32 v4, s{TAG}")
    a("s_mov_b64 exec, 1")
    a(f"buffer_store_dword v4, v3, s[32:35], {soff} offen{SC}")
    a("s_mov_b64 exec, -1")
def poll(a, lab, vaddr, vdst, soff, landed=False, own=None):
    a(f"s_mov_b32 s{CNT}, {POLL_LIMIT}")
    a(f"s_branch {lab}_{'cmp' if landed else 'chk'}")
    a.label(lab)
    a(f"buffer_load_dword v{vdst}, v{vaddr}, s[32:35], {soff} offen{SC}")
    a.label(lab + "_chk")
    a("s_waitcnt vmcnt(0)")
    a.label(lab + "_cmp")
    a(f"v_cmp_ne_u32 s[{CP}:{CP+1}], s{TAG}, v{vdst}")
    a(f"s_sub_u32 s{CNT}, s{CNT}, 1")
    a(f"s_or_b32 s{CP}, s{CP}, s{CP+1}")
    if own is not None: a(f"s_and_b32 s{CP}, s{CP}, {own}")
    a(f"s_cbranch_scc0 {lab}_ok")
    a(f"s_cmp_eq_u32 s{CNT}, 0")
    a(f"s_cbranch_scc1 {lab}_ok")
    a("s_sleep 1")
    a(f"s_branch {lab}")
    a.label(lab + "_ok")
SPINS = []
def check_flags(a, lab, mask, vdst, soff):
    a(f"v_cmp_ne_u32 vcc, s{TAG}, v{vdst}")
    a("s_nop 1")
    a(f"s_cbranch_vccnz {lab}_spin")
    a.label(f"{lab}_back")
    def spin(a):
        a.label(f"{lab}_spin")
        a(f"v_and_b32 v6, {mask}, v{VL8}")
        poll(a, lab, 6, vdst, soff, landed=True)
        a(f"s_branch {lab}_back")
    SPINS.append(spin)

class Fill:
    def __init__(self): self.g = []
    def __call__(self, *lines, after=0): self.g.append((after, list(lines)))
    def pop(self, a, n, g):
        while n > 0 and self.g and self.g[0][0] <= g:
            _, ls = self.g.pop(0)
            for l in ls:
                if isinstance(l, tuple): a.vmem(*l)
                elif callable(l): l(a)
                else: a(l)
            n -= len(ls)

def gate(a):
    X, Wt, t = 96, 104, 56
    for q in range(8):
        u = t + 4*(q & 1)
        a(f"v_lshlrev_b32 v{u}, 16, v{X+q}")
        a(f"v_lshlrev_b32 v{u+2}, 16, v{Wt+q}")
        a(f"v_and_b32 v{u+1}, 0xffff0000, v{X+q}")
        a(f"v_and_b32 v{u+3}, 0xffff0000, v{Wt+q}")
        a(f"v_pk_mul_f32 {vr(u,2)}, {vr(u,2)}, {vr(u+2,2)}")
        a(f"v_cvt_pk_bf16_f32 v{u+2}, v{u}, v{u+1}")
        d = 52 if q == 0 else u
        a(f"v_lshlrev_b32 v{d}, 16, v{u+2}")
        a(f"v_and_b32 v{d+1}, 0xffff0000, v{u+2}")
        if q: a(f"v_pk_add_f32 v[52:53], v[52:53], {vr(u,2)}")
    s = 52
    a(f"v_add_f32 v{s}, v{s}, v{s+1}")
    a(f"v_mov_b32 v{s+1}, v{s}")
    a("v_lshrrev_b32 v6, 3, v1")
    a(f"v_permlane16_swap_b32 v{s}, v{s+1}")
    a(f"v_add_f32 v{s}, v{s}, v{s+1}")
    for r in (8, 4, 2, 1):
        a(f"v_add_f32_dpp v{s}, v{s}, v{s} row_ror:{r} row_mask:0xf bank_mask:0xf")
    a(f"v_cvt_pk_bf16_f32 v{s}, v{s}, v{s}")
    a(f"v_lshlrev_b32 v{s}, 16, v{s}")
    a(f"v_mul_f32 v{s}, {f32(-LOG2E)}, v{s}")
    a(f"v_exp_f32 v{s}, v{s}")
    a(f"v_add_f32 v{s}, 1.0, v{s}")
    a(f"v_rcp_f32 v{s}, v{s}")
    a(f"v_cvt_pk_bf16_f32 v{s}, v{s}, v{s}")
    a(f"v_lshlrev_b32 v{s}, 16, v{s}")

def maxtree(a, dst, src, first):
    if first:
        a(f"v_max3_f32 v{dst}, v{src}, v{src+1}, v{src+2}")
        for j in range(3, 15, 2): a(f"v_max3_f32 v{dst}, v{dst}, v{src+j}, v{src+j+1}")
        a(f"v_max_f32 v{dst}, v{dst}, v{src+15}")
    else:
        for j in range(0, 16, 2): a(f"v_max3_f32 v{dst}, v{dst}, v{src+j}, v{src+j+1}")
def kv_dma(a, rr, kind):
    a(f"s_add_u32 m0, {S.LDS0}, {kind*65536+rr*4096}")
    a(f"s_add_u32 s{TA}, {S.KOFF}, {kind*(WS_VB-WS_KB)+rr*4096}")
    a.vmem(f"buffer_load_dwordx4 v3, s[32:35], s{TA} offen{SC} lds", f"r{rr}")
def wo_dma(a, rr, kind):
    a(f"s_add_u32 m0, {S.LDS0}, {kind*65536+rr*4096}")
    a(f"s_add_u32 s{TA}, {S.WOOFF}, {kind*262144+(rr&3)*32768}")
    R = 16 if rr < 4 else 20
    a.vmem(f"buffer_load_dwordx4 v{VWO}, s[{R}:{R+3}], s{TA} offen lds", f"w{rr}")

def phase1(a):
    ACC = [64, 80, 96]
    a("s_cmp_ge_u32 s2, 256")
    a("s_cbranch_scc1 L_end")
    stamp(a, 0)
    a("s_load_dwordx4 s[4:7], s[0:1], 0")
    a("s_load_dwordx2 s[10:11], s[0:1], 40")
    a("s_load_dwordx2 s[32:33], s[0:1], 80")
    a("s_load_dwordx2 s[8:9], s[0:1], 16")
    a("s_load_dwordx2 s[12:13], s[0:1], 56")
    a(f"s_getpc_b64 s[{VT}:{VT+1}]")
    a.label("L_pc")
    a("v_lshrrev_b32 v2, 6, v0")
    a("v_and_b32 v1, 63, v0")
    a(f"s_lshr_b32 s{J}, s2, 3")
    a(f"v_readfirstlane_b32 s{W}, v2")
    a("v_lshlrev_b32 v3, 4, v1")
    a(f"s_mov_b64 s[14:15], s[{VT}:{VT+1}]")
    a(f"s_add_u32 s{VT}, s{VT}, L_vtab-L_pc")
    a(f"s_addc_u32 s{VT+1}, s{VT+1}, L_vtab@rel32@hi+12")
    def cpf_addr():
        a(f"s_and_b32 s44, s{J}, 15")
        a("s_lshl_b32 s44, s44, 13")
        a("s_sub_u32 s45, s44, 32768")
        a("s_cselect_b32 s44, s44, s45")
        a(f"s_cselect_b64 s[34:35], s[14:15], s[{VT}:{VT+1}]")
        a(f"s_cselect_b32 s45, L_code_end-L_pc-16, -1")
        a("v_lshl_add_u32 v24, v0, 4, s44")
        a("v_min_u32 v24, s45, v24")
    def cpf():
        a.vmem("global_load_dwordx4 v[112:115], v24, s[34:35]", "x")
    def t0():
        a.vmem(f"global_load_dwordx4 v[8:11], v23, s[{VT}:{VT+1}]", "t0")
        a.vmem(f"global_load_dwordx4 v[16:19], v23, s[{VT}:{VT+1}] offset:1024", "t0")
    if OPT["cpf"]: cpf_addr()
    if OPT["cpf"] == 1: cpf()
    a(f"v_mul_u32_u24 v23, {NG*1024}, v2")
    a("v_add_u32 v23, v23, v3")
    if OPT["t0pos"] == 0: t0()
    a("v_lshrrev_b32 v7, 3, v1")
    a("v_and_b32 v4, 7, v1")
    a("v_lshrrev_b32 v5, 1, v7")
    a("v_xor_b32 v6, v4, v5")
    a("v_lshlrev_b32 v6, 4, v6")
    a(f"v_lshl_add_u32 v{VXD}, v7, 10, v6")
    a(f"v_xor_b32 v{VXD+1}, 64, v{VXD}")
    a(f"v_add_u32 v{VXD+1}, {8192-1024}, v{VXD+1}")
    a("v_lshrrev_b32 v6, 2, v1")
    a("v_and_b32 v6, 4, v6")
    a("v_xor_b32 v6, v4, v6")
    a("v_mul_u32_u24 v7, 3072, v7")
    a(f"v_lshl_add_u32 v{VWD}, v6, 4, v7")
    a(f"s_and_b32 s{TY}, s{J}, 1")
    if OPT["map2d"]:
        a(f"s_lshr_b32 s{XOFF}, s2, 5")
        a("s_and_b32 s44, s2, 4")
        a(f"s_lshl1_add_u32 s{XOFF}, s44, s{XOFF}")
    else:
        a(f"s_lshr_b32 s{XOFF}, s2, 4")
    if OPT["rot"] == 4:
        a(f"s_lshl1_add_u32 s{J}, s{J}, s{XOFF}")
    elif OPT["rot"] == 5:
        a(f"s_lshl1_add_u32 s{J}, s{J}, s{XOFF}")
        a(f"s_add_u32 s{J}, s{J}, s2")
    elif OPT["rot"] >= 1:
        a(f"s_lshl2_add_u32 s{J}, s{TY}, s{XOFF}")
    if OPT["rot"] == 2: a(f"s_add_u32 s{J}, s{J}, s2")
    if OPT["rot"] == 3:
        a("s_lshl_b32 s44, s2, 1")
        a(f"s_add_u32 s{J}, s{J}, s44")
    a(f"s_lshl3_add_u32 s{XOFF}, s{XOFF}, s{W}")
    a(f"s_lshl_b32 s{XOFF}, s{XOFF}, 14")
    a(f"s_mul_i32 s{WOFF}, s{W}, 24576")
    a(f"s_lshl_b32 s{MX}, s{W}, 11")
    a(f"s_lshl_b32 s{MW}, s{W}, 10")
    if OPT["map2d"]:
        a("s_and_b32 s44, s2, 3")
        a("s_bfe_u32 s45, s2, 0x10004")
        a("s_lshl1_add_u32 s44, s44, s45")
    else:
        a("s_and_b32 s44, s2, 7")
    a("s_lshl_b32 s44, s44, 7")
    a(f"s_xor_b32 s45, s44, {OPT['hga']*128}")
    a(f"s_lshl_b32 s14, s{TY}, 10")
    a("s_add_u32 s15, s14, s44")
    a("s_sub_u32 s14, s45, s14")
    a("s_add_u32 s14, s14, 1024")
    a(f"s_cmp_eq_u32 s{TY}, 0")
    a("s_cselect_b32 s44, s45, s44")
    a("s_add_u32 s44, s44, 1024")
    a("s_sub_u32 s22, 0x180000, s14")
    a("s_sub_u32 s26, 0x180000, s44")
    a("s_sub_u32 s30, 0x180000, s15")
    a("s_mov_b32 s23, 0x00020000")
    a("s_mov_b32 s27, 0x00020000")
    a("s_mov_b32 s31, 0x00020000")
    a("s_mov_b32 s18, 0x200000")
    a("s_mov_b32 s19, 0x00020000")
    a(f"s_cmp_eq_u32 s{TY}, 0")
    a("s_waitcnt lgkmcnt(0)")
    a("s_cselect_b64 s[24:25], s[6:7], s[10:11]")
    a("s_mov_b64 s[16:17], s[4:5]")
    a("s_add_u32 s20, s6, s14")
    a("s_addc_u32 s21, s7, 0")
    a("s_add_u32 s24, s24, s44")
    a("s_addc_u32 s25, s25, 0")
    a("s_add_u32 s28, s10, s15")
    a("s_addc_u32 s29, s11, 0")
    def dma_part(c, p):
        sl = (c & 3) * SLOT
        if p == 0:
            a(f"s_add_u32 m0, s{MX}, {sl}")
            a(f"s_add_u32 s{TA}, s{J}, {c}")
            a(f"s_and_b32 s{TA}, s{TA}, 7")
            a(f"s_lshl_b32 s{TB}, s{TA}, 7")
            a(f"s_add_u32 s{TB}, s{TB}, s{XOFF}")
            a.vmem(f"buffer_load_dwordx4 v{VXD}, s[16:19], s{TB} offen lds", f"c{c}")
            a.vmem(f"buffer_load_dwordx4 v{VXD+1}, s[16:19], s{TB} offen offset:1024 lds", f"c{c}")
        else:
            a(f"s_add_u32 m0, s{MX}, {sl+16384}")
            a(f"s_mul_i32 s{TC}, s{TA}, 196608")
            a(f"s_add_u32 s{TC}, s{TC}, s{WOFF}")
            a.vmem(f"buffer_load_dwordx4 v{VWD}, s[28:31], s{TC} offen lds", f"c{c}")
            a.vmem(f"buffer_load_dwordx4 v{VWD}, s[24:27], s{TC} offen offset:1024 lds", f"c{c}")
    W0L = [131072 + c*8192 for c in range(4)] + [16384, 24576, 49152, 57344]
    def dma_w0(c):
        a(f"s_add_u32 m0, s{MW}, {W0L[c]}")
        a(f"s_add_u32 s{TB}, s{J}, {c}")
        a(f"s_and_b32 s{TB}, s{TB}, 7")
        a(f"s_mul_i32 s{TB}, s{TB}, 196608")
        a(f"s_add_u32 s{TB}, s{TB}, s{WOFF}")
        a.vmem(f"buffer_load_dwordx4 v{VWD}, s[20:23], s{TB} offen lds", "wa" if c < 4 else "wb")
    def dma(c):
        for p in range(2): dma_part(c, p)
    dma(0)
    if OPT["t0pos"] == 1: t0()
    if OPT["cpf"] == 2: cpf()
    a(f"s_load_dword s{TAG}, s[32:33], {WS_E}")
    a(f"s_lshl3_add_u32 s44, s2, s{W}")
    a("s_lshl_b32 s44, s44, 7")
    a(f"s_add_u32 s44, s44, {8*NG*1024}")
    a(f"s_load_dwordx16 s[48:63], s[{VT}:{VT+1}], s44")
    a(f"s_load_dwordx16 s[64:79], s[{VT}:{VT+1}], s44 offset:64")
    if OPT["bar0"]: a("s_barrier")
    dma(1)
    if OPT["cpf"] == 3: cpf()
    a(f"s_mov_b32 s34, {WS_USED}")
    a("s_mov_b32 s35, 0x00020000")
    a(f"s_mov_b32 s{MASK}, 0x0000ffff")
    a(f"s_mov_b32 s{MASK+1}, 0x0000ffff")
    a(f"s_mov_b32 s{L2E}, {f32(LOG2E)}")
    a(f"s_mov_b32 s{L2E+1}, {f32(0.25*LOG2E)}")
    a(f"s_mov_b32 s{ATT}, 0")
    if OPT["pre2"]: dma(2)
    XB = 120
    LA = OPT["la"]; NB = LA + 1
    def tl(k):
        r = vtab()[k][0]
        return f"global_load_dwordx4 {vr(r,4)}, v7, s[{VT}:{VT+1}] offset:{(k-4)*1024}"
    def rd(g):
        if g >= 32:
            g -= 32
            c, st = g >> 2, g & 3
            f = w0reg(g)
            ad, o = (19, W0L[c] - 131072) if c < 4 else (5, W0L[c] - 16384)
            return [f"ds_read_b64_tr_b16 {vr(f,2)}, v{ad} offset:{o+st*2048}", f"ds_read_b64_tr_b16 {vr(f+2,2)}, v{ad} offset:{o+st*2048+512}"]
        c, st = g >> 2, g & 3
        sl = c & 3
        fr = 32 + 8*(g % NB)
        L = [f"ds_read_b128 {vr(XB+4*g,4)}, v{VXR+4*(sl>>1)+st} offset:{(sl&1)*SLOT}"]
        for s in range(2):
            o = st*4096 + s*1024 + (sl & 1)*SLOT
            L.append(f"ds_read_b64_tr_b16 {vr(fr+4*s,2)}, v{VWR+(sl>>1)} offset:{o}")
            L.append(f"ds_read_b64_tr_b16 {vr(fr+2+4*s,2)}, v{VWR+(sl>>1)} offset:{o+512}")
        return L
    def w0reg(g): return [112, 116, 248, 252][g] if g < 4 else XB + 4*(g-4)
    EX = {}
    def ex(g, fn): EX.setdefault(g, []).append(fn)
    ex(0, lambda: [a(f"v_add_u32 v{VXR+4+st}, {2*SLOT}, v{VXR+st}") for st in range(4)])
    ex(0, lambda: a("v_add_u32 v7, 4096, v23"))
    sched1 = OPT["ds1"]
    for (c, p), g in sched1.items(): ex(g, (lambda c=c, p=p: dma_part(c, p)))
    for c, g in enumerate(OPT["ds0"]): ex(g, (lambda c=c: dma_w0(c)))
    def phi_dma():
        a(f"s_and_b32 s{TB}, {S.PHIOFF}, 1024")
        a(f"s_add_u32 m0, s{TB}, {PHIL}")
        a(f"v_add_u32 v6, {S.PHIOFF}, v3")
        a.vmem("global_load_lds_dwordx4 v6, s[8:9]", "wb")
    ex(OPT["phiat"], phi_dma)
    ex(OPT["t2at"], lambda: a.vmem(tl(2), "t2"))
    def touch():
        a(f"v_add_u32 v6, {S.PHIOFF}, v3")
        a.vmem("global_load_dword v4, v6, s[8:9]", "x")
        a.vmem("global_load_dword v0, v3, s[12:13]", "x")
    if OPT["tchat"] >= 0: ex(OPT["tchat"], touch)
    def touch0():
        a(f"s_lshr_b32 s{TB}, s2, 5")
        a(f"s_mul_i32 s{TB}, s{TB}, 196608")
        a(f"s_add_u32 s{TB}, s{TB}, s{WOFF}")
        a.vmem(f"buffer_load_dword v2, v{VWD}, s[20:23], s{TB} offen", "x")
    if OPT["t0at"] == -1: touch0()
    elif OPT["t0at"] >= 0: ex(OPT["t0at"], touch0)
    def zst():
        a("v_mov_b64 v[8:9], -1")
        a("v_mov_b64 v[10:11], -1")
        a.vmem(f"buffer_store_dwordx4 v[8:11], v3, s[32:35], {S.OFB} offen{SC}", "st")
    if OPT["zat"] >= 0: ex(OPT["zat"], zst)
    else:
        a(f"s_lshr_b32 s{TA}, s2, 5")
        a(f"s_and_b32 s{TB}, s{W}, 3")
        a(f"s_lshl2_add_u32 s{TA}, s{TA}, s{TB}")
        a(f"s_lshr_b32 s{TB}, s{W}, 2")
        a(f"s_lshl1_add_u32 s{TA}, s{TA}, s{TB}")
        a(f"s_lshl_b32 s{TA}, s{TA}, 16")
        a(f"s_and_b32 s{TB}, s2, 7")
        a(f"s_bfe_u32 s{TC}, s2, 0x20003")
        a(f"s_lshl2_add_u32 s{TB}, s{TB}, s{TC}")
        a(f"s_lshl_b32 s{TB}, s{TB}, 10")
        a(f"s_add_u32 s{TA}, s{TA}, s{TB}")
        a(f"s_add_u32 s{TA}, s{TA}, {WS_OF+32768}")
        a("v_mov_b64 v[56:57], -1")
        a("v_mov_b64 v[58:59], -1")
        a.vmem(f"buffer_store_dwordx4 v[56:59], v3, s[32:35], s{TA} offen{SC}", "st")
    def cinit():
        a(f"s_mov_b32 m0, {CNTW}")
        a("s_mov_b32 s7, 0x200000")
        a.vmem("buffer_load_dword v3, s[16:19], s7 offen lds", "wb")
    if OPT["cnt"]: ex(OPT["ciat"], cinit)
    ex(OPT["t2at"] - 2, lambda: a.vmem(tl(3), "t2"))
    ex(OPT["t2at"] + 1, lambda: a.vmem(tl(4), "t3"))
    ex(OPT["t2at"] + 2, lambda: a.vmem(tl(5), "t3"))
    assert LA == 2
    ex(OPT["phiat"] + 1, lambda: a(f"v_subrev_u32 v5, {131072-16384}, v19"))
    a.wait_vm("c0", "t0", extra="lgkmcnt(0)")
    a("s_barrier")
    stamp(a, 1)
    for g in range(LA):
        for l in rd(g): a(l)
    nowait = 0
    for g in range(32):
        c, st = g >> 2, g & 3
        if st == 4 - LA:
            a.wait_vm(f"c{c+1}" if c < 7 else OPT["last"], extra="lgkmcnt(0)")
            a("s_barrier")
            if OPT["gst"] == 1 and c < 7: stamp(a, 2+c, True)
            if c == 0: a(f"s_add_u32 s{TAG}, s{TAG}, 0x9e3779b1")
            nowait = LA - 1
        elif nowait: nowait -= 1
        else: a(f"s_waitcnt lgkmcnt({5*(LA-1)})")
        if OPT["p1prio"]: a(f"s_setprio {3 - ((g + 2) % 4)}")
        R = rd(g + LA)
        if g == 31:
            for k in range(LA, 4): R += rd(32 + k)
        fr = 32 + 8*(g % NB); x = XB + 4*g
        if OPT["al"]: a.raw(".p2align 3")
        mfma(a, ACC[2], fr, x, "0" if g == 0 else ACC[2])
        for l in R[:3]: a(l)
        mfma(a, ACC[1], x, fr+4, "0" if g == 0 else ACC[1])
        for l in R[3:]: a(l)
        for fn in EX.get(g, []): fn()
    stamp(a, 2)
    if OPT["gst"] == 1: stamp(a, 9, True)
    def st2(j):
        if OPT["gst"] == 2: stamp(a, j, True)
    st2(2)
    if OPT["gst"] == 3: stamp(a, 2, True)
    E2 = range(2)
    PH = [160, 176]; EP = [64, 80]; T = [200, 204]
    def f1(half=None):
        tag = "" if half is None else "ab"[half]
        if half is not None:
            a(f"s_bitcmp1_b32 s{W}, 2")
            a(f"s_cbranch_scc{1-half} L_skip_f1{tag}")
        if OPT["cnt"]:
            a(f"v_mov_b32 v6, {CNTW}")
            a("v_mov_b32 v4, 1")
            a("s_waitcnt vmcnt(0)")
            a("s_mov_b64 exec, 1")
            a("ds_add_rtn_u32 v4, v6, v4")
            a("s_mov_b64 exec, -1")
            a("s_waitcnt lgkmcnt(0)")
            a(f"v_readfirstlane_b32 s{TB}, v4")
            a("s_nop 1")
            a(f"s_cmp_lg_u32 s{TB}, 7")
        else:
            a("s_waitcnt vmcnt(0)")
            a(f"s_cmp_lg_u32 s{W}, 0")
            a("s_barrier")
        a.vm = []
        a(f"s_cbranch_scc1 L_f1done{tag}")
        pub(a, S.F1OFF)
        a.label(f"L_f1done{tag}")
        stamp(a, 3)
        if half is not None:
            gld(tag)
            a.label(f"L_skip_f1{tag}")
    def st_v():
        for g in range(2):
            for q in range(4): a(f"v_cvt_pk_bf16_f32 v{40+4*g+q}, v{ACC[1]+8*g+2*q}, v{ACC[1]+8*g+2*q+1}")
        a(f"s_add_u32 s{TB}, {S.QK0}, 65536")
        a(f"s_cmp_eq_u32 s{TY}, 0")
        if "t2" in a.vm: a.wait_vm("t2")
        a("s_cbranch_scc1 L_p1_q")
        a(f"buffer_store_dwordx4 v[40:43], v{VO}, s[32:35], {S.VOFF} offen{SC}")
        a(f"buffer_store_dwordx4 v[44:47], v{VO}, s[32:35], {S.VOFF} offen offset:512{SC}")
        a("s_branch L_p1_qk")
        a.label("L_p1_q")
        for i in range(0, 16, 2): a(f"v_pk_mul_f32 v[{ACC[2]+i}:{ACC[2]+i+1}], v[{ACC[2]+i}:{ACC[2]+i+1}], s[{L2E}:{L2E+1}] op_sel:[0,1]")
        a(f"v_mov_b32 v{KO}, v3")
        a.label("L_p1_qk")
    def st_qk(e):
        for q in range(4): a(f"v_cvt_pk_bf16_f32 v{32+4*e+q}, v{ACC[2]+8*e+2*q}, v{ACC[2]+8*e+2*q+1}")
        a.vmem(f"buffer_store_dwordx4 {vr(32+4*e,4)}, v{KO}, s[32:35], {S.QK0 if e == 0 else 's%d' % TB} offen{SC}", "st")
    def gld(tag=""):
        a("v_lshlrev_b32 v6, 5, v1")
        a("v_and_b32 v4, 0x3ff, v6")
        a(f"s_cmp_eq_u32 s{TY}, 0")
        a(f"s_cbranch_scc1 L_skip_gl{tag}")
        a("global_load_dwordx4 v[104:107], v4, s[12:13]")
        a("global_load_dwordx4 v[108:111], v4, s[12:13] offset:16")
        a(f"buffer_load_dwordx4 v[96:99], v6, s[16:19], {S.GROW} offen")
        a(f"buffer_load_dwordx4 v[100:103], v6, s[16:19], {S.GROW} offen offset:16")
        a.label(f"L_skip_gl{tag}")
    def ptrs():
        a("s_load_dwordx2 s[16:17], s[0:1], 24")
        a("s_load_dwordx2 s[20:21], s[0:1], 48")
        a("s_load_dwordx2 s[24:25], s[0:1], 64")
        a("s_mov_b32 s18, 0x80000")
        a("s_mov_b32 s22, 0x80000")
        a("s_mov_b32 s26, 0x200000")
    F = OPT["f1g"]
    E2X = {1: [st_v], 2: [lambda: st_qk(0)], 3: [lambda: st_qk(1)]}
    if F < 32: E2X[F] = [gld]
    def step2(g, fill=None):
        if OPT["p2prio"] >= 2 and g % OPT["p2prio"] == 0: a(f"s_setprio {3 - (g // OPT['p2prio']) % 4}")
        if g == 5: st2(3)
        if g == 12 and "wb" in a.vm:
            st2(4)
            a.wait_vm("wb")
            a("s_barrier")
            st2(5)
        if g == F:
            st2(6); f1(); st2(7)
        if g == OPT["fb"]: f1(1)
        a(f"s_waitcnt lgkmcnt({(6 if g < 28 else 2*(31-g) + 4)})")
        if OPT["al"]: a.raw(".p2align 3")
        mfma(a, ACC[0], w0reg(g), XB+4*g, "0" if g == 0 else ACC[0])
        if g + 4 < 32:
            for l in rd(32 + g + 4): a(l)
        if g == 27:
            for e in range(2):
                a(f"ds_read_b64_tr_b16 {vr(248+4*e,2)}, v{PHIA} offset:{e*512}")
                a(f"ds_read_b64_tr_b16 {vr(250+4*e,2)}, v{PHIA} offset:{e*512+256}")
        for fn in E2X.get(g, []): fn()
        if fill:
            for _ in range(fill[1]):
                if fill[0]: a(fill[0].pop(0))
    L = ["v_mov_b32 v6, 0x3f803f80"]
    for q in range(8):
        L.append(f"v_cndmask_b32 v{96+q}, v6, v{40+q}, s[{MASK}:{MASK+1}]")
        L.append(f"v_cndmask_b32 v{104+q}, v{40+q}, v6, s[{MASK}:{MASK+1}]")
    if OPT["p2prio"] == 1: a("s_setprio 2")
    for g in range(32): step2(g, (L, 3) if g >= 5 else None)
    if OPT["p2prio"]: a("s_setprio 0")
    assert not L
    if OPT["p2prio"] or OPT["p1prio"]: a("s_setprio 0")
    st2(8)
    for e in E2:
        for q in range(4): a(f"v_cvt_pk_bf16_f32 v{192+4*e+q}, v{ACC[0]+8*e+2*q}, v{ACC[0]+8*e+2*q+1}")
    a("s_waitcnt lgkmcnt(0)")
    mfma(a, PH[0], 248, 192, "0")
    mfma(a, PH[1], 252, 196, "0")
    if F < 32: ptrs()
    st2(9)
    for k in range(0, 16, 2): a(f"v_mov_b64 {vr(VA[0]+k,2)}, {vr(ONES,2)}")
    a(f"s_and_b32 s{TB}, {S.LDS0}, 0x8000")
    a(f"v_mov_b32 v{IDX}, 0xdddddddd")
    a(f"v_add_u32 v{VK}, s{TB}, v3")
    a(f"s_add_u32 s{TB}, s{TB}, 65536")
    a(f"v_and_b32 v{VV}, 0x1ff, v{VO}")
    a(f"v_add_u32 v{VV}, s{TB}, v{VV}")
    a(f"v_and_b32 v{VL8}, 0x1f0, v3")
    a(f"v_lshlrev_b32 v{VL8}, 3, v{VL8}")
    a(f"v_mov_b32 v{GV}, v7")
    PEND = []
    def point(n):
        if OPT["gst"] == 3 and n in (0, 2, 4, 5, 6, 7): stamp(a, {0: 3, 2: 4, 4: 5, 5: 6, 6: 7, 7: 8}[n], True)
        if n == F - 32:
            if OPT["fb"] >= 0: f1(0)
            else:
                f1()
                gld()
            ptrs()
        if n == OPT["pollat"]:
            a(f"s_cmp_lg_u32 s{W}, 0")
            a("s_cbranch_scc1 L_p2_np")
            a(f"buffer_load_dword v{VP0}, v{VL8}, s[32:35], {S.F1POLL} offen{SC}")
            a.label("L_p2_np")
        if n == OPT["goat"]:
            stamp(a, 4)
            a(f"s_cmp_lg_u32 s{W}, 0")
            a("s_cbranch_scc1 L_p2_go")
            poll(a, "L_pollF1", VL8, VP0, S.F1POLL, own=S.OWN1)
            a.label("L_p2_go")
            a("s_barrier")
            stamp(a, 5)
            PEND.extend([lambda: a.vmem(f"buffer_load_dwordx4 {vr(SCR,4)}, v3, s[32:35], {S.K0OFF} offen{SC}", "q"),
                         lambda: a.vmem(f"buffer_load_dwordx4 {vr(Q[0],4)}, v3, s[32:35], {S.QOFF0} offen{SC}", "q"),
                         lambda: a.vmem(f"buffer_load_dwordx4 {vr(Q[1],4)}, v3, s[32:35], {S.QOFF1} offen{SC}", "q"),
                         lambda: kv_dma(a, 0, 0), lambda: kv_dma(a, 0, 1)])
            a.every = [OPT["sprd"], 0, PEND]
            if OPT["sprd"] == 0 or n >= 6:
                while PEND: PEND.pop(0)()
        if n == 6:
            while PEND: PEND.pop(0)()
            a(f"s_waitcnt vmcnt({len(a.vm)})")
    point(0)
    if OPT["rp"]:
        for e in E2:
            for q in range(4): a(f"v_cvt_pk_bf16_f32 v{T[e]+q}, v{PH[e]+2*q}, v{PH[e]+2*q+1}")
        for e in E2:
            for q in range(4):
                a(f"v_lshlrev_b32 v{PH[e]+2*q}, 16, v{T[e]+q}")
                a(f"v_and_b32 v{PH[e]+2*q+1}, 0xffff0000, v{T[e]+q}")
    for e in E2:
        P = PH[e]; t = T[e]
        a(f"v_max3_f32 v{t}, v{P}, v{P+1}, v{P+2}")
        a(f"v_max3_f32 v{t+1}, -v{P}, -v{P+1}, -v{P+2}")
        a(f"v_max3_f32 v{t}, v{t}, v{P+3}, v{P+4}")
        a(f"v_max3_f32 v{t+1}, v{t+1}, -v{P+3}, -v{P+4}")
        a(f"v_max3_f32 v{t}, v{t}, v{P+5}, v{P+6}")
        a(f"v_max3_f32 v{t+1}, v{t+1}, -v{P+5}, -v{P+6}")
        a(f"v_max_f32 v{t}, v{t}, v{P+7}")
        a(f"v_max_f32_e64 v{t+1}, v{t+1}, -v{P+7}")
    point(1)
    for e in E2: a(f"v_permlane32_swap_b32 v{T[e]}, v{T[e]+1}")
    for e in E2: a(f"v_max_f32 v{T[e]}, v{T[e]}, v{T[e]+1}")
    for e in E2: a(f"v_mul_f32 v{T[e]}, {f32(-LOG2E)}, v{T[e]}")
    for e in E2: a(f"v_mov_b32 v{T[e]+1}, v{T[e]}")
    for e in E2: a(f"v_permlane32_swap_b32 v{T[e]}, v{T[e]+1}")
    for e in E2:
        for q in range(4):
            a(f"v_pk_fma_f32 {vr(EP[e]+2*q,2)}, {vr(PH[e]+2*q,2)}, s[{L2E}:{L2E+1}], {vr(T[e],2)} op_sel_hi:[1,0,0]")
            a(f"v_pk_fma_f32 {vr(EP[e]+8+2*q,2)}, {vr(PH[e]+2*q,2)}, s[{L2E}:{L2E+1}], {vr(T[e],2)} op_sel:[0,0,1] op_sel_hi:[1,0,1] neg_lo:[1,0,0] neg_hi:[1,0,0]")
    point(2)
    for j in range(16): a(f"v_exp_f32 v{EP[0]+j}, v{EP[0]+j}")
    point(3)
    for j in range(16): a(f"v_exp_f32 v{EP[1]+j}, v{EP[1]+j}")
    point(4)
    for e in E2:
        P = PH[e]
        for sg in range(2):
            b = EP[e] + 8*sg
            a(f"v_pk_add_f32 {vr(P+4*sg,2)}, {vr(b,2)}, {vr(b+2,2)}")
            a(f"v_pk_add_f32 {vr(P+4*sg+2,2)}, {vr(b+4,2)}, {vr(b+6,2)}")
    for e in E2:
        for sg in range(2): a(f"v_pk_add_f32 {vr(PH[e]+4*sg,2)}, {vr(PH[e]+4*sg,2)}, {vr(PH[e]+4*sg+2,2)}")
    for e in E2:
        for sg in range(2): a(f"v_add_f32 v{T[e]+sg}, v{PH[e]+4*sg}, v{PH[e]+4*sg+1}")
    for e in E2: a(f"v_permlane32_swap_b32 v{T[e]}, v{T[e]+1}")
    for e in E2: a(f"v_add_f32 v{T[e]}, v{T[e]}, v{T[e]+1}")
    for e in E2: a(f"v_rcp_f32 v{T[e]}, v{T[e]}")
    for e in E2: a(f"v_mov_b32 v{T[e]+1}, v{T[e]}")
    for e in E2: a(f"v_permlane32_swap_b32 v{T[e]}, v{T[e]+1}")
    point(5)
    for e in E2:
        for q in range(4):
            a(f"v_pk_mul_f32 {vr(EP[e]+2*q,2)}, {vr(EP[e]+2*q,2)}, {vr(T[e],2)} op_sel_hi:[1,0]")
            a(f"v_pk_mul_f32 {vr(EP[e]+8+2*q,2)}, {vr(EP[e]+8+2*q,2)}, {vr(T[e],2)} op_sel:[0,1]")
    for e in E2:
        for q in range(8): a(f"v_cvt_pk_bf16_f32 v{PHI+8*e+q}, v{EP[e]+2*q}, v{EP[e]+2*q+1}")
    point(6)
    a(f"s_cmp_eq_u32 s{TY}, 0")
    a("s_cbranch_scc0 L_skip_t0")
    for e in E2:
        mfma(a, PH[e], PHI+8*e, BSEL, "0")
        mfma(a, PH[e], PHI+4+8*e, BSEL+4, PH[e])
    for e in E2:
        for q in range(8): a(f"v_cvt_pk_bf16_f32 v{192+8*e+q}, v{PH[e]+2*q}, v{PH[e]+2*q+1}")
        mfma(a, 64+16*e, 192+8*e, 96+8*e, "0")
        mfma(a, 64+16*e, 196+8*e, 100+8*e, 64+16*e)
    for e in E2:
        for q in range(4): a(f"ds_write_b128 v{REDW}, {vr(64+16*e+4*q,4)} offset:{e*4096+q*1024}")
    a("s_branch L_p1_done")
    a.label("L_skip_t0")
    gate(a)
    a.label("L_p1_done")
    point(7)


def phase2(a):
    def zero_acc():
        for i in range(0, 32, 2): a(f"v_mov_b64 v[{O[0]+i}:{O[0]+i+1}], 0")
    def prime_reads():
        a(f"ds_read_b128 {vr(KB_[0],4)}, v{VK}")
        a(f"ds_read_b128 {vr(KB_[1],4)}, v{VK} offset:1024")
        a(f"s_mov_b64 exec, s[{MASK}:{MASK+1}]")
        a(f"ds_read_b128 {vr(VA[0],4)}, v{VV}")
        a(f"ds_read_b128 {vr(VBB[0],4)}, v{VV} offset:512")
        a("s_mov_b64 exec, -1")
    def negmax():
        a(f"v_permlane32_swap_b32 v{M1}, v{M2}")
        a(f"v_max_f32 v{M1}, v{M1}, v{M2}")
        a(f"v_sub_f32 v{M1}, 0, v{M1}")
        a(f"v_mov_b32 v{M2}, v{M1}")
        a(f"v_permlane32_swap_b32 v{M1}, v{M2}")
    def cfill(q):
        for i in range(0, 16, 2): a(f"v_pk_mov_b32 {vr(C[q]+i,2)}, {vr(M1,2)}, {vr(M1,2)} op_sel:[{q},{q}]")
    a(f"v_mov_b32 v5, {FLAG}")
    a("v_mov_b32 v7, 0")
    a("v_mov_b64 v[196:197], 0")
    a("v_mov_b64 v[198:199], 0")
    a.wait_vm("q")
    mfma(a, S4[0][1], SCR, Q[0], "0")
    mfma(a, S4[1][1], SCR, Q[1], "0")
    a(f"v_mov_b64 v[156:157], v[{KVP0}:{KVP1}]")
    a(f"v_mov_b32 v158, v{REDR}")
    a("s_mov_b64 exec, 1")
    a("ds_write_b32 v5, v7")
    a("s_mov_b64 exec, -1")
    a("s_waitcnt lgkmcnt(0)")
    mfma(a, O[0], 196, 196, "0")
    mfma(a, O[1], 196, 196, "0")
    maxtree(a, M1, S4[0][1], True)
    maxtree(a, M2, S4[1][1], True)
    negmax(); cfill(0); cfill(1)
    a(f"s_cmp_eq_u32 s{TY}, 0")
    a.wait_vm("r0")
    a("s_barrier")
    stamp(a, 6)
    if OPT["gst"] == 3: stamp(a, 9, True)
    prime_reads()
    a("s_cbranch_scc0 L_skip_r0")
    for w in range(4):
        for q in range(2):
            a(f"ds_read_b128 {vr(160+8*w+4*q,4)}, v158 offset:{(w>>1)*32768+(w&1)*8192+q*1024}")
    a("s_waitcnt lgkmcnt(11)")
    a("s_branch L_first")
    a.label("L_skip_r0")
    a("s_mov_b32 exec_lo, 1")
    a("s_mov_b32 exec_hi, 1")
    a(f"buffer_store_dword v52, v6, s[32:35], {S.GOFF} offen{SC}")
    a("s_mov_b64 exec, -1")
    a.label("L_redo")
    a("s_waitcnt lgkmcnt(3)")
    a.label("L_first")
    mfma(a, S4[0][0], KB_[0], Q[0], C[0])
    mfma(a, S4[1][0], KB_[0], Q[1], C[1])
    kv_dma(a, 1, 0); kv_dma(a, 1, 1)
    nvm = [0]; marks = {}
    PL, ZL = SCR, SCR + 16
    def wait_after(nm): a(f"s_waitcnt vmcnt({nvm[0]-marks[nm]})")
    def svm(txt):
        a.vmem(txt, "x"); nvm[0] += 1
    def j_drain(): a("s_waitcnt vmcnt(0)")
    def j_kp():
        for j in range(0, 8, 2): a(f"v_pk_add_f32 {vr(160+j,2)}, {vr(160+j,2)}, {vr(168+j,2)}")
        for j in range(0, 8, 2): a(f"v_pk_add_f32 {vr(176+j,2)}, {vr(176+j,2)}, {vr(184+j,2)}")
        for j in range(0, 8, 2): a(f"v_pk_add_f32 {vr(160+j,2)}, {vr(160+j,2)}, {vr(176+j,2)}")
        a(f"buffer_store_dwordx4 v[160:163], v156, s[32:35], {S.KVPOFF} offen{SC}")
        a(f"buffer_store_dwordx4 v[164:167], v157, s[32:35], {S.KVPOFF} offen{SC}")
    def j_p2():
        a(f"v_and_b32 v6, 0x7ff, v{VL8}")
        a(f"buffer_load_dword v{VP0}, v6, s[32:35], {S.F2POLL} offen{SC}")
    def j_ld():
        wait_after("p2")
        check_flags(a, "L_pollF2", 0x7ff, VP0, S.F2POLL)
        a("v_lshrrev_b32 v5, 4, v1")
        a("v_lshlrev_b32 v5, 14, v5")
        a("v_and_b32 v6, 0xf0, v3")
        a("v_add_u32 v6, v6, v5")
        a(f"s_lshr_b32 s{TB}, s2, 5")
        a(f"s_mul_i32 s{TB}, s{TB}, 240")
        a(f"s_sub_u32 s{TB}, {S.LDK}, s{TB}")
        for p in range(4):
            a(f"s_add_u32 s{TC}, {S.LDK}, {p*4096}")
            a(f"buffer_load_dwordx4 {vr(PL+4*p,4)}, v6, s[32:35], s{TC} offen{SC}")
        for p in range(4):
            a(f"s_add_u32 s{TC}, s{TB}, {p*4096}")
            a(f"buffer_load_dwordx4 {vr(ZL+4*p,4)}, v5, s[32:35], s{TC} offen offset:2048{SC}")
    def j_red():
        wait_after("ld")
        B2 = (PL, ZL)
        for base in B2:
            for j in (0, 2):
                a(f"v_pk_add_f32 {vr(base+j,2)}, {vr(base+j,2)}, {vr(base+4+j,2)}")
                a(f"v_pk_add_f32 {vr(base+8+j,2)}, {vr(base+8+j,2)}, {vr(base+12+j,2)}")
        for base in B2:
            for j in (0, 2): a(f"v_pk_add_f32 {vr(base+j,2)}, {vr(base+j,2)}, {vr(base+8+j,2)}")
        for sw in ("32", "16"):
            for base in B2:
                for j in (0, 2): a(f"v_mov_b64 {vr(base+4+j,2)}, {vr(base+j,2)}")
            for base in B2:
                for j in range(4): a(f"v_permlane{sw}_swap_b32 v{base+j}, v{base+4+j}")
            for base in B2:
                for j in (0, 2): a(f"v_pk_add_f32 {vr(base+j,2)}, {vr(base+j,2)}, {vr(base+4+j,2)}")
        a("v_cmp_eq_u32 vcc, 16, v1")
        for base in B2:
            a(f"v_cvt_pk_bf16_f32 v{base+4}, v{base}, v{base+1}")
            a(f"v_cvt_pk_bf16_f32 v{base+5}, v{base+2}, v{base+3}")
        a(f"v_cndmask_b32 v{PL+4}, v{PL+4}, v{ZL+4}, vcc")
        a(f"v_cndmask_b32 v{PL+5}, v{PL+5}, v{ZL+5}, vcc")
        a("s_mov_b64 exec, 0x1ffff")
        a(f"buffer_store_dwordx2 {vr(PL+4,2)}, v3, s[32:35], {S.KVFW} offen{SC}")
        a("s_mov_b64 exec, -1")
    def j_f5():
        a("s_waitcnt vmcnt(0)")
        pub(a, S.F5OFF)
    def j_p5():
        a(f"v_and_b32 v6, 0x7ff, v{VL8}")
        a(f"buffer_load_dword v{VP1}, v6, s[32:35], {S.F5POLL} offen{SC}")
    def j_kv():
        wait_after("p5")
        check_flags(a, "L_pollF5", 0x7ff, VP1, S.F5POLL)
        a(f"v_min_u32 v5, 64, v{G4}")
        a("v_lshrrev_b32 v6, 5, v1")
        a("v_mul_u32_u24 v6, 272, v6")
        a("v_lshl_add_u32 v5, v5, 2, v6")
        for e in range(2):
            for sg in range(2):
                a(f"buffer_load_dwordx4 {vr(SCR+8*e+4*sg,4)}, v5, s[32:35], {S.KVFR} offen offset:{e*2048+sg*544}{SC}")
    def j_om():
        wait_after("kv")
        for sg in range(2):
            for e in range(2): mfma(a, SCR+16+16*e, SCR+8*e+4*sg, PHI+8*e+4*sg, "0" if sg == 0 else SCR+16+16*e)
    def j_oa(e):
        def f():
            D = SCR+16+16*e
            a(f"v_add_f32 v4, {f32(1e-6)}, v{D+8}")
            a("v_rcp_f32 v4, v4")
            for i in range(0, 8, 2): a(f"v_pk_mul_f32 {vr(D+i,2)}, {vr(D+i,2)}, v[4:5] op_sel_hi:[1,0]")
            for q in range(4): a(f"v_cvt_pk_bf16_f32 v{SCR+4*e+q}, v{D+2*q}, v{D+2*q+1}")
            a(f"buffer_store_dwordx4 {vr(SCR+4*e,4)}, v3, s[32:35], {S.OAOFF} offen offset:{e*1024}{SC}")
        return f
    def j_p4():
        a(f"v_and_b32 v6, 0x7ff, v{VL8}")
        svm(f"buffer_load_dword v{VP0}, v6, s[32:35], {S.F4POLL} offen{SC}")
    def j_c4():
        wait_after("p4")
        check_flags(a, "L_pollF4", 0x7ff, VP0, S.F4POLL)
        svm(f"buffer_load_dword v{GV}, v{G4}, s[32:35], {S.GATE3} offen{SC}")
        svm(f"buffer_load_dword v{GV+1}, v{G4}, s[32:35], {S.GATET} offen{SC}")
    def j_la(i):
        def f():
            for k in (2*i, 2*i+1):
                svm(f"buffer_load_dwordx4 {vr(SCR+4*k,4)}, v3, s[32:35], {S.OF3 if k < 4 else S.OF3B} offen offset:{(k%4)*1024}{SC}")
        return f
    def j_tb(k):
        return lambda: svm(f"global_load_dwordx4 {vr(vtab()[k][0],4)}, v{GV}, s[{VT}:{VT+1}] offset:{(k-4)*1024}")
    JB = dict(kp=(R_T0, j_kp), tb6=(R_ANY, j_tb(6)), tb7=(R_ANY, j_tb(7)), d0=(R_T0, j_drain), d1=(R_T1, j_drain), f2=(R_T0W0, lambda: pub(a, S.F2OFF)), f4=(R_T1W0, lambda: pub(a, S.F4OFF)),
              p2=(R_RED, j_p2), ld=(R_RED, j_ld), red=(R_RED, j_red), f5=(R_RED, j_f5),
              p5=(R_T1, j_p5), kv=(R_T1, j_kv), om=(R_T1, j_om), oa0=(R_T1, j_oa(0)), oa1=(R_T1, j_oa(1)),
              p4=(None, j_p4), c4=(None, j_c4), la0=(None, j_la(0)), la1=(None, j_la(1)), la2=(None, j_la(2)), la3=(None, j_la(3)))
    OUTL = []
    def hook(name):
        role, body = JB[name]
        if name not in OPT["y_skip"]:
            if role in OPT["outl"]:
                a(f"s_bitcmp1_b32 {S.ROLE}, {role}")
                a(f"s_cbranch_scc1 L_job_{name}")
                a.label(f"L_ret_{name}")
                keep = a.lines; a.lines = []
                a.label(f"L_job_{name}")
                body()
                a(f"s_branch L_ret_{name}")
                OUTL.extend(a.lines); a.lines = keep
            else:
                if role is not None:
                    a(f"s_bitcmp1_b32 {S.ROLE}, {role}")
                    a(f"s_cbranch_scc0 L_skip_{name}")
                body()
                if role is not None: a.label(f"L_skip_{name}")
        marks[name] = nvm[0]
    SPINS.append(lambda a: a.lines.extend(OUTL))
    JOBS = OPT["sched"]
    p0, p1, p2 = OPT["pos"]
    BST = OPT["bst"]
    for T in range(32):
        it, t = T >> 2, T & 3
        KVS = OPT["kvs"] if it else OPT["wos"]
        WOS = OPT["wos"]
        for qi in range(2):
            st = 2*t + qi
            s = S4[qi][T & 1]
            def extras(k):
                if (qi, k) == OPT["kat"] and T + 2 < 32: a(f"ds_read_b128 {vr(KB_[T&1],4)}, v{VK} offset:{(T+2)*1024}")
                if (qi, k) == OPT["vat"] and T + 1 < 32:
                    a(f"s_mov_b64 exec, s[{MASK}:{MASK+1}]")
                    a(f"ds_read_b128 {vr(VA[(T+1)&1],4)}, v{VV} offset:{(T+1)*1024}")
                    a(f"ds_read_b128 {vr(VBB[(T+1)&1],4)}, v{VV} offset:{(T+1)*1024+512}")
                    a("s_mov_b64 exec, -1")
                if k == OPT["dmk"]:
                    if st in KVS and it + 2 < 8:
                        kv_dma(a, it + 2, KVS.index(st)); nvm[0] += 1
                    if st in WOS and it >= 1:
                        wo_dma(a, it - 1, WOS.index(st)); nvm[0] += 1
                if k == OPT["jk"]:
                    for nm in JOBS.get((it, st), "").split(): hook(nm)
            if OPT["lprio"] and qi == OPT["pq"]: a(f"s_setprio {3 - ((T + OPT['poff']) % 4)}")
            for j in range(16):
                a(f"v_exp_f32 v{s+j}, v{s+j}")
                if j == p0:
                    tp = T if qi == 1 else T - 1
                    if tp >= 0: smfmac(a, O[1-qi], VBB[tp & 1], S4[1-qi][tp & 1]+8, IDX)
                    if st == BST:
                        if it == OPT["f2it"]: hook("d0")
                        if it == OPT["f4it"]: hook("d1")
                        if it < 7: a.wait_vm(f"r{it+1}")
                        a("s_barrier")
                        if it == OPT["f2it"]: hook("f2")
                        if it == OPT["f4it"]: hook("f4")
                    extras(0)
                if j == p1:
                    if qi == 0: a("s_waitcnt lgkmcnt(0)")
                    if T + 1 < 32: mfma(a, S4[qi][(T+1) & 1], KB_[(T+1) & 1], Q[qi], C[qi])
                    extras(1)
                if j == p2:
                    smfmac(a, O[qi], VA[T & 1], s, IDX)
                    extras(2)
    if OPT["lprio"]: a("s_setprio 0")
    a(f"ds_write_b128 v{XW}, {vr(O[0],4)}")
    a(f"ds_write_b128 v{XW}, {vr(O[0]+4,4)} offset:1024")
    smfmac(a, O[1], VBB[1], S4[1][1]+8, IDX)
    a(f"ds_write_b32 v{XW}, v{O[0]+8} offset:2048")
    stamp(a, 7); st4(a, 2)
    SX = 64
    a(f"v_add_f32_e64 v{M1}, |v{O[0]}|, |v{O[0]+1}|")
    a(f"v_add_f32_e64 v{M2}, |v{O[0]+2}|, |v{O[0]+3}|")
    for i in range(4, 9): a(f"v_add_f32_e64 v{M1+(i&1)}, v{M1+(i&1)}, |v{O[0]+i}|")
    a(f"v_mov_b32 v6, {FLAG}")
    a("v_mov_b32 v7, 1")
    a(f"v_mov_b32 v5, {f32(OPT['thr'])}")
    for i in range(0, 9): a(f"v_add_f32_e64 v{M2-(i&1)}, v{M2-(i&1)}, |v{O[1]+i}|")
    a(f"v_add_f32 v{M1}, v{M1}, v{M2}")
    a(f"v_cmp_nlt_f32 vcc, v{M1}, v5")
    a(f"s_waitcnt vmcnt({nvm[0]-marks['c4']})")
    a(f"v_sub_f32 v{GV+1}, 1.0, v{GV+1}")
    a("s_cbranch_vccz L_noflag")
    a("ds_write_b32 v6, v7")
    a.label("L_noflag")
    a("s_waitcnt lgkmcnt(0)")
    a("s_barrier")
    a(f"ds_read_b32 v{M2}, v6")
    a(f"ds_read_b32 v{SX+8}, v{XR} offset:2048")
    a(f"ds_read_b128 {vr(SX,4)}, v{XR}")
    a(f"ds_read_b128 {vr(SX+4,4)}, v{XR} offset:1024")
    a(f"v_cvt_pk_bf16_f32 v{GV+1}, v{GV+1}, v{GV+1}")
    a(f"v_lshlrev_b32 v{GV+1}, 16, v{GV+1}")
    a("s_waitcnt lgkmcnt(2)")
    a(f"v_readfirstlane_b32 s{TB}, v{M2}")
    a(f"v_add_f32 v{O[1]+8}, v{O[1]+8}, v{SX+8}")
    a(f"v_rcp_f32 v{M1}, v{O[1]+8}")
    a(f"s_cmp_lg_u32 s{TB}, 0")
    a("s_cbranch_scc1 L_maybe_fb")
    a.label("L_fin")
    a(f"v_mul_f32 v{M1}, v{M1}, v{GV+1}")
    a("s_waitcnt lgkmcnt(0)")
    for i in range(0, 8, 2): a(f"v_pk_add_f32 {vr(O[1]+i,2)}, {vr(O[1]+i,2)}, {vr(SX+i,2)}")
    for i in range(0, 8, 2): a(f"v_pk_mul_f32 {vr(O[1]+i,2)}, {vr(O[1]+i,2)}, {vr(M1,2)} op_sel_hi:[1,0]")
    for q in range(4): a(f"v_cvt_pk_bf16_f32 v{20+q}, v{O[1]+2*q}, v{O[1]+2*q+1}")
    for q in range(4): a(f"v_min_u32 v{20+q}, -2, v{20+q}")
    a(f"buffer_store_dwordx4 v[20:23], v3, s[32:35], {S.OFB} offen{SC}")
    wo_dma(a, 7, 0)
    wo_dma(a, 7, 1)

    def rare(a):
        a.label("L_maybe_fb")
        a(f"s_cmp_lg_u32 s{ATT}, 0")
        a("s_cbranch_scc1 L_fin")
        a(f"s_mov_b32 s{ATT}, 1")
        a(f"s_mov_b32 {S.ROLE}, 0")
        a("s_waitcnt vmcnt(0) lgkmcnt(0)")
        a("s_barrier")
        for rr in range(8):
            kv_dma(a, rr, 0); kv_dma(a, rr, 1)
        a(f"v_mov_b32 v{M1}, 0xff800000")
        a(f"v_mov_b32 v{M2}, 0xff800000")
        a("v_mov_b32 v4, v3")
        a(f"s_mov_b32 s{CNT}, 64")
        a("s_waitcnt vmcnt(0)")
        a("s_barrier")
        a.label("L_fbloop")
        a(f"ds_read_b128 {vr(KB_[0],4)}, v4")
        a("v_add_u32 v4, 1024, v4")
        a("s_waitcnt lgkmcnt(0)")
        mfma(a, S4[0][0], KB_[0], Q[0], "0")
        mfma(a, S4[1][0], KB_[0], Q[1], "0")
        a.nop(12)
        maxtree(a, M1, S4[0][0], False)
        maxtree(a, M2, S4[1][0], False)
        a(f"s_sub_u32 s{CNT}, s{CNT}, 1")
        a(f"s_cmp_lg_u32 s{CNT}, 0")
        a("s_cbranch_scc1 L_fbloop")
        zero_acc()
        prime_reads()
        negmax(); cfill(0); cfill(1)
        a("s_nop 1")
        a("s_branch L_redo")
    return rare

def phase3(a):
    ACC, OFB_, PEND = 32, 224, TC
    WA = list(range(112, 136, 4)) + list(range(184, 224, 4))
    WB = list(range(64, 128, 4))
    def trread(br, i):
        for ct in range(2):
            f = (WA, WB)[br][2*i+ct]
            a(f"ds_read_b64_tr_b16 {vr(f,2)}, v{TR0+ct} offset:{br*16384+i*2048}")
            a(f"ds_read_b64_tr_b16 {vr(f+2,2)}, v{TR0+ct} offset:{br*16384+i*2048+1024}")
    def oload(k):
        return f"buffer_load_dwordx4 {vr(OFB_+4*k,4)}, v3, s[32:35], {S.OF3 if k < 4 else S.OF3B} offen offset:{(k%4)*1024}{SC}"
    stamp(a, 8); st4(a, 3)
    for i in range(2): trread(0, i)
    a(f"s_add_u32 {S.OF3}, {S.OF3}, 32768")
    a(f"s_add_u32 {S.OF3B}, {S.OF3B}, 32768")
    a(f"s_mov_b32 s{CNT}, {POLL_LIMIT}")
    a(f"s_mov_b32 s{PEND}, 0")
    for p in range(1, 4): a(f"v_xor_b32 v{12+p}, {p*32768}, v{RR}")
    a("s_waitcnt vmcnt(3)")
    OP = OPT["opos"]
    if OP < 8: a("s_barrier")
    for i in range(8):
        if i == OP:
            for k in range(8): a(oload(k))
        if i + 2 < 8: trread(0, i + 2)
        a(f"s_waitcnt lgkmcnt({4*min(2, 7-i)})")
        for ct in range(2): mfma(a, ACC+16*ct, WA[2*i+ct], SCR+4*i, "0" if i == 0 else ACC+16*ct)
        if OP == -1: a(oload(i))
    if OP == 8:
        for k in range(8): a(oload(k))
    NPRE = OPT["npre"]
    NB0 = OPT["nb0"]
    for i in range(NB0): trread(1, i)
    st4(a, 4)
    a("s_waitcnt vmcnt(0)")
    st4(a, 5)
    a("s_barrier")
    todo = list(range(NB0, 8)); mul = list(range(0, 32, 2))
    for k in range(NPRE):
        a(oload(k))
        for _ in range(2):
            if todo:
                a("s_waitcnt lgkmcnt(8)")
                trread(1, todo.pop(0))
        for _ in range(4):
            if mul:
                j = mul.pop(0)
                a(f"v_pk_mul_f32 {vr(ACC+j,2)}, {vr(ACC+j,2)}, {vr(GV,2)} op_sel_hi:[1,0]")
    assert not todo and not mul
    st4(a, 6)
    def test(a, o):
        a(f"v_max3_u32 v4, v{o}, v{o+1}, v{o+2}")
        a(f"v_max_u32 v4, v4, v{o+3}")
        a("v_cmp_eq_u32 vcc, -1, v4")
        a("s_nop 1")
    if OPT["det"]:
        for i in range(8):
            o = OFB_ + 4*i
            a(f"s_waitcnt vmcnt({min(7-i, NPRE-1)})" + (" lgkmcnt(0)" if i == 0 else ""))
            if i == 0: st4(a, 7)
            a.label(f"L_ot{i}")
            test(a, o)
            a(f"s_cbranch_vccnz L_obad{i}")
            a.label(f"L_og{i}")
            for ct in range(2): mfma(a, ACC+16*ct, WB[2*i+ct], o, ACC+16*ct)
            if i + NPRE < 8: a(oload(i + NPRE))
        def retry(a):
            for i in range(8):
                a.label(f"L_obad{i}")
                a(f"s_sub_u32 s{CNT}, s{CNT}, 1")
                a(f"s_cmp_lt_i32 s{CNT}, 1")
                a(f"s_cbranch_scc1 L_og{i}")
                a("s_waitcnt vmcnt(0)")
                a(f"s_sleep {OPT['osleep']}")
                a(oload(i))
                for k in range(i + 1, min(8, i + NPRE)):
                    test(a, OFB_ + 4*k)
                    a(f"s_cbranch_vccz L_os{i}_{k}")
                    a(oload(k))
                    a.label(f"L_os{i}_{k}")
                a("s_waitcnt vmcnt(0)")
                a(f"s_branch L_ot{i}")
    else:
        for i in range(8):
            o = OFB_ + 4*i
            a(f"s_waitcnt vmcnt({7-i})")
            test(a, o)
            a(f"s_cbranch_vccnz L_obad{i}")
            for ct in range(2): mfma(a, ACC+16*ct, WB[2*i+ct], o, ACC+16*ct)
            a.label(f"L_onext{i}")
        a(f"s_cmp_lg_u32 s{PEND}, 0")
        a("s_cbranch_scc1 L_oretry")
        a.label("L_odone")
        def retry(a):
            for i in range(8):
                a.label(f"L_obad{i}")
                a(f"s_bitset1_b32 s{PEND}, {i}")
                a(f"s_branch L_onext{i}")
            a.label("L_oretry")
            a(f"s_sub_u32 s{CNT}, s{CNT}, 1")
            a(f"s_cmp_lt_i32 s{CNT}, 1")
            a("s_cbranch_scc1 L_oexit")
            a(f"s_sleep {OPT['osleep']}")
            for i in range(8):
                a(f"s_bitcmp1_b32 s{PEND}, {i}")
                a(f"s_cbranch_scc0 L_ol{i}")
                a(oload(i))
                a.label(f"L_ol{i}")
            a("s_waitcnt vmcnt(0)")
            for i in range(8):
                o = OFB_ + 4*i
                a(f"s_bitcmp1_b32 s{PEND}, {i}")
                a(f"s_cbranch_scc0 L_oc{i}")
                test(a, o)
                a(f"s_cbranch_vccnz L_oc{i}")
                for ct in range(2): mfma(a, ACC+16*ct, WB[2*i+ct], o, ACC+16*ct)
                a(f"s_bitset0_b32 s{PEND}, {i}")
                a.label(f"L_oc{i}")
            a(f"s_cmp_lg_u32 s{PEND}, 0")
            a("s_cbranch_scc1 L_oretry")
            a.label("L_oexit")
            a.nop(10)
            a("s_branch L_odone")
    SPINS.append(retry)
    stamp(a, 9); st4(a, 8)
    for p in range(1, 4):
        for q in range(2): a(f"ds_write_b128 v{12+p}, {vr(ACC+8*p+4*q,4)} offset:{(p-1)*2048+q*1024}")
    a("s_waitcnt lgkmcnt(0)")
    a("s_barrier")
    for src in range(3):
        for q in range(2): a(f"ds_read_b128 {vr(64+8*src+4*q,4)}, v{RR} offset:{src*2048+q*1024}")
    a("s_waitcnt lgkmcnt(4)")
    for j in range(0, 8, 2): a(f"v_pk_add_f32 {vr(64+j,2)}, {vr(64+j,2)}, {vr(ACC+j,2)}")
    a("s_waitcnt lgkmcnt(0)")
    for j in range(0, 8, 2): a(f"v_pk_add_f32 {vr(72+j,2)}, {vr(72+j,2)}, {vr(80+j,2)}")
    for j in range(0, 8, 2): a(f"v_pk_add_f32 {vr(64+j,2)}, {vr(64+j,2)}, {vr(72+j,2)}")
    for q in range(4): a(f"v_cvt_pk_bf16_f32 v{20+q}, v{64+2*q}, v{64+2*q+1}")
    st4(a, 9)
    a("v_permlane32_swap_b32 v20, v22")
    a("v_permlane32_swap_b32 v21, v23")
    a(f"buffer_store_dwordx4 v[20:23], v{OUTA}, s[24:27], {S.OUTOFF} offen{OPT['outsc']}")
    a(f"s_or_b32 s{TA}, s2, s{W}")
    a(f"s_cmp_lg_u32 s{TA}, 0")
    a("s_cbranch_scc1 L_noE")
    a(f"v_mov_b32 v24, s{TAG}")
    a("s_mov_b64 exec, 1")
    a(f"buffer_store_dword v24, v3, s[32:35], 0 offen offset:{WS_E}")
    a("s_mov_b64 exec, -1")
    a.label("L_noE")
    flush_stamps(a)

def tables():
    t = ".p2align 8\nL_vtab:\n"
    for w in range(8):
        for r, fn in vtab():
            for l in range(0, 64, 2):
                t += ".long " + ",".join(str(x) for x in fn(w, l) + fn(w, l+1)) + "\n"
    t += ".set b, 0\n.rept 256\n.set w, 0\n.rept 8\n"
    for n, e in stab(): t += f".long {e}\n"
    t += ".set w, w+1\n.endr\n.set b, b+1\n.endr\n"
    return t

def main(out):
    hdr = open("cdna_kernels/" + NAME + ".s.ref").read().split("; Override launch")[0]
    txt = hdr + "; @launch grid=(256,1,1) block=(512,1,1) lds=163840\n"
    txt += '.amdgcn_target "amdgcn-amd-amdhsa--gfx950"\n.text\n'
    nm = NAME + "_kernel"
    a = Asm()
    a.label(nm)
    phase1(a)
    rare = phase2(a)
    phase3(a)
    a.label("L_end")
    a("s_endpgm")
    for sp in SPINS: sp(a)
    rare(a)
    a.label("L_code_end")
    a("s_endpgm")
    a.lines, added = autonop(a.lines)
    errs = check(a.lines, nm)
    bare, skipping = [], None
    for l in a.lines:
        if skipping:
            if l.startswith(skipping + ":"): skipping = None
            continue
        bare.append(l)
        if "s_cbranch_scc0 L_skip_" in l or "s_cbranch_scc1 L_skip_" in l: skipping = l.split()[-1]
    errs += check(bare, nm + "(optional blocks skipped)")
    txt += f".globl {nm}\n.p2align 8\n.type {nm},@function\n" + a.text()
    txt += f""".section .rodata,"a"
.p2align 6
.amdhsa_kernel {nm}
  .amdhsa_next_free_vgpr 256
  .amdhsa_next_free_sgpr 102
  .amdhsa_accum_offset 256
  .amdhsa_group_segment_fixed_size 0
  .amdhsa_kernarg_size 88
  .amdhsa_user_sgpr_count 2
  .amdhsa_user_sgpr_kernarg_segment_ptr 1
  .amdhsa_system_sgpr_workgroup_id_x 1
.end_amdhsa_kernel
""" + tables()
    open(out, "w").write(txt)
    for e in errs: print("HAZARD", e)
    print("written", out, len(txt), "bytes;", len(errs), "hazards;", added, "auto nops")

if __name__ == "__main__":
    if "--stamps" in sys.argv:
        STAMPS = True; sys.argv.remove("--stamps")
    for x in list(sys.argv):
        if x.startswith("--o:"):
            k, v = x[4:].split("=", 1)
            assert k in OPT, k
            OPT[k] = eval(v); sys.argv.remove(x)
    main(sys.argv[1] if len(sys.argv) > 1 else "cdna_kernels/" + NAME + ".s")
```

```python
import sys, struct
from asmlib import *

NAME = "gated_mix__linear_kernel_hedgehog__mha_block__prompt"
WS_E, WS_F1, WS_F2, WS_GATE, WS_F4, WS_F5, WS_KVF = 0x0, 0x10000, 0x20000, 0x40000, 0x50000, 0x60000, 0x70000
WS_QB, WS_KB, WS_VB, WS_KVP, WS_OF = 0x200000, 0x400000, 0x600000, 0x800000, 0xA00000
WS_USED = 0x2100000
def f32(x): return "0x%08x" % struct.unpack("<I", struct.pack("<f", x))[0]
LOG2E = 1.4426950408889634
STAMPS = False
OPT = dict(lg0=0, cmask=15, nobar=(6,), npre=5, nb0=2, det=1, p1prio=0, opos=9, outl=(1,2,4), bst=4, kat=(0,2), vat=(1,2), dmk=0, jk=1, lprio=1, pq=1, poff=2, p2prio=0, cnt=0, ciat=19, fb=-1, sprd=8, al=0, t0pos=0, bar0=1, gst=0, la=2, pre2=0, t0at=-2, f1g=26, zat=30, last='wb', t2at=26, tchat=7, phiat=24, ds0=(16,17,18,19,20,21,22,23), ds1={(2,0):0,(2,1):1,(3,0):2,(3,1):3,(4,0):4,(4,1):5,(5,0):6,(5,1):8,(6,0):10,(6,1):12,(7,0):14,(7,1):15}, map2d=1, pp=0, rot=4, rp=1, pos=(1, 6, 11), thr=2.0**100, cyc=0, amp=None, outsc="", fill=3, hga=4, osleep=4, cpf=1,
           rsplit=(0, 3, 5, 7), f1at=1, pollat=2, goat=5, y_skip=(),
           f2it=0, f4it=5, kvs=(0, 1), wos=(6, 7),
           sched={(0, 0): "kp", (0, 5): "tb6 tb7", (1, 2): "p2", (1, 6): "ld", (2, 2): "red", (2, 5): "f5", (3, 4): "p5", (4, 0): "kv", (4, 5): "om", (4, 6): "oa0", (4, 7): "oa1",
                  (6, 4): "p4", (7, 0): "c4 la0", (7, 1): "la1", (7, 2): "la2", (7, 3): "la3"})
SC = " sc1"
POLL_LIMIT = 200000
NST = 11
SLOT = 32768
XCH, FLAG, PHIL, CNTW = 131072, 155648, 8192, 12288
R_T0, R_T0W0, R_RED, R_T1, R_T1W0, R_ANY = range(6)

W = 3
TAG, J, XOFF, WOFF, MX, MW, TY, ATT = range(36, 44)
L2E, MASK, VT = 10, 14, 46
TA, TB, TC, CNT = 4, 5, 6, 7
CP = 44
def stab():
    hA = OPT["hga"]
    d = dict(hg="(b&7)", j="(b>>3)", ty="((b>>3)&1)", rb16="(b>>4)", rb8="(b>>5)", qp="(w&3)", kh="(w>>2)", kq="(w>>1)", rt3="(w&1)")
    d["hg1"] = d["hg"]
    if OPT["map2d"]:
        d["hg1"] = "(((b&3)<<1)+((b>>4)&1))"
        d["rb16"] = "((((b>>2)&1)<<3)+(b>>5))"
    d["h"] = "(({hg}<<2)+({j}&3))".format(**d)
    d["t"] = "(({rb16}<<2)+{qp})".format(**d)
    d["hb0"] = "(({hg1}<<2)+({kh}<<1))".format(**d)
    d["ha0"] = "({hb0}^%d)".format(**d) % (hA*4)
    d["hr"] = "(((({h}+w)-1)&31)^%d)".format(**d) % (hA*4)
    d["T"] = "((({rb8}<<3)+({qp}<<1))+{kh})".format(**d)
    d["T3"] = "(((({rb8}<<2)+({hg}>>1))<<1)+{rt3})".format(**d)
    d["cb"] = "(((b&1)<<2)+({j}&3))".format(**d)
    d["lds0"] = "(({kh}<<15)+({qp}<<10))".format(**d)
    d["w0"] = "(((w-1)>>8)&1)"
    d["w12"] = "((((w-3)>>8)&1)-{w0})".format(**d)
    E = [
     ("F1OFF", "(%d+(((({hg1}<<5)+({rb16}<<1))+{ty})<<7))" % WS_F1),
     ("F1POLL", "(%d+({hg}<<12))" % WS_F1),
     ("F2OFF", "(%d+((({hg1}<<4)+{rb16})<<7))" % WS_F2),
     ("F2POLL", "(%d+({hg}<<11))" % WS_F2),
     ("VOFF", "((%d+({hb0}<<16))+({t}<<10))" % WS_VB),
     ("QK0", "(((%d+({ty}*%d))+({hb0}<<16))+({t}<<10))" % (WS_QB, WS_KB-WS_QB)),
     ("LDS0", "{lds0}"),
     ("KOFF", "((%d+({h}<<16))+{lds0})" % WS_KB),
     ("K0OFF", "(%d+({h}<<16))" % WS_KB),
     ("QOFF1", "((%d+({h}<<16))+({T}<<10))" % WS_QB),
     ("QOFF0", "((%d+({h}<<16))+(({T}^1)<<10))" % WS_QB),
     ("ROLE", "(((1-{ty})*((%d+({w0}*%d))+({w12}*%d)))+({ty}*(%d+({w0}*%d))))" % ((1 << R_T0) | (1 << R_ANY), 1 << R_T0W0, 1 << R_RED, (1 << R_T1) | (1 << R_ANY), 1 << R_T1W0)),
     ("KVPOFF", "(%d+(((({ha0}+({qp}>>1))<<4)+{rb16})<<12))" % WS_KVP),
     ("OFB", "((%d+({T}<<16))+({h}<<10))" % (WS_OF+32768)),
     ("OF3", "((%d+({T3}<<16))+({kq}<<13))" % WS_OF),
     ("OF3B", "((%d+({T3}<<16))+({kq}<<13))" % (WS_OF+4096)),
     ("OUTOFF", "((({T3}<<15)+({cb}<<7))+({kq}<<5))"),
     ("WOOFF", "(((({kh}<<4)+{qp})<<13)+({cb}<<7))"),
     ("F4POLL", "(%d+({rb8}<<11))" % WS_F4),
     ("F4OFF", "(%d+((({rb16}<<3)+{hg1})<<7))" % WS_F4),
     ("OWN1", "(4294967295-((((({hg}^{hg1})-1)>>8)&1)<<(({rb16}<<1)+{ty})))"),
     ("GATE3", "(%d+({T3}<<7))" % WS_GATE),
     ("GATET", "(%d+({T}<<7))" % WS_GATE),
     ("GROW", "(((({rb16}<<7)+({hg1}<<4))+(w<<1))<<10)"),
     ("GOFF", "(%d+(((({rb16}<<7)+({hg1}<<4))+(w<<1))<<2))" % WS_GATE),
     ("PHIOFF", "((({hg1}^%d)<<11)+({rt3}<<10))" % hA),
     ("LDK", "((%d+({hr}<<16))+({rb8}<<8))" % WS_KVP),
     ("KVFW", "((((%d+({hr}<<11))+(({rb8}>>2)*544))+(({rb8}&1)*272))+(({rb8}&2)<<2))" % WS_KVF),
     ("F5OFF", "((%d+({hr}<<10))+({rb8}<<7))" % WS_F5),
     ("F5POLL", "(%d+({ha0}<<10))" % WS_F5),
     ("KVFR", "(%d+({ha0}<<11))" % WS_KVF),
     ("OAOFF", "((%d+({t}<<16))+({ha0}<<10))" % WS_OF),
    ]
    assert len(E) == 32
    return [(n, e.format(**d)) for n, e in E]
SR = {n: 48 + i for i, (n, _) in enumerate(stab())}
class _S:
    def __getattr__(self, n): return f"s{SR[n]}"
S = _S()

Q = [8, 12]; C = [16, 32]; S4 = [[48, 200], [64, 216]]; O = [80, 96]
KB_ = [112, 116]; VA = [120, 128]; VBB = [124, 132]
IDX, VK, VV, VL8, VWO, XW, XR, TR0, TR1, RR, OUTA, G4 = range(136, 148)
GV, M1, M2 = 148, 150, 151
VP0, VP1 = 0, 2
SCR, PHI = 152, 232
VXR, VWR, PHIA, VXD, VWD, BSEL = 8, 16, 18, 20, 22, 56
KO, VO, REDW, REDR, KVP0, KVP1, ONES = 24, 25, 26, 27, 28, 29, 30
def vtab():
    def trc(l): return ((l >> 2) & 3)*128 + ((l >> 4) & 1)*32 + (l & 3)*8
    def g0(w, l):
        r, hf = l & 31, l >> 5
        return [(w & 3)*4096 + r*128 + (((2*st + hf) ^ ((r >> 1) & 7))*16) for st in range(4)]
    def g2(w, l):
        hf = l >> 5
        v = trc(l) + (((w >> 2) ^ ((l >> 3) & 1))*64)
        return [16384 + hf*2048 + v, 16384 + hf*2048 + v + 2*SLOT, PHIL + (w >> 2)*1024 + (4*hf + ((l >> 2) & 3))*32 + (l & 3)*8, 131072 + hf*1024 + v]
    def g3(w, l):
        pi = (l & 0x33) | (((l >> 2) & 1) << 3) | (((l >> 3) & 1) << 2)
        return [pi*16, ((l >> 4) & 1)*65536 + (l >> 5)*256 + (l & 15)*16,
                (w >> 1)*32768 + 8192 + (w & 1)*8192 + l*16, (w >> 2)*65536 + 8192 + (w & 3)*2048 + l*16]
    def g4(w, l):
        own = ((l >> 4) & 1) == ((w >> 1) & 1); q0 = 2*(w & 1); hf = l >> 5
        k = [q*512 + hf*256 + (l & 15)*16 if own else 2048 + q*32 + hf*16 for q in (q0, q0+1)]
        one = 0x3f803f80 if (l & 27) == 16 else 0
        return k + [one, one]
    def bsel(sg):
        def g(w, l):
            t = (l & 31) - 4*(l >> 5) - 16*sg
            T = lambda j: 8*(j//4) + j % 4
            return [(0x3f80 if t == T(2*q) else 0) | (0x3f800000 if t == T(2*q+1) else 0) for q in range(4)]
        return g
    def tr0(w, l): return (w >> 1)*32768 + (((l >> 5)*512 + ((l >> 3) & 1)*64 + trc(l)) ^ ((w >> 1)*32))
    def g8(w, l): return [(l >> 3)*1024 + (((l & 7) ^ ((l >> 2) & 4))*16), XCH + w*3072 + l*16, XCH + (w ^ 4)*3072 + l*16, tr0(w, l)]
    def g9(w, l): return [tr0(w, l) ^ 64, (w >> 1)*32768 + (w & 1)*8192 + l*16, (l & 31)*1024 + (l >> 5)*16, (l & 31)*4]
    return [(8, g0), (16, g2), (24, g3), (28, g4), (56, bsel(0)), (60, bsel(1)), (140, g8), (144, g9)]
NG = len(vtab())

def mfma(a, d, A, B, Cc):
    a(f"v_mfma_f32_32x32x16_bf16 {vr(d,16)}, {vr(A,4)}, {vr(B,4)}, {Cc if isinstance(Cc,str) else vr(Cc,16)}")
def smfmac(a, d, A, B, idx):
    a(f"v_smfmac_f32_32x32x32_bf16 {vr(d,16)}, {vr(A,4)}, {vr(B,8)}, v{idx}")
def stamp(a, j, g=False):
    if OPT["gst"] and not g and j not in (0, 1, NST-1): return
    if STAMPS: a(f"s_mem{'' if OPT['cyc'] else 'real'}time s[{80+2*j}:{81+2*j}]")
def st5(a, j):
    if OPT["gst"] == 5: stamp(a, j, True)
def st4(a, j):
    if OPT["gst"] == 4: stamp(a, j, True)
def flush_stamps(a):
    if not STAMPS: return
    a("s_waitcnt vmcnt(0)")
    stamp(a, NST-1)
    a("s_waitcnt lgkmcnt(0)")
    if OPT["amp"]:
        j0, j1 = OPT["amp"]
        a(f"s_or_b32 s7, s2, s{W}")
        a("s_cmp_lg_u32 s7, 0")
        a("s_cbranch_scc1 L_end")
        a(f"s_sub_u32 s7, s{80+2*j1}, s{80+2*j0}")
        a("s_lshl_b32 s7, s7, 4")
        a.label("L_amp")
        a("s_memrealtime s[4:5]")
        a("s_waitcnt lgkmcnt(0)")
        a(f"s_sub_u32 s6, s4, s{80+2*(NST-1)}")
        a("s_cmp_lt_u32 s6, s7")
        a("s_cbranch_scc1 L_amp")
        return
    a("s_lshl_b32 s7, s2, 3")
    a(f"s_add_u32 s7, s7, s{W}")
    a("s_lshl_b32 s7, s7, 6")
    a(f"s_add_u32 s7, s7, {0x2000000}")
    a("s_mov_b64 exec, 1")
    a("v_mov_b32 v1, 0")
    for j in range(NST):
        a(f"v_mov_b32 v2, s{80+2*j}")
        a(f"buffer_store_dword v2, v1, s[32:35], s7 offen offset:{4*j}")
def pub(a, soff):
    a(f"v_mov_b32 v4, s{TAG}")
    a("s_mov_b64 exec, 1")
    a(f"buffer_store_dword v4, v3, s[32:35], {soff} offen{SC}")
    a("s_mov_b64 exec, -1")
def poll(a, lab, vaddr, vdst, soff, landed=False, own=None):
    a(f"s_mov_b32 s{CNT}, {POLL_LIMIT}")
    a(f"s_branch {lab}_{'cmp' if landed else 'chk'}")
    a.label(lab)
    a(f"buffer_load_dword v{vdst}, v{vaddr}, s[32:35], {soff} offen{SC}")
    a.label(lab + "_chk")
    a("s_waitcnt vmcnt(0)")
    a.label(lab + "_cmp")
    a(f"v_cmp_ne_u32 s[{CP}:{CP+1}], s{TAG}, v{vdst}")
    a(f"s_sub_u32 s{CNT}, s{CNT}, 1")
    a(f"s_or_b32 s{CP}, s{CP}, s{CP+1}")
    if own is not None: a(f"s_and_b32 s{CP}, s{CP}, {own}")
    a(f"s_cbranch_scc0 {lab}_ok")
    a(f"s_cmp_eq_u32 s{CNT}, 0")
    a(f"s_cbranch_scc1 {lab}_ok")
    a("s_sleep 1")
    a(f"s_branch {lab}")
    a.label(lab + "_ok")
SPINS = []
def check_flags(a, lab, mask, vdst, soff):
    a(f"v_cmp_ne_u32 vcc, s{TAG}, v{vdst}")
    a("s_nop 1")
    a(f"s_cbranch_vccnz {lab}_spin")
    a.label(f"{lab}_back")
    def spin(a):
        a.label(f"{lab}_spin")
        a(f"v_and_b32 v6, {mask}, v{VL8}")
        poll(a, lab, 6, vdst, soff, landed=True)
        a(f"s_branch {lab}_back")
    SPINS.append(spin)

class Fill:
    def __init__(self): self.g = []
    def __call__(self, *lines, after=0): self.g.append((after, list(lines)))
    def pop(self, a, n, g):
        while n > 0 and self.g and self.g[0][0] <= g:
            _, ls = self.g.pop(0)
            for l in ls:
                if isinstance(l, tuple): a.vmem(*l)
                elif callable(l): l(a)
                else: a(l)
            n -= len(ls)

def gate(a):
    X, Wt, t = 96, 104, 56
    for q in range(8):
        u = t + 4*(q & 1)
        a(f"v_lshlrev_b32 v{u}, 16, v{X+q}")
        a(f"v_lshlrev_b32 v{u+2}, 16, v{Wt+q}")
        a(f"v_and_b32 v{u+1}, 0xffff0000, v{X+q}")
        a(f"v_and_b32 v{u+3}, 0xffff0000, v{Wt+q}")
        a(f"v_pk_mul_f32 {vr(u,2)}, {vr(u,2)}, {vr(u+2,2)}")
        a(f"v_cvt_pk_bf16_f32 v{u+2}, v{u}, v{u+1}")
        d = 52 if q == 0 else u
        a(f"v_lshlrev_b32 v{d}, 16, v{u+2}")
        a(f"v_and_b32 v{d+1}, 0xffff0000, v{u+2}")
        if q: a(f"v_pk_add_f32 v[52:53], v[52:53], {vr(u,2)}")
    s = 52
    a(f"v_add_f32 v{s}, v{s}, v{s+1}")
    a(f"v_mov_b32 v{s+1}, v{s}")
    a("v_lshrrev_b32 v6, 3, v1")
    a(f"v_permlane16_swap_b32 v{s}, v{s+1}")
    a(f"v_add_f32 v{s}, v{s}, v{s+1}")
    for r in (8, 4, 2, 1):
        a(f"v_add_f32_dpp v{s}, v{s}, v{s} row_ror:{r} row_mask:0xf bank_mask:0xf")
    a(f"v_cvt_pk_bf16_f32 v{s}, v{s}, v{s}")
    a(f"v_lshlrev_b32 v{s}, 16, v{s}")
    a(f"v_mul_f32 v{s}, {f32(-LOG2E)}, v{s}")
    a(f"v_exp_f32 v{s}, v{s}")
    a(f"v_add_f32 v{s}, 1.0, v{s}")
    a(f"v_rcp_f32 v{s}, v{s}")
    a(f"v_cvt_pk_bf16_f32 v{s}, v{s}, v{s}")
    a(f"v_lshlrev_b32 v{s}, 16, v{s}")

def maxtree(a, dst, src, first):
    if first:
        a(f"v_max3_f32 v{dst}, v{src}, v{src+1}, v{src+2}")
        for j in range(3, 15, 2): a(f"v_max3_f32 v{dst}, v{dst}, v{src+j}, v{src+j+1}")
        a(f"v_max_f32 v{dst}, v{dst}, v{src+15}")
    else:
        for j in range(0, 16, 2): a(f"v_max3_f32 v{dst}, v{dst}, v{src+j}, v{src+j+1}")
def kv_dma(a, rr, kind):
    a(f"s_add_u32 m0, {S.LDS0}, {kind*65536+rr*4096}")
    a(f"s_add_u32 s{TA}, {S.KOFF}, {kind*(WS_VB-WS_KB)+rr*4096}")
    a.vmem(f"buffer_load_dwordx4 v3, s[32:35], s{TA} offen{SC} lds", f"r{rr}")
def wo_dma(a, rr, kind):
    a(f"s_add_u32 m0, {S.LDS0}, {kind*65536+rr*4096}")
    a(f"s_add_u32 s{TA}, {S.WOOFF}, {kind*262144+(rr&3)*32768}")
    R = 16 if rr < 4 else 20
    a.vmem(f"buffer_load_dwordx4 v{VWO}, s[{R}:{R+3}], s{TA} offen lds", f"w{rr}")

def phase1(a):
    ACC = [64, 80, 96]
    a("s_cmp_ge_u32 s2, 256")
    a("s_cbranch_scc1 L_end")
    stamp(a, 0)
    a("s_load_dwordx4 s[4:7], s[0:1], 0")
    a("s_load_dwordx2 s[10:11], s[0:1], 40")
    a("s_load_dwordx2 s[32:33], s[0:1], 80")
    a("s_load_dwordx2 s[8:9], s[0:1], 16")
    a("s_load_dwordx2 s[12:13], s[0:1], 56")
    a(f"s_getpc_b64 s[{VT}:{VT+1}]")
    a.label("L_pc")
    a("v_lshrrev_b32 v2, 6, v0")
    a("v_and_b32 v1, 63, v0")
    a(f"s_lshr_b32 s{J}, s2, 3")
    a(f"v_readfirstlane_b32 s{W}, v2")
    a("v_lshlrev_b32 v3, 4, v1")
    a(f"s_mov_b64 s[14:15], s[{VT}:{VT+1}]")
    a(f"s_add_u32 s{VT}, s{VT}, L_vtab-L_pc")
    a(f"s_addc_u32 s{VT+1}, s{VT+1}, L_vtab@rel32@hi+12")
    def cpf_addr():
        a(f"s_and_b32 s44, s{J}, {OPT['cmask']}")
        a("s_lshl_b32 s44, s44, 13")
        a("s_sub_u32 s45, s44, 32768")
        a("s_cselect_b32 s44, s44, s45")
        a(f"s_cselect_b64 s[34:35], s[14:15], s[{VT}:{VT+1}]")
        a(f"s_cselect_b32 s45, L_code_end-L_pc-16, -1")
        a("v_lshl_add_u32 v24, v0, 4, s44")
        a("v_min_u32 v24, s45, v24")
    def cpf():
        a.vmem("global_load_dwordx4 v[112:115], v24, s[34:35]", "x")
    def t0():
        a.vmem(f"global_load_dwordx4 v[8:11], v23, s[{VT}:{VT+1}]", "t0")
        a.vmem(f"global_load_dwordx4 v[16:19], v23, s[{VT}:{VT+1}] offset:1024", "t0")
    if OPT["cpf"]: cpf_addr()
    if OPT["cpf"] == 1: cpf()
    a(f"v_mul_u32_u24 v23, {NG*1024}, v2")
    a("v_add_u32 v23, v23, v3")
    if OPT["t0pos"] == 0: t0()
    a("v_lshrrev_b32 v7, 3, v1")
    a("v_and_b32 v4, 7, v1")
    a("v_lshrrev_b32 v5, 1, v7")
    a("v_xor_b32 v6, v4, v5")
    a("v_lshlrev_b32 v6, 4, v6")
    a(f"v_lshl_add_u32 v{VXD}, v7, 10, v6")
    a(f"v_xor_b32 v{VXD+1}, 64, v{VXD}")
    a(f"v_add_u32 v{VXD+1}, {8192-1024}, v{VXD+1}")
    a("v_lshrrev_b32 v6, 2, v1")
    a("v_and_b32 v6, 4, v6")
    a("v_xor_b32 v6, v4, v6")
    a("v_mul_u32_u24 v7, 3072, v7")
    a(f"v_lshl_add_u32 v{VWD}, v6, 4, v7")
    a(f"s_and_b32 s{TY}, s{J}, 1")
    if OPT["map2d"]:
        a(f"s_lshr_b32 s{XOFF}, s2, 5")
        a("s_and_b32 s44, s2, 4")
        a(f"s_lshl1_add_u32 s{XOFF}, s44, s{XOFF}")
    else:
        a(f"s_lshr_b32 s{XOFF}, s2, 4")
    if OPT["rot"] == 4:
        a(f"s_lshl1_add_u32 s{J}, s{J}, s{XOFF}")
    elif OPT["rot"] == 5:
        a(f"s_lshl1_add_u32 s{J}, s{J}, s{XOFF}")
        a(f"s_add_u32 s{J}, s{J}, s2")
    elif OPT["rot"] >= 1:
        a(f"s_lshl2_add_u32 s{J}, s{TY}, s{XOFF}")
    if OPT["rot"] == 2: a(f"s_add_u32 s{J}, s{J}, s2")
    if OPT["rot"] == 3:
        a("s_lshl_b32 s44, s2, 1")
        a(f"s_add_u32 s{J}, s{J}, s44")
    a(f"s_lshl3_add_u32 s{XOFF}, s{XOFF}, s{W}")
    a(f"s_lshl_b32 s{XOFF}, s{XOFF}, 14")
    a(f"s_mul_i32 s{WOFF}, s{W}, 24576")
    a(f"s_lshl_b32 s{MX}, s{W}, 11")
    a(f"s_lshl_b32 s{MW}, s{W}, 10")
    if OPT["map2d"]:
        a("s_and_b32 s44, s2, 3")
        a("s_bfe_u32 s45, s2, 0x10004")
        a("s_lshl1_add_u32 s44, s44, s45")
    else:
        a("s_and_b32 s44, s2, 7")
    a("s_lshl_b32 s44, s44, 7")
    a(f"s_xor_b32 s45, s44, {OPT['hga']*128}")
    a(f"s_lshl_b32 s14, s{TY}, 10")
    a("s_add_u32 s15, s14, s44")
    a("s_sub_u32 s14, s45, s14")
    a("s_add_u32 s14, s14, 1024")
    a(f"s_cmp_eq_u32 s{TY}, 0")
    a("s_cselect_b32 s44, s45, s44")
    a("s_add_u32 s44, s44, 1024")
    a("s_sub_u32 s22, 0x180000, s14")
    a("s_sub_u32 s26, 0x180000, s44")
    a("s_sub_u32 s30, 0x180000, s15")
    a("s_mov_b32 s23, 0x00020000")
    a("s_mov_b32 s27, 0x00020000")
    a("s_mov_b32 s31, 0x00020000")
    a("s_mov_b32 s18, 0x200000")
    a("s_mov_b32 s19, 0x00020000")
    a(f"s_cmp_eq_u32 s{TY}, 0")
    st5(a, 2)
    a("s_waitcnt lgkmcnt(0)")
    st5(a, 3)
    a("s_cselect_b64 s[24:25], s[6:7], s[10:11]")
    a("s_mov_b64 s[16:17], s[4:5]")
    a("s_add_u32 s20, s6, s14")
    a("s_addc_u32 s21, s7, 0")
    a("s_add_u32 s24, s24, s44")
    a("s_addc_u32 s25, s25, 0")
    a("s_add_u32 s28, s10, s15")
    a("s_addc_u32 s29, s11, 0")
    def dma_part(c, p):
        sl = (c & 3) * SLOT
        if p == 0:
            a(f"s_add_u32 m0, s{MX}, {sl}")
            a(f"s_add_u32 s{TA}, s{J}, {c}")
            a(f"s_and_b32 s{TA}, s{TA}, 7")
            a(f"s_lshl_b32 s{TB}, s{TA}, 7")
            a(f"s_add_u32 s{TB}, s{TB}, s{XOFF}")
            a.vmem(f"buffer_load_dwordx4 v{VXD}, s[16:19], s{TB} offen lds", f"c{c}")
            a.vmem(f"buffer_load_dwordx4 v{VXD+1}, s[16:19], s{TB} offen offset:1024 lds", f"c{c}")
        else:
            a(f"s_add_u32 m0, s{MX}, {sl+16384}")
            a(f"s_mul_i32 s{TC}, s{TA}, 196608")
            a(f"s_add_u32 s{TC}, s{TC}, s{WOFF}")
            a.vmem(f"buffer_load_dwordx4 v{VWD}, s[28:31], s{TC} offen lds", f"c{c}")
            a.vmem(f"buffer_load_dwordx4 v{VWD}, s[24:27], s{TC} offen offset:1024 lds", f"c{c}")
    W0L = [131072 + c*8192 for c in range(4)] + [16384, 24576, 49152, 57344]
    def dma_w0(c):
        a(f"s_add_u32 m0, s{MW}, {W0L[c]}")
        a(f"s_add_u32 s{TB}, s{J}, {c}")
        a(f"s_and_b32 s{TB}, s{TB}, 7")
        a(f"s_mul_i32 s{TB}, s{TB}, 196608")
        a(f"s_add_u32 s{TB}, s{TB}, s{WOFF}")
        a.vmem(f"buffer_load_dwordx4 v{VWD}, s[20:23], s{TB} offen lds", "wa" if c < 4 else "wb")
    def dma(c):
        for p in range(2): dma_part(c, p)
    dma(0)
    st5(a, 4)
    if OPT["t0pos"] == 1: t0()
    if OPT["cpf"] == 2: cpf()
    a(f"s_load_dword s{TAG}, s[32:33], {WS_E}")
    a(f"s_lshl3_add_u32 s44, s2, s{W}")
    a("s_lshl_b32 s44, s44, 7")
    a(f"s_add_u32 s44, s44, {8*NG*1024}")
    a(f"s_load_dwordx16 s[48:63], s[{VT}:{VT+1}], s44")
    a(f"s_load_dwordx16 s[64:79], s[{VT}:{VT+1}], s44 offset:64")
    if OPT["bar0"]: a("s_barrier")
    st5(a, 5)
    dma(1)
    st5(a, 6)
    if OPT["cpf"] == 3: cpf()
    a(f"s_mov_b32 s34, {WS_USED}")
    a("s_mov_b32 s35, 0x00020000")
    a(f"s_mov_b32 s{MASK}, 0x0000ffff")
    a(f"s_mov_b32 s{MASK+1}, 0x0000ffff")
    a(f"s_mov_b32 s{L2E}, {f32(LOG2E)}")
    a(f"s_mov_b32 s{L2E+1}, {f32(0.25*LOG2E)}")
    a(f"s_mov_b32 s{ATT}, 0")
    if OPT["pre2"]: dma(2)
    XB = 120
    LA = OPT["la"]; NB = LA + 1
    def tl(k):
        r = vtab()[k][0]
        return f"global_load_dwordx4 {vr(r,4)}, v7, s[{VT}:{VT+1}] offset:{(k-4)*1024}"
    def rd(g):
        if g >= 32:
            g -= 32
            c, st = g >> 2, g & 3
            f = w0reg(g)
            ad, o = (19, W0L[c] - 131072) if c < 4 else (5, W0L[c] - 16384)
            return [f"ds_read_b64_tr_b16 {vr(f,2)}, v{ad} offset:{o+st*2048}", f"ds_read_b64_tr_b16 {vr(f+2,2)}, v{ad} offset:{o+st*2048+512}"]
        c, st = g >> 2, g & 3
        sl = c & 3
        fr = 32 + 8*(g % NB)
        L = [f"ds_read_b128 {vr(XB+4*g,4)}, v{VXR+4*(sl>>1)+st} offset:{(sl&1)*SLOT}"]
        for s in range(2):
            o = st*4096 + s*1024 + (sl & 1)*SLOT
            L.append(f"ds_read_b64_tr_b16 {vr(fr+4*s,2)}, v{VWR+(sl>>1)} offset:{o}")
            L.append(f"ds_read_b64_tr_b16 {vr(fr+2+4*s,2)}, v{VWR+(sl>>1)} offset:{o+512}")
        return L
    def w0reg(g): return [112, 116, 248, 252][g] if g < 4 else XB + 4*(g-4)
    EX = {}
    def ex(g, fn): EX.setdefault(g, []).append(fn)
    ex(0, lambda: [a(f"v_add_u32 v{VXR+4+st}, {2*SLOT}, v{VXR+st}") for st in range(4)])
    ex(0, lambda: a("v_add_u32 v7, 4096, v23"))
    sched1 = OPT["ds1"]
    for (c, p), g in sched1.items(): ex(g, (lambda c=c, p=p: dma_part(c, p)))
    for c, g in enumerate(OPT["ds0"]): ex(g, (lambda c=c: dma_w0(c)))
    def phi_dma():
        a(f"s_and_b32 s{TB}, {S.PHIOFF}, 1024")
        a(f"s_add_u32 m0, s{TB}, {PHIL}")
        a(f"v_add_u32 v6, {S.PHIOFF}, v3")
        a.vmem("global_load_lds_dwordx4 v6, s[8:9]", "wb")
    ex(OPT["phiat"], phi_dma)
    ex(OPT["t2at"], lambda: a.vmem(tl(2), "t2"))
    def touch():
        a(f"v_add_u32 v6, {S.PHIOFF}, v3")
        a.vmem("global_load_dword v4, v6, s[8:9]", "x")
        a.vmem("global_load_dword v0, v3, s[12:13]", "x")
    if OPT["tchat"] >= 0: ex(OPT["tchat"], touch)
    def touch0():
        a(f"s_lshr_b32 s{TB}, s2, 5")
        a(f"s_mul_i32 s{TB}, s{TB}, 196608")
        a(f"s_add_u32 s{TB}, s{TB}, s{WOFF}")
        a.vmem(f"buffer_load_dword v2, v{VWD}, s[20:23], s{TB} offen", "x")
    if OPT["t0at"] == -1: touch0()
    elif OPT["t0at"] >= 0: ex(OPT["t0at"], touch0)
    def zst():
        a("v_mov_b64 v[8:9], -1")
        a("v_mov_b64 v[10:11], -1")
        a.vmem(f"buffer_store_dwordx4 v[8:11], v3, s[32:35], {S.OFB} offen{SC}", "st")
    if OPT["zat"] >= 0: ex(OPT["zat"], zst)
    else:
        a(f"s_lshr_b32 s{TA}, s2, 5")
        a(f"s_and_b32 s{TB}, s{W}, 3")
        a(f"s_lshl2_add_u32 s{TA}, s{TA}, s{TB}")
        a(f"s_lshr_b32 s{TB}, s{W}, 2")
        a(f"s_lshl1_add_u32 s{TA}, s{TA}, s{TB}")
        a(f"s_lshl_b32 s{TA}, s{TA}, 16")
        a(f"s_and_b32 s{TB}, s2, 7")
        a(f"s_bfe_u32 s{TC}, s2, 0x20003")
        a(f"s_lshl2_add_u32 s{TB}, s{TB}, s{TC}")
        a(f"s_lshl_b32 s{TB}, s{TB}, 10")
        a(f"s_add_u32 s{TA}, s{TA}, s{TB}")
        a(f"s_add_u32 s{TA}, s{TA}, {WS_OF+32768}")
        a("v_mov_b64 v[56:57], -1")
        a("v_mov_b64 v[58:59], -1")
        a.vmem(f"buffer_store_dwordx4 v[56:59], v3, s[32:35], s{TA} offen{SC}", "st")
    def cinit():
        a(f"s_mov_b32 m0, {CNTW}")
        a("s_mov_b32 s7, 0x200000")
        a.vmem("buffer_load_dword v3, s[16:19], s7 offen lds", "wb")
    if OPT["cnt"]: ex(OPT["ciat"], cinit)
    ex(OPT["t2at"] - 2, lambda: a.vmem(tl(3), "t2"))
    ex(OPT["t2at"] + 1, lambda: a.vmem(tl(4), "t3"))
    ex(OPT["t2at"] + 2, lambda: a.vmem(tl(5), "t3"))
    assert LA == 2
    ex(OPT["phiat"] + 1, lambda: a(f"v_subrev_u32 v5, {131072-16384}, v19"))
    if OPT["gst"] == 5:
        a("s_waitcnt vmcnt(8)"); st5(a, 7)
        a("s_waitcnt vmcnt(6)"); st5(a, 8)
        a("s_waitcnt vmcnt(4)"); st5(a, 9)
    a.wait_vm("c0", "t0", extra="lgkmcnt(0)" if OPT["lg0"] else "")
    a("s_barrier")
    stamp(a, 1)
    for g in range(LA):
        for l in rd(g): a(l)
    nowait = 0
    for g in range(32):
        c, st = g >> 2, g & 3
        if st == 4 - LA and c in OPT["nobar"]:
            assert f"c{c+1}" not in a.vm
            a(f"s_waitcnt lgkmcnt({5*(LA-1)})")
        elif st == 4 - LA:
            cw = c + 1
            while cw in OPT["nobar"]: cw += 1
            a.wait_vm(f"c{cw}" if c < 7 else OPT["last"], extra="lgkmcnt(0)")
            a("s_barrier")
            if OPT["gst"] == 1 and c < 7: stamp(a, 2+c, True)
            if c == 0: a(f"s_add_u32 s{TAG}, s{TAG}, 0x9e3779b1")
            nowait = LA - 1
        elif nowait: nowait -= 1
        else: a(f"s_waitcnt lgkmcnt({5*(LA-1)})")
        if OPT["p1prio"]: a(f"s_setprio {3 - ((g + 2) % 4)}")
        R = rd(g + LA)
        if g == 31:
            for k in range(LA, 4): R += rd(32 + k)
        fr = 32 + 8*(g % NB); x = XB + 4*g
        if OPT["al"]: a.raw(".p2align 3")
        mfma(a, ACC[2], fr, x, "0" if g == 0 else ACC[2])
        for l in R[:3]: a(l)
        mfma(a, ACC[1], x, fr+4, "0" if g == 0 else ACC[1])
        for l in R[3:]: a(l)
        for fn in EX.get(g, []): fn()
    stamp(a, 2)
    if OPT["gst"] == 1: stamp(a, 9, True)
    def st2(j):
        if OPT["gst"] == 2: stamp(a, j, True)
    st2(2)
    if OPT["gst"] == 3: stamp(a, 2, True)
    E2 = range(2)
    PH = [160, 176]; EP = [64, 80]; T = [200, 204]
    def f1(half=None):
        tag = "" if half is None else "ab"[half]
        if half is not None:
            a(f"s_bitcmp1_b32 s{W}, 2")
            a(f"s_cbranch_scc{1-half} L_skip_f1{tag}")
        if OPT["cnt"]:
            a(f"v_mov_b32 v6, {CNTW}")
            a("v_mov_b32 v4, 1")
            a("s_waitcnt vmcnt(0)")
            a("s_mov_b64 exec, 1")
            a("ds_add_rtn_u32 v4, v6, v4")
            a("s_mov_b64 exec, -1")
            a("s_waitcnt lgkmcnt(0)")
            a(f"v_readfirstlane_b32 s{TB}, v4")
            a("s_nop 1")
            a(f"s_cmp_lg_u32 s{TB}, 7")
        else:
            a("s_waitcnt vmcnt(0)")
            a(f"s_cmp_lg_u32 s{W}, 0")
            a("s_barrier")
        a.vm = []
        a(f"s_cbranch_scc1 L_f1done{tag}")
        pub(a, S.F1OFF)
        a.label(f"L_f1done{tag}")
        stamp(a, 3)
        if half is not None:
            gld(tag)
            a.label(f"L_skip_f1{tag}")
    def st_v():
        for g in range(2):
            for q in range(4): a(f"v_cvt_pk_bf16_f32 v{40+4*g+q}, v{ACC[1]+8*g+2*q}, v{ACC[1]+8*g+2*q+1}")
        a(f"s_add_u32 s{TB}, {S.QK0}, 65536")
        a(f"s_cmp_eq_u32 s{TY}, 0")
        if "t2" in a.vm: a.wait_vm("t2")
        a("s_cbranch_scc1 L_p1_q")
        a(f"buffer_store_dwordx4 v[40:43], v{VO}, s[32:35], {S.VOFF} offen{SC}")
        a(f"buffer_store_dwordx4 v[44:47], v{VO}, s[32:35], {S.VOFF} offen offset:512{SC}")
        a("s_branch L_p1_qk")
        a.label("L_p1_q")
        for i in range(0, 16, 2): a(f"v_pk_mul_f32 v[{ACC[2]+i}:{ACC[2]+i+1}], v[{ACC[2]+i}:{ACC[2]+i+1}], s[{L2E}:{L2E+1}] op_sel:[0,1]")
        a(f"v_mov_b32 v{KO}, v3")
        a.label("L_p1_qk")
    def st_qk(e):
        for q in range(4): a(f"v_cvt_pk_bf16_f32 v{32+4*e+q}, v{ACC[2]+8*e+2*q}, v{ACC[2]+8*e+2*q+1}")
        a.vmem(f"buffer_store_dwordx4 {vr(32+4*e,4)}, v{KO}, s[32:35], {S.QK0 if e == 0 else 's%d' % TB} offen{SC}", "st")
    def gld(tag=""):
        a("v_lshlrev_b32 v6, 5, v1")
        a("v_and_b32 v4, 0x3ff, v6")
        a(f"s_cmp_eq_u32 s{TY}, 0")
        a(f"s_cbranch_scc1 L_skip_gl{tag}")
        a("global_load_dwordx4 v[104:107], v4, s[12:13]")
        a("global_load_dwordx4 v[108:111], v4, s[12:13] offset:16")
        a(f"buffer_load_dwordx4 v[96:99], v6, s[16:19], {S.GROW} offen")
        a(f"buffer_load_dwordx4 v[100:103], v6, s[16:19], {S.GROW} offen offset:16")
        a.label(f"L_skip_gl{tag}")
    def ptrs():
        a("s_load_dwordx2 s[16:17], s[0:1], 24")
        a("s_load_dwordx2 s[20:21], s[0:1], 48")
        a("s_load_dwordx2 s[24:25], s[0:1], 64")
        a("s_mov_b32 s18, 0x80000")
        a("s_mov_b32 s22, 0x80000")
        a("s_mov_b32 s26, 0x200000")
    F = OPT["f1g"]
    E2X = {1: [st_v], 2: [lambda: st_qk(0)], 3: [lambda: st_qk(1)]}
    if F < 32: E2X[F] = [gld]
    def step2(g, fill=None):
        if OPT["p2prio"] >= 2 and g % OPT["p2prio"] == 0: a(f"s_setprio {3 - (g // OPT['p2prio']) % 4}")
        if g == 5: st2(3)
        if g == 12 and "wb" in a.vm:
            st2(4)
            a.wait_vm("wb")
            a("s_barrier")
            st2(5)
        if g == F:
            st2(6); f1(); st2(7)
        if g == OPT["fb"]: f1(1)
        a(f"s_waitcnt lgkmcnt({(6 if g < 28 else 2*(31-g) + 4)})")
        if OPT["al"]: a.raw(".p2align 3")
        mfma(a, ACC[0], w0reg(g), XB+4*g, "0" if g == 0 else ACC[0])
        if g + 4 < 32:
            for l in rd(32 + g + 4): a(l)
        if g == 27:
            for e in range(2):
                a(f"ds_read_b64_tr_b16 {vr(248+4*e,2)}, v{PHIA} offset:{e*512}")
                a(f"ds_read_b64_tr_b16 {vr(250+4*e,2)}, v{PHIA} offset:{e*512+256}")
        for fn in E2X.get(g, []): fn()
        if fill:
            for _ in range(fill[1]):
                if fill[0]: a(fill[0].pop(0))
    L = ["v_mov_b32 v6, 0x3f803f80"]
    for q in range(8):
        L.append(f"v_cndmask_b32 v{96+q}, v6, v{40+q}, s[{MASK}:{MASK+1}]")
        L.append(f"v_cndmask_b32 v{104+q}, v{40+q}, v6, s[{MASK}:{MASK+1}]")
    if OPT["p2prio"] == 1: a("s_setprio 2")
    for g in range(32): step2(g, (L, 3) if g >= 5 else None)
    if OPT["p2prio"]: a("s_setprio 0")
    assert not L
    if OPT["p2prio"] or OPT["p1prio"]: a("s_setprio 0")
    st2(8)
    for e in E2:
        for q in range(4): a(f"v_cvt_pk_bf16_f32 v{192+4*e+q}, v{ACC[0]+8*e+2*q}, v{ACC[0]+8*e+2*q+1}")
    a("s_waitcnt lgkmcnt(0)")
    mfma(a, PH[0], 248, 192, "0")
    mfma(a, PH[1], 252, 196, "0")
    if F < 32: ptrs()
    st2(9)
    for k in range(0, 16, 2): a(f"v_mov_b64 {vr(VA[0]+k,2)}, {vr(ONES,2)}")
    a(f"s_and_b32 s{TB}, {S.LDS0}, 0x8000")
    a(f"v_mov_b32 v{IDX}, 0xdddddddd")
    a(f"v_add_u32 v{VK}, s{TB}, v3")
    a(f"s_add_u32 s{TB}, s{TB}, 65536")
    a(f"v_and_b32 v{VV}, 0x1ff, v{VO}")
    a(f"v_add_u32 v{VV}, s{TB}, v{VV}")
    a(f"v_and_b32 v{VL8}, 0x1f0, v3")
    a(f"v_lshlrev_b32 v{VL8}, 3, v{VL8}")
    a(f"v_mov_b32 v{GV}, v7")
    PEND = []
    def point(n):
        if OPT["gst"] == 3 and n in (0, 2, 4, 5, 6, 7): stamp(a, {0: 3, 2: 4, 4: 5, 5: 6, 6: 7, 7: 8}[n], True)
        if n == F - 32:
            if OPT["fb"] >= 0: f1(0)
            else:
                f1()
                gld()
            ptrs()
        if n == OPT["pollat"]:
            a(f"s_cmp_lg_u32 s{W}, 0")
            a("s_cbranch_scc1 L_p2_np")
            a(f"buffer_load_dword v{VP0}, v{VL8}, s[32:35], {S.F1POLL} offen{SC}")
            a.label("L_p2_np")
        if n == OPT["goat"]:
            stamp(a, 4)
            a(f"s_cmp_lg_u32 s{W}, 0")
            a("s_cbranch_scc1 L_p2_go")
            poll(a, "L_pollF1", VL8, VP0, S.F1POLL, own=S.OWN1)
            a.label("L_p2_go")
            a("s_barrier")
            stamp(a, 5)
            PEND.extend([lambda: a.vmem(f"buffer_load_dwordx4 {vr(SCR,4)}, v3, s[32:35], {S.K0OFF} offen{SC}", "q"),
                         lambda: a.vmem(f"buffer_load_dwordx4 {vr(Q[0],4)}, v3, s[32:35], {S.QOFF0} offen{SC}", "q"),
                         lambda: a.vmem(f"buffer_load_dwordx4 {vr(Q[1],4)}, v3, s[32:35], {S.QOFF1} offen{SC}", "q"),
                         lambda: kv_dma(a, 0, 0), lambda: kv_dma(a, 0, 1)])
            a.every = [OPT["sprd"], 0, PEND]
            if OPT["sprd"] == 0 or n >= 6:
                while PEND: PEND.pop(0)()
        if n == 6:
            while PEND: PEND.pop(0)()
            a(f"s_waitcnt vmcnt({len(a.vm)})")
    point(0)
    if OPT["rp"]:
        for e in E2:
            for q in range(4): a(f"v_cvt_pk_bf16_f32 v{T[e]+q}, v{PH[e]+2*q}, v{PH[e]+2*q+1}")
        for e in E2:
            for q in range(4):
                a(f"v_lshlrev_b32 v{PH[e]+2*q}, 16, v{T[e]+q}")
                a(f"v_and_b32 v{PH[e]+2*q+1}, 0xffff0000, v{T[e]+q}")
    for e in E2:
        P = PH[e]; t = T[e]
        a(f"v_max3_f32 v{t}, v{P}, v{P+1}, v{P+2}")
        a(f"v_max3_f32 v{t+1}, -v{P}, -v{P+1}, -v{P+2}")
        a(f"v_max3_f32 v{t}, v{t}, v{P+3}, v{P+4}")
        a(f"v_max3_f32 v{t+1}, v{t+1}, -v{P+3}, -v{P+4}")
        a(f"v_max3_f32 v{t}, v{t}, v{P+5}, v{P+6}")
        a(f"v_max3_f32 v{t+1}, v{t+1}, -v{P+5}, -v{P+6}")
        a(f"v_max_f32 v{t}, v{t}, v{P+7}")
        a(f"v_max_f32_e64 v{t+1}, v{t+1}, -v{P+7}")
    point(1)
    for e in E2: a(f"v_permlane32_swap_b32 v{T[e]}, v{T[e]+1}")
    for e in E2: a(f"v_max_f32 v{T[e]}, v{T[e]}, v{T[e]+1}")
    for e in E2: a(f"v_mul_f32 v{T[e]}, {f32(-LOG2E)}, v{T[e]}")
    for e in E2: a(f"v_mov_b32 v{T[e]+1}, v{T[e]}")
    for e in E2: a(f"v_permlane32_swap_b32 v{T[e]}, v{T[e]+1}")
    for e in E2:
        for q in range(4):
            a(f"v_pk_fma_f32 {vr(EP[e]+2*q,2)}, {vr(PH[e]+2*q,2)}, s[{L2E}:{L2E+1}], {vr(T[e],2)} op_sel_hi:[1,0,0]")
            a(f"v_pk_fma_f32 {vr(EP[e]+8+2*q,2)}, {vr(PH[e]+2*q,2)}, s[{L2E}:{L2E+1}], {vr(T[e],2)} op_sel:[0,0,1] op_sel_hi:[1,0,1] neg_lo:[1,0,0] neg_hi:[1,0,0]")
    point(2)
    for j in range(16): a(f"v_exp_f32 v{EP[0]+j}, v{EP[0]+j}")
    point(3)
    for j in range(16): a(f"v_exp_f32 v{EP[1]+j}, v{EP[1]+j}")
    point(4)
    for e in E2:
        P = PH[e]
        for sg in range(2):
            b = EP[e] + 8*sg
            a(f"v_pk_add_f32 {vr(P+4*sg,2)}, {vr(b,2)}, {vr(b+2,2)}")
            a(f"v_pk_add_f32 {vr(P+4*sg+2,2)}, {vr(b+4,2)}, {vr(b+6,2)}")
    for e in E2:
        for sg in range(2): a(f"v_pk_add_f32 {vr(PH[e]+4*sg,2)}, {vr(PH[e]+4*sg,2)}, {vr(PH[e]+4*sg+2,2)}")
    for e in E2:
        for sg in range(2): a(f"v_add_f32 v{T[e]+sg}, v{PH[e]+4*sg}, v{PH[e]+4*sg+1}")
    for e in E2: a(f"v_permlane32_swap_b32 v{T[e]}, v{T[e]+1}")
    for e in E2: a(f"v_add_f32 v{T[e]}, v{T[e]}, v{T[e]+1}")
    for e in E2: a(f"v_rcp_f32 v{T[e]}, v{T[e]}")
    for e in E2: a(f"v_mov_b32 v{T[e]+1}, v{T[e]}")
    for e in E2: a(f"v_permlane32_swap_b32 v{T[e]}, v{T[e]+1}")
    point(5)
    for e in E2:
        for q in range(4):
            a(f"v_pk_mul_f32 {vr(EP[e]+2*q,2)}, {vr(EP[e]+2*q,2)}, {vr(T[e],2)} op_sel_hi:[1,0]")
            a(f"v_pk_mul_f32 {vr(EP[e]+8+2*q,2)}, {vr(EP[e]+8+2*q,2)}, {vr(T[e],2)} op_sel:[0,1]")
    for e in E2:
        for q in range(8): a(f"v_cvt_pk_bf16_f32 v{PHI+8*e+q}, v{EP[e]+2*q}, v{EP[e]+2*q+1}")
    point(6)
    a(f"s_cmp_eq_u32 s{TY}, 0")
    a("s_cbranch_scc0 L_skip_t0")
    for e in E2:
        mfma(a, PH[e], PHI+8*e, BSEL, "0")
        mfma(a, PH[e], PHI+4+8*e, BSEL+4, PH[e])
    for e in E2:
        for q in range(8): a(f"v_cvt_pk_bf16_f32 v{192+8*e+q}, v{PH[e]+2*q}, v{PH[e]+2*q+1}")
        mfma(a, 64+16*e, 192+8*e, 96+8*e, "0")
        mfma(a, 64+16*e, 196+8*e, 100+8*e, 64+16*e)
    for e in E2:
        for q in range(4): a(f"ds_write_b128 v{REDW}, {vr(64+16*e+4*q,4)} offset:{e*4096+q*1024}")
    a("s_branch L_p1_done")
    a.label("L_skip_t0")
    gate(a)
    a.label("L_p1_done")
    point(7)


def phase2(a):
    def zero_acc():
        for i in range(0, 32, 2): a(f"v_mov_b64 v[{O[0]+i}:{O[0]+i+1}], 0")
    def prime_reads():
        a(f"ds_read_b128 {vr(KB_[0],4)}, v{VK}")
        a(f"ds_read_b128 {vr(KB_[1],4)}, v{VK} offset:1024")
        a(f"s_mov_b64 exec, s[{MASK}:{MASK+1}]")
        a(f"ds_read_b128 {vr(VA[0],4)}, v{VV}")
        a(f"ds_read_b128 {vr(VBB[0],4)}, v{VV} offset:512")
        a("s_mov_b64 exec, -1")
    def negmax():
        a(f"v_permlane32_swap_b32 v{M1}, v{M2}")
        a(f"v_max_f32 v{M1}, v{M1}, v{M2}")
        a(f"v_sub_f32 v{M1}, 0, v{M1}")
        a(f"v_mov_b32 v{M2}, v{M1}")
        a(f"v_permlane32_swap_b32 v{M1}, v{M2}")
    def cfill(q):
        for i in range(0, 16, 2): a(f"v_pk_mov_b32 {vr(C[q]+i,2)}, {vr(M1,2)}, {vr(M1,2)} op_sel:[{q},{q}]")
    a(f"v_mov_b32 v5, {FLAG}")
    a("v_mov_b32 v7, 0")
    a("v_mov_b64 v[196:197], 0")
    a("v_mov_b64 v[198:199], 0")
    a.wait_vm("q")
    mfma(a, S4[0][1], SCR, Q[0], "0")
    mfma(a, S4[1][1], SCR, Q[1], "0")
    a(f"v_mov_b64 v[156:157], v[{KVP0}:{KVP1}]")
    a(f"v_mov_b32 v158, v{REDR}")
    a("s_mov_b64 exec, 1")
    a("ds_write_b32 v5, v7")
    a("s_mov_b64 exec, -1")
    a("s_waitcnt lgkmcnt(0)")
    mfma(a, O[0], 196, 196, "0")
    mfma(a, O[1], 196, 196, "0")
    maxtree(a, M1, S4[0][1], True)
    maxtree(a, M2, S4[1][1], True)
    negmax(); cfill(0); cfill(1)
    a(f"s_cmp_eq_u32 s{TY}, 0")
    a.wait_vm("r0")
    a("s_barrier")
    stamp(a, 6)
    if OPT["gst"] == 3: stamp(a, 9, True)
    prime_reads()
    a("s_cbranch_scc0 L_skip_r0")
    for w in range(4):
        for q in range(2):
            a(f"ds_read_b128 {vr(160+8*w+4*q,4)}, v158 offset:{(w>>1)*32768+(w&1)*8192+q*1024}")
    a("s_waitcnt lgkmcnt(11)")
    a("s_branch L_first")
    a.label("L_skip_r0")
    a("s_mov_b32 exec_lo, 1")
    a("s_mov_b32 exec_hi, 1")
    a(f"buffer_store_dword v52, v6, s[32:35], {S.GOFF} offen{SC}")
    a("s_mov_b64 exec, -1")
    a.label("L_redo")
    a("s_waitcnt lgkmcnt(3)")
    a.label("L_first")
    mfma(a, S4[0][0], KB_[0], Q[0], C[0])
    mfma(a, S4[1][0], KB_[0], Q[1], C[1])
    kv_dma(a, 1, 0); kv_dma(a, 1, 1)
    nvm = [0]; marks = {}
    PL, ZL = SCR, SCR + 16
    def wait_after(nm): a(f"s_waitcnt vmcnt({nvm[0]-marks[nm]})")
    def svm(txt):
        a.vmem(txt, "x"); nvm[0] += 1
    def j_drain(): a("s_waitcnt vmcnt(0)")
    def j_kp():
        for j in range(0, 8, 2): a(f"v_pk_add_f32 {vr(160+j,2)}, {vr(160+j,2)}, {vr(168+j,2)}")
        for j in range(0, 8, 2): a(f"v_pk_add_f32 {vr(176+j,2)}, {vr(176+j,2)}, {vr(184+j,2)}")
        for j in range(0, 8, 2): a(f"v_pk_add_f32 {vr(160+j,2)}, {vr(160+j,2)}, {vr(176+j,2)}")
        a(f"buffer_store_dwordx4 v[160:163], v156, s[32:35], {S.KVPOFF} offen{SC}")
        a(f"buffer_store_dwordx4 v[164:167], v157, s[32:35], {S.KVPOFF} offen{SC}")
    def j_p2():
        a(f"v_and_b32 v6, 0x7ff, v{VL8}")
        a(f"buffer_load_dword v{VP0}, v6, s[32:35], {S.F2POLL} offen{SC}")
    def j_ld():
        wait_after("p2")
        check_flags(a, "L_pollF2", 0x7ff, VP0, S.F2POLL)
        a("v_lshrrev_b32 v5, 4, v1")
        a("v_lshlrev_b32 v5, 14, v5")
        a("v_and_b32 v6, 0xf0, v3")
        a("v_add_u32 v6, v6, v5")
        a(f"s_lshr_b32 s{TB}, s2, 5")
        a(f"s_mul_i32 s{TB}, s{TB}, 240")
        a(f"s_sub_u32 s{TB}, {S.LDK}, s{TB}")
        for p in range(4):
            a(f"s_add_u32 s{TC}, {S.LDK}, {p*4096}")
            a(f"buffer_load_dwordx4 {vr(PL+4*p,4)}, v6, s[32:35], s{TC} offen{SC}")
        for p in range(4):
            a(f"s_add_u32 s{TC}, s{TB}, {p*4096}")
            a(f"buffer_load_dwordx4 {vr(ZL+4*p,4)}, v5, s[32:35], s{TC} offen offset:2048{SC}")
    def j_red():
        wait_after("ld")
        B2 = (PL, ZL)
        for base in B2:
            for j in (0, 2):
                a(f"v_pk_add_f32 {vr(base+j,2)}, {vr(base+j,2)}, {vr(base+4+j,2)}")
                a(f"v_pk_add_f32 {vr(base+8+j,2)}, {vr(base+8+j,2)}, {vr(base+12+j,2)}")
        for base in B2:
            for j in (0, 2): a(f"v_pk_add_f32 {vr(base+j,2)}, {vr(base+j,2)}, {vr(base+8+j,2)}")
        for sw in ("32", "16"):
            for base in B2:
                for j in (0, 2): a(f"v_mov_b64 {vr(base+4+j,2)}, {vr(base+j,2)}")
            for base in B2:
                for j in range(4): a(f"v_permlane{sw}_swap_b32 v{base+j}, v{base+4+j}")
            for base in B2:
                for j in (0, 2): a(f"v_pk_add_f32 {vr(base+j,2)}, {vr(base+j,2)}, {vr(base+4+j,2)}")
        a("v_cmp_eq_u32 vcc, 16, v1")
        for base in B2:
            a(f"v_cvt_pk_bf16_f32 v{base+4}, v{base}, v{base+1}")
            a(f"v_cvt_pk_bf16_f32 v{base+5}, v{base+2}, v{base+3}")
        a(f"v_cndmask_b32 v{PL+4}, v{PL+4}, v{ZL+4}, vcc")
        a(f"v_cndmask_b32 v{PL+5}, v{PL+5}, v{ZL+5}, vcc")
        a("s_mov_b64 exec, 0x1ffff")
        a(f"buffer_store_dwordx2 {vr(PL+4,2)}, v3, s[32:35], {S.KVFW} offen{SC}")
        a("s_mov_b64 exec, -1")
    def j_f5():
        a("s_waitcnt vmcnt(0)")
        pub(a, S.F5OFF)
    def j_p5():
        a(f"v_and_b32 v6, 0x7ff, v{VL8}")
        a(f"buffer_load_dword v{VP1}, v6, s[32:35], {S.F5POLL} offen{SC}")
    def j_kv():
        wait_after("p5")
        check_flags(a, "L_pollF5", 0x7ff, VP1, S.F5POLL)
        a(f"v_min_u32 v5, 64, v{G4}")
        a("v_lshrrev_b32 v6, 5, v1")
        a("v_mul_u32_u24 v6, 272, v6")
        a("v_lshl_add_u32 v5, v5, 2, v6")
        for e in range(2):
            for sg in range(2):
                a(f"buffer_load_dwordx4 {vr(SCR+8*e+4*sg,4)}, v5, s[32:35], {S.KVFR} offen offset:{e*2048+sg*544}{SC}")
    def j_om():
        wait_after("kv")
        for sg in range(2):
            for e in range(2): mfma(a, SCR+16+16*e, SCR+8*e+4*sg, PHI+8*e+4*sg, "0" if sg == 0 else SCR+16+16*e)
    def j_oa(e):
        def f():
            D = SCR+16+16*e
            a(f"v_add_f32 v4, {f32(1e-6)}, v{D+8}")
            a("v_rcp_f32 v4, v4")
            for i in range(0, 8, 2): a(f"v_pk_mul_f32 {vr(D+i,2)}, {vr(D+i,2)}, v[4:5] op_sel_hi:[1,0]")
            for q in range(4): a(f"v_cvt_pk_bf16_f32 v{SCR+4*e+q}, v{D+2*q}, v{D+2*q+1}")
            a(f"buffer_store_dwordx4 {vr(SCR+4*e,4)}, v3, s[32:35], {S.OAOFF} offen offset:{e*1024}{SC}")
        return f
    def j_p4():
        a(f"v_and_b32 v6, 0x7ff, v{VL8}")
        svm(f"buffer_load_dword v{VP0}, v6, s[32:35], {S.F4POLL} offen{SC}")
    def j_c4():
        wait_after("p4")
        check_flags(a, "L_pollF4", 0x7ff, VP0, S.F4POLL)
        svm(f"buffer_load_dword v{GV}, v{G4}, s[32:35], {S.GATE3} offen{SC}")
        svm(f"buffer_load_dword v{GV+1}, v{G4}, s[32:35], {S.GATET} offen{SC}")
    def j_la(i):
        def f():
            for k in (2*i, 2*i+1):
                svm(f"buffer_load_dwordx4 {vr(SCR+4*k,4)}, v3, s[32:35], {S.OF3 if k < 4 else S.OF3B} offen offset:{(k%4)*1024}{SC}")
        return f
    def j_tb(k):
        return lambda: svm(f"global_load_dwordx4 {vr(vtab()[k][0],4)}, v{GV}, s[{VT}:{VT+1}] offset:{(k-4)*1024}")
    JB = dict(kp=(R_T0, j_kp), tb6=(R_ANY, j_tb(6)), tb7=(R_ANY, j_tb(7)), d0=(R_T0, j_drain), d1=(R_T1, j_drain), f2=(R_T0W0, lambda: pub(a, S.F2OFF)), f4=(R_T1W0, lambda: pub(a, S.F4OFF)),
              p2=(R_RED, j_p2), ld=(R_RED, j_ld), red=(R_RED, j_red), f5=(R_RED, j_f5),
              p5=(R_T1, j_p5), kv=(R_T1, j_kv), om=(R_T1, j_om), oa0=(R_T1, j_oa(0)), oa1=(R_T1, j_oa(1)),
              p4=(None, j_p4), c4=(None, j_c4), la0=(None, j_la(0)), la1=(None, j_la(1)), la2=(None, j_la(2)), la3=(None, j_la(3)))
    OUTL = []
    def hook(name):
        role, body = JB[name]
        if name not in OPT["y_skip"]:
            if role in OPT["outl"]:
                a(f"s_bitcmp1_b32 {S.ROLE}, {role}")
                a(f"s_cbranch_scc1 L_job_{name}")
                a.label(f"L_ret_{name}")
                keep = a.lines; a.lines = []
                a.label(f"L_job_{name}")
                body()
                a(f"s_branch L_ret_{name}")
                OUTL.extend(a.lines); a.lines = keep
            else:
                if role is not None:
                    a(f"s_bitcmp1_b32 {S.ROLE}, {role}")
                    a(f"s_cbranch_scc0 L_skip_{name}")
                body()
                if role is not None: a.label(f"L_skip_{name}")
        marks[name] = nvm[0]
    SPINS.append(lambda a: a.lines.extend(OUTL))
    JOBS = OPT["sched"]
    p0, p1, p2 = OPT["pos"]
    BST = OPT["bst"]
    for T in range(32):
        it, t = T >> 2, T & 3
        KVS = OPT["kvs"] if it else OPT["wos"]
        WOS = OPT["wos"]
        for qi in range(2):
            st = 2*t + qi
            s = S4[qi][T & 1]
            def extras(k):
                if (qi, k) == OPT["kat"] and T + 2 < 32: a(f"ds_read_b128 {vr(KB_[T&1],4)}, v{VK} offset:{(T+2)*1024}")
                if (qi, k) == OPT["vat"] and T + 1 < 32:
                    a(f"s_mov_b64 exec, s[{MASK}:{MASK+1}]")
                    a(f"ds_read_b128 {vr(VA[(T+1)&1],4)}, v{VV} offset:{(T+1)*1024}")
                    a(f"ds_read_b128 {vr(VBB[(T+1)&1],4)}, v{VV} offset:{(T+1)*1024+512}")
                    a("s_mov_b64 exec, -1")
                if k == OPT["dmk"]:
                    if st in KVS and it + 2 < 8:
                        kv_dma(a, it + 2, KVS.index(st)); nvm[0] += 1
                    if st in WOS and it >= 1:
                        wo_dma(a, it - 1, WOS.index(st)); nvm[0] += 1
                if k == OPT["jk"]:
                    for nm in JOBS.get((it, st), "").split(): hook(nm)
            if OPT["lprio"] and qi == OPT["pq"]: a(f"s_setprio {3 - ((T + OPT['poff']) % 4)}")
            for j in range(16):
                a(f"v_exp_f32 v{s+j}, v{s+j}")
                if j == p0:
                    tp = T if qi == 1 else T - 1
                    if tp >= 0: smfmac(a, O[1-qi], VBB[tp & 1], S4[1-qi][tp & 1]+8, IDX)
                    if st == BST:
                        if it == OPT["f2it"]: hook("d0")
                        if it == OPT["f4it"]: hook("d1")
                        if it < 7: a.wait_vm(f"r{it+1}")
                        a("s_barrier")
                        if it == OPT["f2it"]: hook("f2")
                        if it == OPT["f4it"]: hook("f4")
                    extras(0)
                if j == p1:
                    if qi == 0: a("s_waitcnt lgkmcnt(0)")
                    if T + 1 < 32: mfma(a, S4[qi][(T+1) & 1], KB_[(T+1) & 1], Q[qi], C[qi])
                    extras(1)
                if j == p2:
                    smfmac(a, O[qi], VA[T & 1], s, IDX)
                    extras(2)
    if OPT["lprio"]: a("s_setprio 0")
    a(f"ds_write_b128 v{XW}, {vr(O[0],4)}")
    a(f"ds_write_b128 v{XW}, {vr(O[0]+4,4)} offset:1024")
    smfmac(a, O[1], VBB[1], S4[1][1]+8, IDX)
    a(f"ds_write_b32 v{XW}, v{O[0]+8} offset:2048")
    stamp(a, 7); st4(a, 2)
    SX = 64
    a(f"v_add_f32_e64 v{M1}, |v{O[0]}|, |v{O[0]+1}|")
    a(f"v_add_f32_e64 v{M2}, |v{O[0]+2}|, |v{O[0]+3}|")
    for i in range(4, 9): a(f"v_add_f32_e64 v{M1+(i&1)}, v{M1+(i&1)}, |v{O[0]+i}|")
    a(f"v_mov_b32 v6, {FLAG}")
    a("v_mov_b32 v7, 1")
    a(f"v_mov_b32 v5, {f32(OPT['thr'])}")
    for i in range(0, 9): a(f"v_add_f32_e64 v{M2-(i&1)}, v{M2-(i&1)}, |v{O[1]+i}|")
    a(f"v_add_f32 v{M1}, v{M1}, v{M2}")
    a(f"v_cmp_nlt_f32 vcc, v{M1}, v5")
    a(f"s_waitcnt vmcnt({nvm[0]-marks['c4']})")
    a(f"v_sub_f32 v{GV+1}, 1.0, v{GV+1}")
    a("s_cbranch_vccz L_noflag")
    a("ds_write_b32 v6, v7")
    a.label("L_noflag")
    a("s_waitcnt lgkmcnt(0)")
    a("s_barrier")
    a(f"ds_read_b32 v{M2}, v6")
    a(f"ds_read_b32 v{SX+8}, v{XR} offset:2048")
    a(f"ds_read_b128 {vr(SX,4)}, v{XR}")
    a(f"ds_read_b128 {vr(SX+4,4)}, v{XR} offset:1024")
    a(f"v_cvt_pk_bf16_f32 v{GV+1}, v{GV+1}, v{GV+1}")
    a(f"v_lshlrev_b32 v{GV+1}, 16, v{GV+1}")
    a("s_waitcnt lgkmcnt(2)")
    a(f"v_readfirstlane_b32 s{TB}, v{M2}")
    a(f"v_add_f32 v{O[1]+8}, v{O[1]+8}, v{SX+8}")
    a(f"v_rcp_f32 v{M1}, v{O[1]+8}")
    a(f"s_cmp_lg_u32 s{TB}, 0")
    a("s_cbranch_scc1 L_maybe_fb")
    a.label("L_fin")
    a(f"v_mul_f32 v{M1}, v{M1}, v{GV+1}")
    a("s_waitcnt lgkmcnt(0)")
    for i in range(0, 8, 2): a(f"v_pk_add_f32 {vr(O[1]+i,2)}, {vr(O[1]+i,2)}, {vr(SX+i,2)}")
    for i in range(0, 8, 2): a(f"v_pk_mul_f32 {vr(O[1]+i,2)}, {vr(O[1]+i,2)}, {vr(M1,2)} op_sel_hi:[1,0]")
    for q in range(4): a(f"v_cvt_pk_bf16_f32 v{20+q}, v{O[1]+2*q}, v{O[1]+2*q+1}")
    for q in range(4): a(f"v_min_u32 v{20+q}, -2, v{20+q}")
    a(f"buffer_store_dwordx4 v[20:23], v3, s[32:35], {S.OFB} offen{SC}")
    wo_dma(a, 7, 0)
    wo_dma(a, 7, 1)

    def rare(a):
        a.label("L_maybe_fb")
        a(f"s_cmp_lg_u32 s{ATT}, 0")
        a("s_cbranch_scc1 L_fin")
        a(f"s_mov_b32 s{ATT}, 1")
        a(f"s_mov_b32 {S.ROLE}, 0")
        a("s_waitcnt vmcnt(0) lgkmcnt(0)")
        a("s_barrier")
        for rr in range(8):
            kv_dma(a, rr, 0); kv_dma(a, rr, 1)
        a(f"v_mov_b32 v{M1}, 0xff800000")
        a(f"v_mov_b32 v{M2}, 0xff800000")
        a("v_mov_b32 v4, v3")
        a(f"s_mov_b32 s{CNT}, 64")
        a("s_waitcnt vmcnt(0)")
        a("s_barrier")
        a.label("L_fbloop")
        a(f"ds_read_b128 {vr(KB_[0],4)}, v4")
        a("v_add_u32 v4, 1024, v4")
        a("s_waitcnt lgkmcnt(0)")
        mfma(a, S4[0][0], KB_[0], Q[0], "0")
        mfma(a, S4[1][0], KB_[0], Q[1], "0")
        a.nop(12)
        maxtree(a, M1, S4[0][0], False)
        maxtree(a, M2, S4[1][0], False)
        a(f"s_sub_u32 s{CNT}, s{CNT}, 1")
        a(f"s_cmp_lg_u32 s{CNT}, 0")
        a("s_cbranch_scc1 L_fbloop")
        zero_acc()
        prime_reads()
        negmax(); cfill(0); cfill(1)
        a("s_nop 1")
        a("s_branch L_redo")
    return rare

def phase3(a):
    ACC, OFB_, PEND = 32, 224, TC
    WA = list(range(112, 136, 4)) + list(range(184, 224, 4))
    WB = list(range(64, 128, 4))
    def trread(br, i):
        for ct in range(2):
            f = (WA, WB)[br][2*i+ct]
            a(f"ds_read_b64_tr_b16 {vr(f,2)}, v{TR0+ct} offset:{br*16384+i*2048}")
            a(f"ds_read_b64_tr_b16 {vr(f+2,2)}, v{TR0+ct} offset:{br*16384+i*2048+1024}")
    def oload(k):
        return f"buffer_load_dwordx4 {vr(OFB_+4*k,4)}, v3, s[32:35], {S.OF3 if k < 4 else S.OF3B} offen offset:{(k%4)*1024}{SC}"
    stamp(a, 8); st4(a, 3)
    for i in range(2): trread(0, i)
    a(f"s_add_u32 {S.OF3}, {S.OF3}, 32768")
    a(f"s_add_u32 {S.OF3B}, {S.OF3B}, 32768")
    a(f"s_mov_b32 s{CNT}, {POLL_LIMIT}")
    a(f"s_mov_b32 s{PEND}, 0")
    for p in range(1, 4): a(f"v_xor_b32 v{12+p}, {p*32768}, v{RR}")
    a("s_waitcnt vmcnt(3)")
    OP = OPT["opos"]
    if OP < 8: a("s_barrier")
    for i in range(8):
        if i == OP:
            for k in range(8): a(oload(k))
        if i + 2 < 8: trread(0, i + 2)
        a(f"s_waitcnt lgkmcnt({4*min(2, 7-i)})")
        for ct in range(2): mfma(a, ACC+16*ct, WA[2*i+ct], SCR+4*i, "0" if i == 0 else ACC+16*ct)
        if OP == -1: a(oload(i))
    if OP == 8:
        for k in range(8): a(oload(k))
    NPRE = OPT["npre"]
    NB0 = OPT["nb0"]
    for i in range(NB0): trread(1, i)
    st4(a, 4)
    a("s_waitcnt vmcnt(0)")
    st4(a, 5)
    a("s_barrier")
    todo = list(range(NB0, 8)); mul = list(range(0, 32, 2))
    for k in range(NPRE):
        a(oload(k))
        for _ in range(2):
            if todo:
                a("s_waitcnt lgkmcnt(8)")
                trread(1, todo.pop(0))
        for _ in range(4):
            if mul:
                j = mul.pop(0)
                a(f"v_pk_mul_f32 {vr(ACC+j,2)}, {vr(ACC+j,2)}, {vr(GV,2)} op_sel_hi:[1,0]")
    assert not todo and not mul
    st4(a, 6)
    def test(a, o):
        a(f"v_max3_u32 v4, v{o}, v{o+1}, v{o+2}")
        a(f"v_max_u32 v4, v4, v{o+3}")
        a("v_cmp_eq_u32 vcc, -1, v4")
        a("s_nop 1")
    if OPT["det"]:
        for i in range(8):
            o = OFB_ + 4*i
            a(f"s_waitcnt vmcnt({min(7-i, NPRE-1)})" + (" lgkmcnt(0)" if i == 0 else ""))
            if i == 0: st4(a, 7)
            a.label(f"L_ot{i}")
            test(a, o)
            a(f"s_cbranch_vccnz L_obad{i}")
            a.label(f"L_og{i}")
            for ct in range(2): mfma(a, ACC+16*ct, WB[2*i+ct], o, ACC+16*ct)
            if i + NPRE < 8: a(oload(i + NPRE))
        def retry(a):
            for i in range(8):
                a.label(f"L_obad{i}")
                a(f"s_sub_u32 s{CNT}, s{CNT}, 1")
                a(f"s_cmp_lt_i32 s{CNT}, 1")
                a(f"s_cbranch_scc1 L_og{i}")
                a("s_waitcnt vmcnt(0)")
                a(f"s_sleep {OPT['osleep']}")
                a(oload(i))
                for k in range(i + 1, min(8, i + NPRE)):
                    test(a, OFB_ + 4*k)
                    a(f"s_cbranch_vccz L_os{i}_{k}")
                    a(oload(k))
                    a.label(f"L_os{i}_{k}")
                a("s_waitcnt vmcnt(0)")
                a(f"s_branch L_ot{i}")
    else:
        for i in range(8):
            o = OFB_ + 4*i
            a(f"s_waitcnt vmcnt({7-i})")
            test(a, o)
            a(f"s_cbranch_vccnz L_obad{i}")
            for ct in range(2): mfma(a, ACC+16*ct, WB[2*i+ct], o, ACC+16*ct)
            a.label(f"L_onext{i}")
        a(f"s_cmp_lg_u32 s{PEND}, 0")
        a("s_cbranch_scc1 L_oretry")
        a.label("L_odone")
        def retry(a):
            for i in range(8):
                a.label(f"L_obad{i}")
                a(f"s_bitset1_b32 s{PEND}, {i}")
                a(f"s_branch L_onext{i}")
            a.label("L_oretry")
            a(f"s_sub_u32 s{CNT}, s{CNT}, 1")
            a(f"s_cmp_lt_i32 s{CNT}, 1")
            a("s_cbranch_scc1 L_oexit")
            a(f"s_sleep {OPT['osleep']}")
            for i in range(8):
                a(f"s_bitcmp1_b32 s{PEND}, {i}")
                a(f"s_cbranch_scc0 L_ol{i}")
                a(oload(i))
                a.label(f"L_ol{i}")
            a("s_waitcnt vmcnt(0)")
            for i in range(8):
                o = OFB_ + 4*i
                a(f"s_bitcmp1_b32 s{PEND}, {i}")
                a(f"s_cbranch_scc0 L_oc{i}")
                test(a, o)
                a(f"s_cbranch_vccnz L_oc{i}")
                for ct in range(2): mfma(a, ACC+16*ct, WB[2*i+ct], o, ACC+16*ct)
                a(f"s_bitset0_b32 s{PEND}, {i}")
                a.label(f"L_oc{i}")
            a(f"s_cmp_lg_u32 s{PEND}, 0")
            a("s_cbranch_scc1 L_oretry")
            a.label("L_oexit")
            a.nop(10)
            a("s_branch L_odone")
    SPINS.append(retry)
    stamp(a, 9); st4(a, 8)
    for p in range(1, 4):
        for q in range(2): a(f"ds_write_b128 v{12+p}, {vr(ACC+8*p+4*q,4)} offset:{(p-1)*2048+q*1024}")
    a("s_waitcnt lgkmcnt(0)")
    a("s_barrier")
    for src in range(3):
        for q in range(2): a(f"ds_read_b128 {vr(64+8*src+4*q,4)}, v{RR} offset:{src*2048+q*1024}")
    a("s_waitcnt lgkmcnt(4)")
    for j in range(0, 8, 2): a(f"v_pk_add_f32 {vr(64+j,2)}, {vr(64+j,2)}, {vr(ACC+j,2)}")
    a("s_waitcnt lgkmcnt(0)")
    for j in range(0, 8, 2): a(f"v_pk_add_f32 {vr(72+j,2)}, {vr(72+j,2)}, {vr(80+j,2)}")
    for j in range(0, 8, 2): a(f"v_pk_add_f32 {vr(64+j,2)}, {vr(64+j,2)}, {vr(72+j,2)}")
    for q in range(4): a(f"v_cvt_pk_bf16_f32 v{20+q}, v{64+2*q}, v{64+2*q+1}")
    st4(a, 9)
    a("v_permlane32_swap_b32 v20, v22")
    a("v_permlane32_swap_b32 v21, v23")
    a(f"buffer_store_dwordx4 v[20:23], v{OUTA}, s[24:27], {S.OUTOFF} offen{OPT['outsc']}")
    a(f"s_or_b32 s{TA}, s2, s{W}")
    a(f"s_cmp_lg_u32 s{TA}, 0")
    a("s_cbranch_scc1 L_noE")
    a(f"v_mov_b32 v24, s{TAG}")
    a("s_mov_b64 exec, 1")
    a(f"buffer_store_dword v24, v3, s[32:35], 0 offen offset:{WS_E}")
    a("s_mov_b64 exec, -1")
    a.label("L_noE")
    flush_stamps(a)

def tables():
    t = ".p2align 8\nL_vtab:\n"
    for w in range(8):
        for r, fn in vtab():
            for l in range(0, 64, 2):
                t += ".long " + ",".join(str(x) for x in fn(w, l) + fn(w, l+1)) + "\n"
    t += ".set b, 0\n.rept 256\n.set w, 0\n.rept 8\n"
    for n, e in stab(): t += f".long {e}\n"
    t += ".set w, w+1\n.endr\n.set b, b+1\n.endr\n"
    return t

def main(out):
    hdr = open("cdna_kernels/" + NAME + ".s.ref").read().split("; Override launch")[0]
    txt = hdr + "; @launch grid=(256,1,1) block=(512,1,1) lds=163840\n"
    txt += '.amdgcn_target "amdgcn-amd-amdhsa--gfx950"\n.text\n'
    nm = NAME + "_kernel"
    a = Asm()
    a.label(nm)
    phase1(a)
    rare = phase2(a)
    phase3(a)
    a.label("L_end")
    a("s_endpgm")
    for sp in SPINS: sp(a)
    rare(a)
    a.label("L_code_end")
    a("s_endpgm")
    a.lines, added = autonop(a.lines)
    errs = check(a.lines, nm)
    bare, skipping = [], None
    for l in a.lines:
        if skipping:
            if l.startswith(skipping + ":"): skipping = None
            continue
        bare.append(l)
        if "s_cbranch_scc0 L_skip_" in l or "s_cbranch_scc1 L_skip_" in l: skipping = l.split()[-1]
    errs += check(bare, nm + "(optional blocks skipped)")
    txt += f".globl {nm}\n.p2align 8\n.type {nm},@function\n" + a.text()
    txt += f""".section .rodata,"a"
.p2align 6
.amdhsa_kernel {nm}
  .amdhsa_next_free_vgpr 256
  .amdhsa_next_free_sgpr 102
  .amdhsa_accum_offset 256
  .amdhsa_group_segment_fixed_size 0
  .amdhsa_kernarg_size 88
  .amdhsa_user_sgpr_count 2
  .amdhsa_user_sgpr_kernarg_segment_ptr 1
  .amdhsa_system_sgpr_workgroup_id_x 1
.end_amdhsa_kernel
""" + tables()
    open(out, "w").write(txt)
    for e in errs: print("HAZARD", e)
    print("written", out, len(txt), "bytes;", len(errs), "hazards;", added, "auto nops")

if __name__ == "__main__":
    if "--stamps" in sys.argv:
        STAMPS = True; sys.argv.remove("--stamps")
    for x in list(sys.argv):
        if x.startswith("--o:"):
            k, v = x[4:].split("=", 1)
            assert k in OPT, k
            OPT[k] = eval(v); sys.argv.remove(x)
    main(sys.argv[1] if len(sys.argv) > 1 else "cdna_kernels/" + NAME + ".s")
```

```python
import sys, struct
from asmlib import *

NAME = "gated_mix__linear_kernel_hedgehog__mha_block__prompt"
WS_E, WS_F1, WS_F2, WS_GATE, WS_F4, WS_F5, WS_KVF = 0x0, 0x10000, 0x20000, 0x40000, 0x50000, 0x60000, 0x70000
WS_QB, WS_KB, WS_VB, WS_KVP, WS_OF = 0x200000, 0x400000, 0x600000, 0x800000, 0xA00000
WS_USED = 0x2100000
def f32(x): return "0x%08x" % struct.unpack("<I", struct.pack("<f", x))[0]
LOG2E = 1.4426950408889634
STAMPS = False
OPT = dict(dup={(32,42):3}, mslots=(3,8,13), lg0=0, cmask=15, nobar=(6,), npre=5, nb0=2, det=1, p1prio=0, opos=9, outl=(1,2,4), bst=4, kat=(0,2), vat=(1,2), dmk=0, jk=1, lprio=1, pq=1, poff=2, p2prio=0, cnt=0, ciat=19, fb=-1, sprd=8, al=0, t0pos=0, bar0=1, gst=0, la=2, pre2=0, t0at=-2, f1g=26, zat=30, last='wb', t2at=26, tchat=7, phiat=24, ds0=(16,17,18,19,20,21,22,23), ds1={(2,0):0,(2,1):1,(3,0):2,(3,1):3,(4,0):4,(4,1):5,(5,0):6,(5,1):8,(6,0):10,(6,1):12,(7,0):14,(7,1):15}, map2d=1, pp=0, rot=4, rp=1, pos=(1, 6, 11), thr=2.0**100, cyc=0, amp=None, outsc="", fill=3, hga=4, osleep=4, cpf=1,
           rsplit=(0, 3, 5, 7), f1at=1, pollat=2, goat=5, y_skip=(),
           f2it=0, f4it=5, kvs=(0, 1), wos=(6, 7),
           sched={(0, 0): "kp", (0, 5): "tb6 tb7", (1, 2): "p2", (1, 6): "ld", (2, 2): "red", (2, 5): "f5", (3, 4): "p5", (4, 0): "kv", (4, 4): "om", (4, 7): "oa0", (5, 0): "oa1",
                  (6, 4): "p4", (7, 0): "c4 la0", (7, 1): "la1", (7, 2): "la2", (7, 3): "la3"})
SC = " sc1"
POLL_LIMIT = 200000
NST = 11
SLOT = 32768
XCH, FLAG, PHIL, CNTW = 131072, 155648, 8192, 12288
R_T0, R_T0W0, R_RED, R_T1, R_T1W0, R_ANY = range(6)

W = 3
TAG, J, XOFF, WOFF, MX, MW, TY, ATT = range(36, 44)
L2E, MASK, VT = 10, 14, 46
TA, TB, TC, CNT = 4, 5, 6, 7
CP = 44
def stab():
    hA = OPT["hga"]
    d = dict(hg="(b&7)", j="(b>>3)", ty="((b>>3)&1)", rb16="(b>>4)", rb8="(b>>5)", qp="(w&3)", kh="(w>>2)", kq="(w>>1)", rt3="(w&1)")
    d["hg1"] = d["hg"]
    if OPT["map2d"]:
        d["hg1"] = "(((b&3)<<1)+((b>>4)&1))"
        d["rb16"] = "((((b>>2)&1)<<3)+(b>>5))"
    d["h"] = "(({hg}<<2)+({j}&3))".format(**d)
    d["t"] = "(({rb16}<<2)+{qp})".format(**d)
    d["hb0"] = "(({hg1}<<2)+({kh}<<1))".format(**d)
    d["ha0"] = "({hb0}^%d)".format(**d) % (hA*4)
    d["hr"] = "(((({h}+w)-1)&31)^%d)".format(**d) % (hA*4)
    d["T"] = "((({rb8}<<3)+({qp}<<1))+{kh})".format(**d)
    d["T3"] = "(((({rb8}<<2)+({hg}>>1))<<1)+{rt3})".format(**d)
    d["cb"] = "(((b&1)<<2)+({j}&3))".format(**d)
    d["lds0"] = "(({kh}<<15)+({qp}<<10))".format(**d)
    d["w0"] = "(((w-1)>>8)&1)"
    d["w12"] = "((((w-3)>>8)&1)-{w0})".format(**d)
    E = [
     ("F1OFF", "(%d+(((({hg1}<<5)+({rb16}<<1))+{ty})<<7))" % WS_F1),
     ("F1POLL", "(%d+({hg}<<12))" % WS_F1),
     ("F2OFF", "(%d+((({hg1}<<4)+{rb16})<<7))" % WS_F2),
     ("F2POLL", "(%d+({hg}<<11))" % WS_F2),
     ("VOFF", "((%d+({hb0}<<16))+({t}<<10))" % WS_VB),
     ("QK0", "(((%d+({ty}*%d))+({hb0}<<16))+({t}<<10))" % (WS_QB, WS_KB-WS_QB)),
     ("LDS0", "{lds0}"),
     ("KOFF", "((%d+({h}<<16))+{lds0})" % WS_KB),
     ("K0OFF", "(%d+({h}<<16))" % WS_KB),
     ("QOFF1", "((%d+({h}<<16))+({T}<<10))" % WS_QB),
     ("QOFF0", "((%d+({h}<<16))+(({T}^1)<<10))" % WS_QB),
     ("ROLE", "(((1-{ty})*((%d+({w0}*%d))+({w12}*%d)))+({ty}*(%d+({w0}*%d))))" % ((1 << R_T0) | (1 << R_ANY), 1 << R_T0W0, 1 << R_RED, (1 << R_T1) | (1 << R_ANY), 1 << R_T1W0)),
     ("KVPOFF", "(%d+(((({ha0}+({qp}>>1))<<4)+{rb16})<<12))" % WS_KVP),
     ("OFB", "((%d+({T}<<16))+({h}<<10))" % (WS_OF+32768)),
     ("OF3", "((%d+({T3}<<16))+({kq}<<13))" % WS_OF),
     ("OF3B", "((%d+({T3}<<16))+({kq}<<13))" % (WS_OF+4096)),
     ("OUTOFF", "((({T3}<<15)+({cb}<<7))+({kq}<<5))"),
     ("WOOFF", "(((({kh}<<4)+{qp})<<13)+({cb}<<7))"),
     ("F4POLL", "(%d+({rb8}<<11))" % WS_F4),
     ("F4OFF", "(%d+((({rb16}<<3)+{hg1})<<7))" % WS_F4),
     ("OWN1", "(4294967295-((((({hg}^{hg1})-1)>>8)&1)<<(({rb16}<<1)+{ty})))"),
     ("GATE3", "(%d+({T3}<<7))" % WS_GATE),
     ("GATET", "(%d+({T}<<7))" % WS_GATE),
     ("GROW", "(((({rb16}<<7)+({hg1}<<4))+(w<<1))<<10)"),
     ("GOFF", "(%d+(((({rb16}<<7)+({hg1}<<4))+(w<<1))<<2))" % WS_GATE),
     ("PHIOFF", "((({hg1}^%d)<<11)+({rt3}<<10))" % hA),
     ("LDK", "((%d+({hr}<<16))+({rb8}<<8))" % WS_KVP),
     ("KVFW", "((((%d+({hr}<<11))+(({rb8}>>2)*544))+(({rb8}&1)*272))+(({rb8}&2)<<2))" % WS_KVF),
     ("F5OFF", "((%d+({hr}<<10))+({rb8}<<7))" % WS_F5),
     ("F5POLL", "(%d+({ha0}<<10))" % WS_F5),
     ("KVFR", "(%d+({ha0}<<11))" % WS_KVF),
     ("OAOFF", "((%d+({t}<<16))+({ha0}<<10))" % WS_OF),
    ]
    assert len(E) == 32
    return [(n, e.format(**d)) for n, e in E]
SR = {n: 48 + i for i, (n, _) in enumerate(stab())}
class _S:
    def __getattr__(self, n): return f"s{SR[n]}"
S = _S()

Q = [8, 12]; C = [16, 32]; S4 = [[48, 200], [64, 216]]; O = [80, 96]
KB_ = [112, 116]; VA = [120, 128]; VBB = [124, 132]
IDX, VK, VV, VL8, VWO, XW, XR, TR0, TR1, RR, OUTA, G4 = range(136, 148)
GV, M1, M2 = 148, 150, 151
VP0, VP1 = 0, 2
SCR, PHI = 152, 232
VXR, VWR, PHIA, VXD, VWD, BSEL = 8, 16, 18, 20, 22, 56
KO, VO, REDW, REDR, KVP0, KVP1, ONES = 24, 25, 26, 27, 28, 29, 30
def vtab():
    def trc(l): return ((l >> 2) & 3)*128 + ((l >> 4) & 1)*32 + (l & 3)*8
    def g0(w, l):
        r, hf = l & 31, l >> 5
        return [(w & 3)*4096 + r*128 + (((2*st + hf) ^ ((r >> 1) & 7))*16) for st in range(4)]
    def g2(w, l):
        hf = l >> 5
        v = trc(l) + (((w >> 2) ^ ((l >> 3) & 1))*64)
        return [16384 + hf*2048 + v, 16384 + hf*2048 + v + 2*SLOT, PHIL + (w >> 2)*1024 + (4*hf + ((l >> 2) & 3))*32 + (l & 3)*8, 131072 + hf*1024 + v]
    def g3(w, l):
        pi = (l & 0x33) | (((l >> 2) & 1) << 3) | (((l >> 3) & 1) << 2)
        return [pi*16, ((l >> 4) & 1)*65536 + (l >> 5)*256 + (l & 15)*16,
                (w >> 1)*32768 + 8192 + (w & 1)*8192 + l*16, (w >> 2)*65536 + 8192 + (w & 3)*2048 + l*16]
    def g4(w, l):
        own = ((l >> 4) & 1) == ((w >> 1) & 1); q0 = 2*(w & 1); hf = l >> 5
        k = [q*512 + hf*256 + (l & 15)*16 if own else 2048 + q*32 + hf*16 for q in (q0, q0+1)]
        one = 0x3f803f80 if (l & 27) == 16 else 0
        return k + [one, one]
    def bsel(sg):
        def g(w, l):
            t = (l & 31) - 4*(l >> 5) - 16*sg
            T = lambda j: 8*(j//4) + j % 4
            return [(0x3f80 if t == T(2*q) else 0) | (0x3f800000 if t == T(2*q+1) else 0) for q in range(4)]
        return g
    def tr0(w, l): return (w >> 1)*32768 + (((l >> 5)*512 + ((l >> 3) & 1)*64 + trc(l)) ^ ((w >> 1)*32))
    def g8(w, l): return [(l >> 3)*1024 + (((l & 7) ^ ((l >> 2) & 4))*16), XCH + w*3072 + l*16, XCH + (w ^ 4)*3072 + l*16, tr0(w, l)]
    def g9(w, l): return [tr0(w, l) ^ 64, (w >> 1)*32768 + (w & 1)*8192 + l*16, (l & 31)*1024 + (l >> 5)*16, (l & 31)*4]
    return [(8, g0), (16, g2), (24, g3), (28, g4), (56, bsel(0)), (60, bsel(1)), (140, g8), (144, g9)]
NG = len(vtab())

def mfma(a, d, A, B, Cc):
    a(f"v_mfma_f32_32x32x16_bf16 {vr(d,16)}, {vr(A,4)}, {vr(B,4)}, {Cc if isinstance(Cc,str) else vr(Cc,16)}")
def smfmac(a, d, A, B, idx):
    a(f"v_smfmac_f32_32x32x32_bf16 {vr(d,16)}, {vr(A,4)}, {vr(B,8)}, v{idx}")
def stamp(a, j, g=False):
    if OPT["gst"] and not g and j not in (0, 1, NST-1): return
    if STAMPS: a(f"s_mem{'' if OPT['cyc'] else 'real'}time s[{80+2*j}:{81+2*j}]")
def st5(a, j):
    if OPT["gst"] == 5: stamp(a, j, True)
def st4(a, j):
    if OPT["gst"] == 4: stamp(a, j, True)
def flush_stamps(a):
    if not STAMPS: return
    a("s_waitcnt vmcnt(0)")
    stamp(a, NST-1)
    a("s_waitcnt lgkmcnt(0)")
    if OPT["amp"]:
        j0, j1 = OPT["amp"]
        a(f"s_or_b32 s7, s2, s{W}")
        a("s_cmp_lg_u32 s7, 0")
        a("s_cbranch_scc1 L_end")
        a(f"s_sub_u32 s7, s{80+2*j1}, s{80+2*j0}")
        a("s_lshl_b32 s7, s7, 4")
        a.label("L_amp")
        a("s_memrealtime s[4:5]")
        a("s_waitcnt lgkmcnt(0)")
        a(f"s_sub_u32 s6, s4, s{80+2*(NST-1)}")
        a("s_cmp_lt_u32 s6, s7")
        a("s_cbranch_scc1 L_amp")
        return
    a("s_lshl_b32 s7, s2, 3")
    a(f"s_add_u32 s7, s7, s{W}")
    a("s_lshl_b32 s7, s7, 6")
    a(f"s_add_u32 s7, s7, {0x2000000}")
    a("s_mov_b64 exec, 1")
    a("v_mov_b32 v1, 0")
    for j in range(NST):
        a(f"v_mov_b32 v2, s{80+2*j}")
        a(f"buffer_store_dword v2, v1, s[32:35], s7 offen offset:{4*j}")
def pub(a, soff):
    a(f"v_mov_b32 v4, s{TAG}")
    a("s_mov_b64 exec, 1")
    a(f"buffer_store_dword v4, v3, s[32:35], {soff} offen{SC}")
    a("s_mov_b64 exec, -1")
def poll(a, lab, vaddr, vdst, soff, landed=False, own=None):
    a(f"s_mov_b32 s{CNT}, {POLL_LIMIT}")
    a(f"s_branch {lab}_{'cmp' if landed else 'chk'}")
    a.label(lab)
    a(f"buffer_load_dword v{vdst}, v{vaddr}, s[32:35], {soff} offen{SC}")
    a.label(lab + "_chk")
    a("s_waitcnt vmcnt(0)")
    a.label(lab + "_cmp")
    a(f"v_cmp_ne_u32 s[{CP}:{CP+1}], s{TAG}, v{vdst}")
    a(f"s_sub_u32 s{CNT}, s{CNT}, 1")
    a(f"s_or_b32 s{CP}, s{CP}, s{CP+1}")
    if own is not None: a(f"s_and_b32 s{CP}, s{CP}, {own}")
    a(f"s_cbranch_scc0 {lab}_ok")
    a(f"s_cmp_eq_u32 s{CNT}, 0")
    a(f"s_cbranch_scc1 {lab}_ok")
    a("s_sleep 1")
    a(f"s_branch {lab}")
    a.label(lab + "_ok")
SPINS = []
def check_flags(a, lab, mask, vdst, soff):
    a(f"v_cmp_ne_u32 vcc, s{TAG}, v{vdst}")
    a("s_nop 1")
    a(f"s_cbranch_vccnz {lab}_spin")
    a.label(f"{lab}_back")
    def spin(a):
        a.label(f"{lab}_spin")
        a(f"v_and_b32 v6, {mask}, v{VL8}")
        poll(a, lab, 6, vdst, soff, landed=True)
        a(f"s_branch {lab}_back")
    SPINS.append(spin)

class Fill:
    def __init__(self): self.g = []
    def __call__(self, *lines, after=0): self.g.append((after, list(lines)))
    def pop(self, a, n, g):
        while n > 0 and self.g and self.g[0][0] <= g:
            _, ls = self.g.pop(0)
            for l in ls:
                if isinstance(l, tuple): a.vmem(*l)
                elif callable(l): l(a)
                else: a(l)
            n -= len(ls)

def gate(a):
    X, Wt, t = 96, 104, 56
    for q in range(8):
        u = t + 4*(q & 1)
        a(f"v_lshlrev_b32 v{u}, 16, v{X+q}")
        a(f"v_lshlrev_b32 v{u+2}, 16, v{Wt+q}")
        a(f"v_and_b32 v{u+1}, 0xffff0000, v{X+q}")
        a(f"v_and_b32 v{u+3}, 0xffff0000, v{Wt+q}")
        a(f"v_pk_mul_f32 {vr(u,2)}, {vr(u,2)}, {vr(u+2,2)}")
        a(f"v_cvt_pk_bf16_f32 v{u+2}, v{u}, v{u+1}")
        d = 52 if q == 0 else u
        a(f"v_lshlrev_b32 v{d}, 16, v{u+2}")
        a(f"v_and_b32 v{d+1}, 0xffff0000, v{u+2}")
        if q: a(f"v_pk_add_f32 v[52:53], v[52:53], {vr(u,2)}")
    s = 52
    a(f"v_add_f32 v{s}, v{s}, v{s+1}")
    a(f"v_mov_b32 v{s+1}, v{s}")
    a("v_lshrrev_b32 v6, 3, v1")
    a(f"v_permlane16_swap_b32 v{s}, v{s+1}")
    a(f"v_add_f32 v{s}, v{s}, v{s+1}")
    for r in (8, 4, 2, 1):
        a(f"v_add_f32_dpp v{s}, v{s}, v{s} row_ror:{r} row_mask:0xf bank_mask:0xf")
    a(f"v_cvt_pk_bf16_f32 v{s}, v{s}, v{s}")
    a(f"v_lshlrev_b32 v{s}, 16, v{s}")
    a(f"v_mul_f32 v{s}, {f32(-LOG2E)}, v{s}")
    a(f"v_exp_f32 v{s}, v{s}")
    a(f"v_add_f32 v{s}, 1.0, v{s}")
    a(f"v_rcp_f32 v{s}, v{s}")
    a(f"v_cvt_pk_bf16_f32 v{s}, v{s}, v{s}")
    a(f"v_lshlrev_b32 v{s}, 16, v{s}")

def maxtree(a, dst, src, first):
    if first:
        a(f"v_max3_f32 v{dst}, v{src}, v{src+1}, v{src+2}")
        for j in range(3, 15, 2): a(f"v_max3_f32 v{dst}, v{dst}, v{src+j}, v{src+j+1}")
        a(f"v_max_f32 v{dst}, v{dst}, v{src+15}")
    else:
        for j in range(0, 16, 2): a(f"v_max3_f32 v{dst}, v{dst}, v{src+j}, v{src+j+1}")
def kv_dma(a, rr, kind):
    a(f"s_add_u32 m0, {S.LDS0}, {kind*65536+rr*4096}")
    a(f"s_add_u32 s{TA}, {S.KOFF}, {kind*(WS_VB-WS_KB)+rr*4096}")
    a.vmem(f"buffer_load_dwordx4 v3, s[32:35], s{TA} offen{SC} lds", f"r{rr}")
def wo_dma(a, rr, kind):
    a(f"s_add_u32 m0, {S.LDS0}, {kind*65536+rr*4096}")
    a(f"s_add_u32 s{TA}, {S.WOOFF}, {kind*262144+(rr&3)*32768}")
    R = 16 if rr < 4 else 20
    a.vmem(f"buffer_load_dwordx4 v{VWO}, s[{R}:{R+3}], s{TA} offen lds", f"w{rr}")

def phase1(a):
    ACC = [64, 80, 96]
    a("s_cmp_ge_u32 s2, 256")
    a("s_cbranch_scc1 L_end")
    stamp(a, 0)
    a("s_load_dwordx4 s[4:7], s[0:1], 0")
    a("s_load_dwordx2 s[10:11], s[0:1], 40")
    a("s_load_dwordx2 s[32:33], s[0:1], 80")
    a("s_load_dwordx2 s[8:9], s[0:1], 16")
    a("s_load_dwordx2 s[12:13], s[0:1], 56")
    a(f"s_getpc_b64 s[{VT}:{VT+1}]")
    a.label("L_pc")
    a("v_lshrrev_b32 v2, 6, v0")
    a("v_and_b32 v1, 63, v0")
    a(f"s_lshr_b32 s{J}, s2, 3")
    a(f"v_readfirstlane_b32 s{W}, v2")
    a("v_lshlrev_b32 v3, 4, v1")
    a(f"s_mov_b64 s[14:15], s[{VT}:{VT+1}]")
    a(f"s_add_u32 s{VT}, s{VT}, L_vtab-L_pc")
    a(f"s_addc_u32 s{VT+1}, s{VT+1}, L_vtab@rel32@hi+12")
    def cpf_addr():
        a(f"s_and_b32 s44, s{J}, {OPT['cmask']}")
        a("s_lshl_b32 s44, s44, 13")
        a("s_sub_u32 s45, s44, 32768")
        a("s_cselect_b32 s44, s44, s45")
        a(f"s_cselect_b64 s[34:35], s[14:15], s[{VT}:{VT+1}]")
        a(f"s_cselect_b32 s45, L_code_end-L_pc-16, -1")
        a("v_lshl_add_u32 v24, v0, 4, s44")
        a("v_min_u32 v24, s45, v24")
    def cpf():
        a.vmem("global_load_dwordx4 v[112:115], v24, s[34:35]", "x")
    def t0():
        a.vmem(f"global_load_dwordx4 v[8:11], v23, s[{VT}:{VT+1}]", "t0")
        a.vmem(f"global_load_dwordx4 v[16:19], v23, s[{VT}:{VT+1}] offset:1024", "t0")
    if OPT["cpf"]: cpf_addr()
    if OPT["cpf"] == 1: cpf()
    a(f"v_mul_u32_u24 v23, {NG*1024}, v2")
    a("v_add_u32 v23, v23, v3")
    if OPT["t0pos"] == 0: t0()
    a("v_lshrrev_b32 v7, 3, v1")
    a("v_and_b32 v4, 7, v1")
    a("v_lshrrev_b32 v5, 1, v7")
    a("v_xor_b32 v6, v4, v5")
    a("v_lshlrev_b32 v6, 4, v6")
    a(f"v_lshl_add_u32 v{VXD}, v7, 10, v6")
    a(f"v_xor_b32 v{VXD+1}, 64, v{VXD}")
    a(f"v_add_u32 v{VXD+1}, {8192-1024}, v{VXD+1}")
    a("v_lshrrev_b32 v6, 2, v1")
    a("v_and_b32 v6, 4, v6")
    a("v_xor_b32 v6, v4, v6")
    a("v_mul_u32_u24 v7, 3072, v7")
    a(f"v_lshl_add_u32 v{VWD}, v6, 4, v7")
    a(f"s_and_b32 s{TY}, s{J}, 1")
    if OPT["map2d"]:
        a(f"s_lshr_b32 s{XOFF}, s2, 5")
        a("s_and_b32 s44, s2, 4")
        a(f"s_lshl1_add_u32 s{XOFF}, s44, s{XOFF}")
    else:
        a(f"s_lshr_b32 s{XOFF}, s2, 4")
    if OPT["rot"] == 4:
        a(f"s_lshl1_add_u32 s{J}, s{J}, s{XOFF}")
    elif OPT["rot"] == 5:
        a(f"s_lshl1_add_u32 s{J}, s{J}, s{XOFF}")
        a(f"s_add_u32 s{J}, s{J}, s2")
    elif OPT["rot"] >= 1:
        a(f"s_lshl2_add_u32 s{J}, s{TY}, s{XOFF}")
    if OPT["rot"] == 2: a(f"s_add_u32 s{J}, s{J}, s2")
    if OPT["rot"] == 3:
        a("s_lshl_b32 s44, s2, 1")
        a(f"s_add_u32 s{J}, s{J}, s44")
    a(f"s_lshl3_add_u32 s{XOFF}, s{XOFF}, s{W}")
    a(f"s_lshl_b32 s{XOFF}, s{XOFF}, 14")
    a(f"s_mul_i32 s{WOFF}, s{W}, 24576")
    a(f"s_lshl_b32 s{MX}, s{W}, 11")
    a(f"s_lshl_b32 s{MW}, s{W}, 10")
    if OPT["map2d"]:
        a("s_and_b32 s44, s2, 3")
        a("s_bfe_u32 s45, s2, 0x10004")
        a("s_lshl1_add_u32 s44, s44, s45")
    else:
        a("s_and_b32 s44, s2, 7")
    a("s_lshl_b32 s44, s44, 7")
    a(f"s_xor_b32 s45, s44, {OPT['hga']*128}")
    a(f"s_lshl_b32 s14, s{TY}, 10")
    a("s_add_u32 s15, s14, s44")
    a("s_sub_u32 s14, s45, s14")
    a("s_add_u32 s14, s14, 1024")
    a(f"s_cmp_eq_u32 s{TY}, 0")
    a("s_cselect_b32 s44, s45, s44")
    a("s_add_u32 s44, s44, 1024")
    a("s_sub_u32 s22, 0x180000, s14")
    a("s_sub_u32 s26, 0x180000, s44")
    a("s_sub_u32 s30, 0x180000, s15")
    a("s_mov_b32 s23, 0x00020000")
    a("s_mov_b32 s27, 0x00020000")
    a("s_mov_b32 s31, 0x00020000")
    a("s_mov_b32 s18, 0x200000")
    a("s_mov_b32 s19, 0x00020000")
    a(f"s_cmp_eq_u32 s{TY}, 0")
    st5(a, 2)
    a("s_waitcnt lgkmcnt(0)")
    st5(a, 3)
    a("s_cselect_b64 s[24:25], s[6:7], s[10:11]")
    a("s_mov_b64 s[16:17], s[4:5]")
    a("s_add_u32 s20, s6, s14")
    a("s_addc_u32 s21, s7, 0")
    a("s_add_u32 s24, s24, s44")
    a("s_addc_u32 s25, s25, 0")
    a("s_add_u32 s28, s10, s15")
    a("s_addc_u32 s29, s11, 0")
    def dma_part(c, p):
        sl = (c & 3) * SLOT
        if p == 0:
            a(f"s_add_u32 m0, s{MX}, {sl}")
            a(f"s_add_u32 s{TA}, s{J}, {c}")
            a(f"s_and_b32 s{TA}, s{TA}, 7")
            a(f"s_lshl_b32 s{TB}, s{TA}, 7")
            a(f"s_add_u32 s{TB}, s{TB}, s{XOFF}")
            a.vmem(f"buffer_load_dwordx4 v{VXD}, s[16:19], s{TB} offen lds", f"c{c}")
            a.vmem(f"buffer_load_dwordx4 v{VXD+1}, s[16:19], s{TB} offen offset:1024 lds", f"c{c}")
        else:
            a(f"s_add_u32 m0, s{MX}, {sl+16384}")
            a(f"s_mul_i32 s{TC}, s{TA}, 196608")
            a(f"s_add_u32 s{TC}, s{TC}, s{WOFF}")
            a.vmem(f"buffer_load_dwordx4 v{VWD}, s[28:31], s{TC} offen lds", f"c{c}")
            a.vmem(f"buffer_load_dwordx4 v{VWD}, s[24:27], s{TC} offen offset:1024 lds", f"c{c}")
    W0L = [131072 + c*8192 for c in range(4)] + [16384, 24576, 49152, 57344]
    def dma_w0(c):
        a(f"s_add_u32 m0, s{MW}, {W0L[c]}")
        a(f"s_add_u32 s{TB}, s{J}, {c}")
        a(f"s_and_b32 s{TB}, s{TB}, 7")
        a(f"s_mul_i32 s{TB}, s{TB}, 196608")
        a(f"s_add_u32 s{TB}, s{TB}, s{WOFF}")
        a.vmem(f"buffer_load_dwordx4 v{VWD}, s[20:23], s{TB} offen lds", "wa" if c < 4 else "wb")
    def dma(c):
        for p in range(2): dma_part(c, p)
    dma(0)
    st5(a, 4)
    if OPT["t0pos"] == 1: t0()
    if OPT["cpf"] == 2: cpf()
    a(f"s_load_dword s{TAG}, s[32:33], {WS_E}")
    a(f"s_lshl3_add_u32 s44, s2, s{W}")
    a("s_lshl_b32 s44, s44, 7")
    a(f"s_add_u32 s44, s44, {8*NG*1024}")
    a(f"s_load_dwordx16 s[48:63], s[{VT}:{VT+1}], s44")
    a(f"s_load_dwordx16 s[64:79], s[{VT}:{VT+1}], s44 offset:64")
    if OPT["bar0"]: a("s_barrier")
    st5(a, 5)
    dma(1)
    st5(a, 6)
    if OPT["cpf"] == 3: cpf()
    a(f"s_mov_b32 s34, {WS_USED}")
    a("s_mov_b32 s35, 0x00020000")
    a(f"s_mov_b32 s{MASK}, 0x0000ffff")
    a(f"s_mov_b32 s{MASK+1}, 0x0000ffff")
    a(f"s_mov_b32 s{L2E}, {f32(LOG2E)}")
    a(f"s_mov_b32 s{L2E+1}, {f32(0.25*LOG2E)}")
    a(f"s_mov_b32 s{ATT}, 0")
    if OPT["pre2"]: dma(2)
    XB = 120
    LA = OPT["la"]; NB = LA + 1
    def tl(k):
        r = vtab()[k][0]
        return f"global_load_dwordx4 {vr(r,4)}, v7, s[{VT}:{VT+1}] offset:{(k-4)*1024}"
    def rd(g):
        if g >= 32:
            g -= 32
            c, st = g >> 2, g & 3
            f = w0reg(g)
            ad, o = (19, W0L[c] - 131072) if c < 4 else (5, W0L[c] - 16384)
            return [f"ds_read_b64_tr_b16 {vr(f,2)}, v{ad} offset:{o+st*2048}", f"ds_read_b64_tr_b16 {vr(f+2,2)}, v{ad} offset:{o+st*2048+512}"]
        c, st = g >> 2, g & 3
        sl = c & 3
        fr = 32 + 8*(g % NB)
        L = [f"ds_read_b128 {vr(XB+4*g,4)}, v{VXR+4*(sl>>1)+st} offset:{(sl&1)*SLOT}"]
        for s in range(2):
            o = st*4096 + s*1024 + (sl & 1)*SLOT
            L.append(f"ds_read_b64_tr_b16 {vr(fr+4*s,2)}, v{VWR+(sl>>1)} offset:{o}")
            L.append(f"ds_read_b64_tr_b16 {vr(fr+2+4*s,2)}, v{VWR+(sl>>1)} offset:{o+512}")
        return L
    def w0reg(g): return [112, 116, 248, 252][g] if g < 4 else XB + 4*(g-4)
    EX = {}
    def ex(g, fn): EX.setdefault(g, []).append(fn)
    ex(0, lambda: [a(f"v_add_u32 v{VXR+4+st}, {2*SLOT}, v{VXR+st}") for st in range(4)])
    ex(0, lambda: a("v_add_u32 v7, 4096, v23"))
    sched1 = OPT["ds1"]
    for (c, p), g in sched1.items(): ex(g, (lambda c=c, p=p: dma_part(c, p)))
    for c, g in enumerate(OPT["ds0"]): ex(g, (lambda c=c: dma_w0(c)))
    def phi_dma():
        a(f"s_and_b32 s{TB}, {S.PHIOFF}, 1024")
        a(f"s_add_u32 m0, s{TB}, {PHIL}")
        a(f"v_add_u32 v6, {S.PHIOFF}, v3")
        a.vmem("global_load_lds_dwordx4 v6, s[8:9]", "wb")
    ex(OPT["phiat"], phi_dma)
    ex(OPT["t2at"], lambda: a.vmem(tl(2), "t2"))
    def touch():
        a(f"v_add_u32 v6, {S.PHIOFF}, v3")
        a.vmem("global_load_dword v4, v6, s[8:9]", "x")
        a.vmem("global_load_dword v0, v3, s[12:13]", "x")
    if OPT["tchat"] >= 0: ex(OPT["tchat"], touch)
    def touch0():
        a(f"s_lshr_b32 s{TB}, s2, 5")
        a(f"s_mul_i32 s{TB}, s{TB}, 196608")
        a(f"s_add_u32 s{TB}, s{TB}, s{WOFF}")
        a.vmem(f"buffer_load_dword v2, v{VWD}, s[20:23], s{TB} offen", "x")
    if OPT["t0at"] == -1: touch0()
    elif OPT["t0at"] >= 0: ex(OPT["t0at"], touch0)
    def zst():
        a("v_mov_b64 v[8:9], -1")
        a("v_mov_b64 v[10:11], -1")
        a.vmem(f"buffer_store_dwordx4 v[8:11], v3, s[32:35], {S.OFB} offen{SC}", "st")
    if OPT["zat"] >= 0: ex(OPT["zat"], zst)
    else:
        a(f"s_lshr_b32 s{TA}, s2, 5")
        a(f"s_and_b32 s{TB}, s{W}, 3")
        a(f"s_lshl2_add_u32 s{TA}, s{TA}, s{TB}")
        a(f"s_lshr_b32 s{TB}, s{W}, 2")
        a(f"s_lshl1_add_u32 s{TA}, s{TA}, s{TB}")
        a(f"s_lshl_b32 s{TA}, s{TA}, 16")
        a(f"s_and_b32 s{TB}, s2, 7")
        a(f"s_bfe_u32 s{TC}, s2, 0x20003")
        a(f"s_lshl2_add_u32 s{TB}, s{TB}, s{TC}")
        a(f"s_lshl_b32 s{TB}, s{TB}, 10")
        a(f"s_add_u32 s{TA}, s{TA}, s{TB}")
        a(f"s_add_u32 s{TA}, s{TA}, {WS_OF+32768}")
        a("v_mov_b64 v[56:57], -1")
        a("v_mov_b64 v[58:59], -1")
        a.vmem(f"buffer_store_dwordx4 v[56:59], v3, s[32:35], s{TA} offen{SC}", "st")
    def cinit():
        a(f"s_mov_b32 m0, {CNTW}")
        a("s_mov_b32 s7, 0x200000")
        a.vmem("buffer_load_dword v3, s[16:19], s7 offen lds", "wb")
    if OPT["cnt"]: ex(OPT["ciat"], cinit)
    ex(OPT["t2at"] - 2, lambda: a.vmem(tl(3), "t2"))
    ex(OPT["t2at"] + 1, lambda: a.vmem(tl(4), "t3"))
    ex(OPT["t2at"] + 2, lambda: a.vmem(tl(5), "t3"))
    assert LA == 2
    ex(OPT["phiat"] + 1, lambda: a(f"v_subrev_u32 v5, {131072-16384}, v19"))
    if OPT["gst"] == 5:
        a("s_waitcnt vmcnt(8)"); st5(a, 7)
        a("s_waitcnt vmcnt(6)"); st5(a, 8)
        a("s_waitcnt vmcnt(4)"); st5(a, 9)
    a.wait_vm("c0", "t0", extra="lgkmcnt(0)" if OPT["lg0"] else "")
    a("s_barrier")
    stamp(a, 1)
    for g in range(LA):
        for l in rd(g): a(l)
    nowait = 0
    for g in range(32):
        c, st = g >> 2, g & 3
        if st == 4 - LA and c in OPT["nobar"]:
            assert f"c{c+1}" not in a.vm
            a(f"s_waitcnt lgkmcnt({5*(LA-1)})")
        elif st == 4 - LA:
            cw = c + 1
            while cw in OPT["nobar"]: cw += 1
            a.wait_vm(f"c{cw}" if c < 7 else OPT["last"], extra="lgkmcnt(0)")
            a("s_barrier")
            if OPT["gst"] == 1 and c < 7: stamp(a, 2+c, True)
            if c == 0: a(f"s_add_u32 s{TAG}, s{TAG}, 0x9e3779b1")
            nowait = LA - 1
        elif nowait: nowait -= 1
        else: a(f"s_waitcnt lgkmcnt({5*(LA-1)})")
        if OPT["p1prio"]: a(f"s_setprio {3 - ((g + 2) % 4)}")
        R = rd(g + LA)
        if g == 31:
            for k in range(LA, 4): R += rd(32 + k)
        fr = 32 + 8*(g % NB); x = XB + 4*g
        if OPT["al"]: a.raw(".p2align 3")
        mfma(a, ACC[2], fr, x, "0" if g == 0 else ACC[2])
        for l in R[:3]: a(l)
        mfma(a, ACC[1], x, fr+4, "0" if g == 0 else ACC[1])
        for l in R[3:]: a(l)
        for fn in EX.get(g, []): fn()
    stamp(a, 2)
    if OPT["gst"] == 1: stamp(a, 9, True)
    def st2(j):
        if OPT["gst"] == 2: stamp(a, j, True)
    st2(2)
    if OPT["gst"] == 3: stamp(a, 2, True)
    E2 = range(2)
    PH = [160, 176]; EP = [64, 80]; T = [200, 204]
    def f1(half=None):
        tag = "" if half is None else "ab"[half]
        if half is not None:
            a(f"s_bitcmp1_b32 s{W}, 2")
            a(f"s_cbranch_scc{1-half} L_skip_f1{tag}")
        if OPT["cnt"]:
            a(f"v_mov_b32 v6, {CNTW}")
            a("v_mov_b32 v4, 1")
            a("s_waitcnt vmcnt(0)")
            a("s_mov_b64 exec, 1")
            a("ds_add_rtn_u32 v4, v6, v4")
            a("s_mov_b64 exec, -1")
            a("s_waitcnt lgkmcnt(0)")
            a(f"v_readfirstlane_b32 s{TB}, v4")
            a("s_nop 1")
            a(f"s_cmp_lg_u32 s{TB}, 7")
        else:
            a("s_waitcnt vmcnt(0)")
            a(f"s_cmp_lg_u32 s{W}, 0")
            a("s_barrier")
        a.vm = []
        a(f"s_cbranch_scc1 L_f1done{tag}")
        pub(a, S.F1OFF)
        a.label(f"L_f1done{tag}")
        stamp(a, 3)
        if half is not None:
            gld(tag)
            a.label(f"L_skip_f1{tag}")
    def st_v():
        for g in range(2):
            for q in range(4): a(f"v_cvt_pk_bf16_f32 v{40+4*g+q}, v{ACC[1]+8*g+2*q}, v{ACC[1]+8*g+2*q+1}")
        a(f"s_add_u32 s{TB}, {S.QK0}, 65536")
        a(f"s_cmp_eq_u32 s{TY}, 0")
        if "t2" in a.vm: a.wait_vm("t2")
        a("s_cbranch_scc1 L_p1_q")
        a(f"buffer_store_dwordx4 v[40:43], v{VO}, s[32:35], {S.VOFF} offen{SC}")
        a(f"buffer_store_dwordx4 v[44:47], v{VO}, s[32:35], {S.VOFF} offen offset:512{SC}")
        a("s_branch L_p1_qk")
        a.label("L_p1_q")
        for i in range(0, 16, 2): a(f"v_pk_mul_f32 v[{ACC[2]+i}:{ACC[2]+i+1}], v[{ACC[2]+i}:{ACC[2]+i+1}], s[{L2E}:{L2E+1}] op_sel:[0,1]")
        a(f"v_mov_b32 v{KO}, v3")
        a.label("L_p1_qk")
    def st_qk(e):
        for q in range(4): a(f"v_cvt_pk_bf16_f32 v{32+4*e+q}, v{ACC[2]+8*e+2*q}, v{ACC[2]+8*e+2*q+1}")
        a.vmem(f"buffer_store_dwordx4 {vr(32+4*e,4)}, v{KO}, s[32:35], {S.QK0 if e == 0 else 's%d' % TB} offen{SC}", "st")
    def gld(tag=""):
        a("v_lshlrev_b32 v6, 5, v1")
        a("v_and_b32 v4, 0x3ff, v6")
        a(f"s_cmp_eq_u32 s{TY}, 0")
        a(f"s_cbranch_scc1 L_skip_gl{tag}")
        a("global_load_dwordx4 v[104:107], v4, s[12:13]")
        a("global_load_dwordx4 v[108:111], v4, s[12:13] offset:16")
        a(f"buffer_load_dwordx4 v[96:99], v6, s[16:19], {S.GROW} offen")
        a(f"buffer_load_dwordx4 v[100:103], v6, s[16:19], {S.GROW} offen offset:16")
        a.label(f"L_skip_gl{tag}")
    def ptrs():
        a("s_load_dwordx2 s[16:17], s[0:1], 24")
        a("s_load_dwordx2 s[20:21], s[0:1], 48")
        a("s_load_dwordx2 s[24:25], s[0:1], 64")
        a("s_mov_b32 s18, 0x80000")
        a("s_mov_b32 s22, 0x80000")
        a("s_mov_b32 s26, 0x200000")
    F = OPT["f1g"]
    E2X = {1: [st_v], 2: [lambda: st_qk(0)], 3: [lambda: st_qk(1)]}
    if F < 32: E2X[F] = [gld]
    def step2(g, fill=None):
        if OPT["p2prio"] >= 2 and g % OPT["p2prio"] == 0: a(f"s_setprio {3 - (g // OPT['p2prio']) % 4}")
        if g == 5: st2(3)
        if g == 12 and "wb" in a.vm:
            st2(4)
            a.wait_vm("wb")
            a("s_barrier")
            st2(5)
        if g == F:
            st2(6); f1(); st2(7)
        if g == OPT["fb"]: f1(1)
        a(f"s_waitcnt lgkmcnt({(6 if g < 28 else 2*(31-g) + 4)})")
        if OPT["al"]: a.raw(".p2align 3")
        mfma(a, ACC[0], w0reg(g), XB+4*g, "0" if g == 0 else ACC[0])
        if g + 4 < 32:
            for l in rd(32 + g + 4): a(l)
        if g == 27:
            for e in range(2):
                a(f"ds_read_b64_tr_b16 {vr(248+4*e,2)}, v{PHIA} offset:{e*512}")
                a(f"ds_read_b64_tr_b16 {vr(250+4*e,2)}, v{PHIA} offset:{e*512+256}")
        for fn in E2X.get(g, []): fn()
        if fill:
            for _ in range(fill[1]):
                if fill[0]: a(fill[0].pop(0))
    L = ["v_mov_b32 v6, 0x3f803f80"]
    for q in range(8):
        L.append(f"v_cndmask_b32 v{96+q}, v6, v{40+q}, s[{MASK}:{MASK+1}]")
        L.append(f"v_cndmask_b32 v{104+q}, v{40+q}, v6, s[{MASK}:{MASK+1}]")
    if OPT["p2prio"] == 1: a("s_setprio 2")
    for g in range(32): step2(g, (L, 3) if g >= 5 else None)
    if OPT["p2prio"]: a("s_setprio 0")
    assert not L
    if OPT["p2prio"] or OPT["p1prio"]: a("s_setprio 0")
    st2(8)
    for e in E2:
        for q in range(4): a(f"v_cvt_pk_bf16_f32 v{192+4*e+q}, v{ACC[0]+8*e+2*q}, v{ACC[0]+8*e+2*q+1}")
    a("s_waitcnt lgkmcnt(0)")
    mfma(a, PH[0], 248, 192, "0")
    mfma(a, PH[1], 252, 196, "0")
    if F < 32: ptrs()
    st2(9)
    for k in range(0, 16, 2): a(f"v_mov_b64 {vr(VA[0]+k,2)}, {vr(ONES,2)}")
    a(f"s_and_b32 s{TB}, {S.LDS0}, 0x8000")
    a(f"v_mov_b32 v{IDX}, 0xdddddddd")
    a(f"v_add_u32 v{VK}, s{TB}, v3")
    a(f"s_add_u32 s{TB}, s{TB}, 65536")
    a(f"v_and_b32 v{VV}, 0x1ff, v{VO}")
    a(f"v_add_u32 v{VV}, s{TB}, v{VV}")
    a(f"v_and_b32 v{VL8}, 0x1f0, v3")
    a(f"v_lshlrev_b32 v{VL8}, 3, v{VL8}")
    a(f"v_mov_b32 v{GV}, v7")
    PEND = []
    def point(n):
        if OPT["gst"] == 3 and n in (0, 2, 4, 5, 6, 7): stamp(a, {0: 3, 2: 4, 4: 5, 5: 6, 6: 7, 7: 8}[n], True)
        if n == F - 32:
            if OPT["fb"] >= 0: f1(0)
            else:
                f1()
                gld()
            ptrs()
        if n == OPT["pollat"]:
            a(f"s_cmp_lg_u32 s{W}, 0")
            a("s_cbranch_scc1 L_p2_np")
            a(f"buffer_load_dword v{VP0}, v{VL8}, s[32:35], {S.F1POLL} offen{SC}")
            a.label("L_p2_np")
        if n == OPT["goat"]:
            stamp(a, 4)
            a(f"s_cmp_lg_u32 s{W}, 0")
            a("s_cbranch_scc1 L_p2_go")
            poll(a, "L_pollF1", VL8, VP0, S.F1POLL, own=S.OWN1)
            a.label("L_p2_go")
            a("s_barrier")
            stamp(a, 5)
            PEND.extend([lambda: a.vmem(f"buffer_load_dwordx4 {vr(SCR,4)}, v3, s[32:35], {S.K0OFF} offen{SC}", "q"),
                         lambda: a.vmem(f"buffer_load_dwordx4 {vr(Q[0],4)}, v3, s[32:35], {S.QOFF0} offen{SC}", "q"),
                         lambda: a.vmem(f"buffer_load_dwordx4 {vr(Q[1],4)}, v3, s[32:35], {S.QOFF1} offen{SC}", "q"),
                         lambda: kv_dma(a, 0, 0), lambda: kv_dma(a, 0, 1)])
            a.every = [OPT["sprd"], 0, PEND]
            if OPT["sprd"] == 0 or n >= 6:
                while PEND: PEND.pop(0)()
        if n == 6:
            while PEND: PEND.pop(0)()
            a(f"s_waitcnt vmcnt({len(a.vm)})")
    point(0)
    if OPT["rp"]:
        for e in E2:
            for q in range(4): a(f"v_cvt_pk_bf16_f32 v{T[e]+q}, v{PH[e]+2*q}, v{PH[e]+2*q+1}")
        for e in E2:
            for q in range(4):
                a(f"v_lshlrev_b32 v{PH[e]+2*q}, 16, v{T[e]+q}")
                a(f"v_and_b32 v{PH[e]+2*q+1}, 0xffff0000, v{T[e]+q}")
    for e in E2:
        P = PH[e]; t = T[e]
        a(f"v_max3_f32 v{t}, v{P}, v{P+1}, v{P+2}")
        a(f"v_max3_f32 v{t+1}, -v{P}, -v{P+1}, -v{P+2}")
        a(f"v_max3_f32 v{t}, v{t}, v{P+3}, v{P+4}")
        a(f"v_max3_f32 v{t+1}, v{t+1}, -v{P+3}, -v{P+4}")
        a(f"v_max3_f32 v{t}, v{t}, v{P+5}, v{P+6}")
        a(f"v_max3_f32 v{t+1}, v{t+1}, -v{P+5}, -v{P+6}")
        a(f"v_max_f32 v{t}, v{t}, v{P+7}")
        a(f"v_max_f32_e64 v{t+1}, v{t+1}, -v{P+7}")
    point(1)
    for e in E2: a(f"v_permlane32_swap_b32 v{T[e]}, v{T[e]+1}")
    for e in E2: a(f"v_max_f32 v{T[e]}, v{T[e]}, v{T[e]+1}")
    for e in E2: a(f"v_mul_f32 v{T[e]}, {f32(-LOG2E)}, v{T[e]}")
    for e in E2: a(f"v_mov_b32 v{T[e]+1}, v{T[e]}")
    for e in E2: a(f"v_permlane32_swap_b32 v{T[e]}, v{T[e]+1}")
    for e in E2:
        for q in range(4):
            a(f"v_pk_fma_f32 {vr(EP[e]+2*q,2)}, {vr(PH[e]+2*q,2)}, s[{L2E}:{L2E+1}], {vr(T[e],2)} op_sel_hi:[1,0,0]")
            a(f"v_pk_fma_f32 {vr(EP[e]+8+2*q,2)}, {vr(PH[e]+2*q,2)}, s[{L2E}:{L2E+1}], {vr(T[e],2)} op_sel:[0,0,1] op_sel_hi:[1,0,1] neg_lo:[1,0,0] neg_hi:[1,0,0]")
    point(2)
    for j in range(16): a(f"v_exp_f32 v{EP[0]+j}, v{EP[0]+j}")
    point(3)
    for j in range(16): a(f"v_exp_f32 v{EP[1]+j}, v{EP[1]+j}")
    point(4)
    for e in E2:
        P = PH[e]
        for sg in range(2):
            b = EP[e] + 8*sg
            a(f"v_pk_add_f32 {vr(P+4*sg,2)}, {vr(b,2)}, {vr(b+2,2)}")
            a(f"v_pk_add_f32 {vr(P+4*sg+2,2)}, {vr(b+4,2)}, {vr(b+6,2)}")
    for e in E2:
        for sg in range(2): a(f"v_pk_add_f32 {vr(PH[e]+4*sg,2)}, {vr(PH[e]+4*sg,2)}, {vr(PH[e]+4*sg+2,2)}")
    for e in E2:
        for sg in range(2): a(f"v_add_f32 v{T[e]+sg}, v{PH[e]+4*sg}, v{PH[e]+4*sg+1}")
    for e in E2: a(f"v_permlane32_swap_b32 v{T[e]}, v{T[e]+1}")
    for e in E2: a(f"v_add_f32 v{T[e]}, v{T[e]}, v{T[e]+1}")
    for e in E2: a(f"v_rcp_f32 v{T[e]}, v{T[e]}")
    for e in E2: a(f"v_mov_b32 v{T[e]+1}, v{T[e]}")
    for e in E2: a(f"v_permlane32_swap_b32 v{T[e]}, v{T[e]+1}")
    point(5)
    for e in E2:
        for q in range(4):
            a(f"v_pk_mul_f32 {vr(EP[e]+2*q,2)}, {vr(EP[e]+2*q,2)}, {vr(T[e],2)} op_sel_hi:[1,0]")
            a(f"v_pk_mul_f32 {vr(EP[e]+8+2*q,2)}, {vr(EP[e]+8+2*q,2)}, {vr(T[e],2)} op_sel:[0,1]")
    for e in E2:
        for q in range(8): a(f"v_cvt_pk_bf16_f32 v{PHI+8*e+q}, v{EP[e]+2*q}, v{EP[e]+2*q+1}")
    point(6)
    a(f"s_cmp_eq_u32 s{TY}, 0")
    a("s_cbranch_scc0 L_skip_t0")
    for e in E2:
        mfma(a, PH[e], PHI+8*e, BSEL, "0")
        mfma(a, PH[e], PHI+4+8*e, BSEL+4, PH[e])
    for e in E2:
        for q in range(8): a(f"v_cvt_pk_bf16_f32 v{192+8*e+q}, v{PH[e]+2*q}, v{PH[e]+2*q+1}")
        mfma(a, 64+16*e, 192+8*e, 96+8*e, "0")
        mfma(a, 64+16*e, 196+8*e, 100+8*e, 64+16*e)
    for e in E2:
        for q in range(4): a(f"ds_write_b128 v{REDW}, {vr(64+16*e+4*q,4)} offset:{e*4096+q*1024}")
    a("s_branch L_p1_done")
    a.label("L_skip_t0")
    gate(a)
    a.label("L_p1_done")
    point(7)


def phase2(a):
    def zero_acc():
        for i in range(0, 32, 2): a(f"v_mov_b64 v[{O[0]+i}:{O[0]+i+1}], 0")
    def prime_reads():
        a(f"ds_read_b128 {vr(KB_[0],4)}, v{VK}")
        a(f"ds_read_b128 {vr(KB_[1],4)}, v{VK} offset:1024")
        a(f"s_mov_b64 exec, s[{MASK}:{MASK+1}]")
        a(f"ds_read_b128 {vr(VA[0],4)}, v{VV}")
        a(f"ds_read_b128 {vr(VBB[0],4)}, v{VV} offset:512")
        a("s_mov_b64 exec, -1")
    def negmax():
        a(f"v_permlane32_swap_b32 v{M1}, v{M2}")
        a(f"v_max_f32 v{M1}, v{M1}, v{M2}")
        a(f"v_sub_f32 v{M1}, 0, v{M1}")
        a(f"v_mov_b32 v{M2}, v{M1}")
        a(f"v_permlane32_swap_b32 v{M1}, v{M2}")
    def cfill(q):
        for i in range(0, 16, 2): a(f"v_pk_mov_b32 {vr(C[q]+i,2)}, {vr(M1,2)}, {vr(M1,2)} op_sel:[{q},{q}]")
    a(f"v_mov_b32 v5, {FLAG}")
    a("v_mov_b32 v7, 0")
    a("v_mov_b64 v[196:197], 0")
    a("v_mov_b64 v[198:199], 0")
    a.wait_vm("q")
    mfma(a, S4[0][1], SCR, Q[0], "0")
    mfma(a, S4[1][1], SCR, Q[1], "0")
    a(f"v_mov_b64 v[156:157], v[{KVP0}:{KVP1}]")
    a(f"v_mov_b32 v158, v{REDR}")
    a("s_mov_b64 exec, 1")
    a("ds_write_b32 v5, v7")
    a("s_mov_b64 exec, -1")
    a("s_waitcnt lgkmcnt(0)")
    mfma(a, O[0], 196, 196, "0")
    mfma(a, O[1], 196, 196, "0")
    maxtree(a, M1, S4[0][1], True)
    maxtree(a, M2, S4[1][1], True)
    negmax(); cfill(0); cfill(1)
    a(f"s_cmp_eq_u32 s{TY}, 0")
    a.wait_vm("r0")
    a("s_barrier")
    stamp(a, 6)
    if OPT["gst"] == 3: stamp(a, 9, True)
    prime_reads()
    a("s_cbranch_scc0 L_skip_r0")
    for w in range(4):
        for q in range(2):
            a(f"ds_read_b128 {vr(160+8*w+4*q,4)}, v158 offset:{(w>>1)*32768+(w&1)*8192+q*1024}")
    a("s_waitcnt lgkmcnt(11)")
    a("s_branch L_first")
    a.label("L_skip_r0")
    a("s_mov_b32 exec_lo, 1")
    a("s_mov_b32 exec_hi, 1")
    a(f"buffer_store_dword v52, v6, s[32:35], {S.GOFF} offen{SC}")
    a("s_mov_b64 exec, -1")
    a.label("L_redo")
    a("s_waitcnt lgkmcnt(3)")
    a.label("L_first")
    mfma(a, S4[0][0], KB_[0], Q[0], C[0])
    mfma(a, S4[1][0], KB_[0], Q[1], C[1])
    kv_dma(a, 1, 0); kv_dma(a, 1, 1)
    nvm = [0]; marks = {}
    PL, ZL = SCR, SCR + 16
    def wait_after(nm): a(f"s_waitcnt vmcnt({nvm[0]-marks[nm]})")
    def svm(txt):
        a.vmem(txt, "x"); nvm[0] += 1
    def j_drain(): a("s_waitcnt vmcnt(0)")
    def j_kp():
        for j in range(0, 8, 2): a(f"v_pk_add_f32 {vr(160+j,2)}, {vr(160+j,2)}, {vr(168+j,2)}")
        for j in range(0, 8, 2): a(f"v_pk_add_f32 {vr(176+j,2)}, {vr(176+j,2)}, {vr(184+j,2)}")
        for j in range(0, 8, 2): a(f"v_pk_add_f32 {vr(160+j,2)}, {vr(160+j,2)}, {vr(176+j,2)}")
        a(f"buffer_store_dwordx4 v[160:163], v156, s[32:35], {S.KVPOFF} offen{SC}")
        a(f"buffer_store_dwordx4 v[164:167], v157, s[32:35], {S.KVPOFF} offen{SC}")
    def j_p2():
        a(f"v_and_b32 v6, 0x7ff, v{VL8}")
        a(f"buffer_load_dword v{VP0}, v6, s[32:35], {S.F2POLL} offen{SC}")
    def j_ld():
        wait_after("p2")
        check_flags(a, "L_pollF2", 0x7ff, VP0, S.F2POLL)
        a("v_lshrrev_b32 v5, 4, v1")
        a("v_lshlrev_b32 v5, 14, v5")
        a("v_and_b32 v6, 0xf0, v3")
        a("v_add_u32 v6, v6, v5")
        a(f"s_lshr_b32 s{TB}, s2, 5")
        a(f"s_mul_i32 s{TB}, s{TB}, 240")
        a(f"s_sub_u32 s{TB}, {S.LDK}, s{TB}")
        for p in range(4):
            a(f"s_add_u32 s{TC}, {S.LDK}, {p*4096}")
            a(f"buffer_load_dwordx4 {vr(PL+4*p,4)}, v6, s[32:35], s{TC} offen{SC}")
        for p in range(4):
            a(f"s_add_u32 s{TC}, s{TB}, {p*4096}")
            a(f"buffer_load_dwordx4 {vr(ZL+4*p,4)}, v5, s[32:35], s{TC} offen offset:2048{SC}")
    def j_red():
        wait_after("ld")
        B2 = (PL, ZL)
        for base in B2:
            for j in (0, 2):
                a(f"v_pk_add_f32 {vr(base+j,2)}, {vr(base+j,2)}, {vr(base+4+j,2)}")
                a(f"v_pk_add_f32 {vr(base+8+j,2)}, {vr(base+8+j,2)}, {vr(base+12+j,2)}")
        for base in B2:
            for j in (0, 2): a(f"v_pk_add_f32 {vr(base+j,2)}, {vr(base+j,2)}, {vr(base+8+j,2)}")
        for sw in ("32", "16"):
            for base in B2:
                for j in (0, 2): a(f"v_mov_b64 {vr(base+4+j,2)}, {vr(base+j,2)}")
            for base in B2:
                for j in range(4): a(f"v_permlane{sw}_swap_b32 v{base+j}, v{base+4+j}")
            for base in B2:
                for j in (0, 2): a(f"v_pk_add_f32 {vr(base+j,2)}, {vr(base+j,2)}, {vr(base+4+j,2)}")
        a("v_cmp_eq_u32 vcc, 16, v1")
        for base in B2:
            a(f"v_cvt_pk_bf16_f32 v{base+4}, v{base}, v{base+1}")
            a(f"v_cvt_pk_bf16_f32 v{base+5}, v{base+2}, v{base+3}")
        a(f"v_cndmask_b32 v{PL+4}, v{PL+4}, v{ZL+4}, vcc")
        a(f"v_cndmask_b32 v{PL+5}, v{PL+5}, v{ZL+5}, vcc")
        a("s_mov_b64 exec, 0x1ffff")
        a(f"buffer_store_dwordx2 {vr(PL+4,2)}, v3, s[32:35], {S.KVFW} offen{SC}")
        a("s_mov_b64 exec, -1")
    def j_f5():
        a("s_waitcnt vmcnt(0)")
        pub(a, S.F5OFF)
    def j_p5():
        a(f"v_and_b32 v6, 0x7ff, v{VL8}")
        a(f"buffer_load_dword v{VP1}, v6, s[32:35], {S.F5POLL} offen{SC}")
    def j_kv():
        wait_after("p5")
        check_flags(a, "L_pollF5", 0x7ff, VP1, S.F5POLL)
        a(f"v_min_u32 v5, 64, v{G4}")
        a("v_lshrrev_b32 v6, 5, v1")
        a("v_mul_u32_u24 v6, 272, v6")
        a("v_lshl_add_u32 v5, v5, 2, v6")
        for e in range(2):
            for sg in range(2):
                a(f"buffer_load_dwordx4 {vr(SCR+8*e+4*sg,4)}, v5, s[32:35], {S.KVFR} offen offset:{e*2048+sg*544}{SC}")
    def j_om():
        wait_after("kv")
        for sg in range(2):
            for e in range(2): mfma(a, SCR+16+16*e, SCR+8*e+4*sg, PHI+8*e+4*sg, "0" if sg == 0 else SCR+16+16*e)
    def j_oa(e):
        def f():
            D = SCR+16+16*e
            a(f"v_add_f32 v4, {f32(1e-6)}, v{D+8}")
            a("v_rcp_f32 v4, v4")
            for i in range(0, 8, 2): a(f"v_pk_mul_f32 {vr(D+i,2)}, {vr(D+i,2)}, v[4:5] op_sel_hi:[1,0]")
            for q in range(4): a(f"v_cvt_pk_bf16_f32 v{SCR+4*e+q}, v{D+2*q}, v{D+2*q+1}")
            a(f"buffer_store_dwordx4 {vr(SCR+4*e,4)}, v3, s[32:35], {S.OAOFF} offen offset:{e*1024}{SC}")
        return f
    def j_p4():
        a(f"v_and_b32 v6, 0x7ff, v{VL8}")
        svm(f"buffer_load_dword v{VP0}, v6, s[32:35], {S.F4POLL} offen{SC}")
    def j_c4():
        wait_after("p4")
        check_flags(a, "L_pollF4", 0x7ff, VP0, S.F4POLL)
        svm(f"buffer_load_dword v{GV}, v{G4}, s[32:35], {S.GATE3} offen{SC}")
        svm(f"buffer_load_dword v{GV+1}, v{G4}, s[32:35], {S.GATET} offen{SC}")
    def j_la(i):
        def f():
            for k in (2*i, 2*i+1):
                svm(f"buffer_load_dwordx4 {vr(SCR+4*k,4)}, v3, s[32:35], {S.OF3 if k < 4 else S.OF3B} offen offset:{(k%4)*1024}{SC}")
        return f
    def j_tb(k):
        return lambda: svm(f"global_load_dwordx4 {vr(vtab()[k][0],4)}, v{GV}, s[{VT}:{VT+1}] offset:{(k-4)*1024}")
    JB = dict(kp=(R_T0, j_kp), tb6=(R_ANY, j_tb(6)), tb7=(R_ANY, j_tb(7)), d0=(R_T0, j_drain), d1=(R_T1, j_drain), f2=(R_T0W0, lambda: pub(a, S.F2OFF)), f4=(R_T1W0, lambda: pub(a, S.F4OFF)),
              p2=(R_RED, j_p2), ld=(R_RED, j_ld), red=(R_RED, j_red), f5=(R_RED, j_f5),
              p5=(R_T1, j_p5), kv=(R_T1, j_kv), om=(R_T1, j_om), oa0=(R_T1, j_oa(0)), oa1=(R_T1, j_oa(1)),
              p4=(None, j_p4), c4=(None, j_c4), la0=(None, j_la(0)), la1=(None, j_la(1)), la2=(None, j_la(2)), la3=(None, j_la(3)))
    OUTL = []
    def hook(name):
        role, body = JB[name]
        if name not in OPT["y_skip"]:
            if role in OPT["outl"]:
                a(f"s_bitcmp1_b32 {S.ROLE}, {role}")
                a(f"s_cbranch_scc1 L_job_{name}")
                a.label(f"L_ret_{name}")
                keep = a.lines; a.lines = []
                a.label(f"L_job_{name}")
                body()
                a(f"s_branch L_ret_{name}")
                OUTL.extend(a.lines); a.lines = keep
            else:
                if role is not None:
                    a(f"s_bitcmp1_b32 {S.ROLE}, {role}")
                    a(f"s_cbranch_scc0 L_skip_{name}")
                body()
                if role is not None: a.label(f"L_skip_{name}")
        marks[name] = nvm[0]
    SPINS.append(lambda a: a.lines.extend(OUTL))
    JOBS = OPT["sched"]
    p0, p1, p2 = OPT["pos"]
    BST = OPT["bst"]
    SPR = []
    def capture(name):
        keep = a.lines; a.lines = []
        JB[name][1]()
        L, a.lines = a.lines, keep
        marks[name] = nvm[0]
        G = []; glue = False
        for l in L:
            t = l.strip()
            if glue and G: G[-1].append(l)
            else: G.append([l])
            glue = t.startswith(("s_waitcnt", "v_cmp", "s_nop", "s_cbranch")) or (t.startswith("s_mov_b64 exec") and not t.endswith("-1")) or (G[-1][0].strip().startswith("s_mov_b64 exec") and not t.endswith("-1"))
        return G
    def step(T, qi, role=None):
        it, t = T >> 2, T & 3
        KVS = OPT["kvs"] if it else OPT["wos"]
        WOS = OPT["wos"]
        st = 2*t + qi
        s = S4[qi][T & 1]
        def extras(k):
            if (qi, k) == OPT["kat"] and T + 2 < 32: a(f"ds_read_b128 {vr(KB_[T&1],4)}, v{VK} offset:{(T+2)*1024}")
            if (qi, k) == OPT["vat"] and T + 1 < 32:
                a(f"s_mov_b64 exec, s[{MASK}:{MASK+1}]")
                a(f"ds_read_b128 {vr(VA[(T+1)&1],4)}, v{VV} offset:{(T+1)*1024}")
                a(f"ds_read_b128 {vr(VBB[(T+1)&1],4)}, v{VV} offset:{(T+1)*1024+512}")
                a("s_mov_b64 exec, -1")
            if k == OPT["dmk"]:
                if st in KVS and it + 2 < 8:
                    kv_dma(a, it + 2, KVS.index(st)); nvm[0] += 1
                if st in WOS and it >= 1:
                    wo_dma(a, it - 1, WOS.index(st)); nvm[0] += 1
            if k == OPT["jk"]:
                for nm in JOBS.get((it, st), "").split():
                    if (it, st) in DUP and JB[nm][0] == DUP[(it, st)]:
                        if role is not None:
                            assert not SPR, nm
                            SPR.extend(capture(nm))
                            a.lines.extend(SPR.pop(0))
                            SPRN[0] = nm
                    else: hook(nm)
        if OPT["lprio"] and qi == OPT["pq"]: a(f"s_setprio {3 - ((T + OPT['poff']) % 4)}")
        for j in range(16):
            a(f"v_exp_f32 v{s+j}, v{s+j}")
            if j == p0:
                tp = T if qi == 1 else T - 1
                if tp >= 0: smfmac(a, O[1-qi], VBB[tp & 1], S4[1-qi][tp & 1]+8, IDX)
                if st == BST:
                    if it in (OPT["f2it"], OPT["f4it"]):
                        a("s_waitcnt vmcnt(0)"); a.vm = []
                    elif it < 7 and f"r{it+1}" in a.vm: a.wait_vm(f"r{it+1}")
                    a("s_barrier")
                    if it == OPT["f2it"]: hook("f2")
                    if it == OPT["f4it"]: hook("f4")
                extras(0)
            elif j == p1:
                if qi == 0: a("s_waitcnt lgkmcnt(0)")
                if T + 1 < 32: mfma(a, S4[qi][(T+1) & 1], KB_[(T+1) & 1], Q[qi], C[qi])
                extras(1)
            elif j == p2:
                smfmac(a, O[qi], VA[T & 1], s, IDX)
                extras(2)
            elif SPR:
                ism = SPR[0][-1].strip().startswith(("v_mfma", "buffer_"))
                if not ism or j in OPT["mslots"]:
                    a.lines.extend(SPR.pop(0))
                    marks[SPRN[0]] = nvm[0]
    SPRN = [None]
    DUP = {}
    for (lo, hi), role in OPT["dup"].items():
        for u in range(lo, hi): DUP[(u >> 3, u & 7)] = role
    u = 0
    while u < 64:
        rng = [k for k in OPT["dup"] if k[0] == u]
        if not rng:
            step(u >> 1, u & 1); u += 1
            continue
        lo, hi = rng[0]; role = OPT["dup"][rng[0]]
        if lo == 0: a.nop(4)
        a(f"s_bitcmp1_b32 {S.ROLE}, {role}")
        a(f"s_cbranch_scc1 L_dup{lo}")
        vm0, n0 = list(a.vm), nvm[0]
        for k in range(lo, hi): step(k >> 1, k & 1)
        a.label(f"L_dupret{lo}")
        vm1, n1 = list(a.vm), nvm[0]
        keep = a.lines; a.lines = []
        a.vm, nvm[0] = vm0, n0
        a.label(f"L_dup{lo}")
        for k in range(lo, hi): step(k >> 1, k & 1, role)
        assert not SPR and a.vm == vm1 and nvm[0] == n1
        a(f"s_branch L_dupret{lo}")
        OUTL.extend(a.lines); a.lines = keep
        u = hi
    if OPT["lprio"]: a("s_setprio 0")
    a(f"ds_write_b128 v{XW}, {vr(O[0],4)}")
    a(f"ds_write_b128 v{XW}, {vr(O[0]+4,4)} offset:1024")
    smfmac(a, O[1], VBB[1], S4[1][1]+8, IDX)
    a(f"ds_write_b32 v{XW}, v{O[0]+8} offset:2048")
    stamp(a, 7); st4(a, 2)
    SX = 64
    a(f"v_add_f32_e64 v{M1}, |v{O[0]}|, |v{O[0]+1}|")
    a(f"v_add_f32_e64 v{M2}, |v{O[0]+2}|, |v{O[0]+3}|")
    for i in range(4, 9): a(f"v_add_f32_e64 v{M1+(i&1)}, v{M1+(i&1)}, |v{O[0]+i}|")
    a(f"v_mov_b32 v6, {FLAG}")
    a("v_mov_b32 v7, 1")
    a(f"v_mov_b32 v5, {f32(OPT['thr'])}")
    for i in range(0, 9): a(f"v_add_f32_e64 v{M2-(i&1)}, v{M2-(i&1)}, |v{O[1]+i}|")
    a(f"v_add_f32 v{M1}, v{M1}, v{M2}")
    a(f"v_cmp_nlt_f32 vcc, v{M1}, v5")
    a(f"s_waitcnt vmcnt({nvm[0]-marks['c4']})")
    a(f"v_sub_f32 v{GV+1}, 1.0, v{GV+1}")
    a("s_cbranch_vccz L_noflag")
    a("ds_write_b32 v6, v7")
    a.label("L_noflag")
    a("s_waitcnt lgkmcnt(0)")
    a("s_barrier")
    a(f"ds_read_b32 v{M2}, v6")
    a(f"ds_read_b32 v{SX+8}, v{XR} offset:2048")
    a(f"ds_read_b128 {vr(SX,4)}, v{XR}")
    a(f"ds_read_b128 {vr(SX+4,4)}, v{XR} offset:1024")
    a(f"v_cvt_pk_bf16_f32 v{GV+1}, v{GV+1}, v{GV+1}")
    a(f"v_lshlrev_b32 v{GV+1}, 16, v{GV+1}")
    a("s_waitcnt lgkmcnt(2)")
    a(f"v_readfirstlane_b32 s{TB}, v{M2}")
    a(f"v_add_f32 v{O[1]+8}, v{O[1]+8}, v{SX+8}")
    a(f"v_rcp_f32 v{M1}, v{O[1]+8}")
    a(f"s_cmp_lg_u32 s{TB}, 0")
    a("s_cbranch_scc1 L_maybe_fb")
    a.label("L_fin")
    a(f"v_mul_f32 v{M1}, v{M1}, v{GV+1}")
    a("s_waitcnt lgkmcnt(0)")
    for i in range(0, 8, 2): a(f"v_pk_add_f32 {vr(O[1]+i,2)}, {vr(O[1]+i,2)}, {vr(SX+i,2)}")
    for i in range(0, 8, 2): a(f"v_pk_mul_f32 {vr(O[1]+i,2)}, {vr(O[1]+i,2)}, {vr(M1,2)} op_sel_hi:[1,0]")
    for q in range(4): a(f"v_cvt_pk_bf16_f32 v{20+q}, v{O[1]+2*q}, v{O[1]+2*q+1}")
    for q in range(4): a(f"v_min_u32 v{20+q}, -2, v{20+q}")
    a(f"buffer_store_dwordx4 v[20:23], v3, s[32:35], {S.OFB} offen{SC}")
    wo_dma(a, 7, 0)
    wo_dma(a, 7, 1)

    def rare(a):
        a.label("L_maybe_fb")
        a(f"s_cmp_lg_u32 s{ATT}, 0")
        a("s_cbranch_scc1 L_fin")
        a(f"s_mov_b32 s{ATT}, 1")
        a(f"s_mov_b32 {S.ROLE}, 0")
        a("s_waitcnt vmcnt(0) lgkmcnt(0)")
        a("s_barrier")
        for rr in range(8):
            kv_dma(a, rr, 0); kv_dma(a, rr, 1)
        a(f"v_mov_b32 v{M1}, 0xff800000")
        a(f"v_mov_b32 v{M2}, 0xff800000")
        a("v_mov_b32 v4, v3")
        a(f"s_mov_b32 s{CNT}, 64")
        a("s_waitcnt vmcnt(0)")
        a("s_barrier")
        a.label("L_fbloop")
        a(f"ds_read_b128 {vr(KB_[0],4)}, v4")
        a("v_add_u32 v4, 1024, v4")
        a("s_waitcnt lgkmcnt(0)")
        mfma(a, S4[0][0], KB_[0], Q[0], "0")
        mfma(a, S4[1][0], KB_[0], Q[1], "0")
        a.nop(12)
        maxtree(a, M1, S4[0][0], False)
        maxtree(a, M2, S4[1][0], False)
        a(f"s_sub_u32 s{CNT}, s{CNT}, 1")
        a(f"s_cmp_lg_u32 s{CNT}, 0")
        a("s_cbranch_scc1 L_fbloop")
        zero_acc()
        prime_reads()
        negmax(); cfill(0); cfill(1)
        a("s_nop 1")
        a("s_branch L_redo")
    return rare

def phase3(a):
    ACC, OFB_, PEND = 32, 224, TC
    WA = list(range(112, 136, 4)) + list(range(184, 224, 4))
    WB = list(range(64, 128, 4))
    def trread(br, i):
        for ct in range(2):
            f = (WA, WB)[br][2*i+ct]
            a(f"ds_read_b64_tr_b16 {vr(f,2)}, v{TR0+ct} offset:{br*16384+i*2048}")
            a(f"ds_read_b64_tr_b16 {vr(f+2,2)}, v{TR0+ct} offset:{br*16384+i*2048+1024}")
    def oload(k):
        return f"buffer_load_dwordx4 {vr(OFB_+4*k,4)}, v3, s[32:35], {S.OF3 if k < 4 else S.OF3B} offen offset:{(k%4)*1024}{SC}"
    stamp(a, 8); st4(a, 3)
    for i in range(2): trread(0, i)
    a(f"s_add_u32 {S.OF3}, {S.OF3}, 32768")
    a(f"s_add_u32 {S.OF3B}, {S.OF3B}, 32768")
    a(f"s_mov_b32 s{CNT}, {POLL_LIMIT}")
    a(f"s_mov_b32 s{PEND}, 0")
    for p in range(1, 4): a(f"v_xor_b32 v{12+p}, {p*32768}, v{RR}")
    a("s_waitcnt vmcnt(3)")
    OP = OPT["opos"]
    if OP < 8: a("s_barrier")
    for i in range(8):
        if i == OP:
            for k in range(8): a(oload(k))
        if i + 2 < 8: trread(0, i + 2)
        a(f"s_waitcnt lgkmcnt({4*min(2, 7-i)})")
        for ct in range(2): mfma(a, ACC+16*ct, WA[2*i+ct], SCR+4*i, "0" if i == 0 else ACC+16*ct)
        if OP == -1: a(oload(i))
    if OP == 8:
        for k in range(8): a(oload(k))
    NPRE = OPT["npre"]
    NB0 = OPT["nb0"]
    for i in range(NB0): trread(1, i)
    st4(a, 4)
    a("s_waitcnt vmcnt(0)")
    st4(a, 5)
    a("s_barrier")
    todo = list(range(NB0, 8)); mul = list(range(0, 32, 2))
    for k in range(NPRE):
        a(oload(k))
        for _ in range(2):
            if todo:
                a("s_waitcnt lgkmcnt(8)")
                trread(1, todo.pop(0))
        for _ in range(4):
            if mul:
                j = mul.pop(0)
                a(f"v_pk_mul_f32 {vr(ACC+j,2)}, {vr(ACC+j,2)}, {vr(GV,2)} op_sel_hi:[1,0]")
    assert not todo and not mul
    st4(a, 6)
    def test(a, o):
        a(f"v_max3_u32 v4, v{o}, v{o+1}, v{o+2}")
        a(f"v_max_u32 v4, v4, v{o+3}")
        a("v_cmp_eq_u32 vcc, -1, v4")
        a("s_nop 1")
    if OPT["det"]:
        for i in range(8):
            o = OFB_ + 4*i
            a(f"s_waitcnt vmcnt({min(7-i, NPRE-1)})" + (" lgkmcnt(0)" if i == 0 else ""))
            if i == 0: st4(a, 7)
            a.label(f"L_ot{i}")
            test(a, o)
            a(f"s_cbranch_vccnz L_obad{i}")
            a.label(f"L_og{i}")
            for ct in range(2): mfma(a, ACC+16*ct, WB[2*i+ct], o, ACC+16*ct)
            if i + NPRE < 8: a(oload(i + NPRE))
        def retry(a):
            for i in range(8):
                a.label(f"L_obad{i}")
                a(f"s_sub_u32 s{CNT}, s{CNT}, 1")
                a(f"s_cmp_lt_i32 s{CNT}, 1")
                a(f"s_cbranch_scc1 L_og{i}")
                a("s_waitcnt vmcnt(0)")
                a(f"s_sleep {OPT['osleep']}")
                a(oload(i))
                for k in range(i + 1, min(8, i + NPRE)):
                    test(a, OFB_ + 4*k)
                    a(f"s_cbranch_vccz L_os{i}_{k}")
                    a(oload(k))
                    a.label(f"L_os{i}_{k}")
                a("s_waitcnt vmcnt(0)")
                a(f"s_branch L_ot{i}")
    else:
        for i in range(8):
            o = OFB_ + 4*i
            a(f"s_waitcnt vmcnt({7-i})")
            test(a, o)
            a(f"s_cbranch_vccnz L_obad{i}")
            for ct in range(2): mfma(a, ACC+16*ct, WB[2*i+ct], o, ACC+16*ct)
            a.label(f"L_onext{i}")
        a(f"s_cmp_lg_u32 s{PEND}, 0")
        a("s_cbranch_scc1 L_oretry")
        a.label("L_odone")
        def retry(a):
            for i in range(8):
                a.label(f"L_obad{i}")
                a(f"s_bitset1_b32 s{PEND}, {i}")
                a(f"s_branch L_onext{i}")
            a.label("L_oretry")
            a(f"s_sub_u32 s{CNT}, s{CNT}, 1")
            a(f"s_cmp_lt_i32 s{CNT}, 1")
            a("s_cbranch_scc1 L_oexit")
            a(f"s_sleep {OPT['osleep']}")
            for i in range(8):
                a(f"s_bitcmp1_b32 s{PEND}, {i}")
                a(f"s_cbranch_scc0 L_ol{i}")
                a(oload(i))
                a.label(f"L_ol{i}")
            a("s_waitcnt vmcnt(0)")
            for i in range(8):
                o = OFB_ + 4*i
                a(f"s_bitcmp1_b32 s{PEND}, {i}")
                a(f"s_cbranch_scc0 L_oc{i}")
                test(a, o)
                a(f"s_cbranch_vccnz L_oc{i}")
                for ct in range(2): mfma(a, ACC+16*ct, WB[2*i+ct], o, ACC+16*ct)
                a(f"s_bitset0_b32 s{PEND}, {i}")
                a.label(f"L_oc{i}")
            a(f"s_cmp_lg_u32 s{PEND}, 0")
            a("s_cbranch_scc1 L_oretry")
            a.label("L_oexit")
            a.nop(10)
            a("s_branch L_odone")
    SPINS.append(retry)
    stamp(a, 9); st4(a, 8)
    for p in range(1, 4):
        for q in range(2): a(f"ds_write_b128 v{12+p}, {vr(ACC+8*p+4*q,4)} offset:{(p-1)*2048+q*1024}")
    a("s_waitcnt lgkmcnt(0)")
    a("s_barrier")
    for src in range(3):
        for q in range(2): a(f"ds_read_b128 {vr(64+8*src+4*q,4)}, v{RR} offset:{src*2048+q*1024}")
    a("s_waitcnt lgkmcnt(4)")
    for j in range(0, 8, 2): a(f"v_pk_add_f32 {vr(64+j,2)}, {vr(64+j,2)}, {vr(ACC+j,2)}")
    a("s_waitcnt lgkmcnt(0)")
    for j in range(0, 8, 2): a(f"v_pk_add_f32 {vr(72+j,2)}, {vr(72+j,2)}, {vr(80+j,2)}")
    for j in range(0, 8, 2): a(f"v_pk_add_f32 {vr(64+j,2)}, {vr(64+j,2)}, {vr(72+j,2)}")
    for q in range(4): a(f"v_cvt_pk_bf16_f32 v{20+q}, v{64+2*q}, v{64+2*q+1}")
    st4(a, 9)
    a("v_permlane32_swap_b32 v20, v22")
    a("v_permlane32_swap_b32 v21, v23")
    a(f"buffer_store_dwordx4 v[20:23], v{OUTA}, s[24:27], {S.OUTOFF} offen{OPT['outsc']}")
    a(f"s_or_b32 s{TA}, s2, s{W}")
    a(f"s_cmp_lg_u32 s{TA}, 0")
    a("s_cbranch_scc1 L_noE")
    a(f"v_mov_b32 v24, s{TAG}")
    a("s_mov_b64 exec, 1")
    a(f"buffer_store_dword v24, v3, s[32:35], 0 offen offset:{WS_E}")
    a("s_mov_b64 exec, -1")
    a.label("L_noE")
    flush_stamps(a)

def tables():
    t = ".p2align 8\nL_vtab:\n"
    for w in range(8):
        for r, fn in vtab():
            for l in range(0, 64, 2):
                t += ".long " + ",".join(str(x) for x in fn(w, l) + fn(w, l+1)) + "\n"
    t += ".set b, 0\n.rept 256\n.set w, 0\n.rept 8\n"
    for n, e in stab(): t += f".long {e}\n"
    t += ".set w, w+1\n.endr\n.set b, b+1\n.endr\n"
    return t

def main(out):
    hdr = open("cdna_kernels/" + NAME + ".s.ref").read().split("; Override launch")[0]
    txt = hdr + "; @launch grid=(256,1,1) block=(512,1,1) lds=163840\n"
    txt += """; One persistent launch, 256 workgroups of 8 waves (one per CU), generated by a script.
"""
    txt += '.amdgcn_target "amdgcn-amd-amdhsa--gfx950"\n.text\n'
    nm = NAME + "_kernel"
    a = Asm()
    a.label(nm)
    phase1(a)
    rare = phase2(a)
    phase3(a)
    a.label("L_end")
    a("s_endpgm")
    for sp in SPINS: sp(a)
    rare(a)
    a.label("L_code_end")
    a("s_endpgm")
    a.lines, added = autonop(a.lines)
    errs = check(a.lines, nm)
    bare, skipping = [], None
    for l in a.lines:
        if skipping:
            if l.startswith(skipping + ":"): skipping = None
            continue
        bare.append(l)
        if "s_cbranch_scc0 L_skip_" in l or "s_cbranch_scc1 L_skip_" in l: skipping = l.split()[-1]
    errs += check(bare, nm + "(optional blocks skipped)")
    txt += f".globl {nm}\n.p2align 8\n.type {nm},@function\n" + a.text()
    txt += f""".section .rodata,"a"
.p2align 6
.amdhsa_kernel {nm}
  .amdhsa_next_free_vgpr 256
  .amdhsa_next_free_sgpr 102
  .amdhsa_accum_offset 256
  .amdhsa_group_segment_fixed_size 0
  .amdhsa_kernarg_size 88
  .amdhsa_user_sgpr_count 2
  .amdhsa_user_sgpr_kernarg_segment_ptr 1
  .amdhsa_system_sgpr_workgroup_id_x 1
.end_amdhsa_kernel
""" + tables()
    open(out, "w").write(txt)
    for e in errs: print("HAZARD", e)
    print("written", out, len(txt), "bytes;", len(errs), "hazards;", added, "auto nops")

if __name__ == "__main__":
    if "--stamps" in sys.argv:
        STAMPS = True; sys.argv.remove("--stamps")
    for x in list(sys.argv):
        if x.startswith("--o:"):
            k, v = x[4:].split("=", 1)
            assert k in OPT, k
            OPT[k] = eval(v); sys.argv.remove(x)
    main(sys.argv[1] if len(sys.argv) > 1 else "cdna_kernels/" + NAME + ".s")
```

```python
import sys, struct
from asmlib import *

NAME = "gated_mix__linear_kernel_hedgehog__mha_block__prompt"
WS_E, WS_F1, WS_F2, WS_GATE, WS_F4, WS_F5, WS_KVF = 0x0, 0x10000, 0x20000, 0x40000, 0x50000, 0x60000, 0x70000
WS_QB, WS_KB, WS_VB, WS_KVP, WS_OF = 0x200000, 0x400000, 0x600000, 0x800000, 0xA00000
WS_USED = 0x2100000
def f32(x): return "0x%08x" % struct.unpack("<I", struct.pack("<f", x))[0]
LOG2E = 1.4426950408889634
STAMPS = False
OPT = dict(auxpos=0, l2t=0, l2m='', dup={(32,42):3}, mslots=(3,8,13), lg0=0, cmask=15, nobar=(6,), npre=5, nb0=2, det=1, p1prio=0, opos=9, outl=(1,2,4), bst=4, kat=(0,2), vat=(1,2), dmk=0, jk=1, lprio=1, pq=1, poff=2, p2prio=0, cnt=0, ciat=19, fb=-1, sprd=8, al=0, t0pos=0, bar0=1, gst=0, la=2, pre2=0, t0at=-2, f1g=26, zat=30, last='wb', t2at=26, tchat=7, phiat=24, ds0=(16,17,18,19,20,21,22,23), ds1={(2,0):0,(2,1):1,(3,0):2,(3,1):3,(4,0):4,(4,1):5,(5,0):6,(5,1):8,(6,0):10,(6,1):12,(7,0):14,(7,1):15}, map2d=1, pp=0, rot=4, rp=1, pos=(1, 6, 11), thr=2.0**100, cyc=0, amp=None, outsc="", fill=3, hga=4, osleep=4, cpf=1,
           rsplit=(0, 3, 5, 7), f1at=1, pollat=2, goat=5, y_skip=(),
           f2it=0, f4it=5, kvs=(0, 1), wos=(6, 7),
           sched={(0, 0): "kp", (0, 5): "tb6 tb7", (1, 2): "p2", (1, 6): "ld", (2, 2): "red", (2, 5): "f5", (3, 4): "p5", (4, 0): "kv", (4, 4): "om", (4, 7): "oa0", (5, 0): "oa1",
                  (6, 4): "p4", (7, 0): "c4 la0", (7, 1): "la1", (7, 2): "la2", (7, 3): "la3"})
SC = " sc1"
POLL_LIMIT = 200000
NST = 11
SLOT = 32768
XCH, FLAG, PHIL, CNTW = 131072, 155648, 8192, 12288
R_T0, R_T0W0, R_RED, R_T1, R_T1W0, R_ANY = range(6)

W = 3
TAG, J, XOFF, WOFF, MX, MW, TY, ATT = range(36, 44)
L2E, MASK, VT = 10, 14, 46
TA, TB, TC, CNT = 4, 5, 6, 7
CP = 44
def stab():
    hA = OPT["hga"]
    d = dict(hg="(b&7)", j="(b>>3)", ty="((b>>3)&1)", rb16="(b>>4)", rb8="(b>>5)", qp="(w&3)", kh="(w>>2)", kq="(w>>1)", rt3="(w&1)")
    d["hg1"] = d["hg"]
    if OPT["map2d"]:
        d["hg1"] = "(((b&3)<<1)+((b>>4)&1))"
        d["rb16"] = "((((b>>2)&1)<<3)+(b>>5))"
    d["h"] = "(({hg}<<2)+({j}&3))".format(**d)
    d["t"] = "(({rb16}<<2)+{qp})".format(**d)
    d["hb0"] = "(({hg1}<<2)+({kh}<<1))".format(**d)
    d["ha0"] = "({hb0}^%d)".format(**d) % (hA*4)
    d["hr"] = "(((({h}+w)-1)&31)^%d)".format(**d) % (hA*4)
    d["T"] = "((({rb8}<<3)+({qp}<<1))+{kh})".format(**d)
    d["T3"] = "(((({rb8}<<2)+({hg}>>1))<<1)+{rt3})".format(**d)
    d["cb"] = "(((b&1)<<2)+({j}&3))".format(**d)
    d["lds0"] = "(({kh}<<15)+({qp}<<10))".format(**d)
    d["w0"] = "(((w-1)>>8)&1)"
    d["w12"] = "((((w-3)>>8)&1)-{w0})".format(**d)
    E = [
     ("F1OFF", "(%d+(((({hg1}<<5)+({rb16}<<1))+{ty})<<7))" % WS_F1),
     ("F1POLL", "(%d+({hg}<<12))" % WS_F1),
     ("F2OFF", "(%d+((({hg1}<<4)+{rb16})<<7))" % WS_F2),
     ("F2POLL", "(%d+({hg}<<11))" % WS_F2),
     ("VOFF", "((%d+({hb0}<<16))+({t}<<10))" % WS_VB),
     ("QK0", "(((%d+({ty}*%d))+({hb0}<<16))+({t}<<10))" % (WS_QB, WS_KB-WS_QB)),
     ("LDS0", "{lds0}"),
     ("KOFF", "((%d+({h}<<16))+{lds0})" % WS_KB),
     ("K0OFF", "(%d+({h}<<16))" % WS_KB),
     ("QOFF1", "((%d+({h}<<16))+({T}<<10))" % WS_QB),
     ("QOFF0", "((%d+({h}<<16))+(({T}^1)<<10))" % WS_QB),
     ("ROLE", "(((1-{ty})*((%d+({w0}*%d))+({w12}*%d)))+({ty}*(%d+({w0}*%d))))" % ((1 << R_T0) | (1 << R_ANY), 1 << R_T0W0, 1 << R_RED, (1 << R_T1) | (1 << R_ANY), 1 << R_T1W0)),
     ("KVPOFF", "(%d+(((({ha0}+({qp}>>1))<<4)+{rb16})<<12))" % WS_KVP),
     ("OFB", "((%d+({T}<<16))+({h}<<10))" % (WS_OF+32768)),
     ("OF3", "((%d+({T3}<<16))+({kq}<<13))" % WS_OF),
     ("OF3B", "((%d+({T3}<<16))+({kq}<<13))" % (WS_OF+4096)),
     ("OUTOFF", "((({T3}<<15)+({cb}<<7))+({kq}<<5))"),
     ("WOOFF", "(((({kh}<<4)+{qp})<<13)+({cb}<<7))"),
     ("F4POLL", "(%d+({rb8}<<11))" % WS_F4),
     ("F4OFF", "(%d+((({rb16}<<3)+{hg1})<<7))" % WS_F4),
     ("OWN1", "(4294967295-((((({hg}^{hg1})-1)>>8)&1)<<(({rb16}<<1)+{ty})))"),
     ("GATE3", "(%d+({T3}<<7))" % WS_GATE),
     ("GATET", "(%d+({T}<<7))" % WS_GATE),
     ("GROW", "(((({rb16}<<7)+({hg1}<<4))+(w<<1))<<10)"),
     ("GOFF", "(%d+(((({rb16}<<7)+({hg1}<<4))+(w<<1))<<2))" % WS_GATE),
     ("PHIOFF", "((({hg1}^%d)<<11)+({rt3}<<10))" % hA),
     ("LDK", "((%d+({hr}<<16))+({rb8}<<8))" % WS_KVP),
     ("KVFW", "((((%d+({hr}<<11))+(({rb8}>>2)*544))+(({rb8}&1)*272))+(({rb8}&2)<<2))" % WS_KVF),
     ("F5OFF", "((%d+({hr}<<10))+({rb8}<<7))" % WS_F5),
     ("F5POLL", "(%d+({ha0}<<10))" % WS_F5),
     ("KVFR", "(%d+({ha0}<<11))" % WS_KVF),
     ("OAOFF", "((%d+({t}<<16))+({ha0}<<10))" % WS_OF),
    ]
    assert len(E) == 32
    return [(n, e.format(**d)) for n, e in E]
SR = {n: 48 + i for i, (n, _) in enumerate(stab())}
class _S:
    def __getattr__(self, n): return f"s{SR[n]}"
S = _S()

Q = [8, 12]; C = [16, 32]; S4 = [[48, 200], [64, 216]]; O = [80, 96]
KB_ = [112, 116]; VA = [120, 128]; VBB = [124, 132]
IDX, VK, VV, VL8, VWO, XW, XR, TR0, TR1, RR, OUTA, G4 = range(136, 148)
GV, M1, M2 = 148, 150, 151
VP0, VP1 = 0, 2
SCR, PHI = 152, 232
VXR, VWR, PHIA, VXD, VWD, BSEL = 8, 16, 18, 20, 22, 56
KO, VO, REDW, REDR, KVP0, KVP1, ONES = 24, 25, 26, 27, 28, 29, 30
def vtab():
    def trc(l): return ((l >> 2) & 3)*128 + ((l >> 4) & 1)*32 + (l & 3)*8
    def g0(w, l):
        r, hf = l & 31, l >> 5
        return [(w & 3)*4096 + r*128 + (((2*st + hf) ^ ((r >> 1) & 7))*16) for st in range(4)]
    def g2(w, l):
        hf = l >> 5
        v = trc(l) + (((w >> 2) ^ ((l >> 3) & 1))*64)
        return [16384 + hf*2048 + v, 16384 + hf*2048 + v + 2*SLOT, PHIL + (w >> 2)*1024 + (4*hf + ((l >> 2) & 3))*32 + (l & 3)*8, 131072 + hf*1024 + v]
    def g3(w, l):
        pi = (l & 0x33) | (((l >> 2) & 1) << 3) | (((l >> 3) & 1) << 2)
        return [pi*16, ((l >> 4) & 1)*65536 + (l >> 5)*256 + (l & 15)*16,
                (w >> 1)*32768 + 8192 + (w & 1)*8192 + l*16, (w >> 2)*65536 + 8192 + (w & 3)*2048 + l*16]
    def g4(w, l):
        own = ((l >> 4) & 1) == ((w >> 1) & 1); q0 = 2*(w & 1); hf = l >> 5
        k = [q*512 + hf*256 + (l & 15)*16 if own else 2048 + q*32 + hf*16 for q in (q0, q0+1)]
        one = 0x3f803f80 if (l & 27) == 16 else 0
        return k + [one, one]
    def bsel(sg):
        def g(w, l):
            t = (l & 31) - 4*(l >> 5) - 16*sg
            T = lambda j: 8*(j//4) + j % 4
            return [(0x3f80 if t == T(2*q) else 0) | (0x3f800000 if t == T(2*q+1) else 0) for q in range(4)]
        return g
    def tr0(w, l): return (w >> 1)*32768 + (((l >> 5)*512 + ((l >> 3) & 1)*64 + trc(l)) ^ ((w >> 1)*32))
    def g8(w, l): return [(l >> 3)*1024 + (((l & 7) ^ ((l >> 2) & 4))*16), XCH + w*3072 + l*16, XCH + (w ^ 4)*3072 + l*16, tr0(w, l)]
    def g9(w, l): return [tr0(w, l) ^ 64, (w >> 1)*32768 + (w & 1)*8192 + l*16, (l & 31)*1024 + (l >> 5)*16, (l & 31)*4]
    return [(8, g0), (16, g2), (24, g3), (28, g4), (56, bsel(0)), (60, bsel(1)), (140, g8), (144, g9)]
NG = len(vtab())

def mfma(a, d, A, B, Cc):
    a(f"v_mfma_f32_32x32x16_bf16 {vr(d,16)}, {vr(A,4)}, {vr(B,4)}, {Cc if isinstance(Cc,str) else vr(Cc,16)}")
def smfmac(a, d, A, B, idx):
    a(f"v_smfmac_f32_32x32x32_bf16 {vr(d,16)}, {vr(A,4)}, {vr(B,8)}, v{idx}")
def stamp(a, j, g=False):
    if OPT["gst"] and not g and j not in (0, 1, NST-1): return
    if STAMPS: a(f"s_mem{'' if OPT['cyc'] else 'real'}time s[{80+2*j}:{81+2*j}]")
def st5(a, j):
    if OPT["gst"] == 5: stamp(a, j, True)
def st4(a, j):
    if OPT["gst"] == 4: stamp(a, j, True)
def flush_stamps(a):
    if not STAMPS: return
    a("s_waitcnt vmcnt(0)")
    stamp(a, NST-1)
    a("s_waitcnt lgkmcnt(0)")
    if OPT["amp"]:
        j0, j1 = OPT["amp"]
        a(f"s_or_b32 s7, s2, s{W}")
        a("s_cmp_lg_u32 s7, 0")
        a("s_cbranch_scc1 L_end")
        a(f"s_sub_u32 s7, s{80+2*j1}, s{80+2*j0}")
        a("s_lshl_b32 s7, s7, 4")
        a.label("L_amp")
        a("s_memrealtime s[4:5]")
        a("s_waitcnt lgkmcnt(0)")
        a(f"s_sub_u32 s6, s4, s{80+2*(NST-1)}")
        a("s_cmp_lt_u32 s6, s7")
        a("s_cbranch_scc1 L_amp")
        return
    a("s_lshl_b32 s7, s2, 3")
    a(f"s_add_u32 s7, s7, s{W}")
    a("s_lshl_b32 s7, s7, 6")
    a(f"s_add_u32 s7, s7, {0x2000000}")
    a("s_mov_b64 exec, 1")
    a("v_mov_b32 v1, 0")
    for j in range(NST):
        a(f"v_mov_b32 v2, s{80+2*j}")
        a(f"buffer_store_dword v2, v1, s[32:35], s7 offen offset:{4*j}")
def pub(a, soff):
    a(f"v_mov_b32 v4, s{TAG}")
    a("s_mov_b64 exec, 1")
    a(f"buffer_store_dword v4, v3, s[32:35], {soff} offen{SC}")
    a("s_mov_b64 exec, -1")
def poll(a, lab, vaddr, vdst, soff, landed=False, own=None):
    a(f"s_mov_b32 s{CNT}, {POLL_LIMIT}")
    a(f"s_branch {lab}_{'cmp' if landed else 'chk'}")
    a.label(lab)
    a(f"buffer_load_dword v{vdst}, v{vaddr}, s[32:35], {soff} offen{SC}")
    a.label(lab + "_chk")
    a("s_waitcnt vmcnt(0)")
    a.label(lab + "_cmp")
    a(f"v_cmp_ne_u32 s[{CP}:{CP+1}], s{TAG}, v{vdst}")
    a(f"s_sub_u32 s{CNT}, s{CNT}, 1")
    a(f"s_or_b32 s{CP}, s{CP}, s{CP+1}")
    if own is not None: a(f"s_and_b32 s{CP}, s{CP}, {own}")
    a(f"s_cbranch_scc0 {lab}_ok")
    a(f"s_cmp_eq_u32 s{CNT}, 0")
    a(f"s_cbranch_scc1 {lab}_ok")
    a("s_sleep 1")
    a(f"s_branch {lab}")
    a.label(lab + "_ok")
SPINS = []
def check_flags(a, lab, mask, vdst, soff):
    a(f"v_cmp_ne_u32 vcc, s{TAG}, v{vdst}")
    a("s_nop 1")
    a(f"s_cbranch_vccnz {lab}_spin")
    a.label(f"{lab}_back")
    def spin(a):
        a.label(f"{lab}_spin")
        a(f"v_and_b32 v6, {mask}, v{VL8}")
        poll(a, lab, 6, vdst, soff, landed=True)
        a(f"s_branch {lab}_back")
    SPINS.append(spin)

class Fill:
    def __init__(self): self.g = []
    def __call__(self, *lines, after=0): self.g.append((after, list(lines)))
    def pop(self, a, n, g):
        while n > 0 and self.g and self.g[0][0] <= g:
            _, ls = self.g.pop(0)
            for l in ls:
                if isinstance(l, tuple): a.vmem(*l)
                elif callable(l): l(a)
                else: a(l)
            n -= len(ls)

def gate(a):
    X, Wt, t = 96, 104, 56
    for q in range(8):
        u = t + 4*(q & 1)
        a(f"v_lshlrev_b32 v{u}, 16, v{X+q}")
        a(f"v_lshlrev_b32 v{u+2}, 16, v{Wt+q}")
        a(f"v_and_b32 v{u+1}, 0xffff0000, v{X+q}")
        a(f"v_and_b32 v{u+3}, 0xffff0000, v{Wt+q}")
        a(f"v_pk_mul_f32 {vr(u,2)}, {vr(u,2)}, {vr(u+2,2)}")
        a(f"v_cvt_pk_bf16_f32 v{u+2}, v{u}, v{u+1}")
        d = 52 if q == 0 else u
        a(f"v_lshlrev_b32 v{d}, 16, v{u+2}")
        a(f"v_and_b32 v{d+1}, 0xffff0000, v{u+2}")
        if q: a(f"v_pk_add_f32 v[52:53], v[52:53], {vr(u,2)}")
    s = 52
    a(f"v_add_f32 v{s}, v{s}, v{s+1}")
    a(f"v_mov_b32 v{s+1}, v{s}")
    a("v_lshrrev_b32 v6, 3, v1")
    a(f"v_permlane16_swap_b32 v{s}, v{s+1}")
    a(f"v_add_f32 v{s}, v{s}, v{s+1}")
    for r in (8, 4, 2, 1):
        a(f"v_add_f32_dpp v{s}, v{s}, v{s} row_ror:{r} row_mask:0xf bank_mask:0xf")
    a(f"v_cvt_pk_bf16_f32 v{s}, v{s}, v{s}")
    a(f"v_lshlrev_b32 v{s}, 16, v{s}")
    a(f"v_mul_f32 v{s}, {f32(-LOG2E)}, v{s}")
    a(f"v_exp_f32 v{s}, v{s}")
    a(f"v_add_f32 v{s}, 1.0, v{s}")
    a(f"v_rcp_f32 v{s}, v{s}")
    a(f"v_cvt_pk_bf16_f32 v{s}, v{s}, v{s}")
    a(f"v_lshlrev_b32 v{s}, 16, v{s}")

def maxtree(a, dst, src, first):
    if first:
        a(f"v_max3_f32 v{dst}, v{src}, v{src+1}, v{src+2}")
        for j in range(3, 15, 2): a(f"v_max3_f32 v{dst}, v{dst}, v{src+j}, v{src+j+1}")
        a(f"v_max_f32 v{dst}, v{dst}, v{src+15}")
    else:
        for j in range(0, 16, 2): a(f"v_max3_f32 v{dst}, v{dst}, v{src+j}, v{src+j+1}")
def kv_dma(a, rr, kind):
    a(f"s_add_u32 m0, {S.LDS0}, {kind*65536+rr*4096}")
    a(f"s_add_u32 s{TA}, {S.KOFF}, {kind*(WS_VB-WS_KB)+rr*4096}")
    a.vmem(f"buffer_load_dwordx4 v3, s[32:35], s{TA} offen{SC} lds", f"r{rr}")
def wo_dma(a, rr, kind):
    a(f"s_add_u32 m0, {S.LDS0}, {kind*65536+rr*4096}")
    a(f"s_add_u32 s{TA}, {S.WOOFF}, {kind*262144+(rr&3)*32768}")
    R = 16 if rr < 4 else 20
    a.vmem(f"buffer_load_dwordx4 v{VWO}, s[{R}:{R+3}], s{TA} offen lds", f"w{rr}")

def phase1(a):
    ACC = [64, 80, 96]
    a("s_cmp_ge_u32 s2, 256")
    a("s_cbranch_scc1 L_end")
    stamp(a, 0)
    a("s_load_dwordx2 s[16:17], s[0:1], 0")
    a("s_load_dwordx2 s[28:29], s[0:1], 40")
    a("s_load_dwordx2 s[20:21], s[0:1], 8")
    a("s_load_dwordx2 s[32:33], s[0:1], 80")
    a("s_load_dwordx2 s[8:9], s[0:1], 16")
    a("s_load_dwordx2 s[12:13], s[0:1], 56")
    a("v_lshrrev_b32 v2, 6, v0")
    a(f"s_getpc_b64 s[14:15]")
    a.label("L_pc")
    a("v_and_b32 v1, 63, v0")
    a(f"v_readfirstlane_b32 s{W}, v2")
    WO1, WO0 = 44, 45
    V = ["v_lshrrev_b32 v7, 3, v1", "v_and_b32 v4, 7, v1", "v_lshrrev_b32 v5, 1, v7", "v_xor_b32 v6, v4, v5", "v_lshlrev_b32 v6, 4, v6",
         f"v_lshl_add_u32 v{VXD}, v7, 10, v6", f"v_xor_b32 v{VXD+1}, 64, v{VXD}", f"v_add_u32 v{VXD+1}, {8192-1024}, v{VXD+1}",
         "v_lshrrev_b32 v6, 2, v1", "v_and_b32 v6, 4, v6", "v_xor_b32 v6, v4, v6", "v_mul_u32_u24 v7, 3072, v7", f"v_lshl_add_u32 v{VWD}, v6, 4, v7",
         "v_lshlrev_b32 v3, 4, v1", f"v_mul_u32_u24 v23, {NG*1024}, v2", "v_add_u32 v23, v23, v3"]
    assert OPT["map2d"] == 1
    Sx = [f"s_lshr_b32 s{J}, s2, 3", f"s_lshr_b32 s{XOFF}, s2, 5", f"s_and_b32 s{TA}, s2, 4", f"s_lshl1_add_u32 s{XOFF}, s{TA}, s{XOFF}",
          f"s_and_b32 s{TY}, s{J}, 1", f"s_and_b32 s{CNT}, s{J}, {OPT['cmask']}", {4: f"s_lshl1_add_u32 s{J}, s{J}, s{XOFF}", 0: f"s_mov_b32 s{J}, 0", 6: f"s_and_b32 s{J}, s2, 7", 7: f"s_mov_b32 s{J}, s{XOFF}"}[OPT["rot"]],
          "s_mov_b32 s18, 0x200000", "s_mov_b32 s19, 0x00020000", "s_mov_b32 s30, 0x180000", "s_mov_b32 s31, 0x00020000",
          f"s_and_b32 s{TA}, s2, 3", f"s_bfe_u32 s{TB}, s2, 0x10004", f"s_lshl1_add_u32 s{TA}, s{TA}, s{TB}", f"s_lshl_b32 s{TA}, s{TA}, 7",
          f"s_xor_b32 s{TB}, s{TA}, {OPT['hga']*128}",
          f"s_lshl3_add_u32 s{XOFF}, s{XOFF}, s{W}", f"s_lshl_b32 s{XOFF}, s{XOFF}, 14", f"s_lshl_b32 s{MX}, s{W}, 11",
          f"s_mul_i32 s{MW}, s{W}, 24576", f"s_lshl_b32 s{TC}, s{TY}, 10",
          f"s_add_u32 s{WOFF}, s{MW}, s{TA}", f"s_add_u32 s{WOFF}, s{WOFF}, s{TC}",
          f"s_add_u32 s{WO0}, s{MW}, s{TB}", f"s_sub_u32 s{WO0}, s{WO0}, s{TC}", f"s_add_u32 s{WO0}, s{WO0}, 1024",
          "s_mov_b64 s[22:23], s[30:31]", "s_mov_b64 s[26:27], s[30:31]"]
    while V or Sx:
        for _ in range(2):
            if Sx: a(Sx.pop(0))
        if V: a(V.pop(0))
    a(f"s_cmp_eq_u32 s{TY}, 0")
    a(f"s_cselect_b32 s{TA}, s{TB}, s{TA}")
    a(f"s_add_u32 s{WO1}, s{MW}, s{TA}")
    a(f"s_add_u32 s{WO1}, s{WO1}, 1024")
    a(f"s_lshl_b32 s{MW}, s{W}, 10")
    def dma_part(c, p, mid=None):
        sl = (c & 3) * SLOT
        if p == 0:
            a(f"s_add_u32 m0, s{MX}, {sl}")
            a(f"s_add_u32 s{TA}, s{J}, {c}")
            a(f"s_and_b32 s{TA}, s{TA}, 7")
            a(f"s_lshl_b32 s{TB}, s{TA}, 7")
            a(f"s_add_u32 s{TB}, s{TB}, s{XOFF}")
            a(f"s_mul_i32 s{TA}, s{TA}, 196608")
            if mid: mid()
            a.vmem(f"buffer_load_dwordx4 v{VXD}, s[16:19], s{TB} offen lds", f"c{c}")
            a.vmem(f"buffer_load_dwordx4 v{VXD+1}, s[16:19], s{TB} offen offset:1024 lds", f"c{c}")
        else:
            a(f"s_add_u32 m0, s{MX}, {sl+16384}")
            a(f"s_add_u32 s{TC}, s{TA}, s{WOFF}")
            a.vmem(f"buffer_load_dwordx4 v{VWD}, s[28:31], s{TC} offen lds", f"c{c}")
            a(f"s_add_u32 s{TC}, s{TA}, s{WO1}")
            a.vmem(f"buffer_load_dwordx4 v{VWD}, s[24:27], s{TC} offen offset:1024 lds", f"c{c}")
    W0L = [131072 + c*8192 for c in range(4)] + [16384, 24576, 49152, 57344]
    def dma_w0(c):
        a(f"s_add_u32 m0, s{MW}, {W0L[c]}")
        a(f"s_add_u32 s{TB}, s{J}, {c}")
        a(f"s_and_b32 s{TB}, s{TB}, 7")
        a(f"s_mul_i32 s{TB}, s{TB}, 196608")
        a(f"s_add_u32 s{TB}, s{TB}, s{WO0}")
        a.vmem(f"buffer_load_dwordx4 v{VWD}, s[20:23], s{TB} offen lds", "wa" if c < 4 else "wb")
    def dma(c):
        for p in range(2): dma_part(c, p)
    def aux():
        a(f"s_add_u32 s{VT}, s14, L_vtab-L_pc")
        a(f"s_addc_u32 s{VT+1}, s15, L_vtab@rel32@hi+12")
        a(f"s_lshl_b32 s{CNT}, s{CNT}, 13")
        a(f"s_sub_u32 s10, s{CNT}, 32768")
        a(f"s_cselect_b32 s{CNT}, s{CNT}, s10")
        a(f"s_cselect_b64 s[14:15], s[14:15], s[{VT}:{VT+1}]")
        a(f"s_cselect_b32 s10, L_code_end-L_pc-16, -1")
        a(f"v_lshl_add_u32 v24, v0, 4, s{CNT}")
        a("v_min_u32 v24, s10, v24")
        a.vmem("global_load_dwordx4 v[112:115], v24, s[14:15]", "x")
        a.vmem(f"global_load_dwordx4 v[8:11], v23, s[{VT}:{VT+1}]", "t0")
        a.vmem(f"global_load_dwordx4 v[16:19], v23, s[{VT}:{VT+1}] offset:1024", "t0")
    def kwait():
        a(f"s_cmp_eq_u32 s{TY}, 0")
        st5(a, 2)
        a("s_waitcnt lgkmcnt(0)")
        st5(a, 3)
        a("s_cselect_b64 s[24:25], s[20:21], s[28:29]")
    if OPT["auxpos"] == 0: aux()
    dma_part(0, 0, kwait)
    dma_part(0, 1)
    st5(a, 4)
    if OPT["auxpos"] == 1: aux()
    a(f"s_load_dword s{TAG}, s[32:33], {WS_E}")
    a(f"s_lshl3_add_u32 s{TB}, s2, s{W}")
    a(f"s_lshl_b32 s{TB}, s{TB}, 7")
    a(f"s_add_u32 s{CNT}, s{TB}, {8*NG*1024}")
    a(f"s_load_dwordx16 s[48:63], s[{VT}:{VT+1}], s{CNT}")
    a(f"s_load_dwordx16 s[64:79], s[{VT}:{VT+1}], s{CNT} offset:64")
    if OPT["bar0"]: a("s_barrier")
    def l2touch():
        m = OPT["l2m"]
        a(f"s_lshr_b32 s{TA}, s2, 3")
        a(f"s_lshl3_add_u32 s{TA}, s{TA}, s{W}")
        a(f"s_and_b32 s{TB}, s2, 4")
        a(f"s_lshl_b32 s{TB}, s{TB}, 18")
        a(f"s_lshl_b32 s{TC}, s{TA}, 12")
        a(f"s_add_u32 s{TB}, s{TB}, s{TC}")
        a("v_and_b32 v5, 31, v1")
        a("v_lshlrev_b32 v5, 7, v5")
        a.vmem(f"buffer_load_dword v25, v5, s[16:19], s{TB} offen{m}", "x")
        a("v_min_u32 v5, 5, v4")
        a("v_lshrrev_b32 v6, 1, v5")
        a("v_and_b32 v5, 1, v5")
        a("v_lshlrev_b32 v5, 7, v5")
        a("v_lshl_add_u32 v5, v6, 10, v5")
        a("v_bfe_u32 v6, v1, 3, 1")
        a("v_mul_u32_u24 v6, 3072, v6")
        a("v_add_u32 v5, v5, v6")
        a(f"s_mul_i32 s{TC}, s{TA}, 6144")
        a(f"s_and_b32 s{TB}, s2, 3")
        a(f"s_lshl_b32 s{TB}, s{TB}, 8")
        a(f"s_add_u32 s{TA}, s{TC}, s{TB}")
        a(f"s_xor_b32 s{TB}, s{TB}, {OPT['hga']*128}")
        a(f"s_add_u32 s{TC}, s{TC}, s{TB}")
        a("s_mov_b64 exec, 0xffff")
        a.vmem(f"buffer_load_dword v26, v5, s[28:31], s{TA} offen{m}", "x")
        a.vmem(f"buffer_load_dword v27, v5, s[20:23], s{TC} offen{m}", "x")
        a("s_mov_b64 exec, -1")
    if OPT["l2t"] == 1: l2touch()
    st5(a, 5)
    dma(1)
    st5(a, 6)
    if OPT["l2t"] == 2: l2touch()
    a(f"s_mov_b32 s34, {WS_USED}")
    a("s_mov_b32 s35, 0x00020000")
    a(f"s_mov_b32 s{MASK}, 0x0000ffff")
    a(f"s_mov_b32 s{MASK+1}, 0x0000ffff")
    a(f"s_mov_b32 s{L2E}, {f32(LOG2E)}")
    a(f"s_mov_b32 s{L2E+1}, {f32(0.25*LOG2E)}")
    a(f"s_mov_b32 s{ATT}, 0")
    if OPT["pre2"]: dma(2)
    XB = 120
    LA = OPT["la"]; NB = LA + 1
    def tl(k):
        r = vtab()[k][0]
        return f"global_load_dwordx4 {vr(r,4)}, v7, s[{VT}:{VT+1}] offset:{(k-4)*1024}"
    def rd(g):
        if g >= 32:
            g -= 32
            c, st = g >> 2, g & 3
            f = w0reg(g)
            ad, o = (19, W0L[c] - 131072) if c < 4 else (5, W0L[c] - 16384)
            return [f"ds_read_b64_tr_b16 {vr(f,2)}, v{ad} offset:{o+st*2048}", f"ds_read_b64_tr_b16 {vr(f+2,2)}, v{ad} offset:{o+st*2048+512}"]
        c, st = g >> 2, g & 3
        sl = c & 3
        fr = 32 + 8*(g % NB)
        L = [f"ds_read_b128 {vr(XB+4*g,4)}, v{VXR+4*(sl>>1)+st} offset:{(sl&1)*SLOT}"]
        for s in range(2):
            o = st*4096 + s*1024 + (sl & 1)*SLOT
            L.append(f"ds_read_b64_tr_b16 {vr(fr+4*s,2)}, v{VWR+(sl>>1)} offset:{o}")
            L.append(f"ds_read_b64_tr_b16 {vr(fr+2+4*s,2)}, v{VWR+(sl>>1)} offset:{o+512}")
        return L
    def w0reg(g): return [112, 116, 248, 252][g] if g < 4 else XB + 4*(g-4)
    EX = {}
    def ex(g, fn): EX.setdefault(g, []).append(fn)
    ex(0, lambda: [a(f"v_add_u32 v{VXR+4+st}, {2*SLOT}, v{VXR+st}") for st in range(4)])
    ex(0, lambda: a("v_add_u32 v7, 4096, v23"))
    sched1 = OPT["ds1"]
    for (c, p), g in sched1.items(): ex(g, (lambda c=c, p=p: dma_part(c, p)))
    for c, g in enumerate(OPT["ds0"]): ex(g, (lambda c=c: dma_w0(c)))
    def phi_dma():
        a(f"s_and_b32 s{TB}, {S.PHIOFF}, 1024")
        a(f"s_add_u32 m0, s{TB}, {PHIL}")
        a(f"v_add_u32 v6, {S.PHIOFF}, v3")
        a.vmem("global_load_lds_dwordx4 v6, s[8:9]", "wb")
    ex(OPT["phiat"], phi_dma)
    ex(OPT["t2at"], lambda: a.vmem(tl(2), "t2"))
    def touch():
        a(f"v_add_u32 v6, {S.PHIOFF}, v3")
        a.vmem("global_load_dword v4, v6, s[8:9]", "x")
        a.vmem("global_load_dword v0, v3, s[12:13]", "x")
    if OPT["tchat"] >= 0: ex(OPT["tchat"], touch)
    def touch0():
        a(f"s_lshr_b32 s{TB}, s2, 5")
        a(f"s_mul_i32 s{TB}, s{TB}, 196608")
        a(f"s_add_u32 s{TB}, s{TB}, s{WO0}")
        a.vmem(f"buffer_load_dword v2, v{VWD}, s[20:23], s{TB} offen", "x")
    if OPT["t0at"] == -1: touch0()
    elif OPT["t0at"] >= 0: ex(OPT["t0at"], touch0)
    def zst():
        a("v_mov_b64 v[8:9], -1")
        a("v_mov_b64 v[10:11], -1")
        a.vmem(f"buffer_store_dwordx4 v[8:11], v3, s[32:35], {S.OFB} offen{SC}", "st")
    if OPT["zat"] >= 0: ex(OPT["zat"], zst)
    else:
        a(f"s_lshr_b32 s{TA}, s2, 5")
        a(f"s_and_b32 s{TB}, s{W}, 3")
        a(f"s_lshl2_add_u32 s{TA}, s{TA}, s{TB}")
        a(f"s_lshr_b32 s{TB}, s{W}, 2")
        a(f"s_lshl1_add_u32 s{TA}, s{TA}, s{TB}")
        a(f"s_lshl_b32 s{TA}, s{TA}, 16")
        a(f"s_and_b32 s{TB}, s2, 7")
        a(f"s_bfe_u32 s{TC}, s2, 0x20003")
        a(f"s_lshl2_add_u32 s{TB}, s{TB}, s{TC}")
        a(f"s_lshl_b32 s{TB}, s{TB}, 10")
        a(f"s_add_u32 s{TA}, s{TA}, s{TB}")
        a(f"s_add_u32 s{TA}, s{TA}, {WS_OF+32768}")
        a("v_mov_b64 v[56:57], -1")
        a("v_mov_b64 v[58:59], -1")
        a.vmem(f"buffer_store_dwordx4 v[56:59], v3, s[32:35], s{TA} offen{SC}", "st")
    def cinit():
        a(f"s_mov_b32 m0, {CNTW}")
        a("s_mov_b32 s7, 0x200000")
        a.vmem("buffer_load_dword v3, s[16:19], s7 offen lds", "wb")
    if OPT["cnt"]: ex(OPT["ciat"], cinit)
    ex(OPT["t2at"] - 2, lambda: a.vmem(tl(3), "t2"))
    ex(OPT["t2at"] + 1, lambda: a.vmem(tl(4), "t3"))
    ex(OPT["t2at"] + 2, lambda: a.vmem(tl(5), "t3"))
    assert LA == 2
    ex(OPT["phiat"] + 1, lambda: a(f"v_subrev_u32 v5, {131072-16384}, v19"))
    if OPT["gst"] == 5:
        a("s_waitcnt vmcnt(8)"); st5(a, 7)
        a("s_waitcnt vmcnt(6)"); st5(a, 8)
        a("s_waitcnt vmcnt(4)"); st5(a, 9)
    a.wait_vm("c0", "t0", extra="lgkmcnt(0)" if OPT["lg0"] else "")
    a("s_barrier")
    stamp(a, 1)
    for g in range(LA):
        for l in rd(g): a(l)
    nowait = 0
    for g in range(32):
        c, st = g >> 2, g & 3
        if st == 4 - LA and c in OPT["nobar"]:
            assert f"c{c+1}" not in a.vm
            a(f"s_waitcnt lgkmcnt({5*(LA-1)})")
        elif st == 4 - LA:
            cw = c + 1
            while cw in OPT["nobar"]: cw += 1
            a.wait_vm(f"c{cw}" if c < 7 else OPT["last"], extra="lgkmcnt(0)")
            a("s_barrier")
            if OPT["gst"] == 1 and c < 7: stamp(a, 2+c, True)
            if c == 0: a(f"s_add_u32 s{TAG}, s{TAG}, 0x9e3779b1")
            nowait = LA - 1
        elif nowait: nowait -= 1
        else: a(f"s_waitcnt lgkmcnt({5*(LA-1)})")
        if OPT["p1prio"]: a(f"s_setprio {3 - ((g + 2) % 4)}")
        R = rd(g + LA)
        if g == 31:
            for k in range(LA, 4): R += rd(32 + k)
        fr = 32 + 8*(g % NB); x = XB + 4*g
        if OPT["al"]: a.raw(".p2align 3")
        mfma(a, ACC[2], fr, x, "0" if g == 0 else ACC[2])
        for l in R[:3]: a(l)
        mfma(a, ACC[1], x, fr+4, "0" if g == 0 else ACC[1])
        for l in R[3:]: a(l)
        for fn in EX.get(g, []): fn()
    stamp(a, 2)
    if OPT["gst"] == 1: stamp(a, 9, True)
    def st2(j):
        if OPT["gst"] == 2: stamp(a, j, True)
    st2(2)
    if OPT["gst"] == 3: stamp(a, 2, True)
    E2 = range(2)
    PH = [160, 176]; EP = [64, 80]; T = [200, 204]
    def f1(half=None):
        tag = "" if half is None else "ab"[half]
        if half is not None:
            a(f"s_bitcmp1_b32 s{W}, 2")
            a(f"s_cbranch_scc{1-half} L_skip_f1{tag}")
        if OPT["cnt"]:
            a(f"v_mov_b32 v6, {CNTW}")
            a("v_mov_b32 v4, 1")
            a("s_waitcnt vmcnt(0)")
            a("s_mov_b64 exec, 1")
            a("ds_add_rtn_u32 v4, v6, v4")
            a("s_mov_b64 exec, -1")
            a("s_waitcnt lgkmcnt(0)")
            a(f"v_readfirstlane_b32 s{TB}, v4")
            a("s_nop 1")
            a(f"s_cmp_lg_u32 s{TB}, 7")
        else:
            a("s_waitcnt vmcnt(0)")
            a(f"s_cmp_lg_u32 s{W}, 0")
            a("s_barrier")
        a.vm = []
        a(f"s_cbranch_scc1 L_f1done{tag}")
        pub(a, S.F1OFF)
        a.label(f"L_f1done{tag}")
        stamp(a, 3)
        if half is not None:
            gld(tag)
            a.label(f"L_skip_f1{tag}")
    def st_v():
        for g in range(2):
            for q in range(4): a(f"v_cvt_pk_bf16_f32 v{40+4*g+q}, v{ACC[1]+8*g+2*q}, v{ACC[1]+8*g+2*q+1}")
        a(f"s_add_u32 s{TB}, {S.QK0}, 65536")
        a(f"s_cmp_eq_u32 s{TY}, 0")
        if "t2" in a.vm: a.wait_vm("t2")
        a("s_cbranch_scc1 L_p1_q")
        a(f"buffer_store_dwordx4 v[40:43], v{VO}, s[32:35], {S.VOFF} offen{SC}")
        a(f"buffer_store_dwordx4 v[44:47], v{VO}, s[32:35], {S.VOFF} offen offset:512{SC}")
        a("s_branch L_p1_qk")
        a.label("L_p1_q")
        for i in range(0, 16, 2): a(f"v_pk_mul_f32 v[{ACC[2]+i}:{ACC[2]+i+1}], v[{ACC[2]+i}:{ACC[2]+i+1}], s[{L2E}:{L2E+1}] op_sel:[0,1]")
        a(f"v_mov_b32 v{KO}, v3")
        a.label("L_p1_qk")
    def st_qk(e):
        for q in range(4): a(f"v_cvt_pk_bf16_f32 v{32+4*e+q}, v{ACC[2]+8*e+2*q}, v{ACC[2]+8*e+2*q+1}")
        a.vmem(f"buffer_store_dwordx4 {vr(32+4*e,4)}, v{KO}, s[32:35], {S.QK0 if e == 0 else 's%d' % TB} offen{SC}", "st")
    def gld(tag=""):
        a("v_lshlrev_b32 v6, 5, v1")
        a("v_and_b32 v4, 0x3ff, v6")
        a(f"s_cmp_eq_u32 s{TY}, 0")
        a(f"s_cbranch_scc1 L_skip_gl{tag}")
        a("global_load_dwordx4 v[104:107], v4, s[12:13]")
        a("global_load_dwordx4 v[108:111], v4, s[12:13] offset:16")
        a(f"buffer_load_dwordx4 v[96:99], v6, s[16:19], {S.GROW} offen")
        a(f"buffer_load_dwordx4 v[100:103], v6, s[16:19], {S.GROW} offen offset:16")
        a.label(f"L_skip_gl{tag}")
    def ptrs():
        a("s_load_dwordx2 s[16:17], s[0:1], 24")
        a("s_load_dwordx2 s[20:21], s[0:1], 48")
        a("s_load_dwordx2 s[24:25], s[0:1], 64")
        a("s_mov_b32 s18, 0x80000")
        a("s_mov_b32 s22, 0x80000")
        a("s_mov_b32 s26, 0x200000")
    F = OPT["f1g"]
    E2X = {1: [st_v], 2: [lambda: st_qk(0)], 3: [lambda: st_qk(1)]}
    if F < 32: E2X[F] = [gld]
    def step2(g, fill=None):
        if OPT["p2prio"] >= 2 and g % OPT["p2prio"] == 0: a(f"s_setprio {3 - (g // OPT['p2prio']) % 4}")
        if g == 5: st2(3)
        if g == 12 and "wb" in a.vm:
            st2(4)
            a.wait_vm("wb")
            a("s_barrier")
            st2(5)
        if g == F:
            st2(6); f1(); st2(7)
        if g == OPT["fb"]: f1(1)
        a(f"s_waitcnt lgkmcnt({(6 if g < 28 else 2*(31-g) + 4)})")
        if OPT["al"]: a.raw(".p2align 3")
        mfma(a, ACC[0], w0reg(g), XB+4*g, "0" if g == 0 else ACC[0])
        if g + 4 < 32:
            for l in rd(32 + g + 4): a(l)
        if g == 27:
            for e in range(2):
                a(f"ds_read_b64_tr_b16 {vr(248+4*e,2)}, v{PHIA} offset:{e*512}")
                a(f"ds_read_b64_tr_b16 {vr(250+4*e,2)}, v{PHIA} offset:{e*512+256}")
        for fn in E2X.get(g, []): fn()
        if fill:
            for _ in range(fill[1]):
                if fill[0]: a(fill[0].pop(0))
    L = ["v_mov_b32 v6, 0x3f803f80"]
    for q in range(8):
        L.append(f"v_cndmask_b32 v{96+q}, v6, v{40+q}, s[{MASK}:{MASK+1}]")
        L.append(f"v_cndmask_b32 v{104+q}, v{40+q}, v6, s[{MASK}:{MASK+1}]")
    if OPT["p2prio"] == 1: a("s_setprio 2")
    for g in range(32): step2(g, (L, 3) if g >= 5 else None)
    if OPT["p2prio"]: a("s_setprio 0")
    assert not L
    if OPT["p2prio"] or OPT["p1prio"]: a("s_setprio 0")
    st2(8)
    for e in E2:
        for q in range(4): a(f"v_cvt_pk_bf16_f32 v{192+4*e+q}, v{ACC[0]+8*e+2*q}, v{ACC[0]+8*e+2*q+1}")
    a("s_waitcnt lgkmcnt(0)")
    mfma(a, PH[0], 248, 192, "0")
    mfma(a, PH[1], 252, 196, "0")
    if F < 32: ptrs()
    st2(9)
    for k in range(0, 16, 2): a(f"v_mov_b64 {vr(VA[0]+k,2)}, {vr(ONES,2)}")
    a(f"s_and_b32 s{TB}, {S.LDS0}, 0x8000")
    a(f"v_mov_b32 v{IDX}, 0xdddddddd")
    a(f"v_add_u32 v{VK}, s{TB}, v3")
    a(f"s_add_u32 s{TB}, s{TB}, 65536")
    a(f"v_and_b32 v{VV}, 0x1ff, v{VO}")
    a(f"v_add_u32 v{VV}, s{TB}, v{VV}")
    a(f"v_and_b32 v{VL8}, 0x1f0, v3")
    a(f"v_lshlrev_b32 v{VL8}, 3, v{VL8}")
    a(f"v_mov_b32 v{GV}, v7")
    PEND = []
    def point(n):
        if OPT["gst"] == 3 and n in (0, 2, 4, 5, 6, 7): stamp(a, {0: 3, 2: 4, 4: 5, 5: 6, 6: 7, 7: 8}[n], True)
        if n == F - 32:
            if OPT["fb"] >= 0: f1(0)
            else:
                f1()
                gld()
            ptrs()
        if n == OPT["pollat"]:
            a(f"s_cmp_lg_u32 s{W}, 0")
            a("s_cbranch_scc1 L_p2_np")
            a(f"buffer_load_dword v{VP0}, v{VL8}, s[32:35], {S.F1POLL} offen{SC}")
            a.label("L_p2_np")
        if n == OPT["goat"]:
            stamp(a, 4)
            a(f"s_cmp_lg_u32 s{W}, 0")
            a("s_cbranch_scc1 L_p2_go")
            poll(a, "L_pollF1", VL8, VP0, S.F1POLL, own=S.OWN1)
            a.label("L_p2_go")
            a("s_barrier")
            stamp(a, 5)
            PEND.extend([lambda: a.vmem(f"buffer_load_dwordx4 {vr(SCR,4)}, v3, s[32:35], {S.K0OFF} offen{SC}", "q"),
                         lambda: a.vmem(f"buffer_load_dwordx4 {vr(Q[0],4)}, v3, s[32:35], {S.QOFF0} offen{SC}", "q"),
                         lambda: a.vmem(f"buffer_load_dwordx4 {vr(Q[1],4)}, v3, s[32:35], {S.QOFF1} offen{SC}", "q"),
                         lambda: kv_dma(a, 0, 0), lambda: kv_dma(a, 0, 1)])
            a.every = [OPT["sprd"], 0, PEND]
            if OPT["sprd"] == 0 or n >= 6:
                while PEND: PEND.pop(0)()
        if n == 6:
            while PEND: PEND.pop(0)()
            a(f"s_waitcnt vmcnt({len(a.vm)})")
    point(0)
    if OPT["rp"]:
        for e in E2:
            for q in range(4): a(f"v_cvt_pk_bf16_f32 v{T[e]+q}, v{PH[e]+2*q}, v{PH[e]+2*q+1}")
        for e in E2:
            for q in range(4):
                a(f"v_lshlrev_b32 v{PH[e]+2*q}, 16, v{T[e]+q}")
                a(f"v_and_b32 v{PH[e]+2*q+1}, 0xffff0000, v{T[e]+q}")
    for e in E2:
        P = PH[e]; t = T[e]
        a(f"v_max3_f32 v{t}, v{P}, v{P+1}, v{P+2}")
        a(f"v_max3_f32 v{t+1}, -v{P}, -v{P+1}, -v{P+2}")
        a(f"v_max3_f32 v{t}, v{t}, v{P+3}, v{P+4}")
        a(f"v_max3_f32 v{t+1}, v{t+1}, -v{P+3}, -v{P+4}")
        a(f"v_max3_f32 v{t}, v{t}, v{P+5}, v{P+6}")
        a(f"v_max3_f32 v{t+1}, v{t+1}, -v{P+5}, -v{P+6}")
        a(f"v_max_f32 v{t}, v{t}, v{P+7}")
        a(f"v_max_f32_e64 v{t+1}, v{t+1}, -v{P+7}")
    point(1)
    for e in E2: a(f"v_permlane32_swap_b32 v{T[e]}, v{T[e]+1}")
    for e in E2: a(f"v_max_f32 v{T[e]}, v{T[e]}, v{T[e]+1}")
    for e in E2: a(f"v_mul_f32 v{T[e]}, {f32(-LOG2E)}, v{T[e]}")
    for e in E2: a(f"v_mov_b32 v{T[e]+1}, v{T[e]}")
    for e in E2: a(f"v_permlane32_swap_b32 v{T[e]}, v{T[e]+1}")
    for e in E2:
        for q in range(4):
            a(f"v_pk_fma_f32 {vr(EP[e]+2*q,2)}, {vr(PH[e]+2*q,2)}, s[{L2E}:{L2E+1}], {vr(T[e],2)} op_sel_hi:[1,0,0]")
            a(f"v_pk_fma_f32 {vr(EP[e]+8+2*q,2)}, {vr(PH[e]+2*q,2)}, s[{L2E}:{L2E+1}], {vr(T[e],2)} op_sel:[0,0,1] op_sel_hi:[1,0,1] neg_lo:[1,0,0] neg_hi:[1,0,0]")
    point(2)
    for j in range(16): a(f"v_exp_f32 v{EP[0]+j}, v{EP[0]+j}")
    point(3)
    for j in range(16): a(f"v_exp_f32 v{EP[1]+j}, v{EP[1]+j}")
    point(4)
    for e in E2:
        P = PH[e]
        for sg in range(2):
            b = EP[e] + 8*sg
            a(f"v_pk_add_f32 {vr(P+4*sg,2)}, {vr(b,2)}, {vr(b+2,2)}")
            a(f"v_pk_add_f32 {vr(P+4*sg+2,2)}, {vr(b+4,2)}, {vr(b+6,2)}")
    for e in E2:
        for sg in range(2): a(f"v_pk_add_f32 {vr(PH[e]+4*sg,2)}, {vr(PH[e]+4*sg,2)}, {vr(PH[e]+4*sg+2,2)}")
    for e in E2:
        for sg in range(2): a(f"v_add_f32 v{T[e]+sg}, v{PH[e]+4*sg}, v{PH[e]+4*sg+1}")
    for e in E2: a(f"v_permlane32_swap_b32 v{T[e]}, v{T[e]+1}")
    for e in E2: a(f"v_add_f32 v{T[e]}, v{T[e]}, v{T[e]+1}")
    for e in E2: a(f"v_rcp_f32 v{T[e]}, v{T[e]}")
    for e in E2: a(f"v_mov_b32 v{T[e]+1}, v{T[e]}")
    for e in E2: a(f"v_permlane32_swap_b32 v{T[e]}, v{T[e]+1}")
    point(5)
    for e in E2:
        for q in range(4):
            a(f"v_pk_mul_f32 {vr(EP[e]+2*q,2)}, {vr(EP[e]+2*q,2)}, {vr(T[e],2)} op_sel_hi:[1,0]")
            a(f"v_pk_mul_f32 {vr(EP[e]+8+2*q,2)}, {vr(EP[e]+8+2*q,2)}, {vr(T[e],2)} op_sel:[0,1]")
    for e in E2:
        for q in range(8): a(f"v_cvt_pk_bf16_f32 v{PHI+8*e+q}, v{EP[e]+2*q}, v{EP[e]+2*q+1}")
    point(6)
    a(f"s_cmp_eq_u32 s{TY}, 0")
    a("s_cbranch_scc0 L_skip_t0")
    for e in E2:
        mfma(a, PH[e], PHI+8*e, BSEL, "0")
        mfma(a, PH[e], PHI+4+8*e, BSEL+4, PH[e])
    for e in E2:
        for q in range(8): a(f"v_cvt_pk_bf16_f32 v{192+8*e+q}, v{PH[e]+2*q}, v{PH[e]+2*q+1}")
        mfma(a, 64+16*e, 192+8*e, 96+8*e, "0")
        mfma(a, 64+16*e, 196+8*e, 100+8*e, 64+16*e)
    for e in E2:
        for q in range(4): a(f"ds_write_b128 v{REDW}, {vr(64+16*e+4*q,4)} offset:{e*4096+q*1024}")
    a("s_branch L_p1_done")
    a.label("L_skip_t0")
    gate(a)
    a.label("L_p1_done")
    point(7)


def phase2(a):
    def zero_acc():
        for i in range(0, 32, 2): a(f"v_mov_b64 v[{O[0]+i}:{O[0]+i+1}], 0")
    def prime_reads():
        a(f"ds_read_b128 {vr(KB_[0],4)}, v{VK}")
        a(f"ds_read_b128 {vr(KB_[1],4)}, v{VK} offset:1024")
        a(f"s_mov_b64 exec, s[{MASK}:{MASK+1}]")
        a(f"ds_read_b128 {vr(VA[0],4)}, v{VV}")
        a(f"ds_read_b128 {vr(VBB[0],4)}, v{VV} offset:512")
        a("s_mov_b64 exec, -1")
    def negmax():
        a(f"v_permlane32_swap_b32 v{M1}, v{M2}")
        a(f"v_max_f32 v{M1}, v{M1}, v{M2}")
        a(f"v_sub_f32 v{M1}, 0, v{M1}")
        a(f"v_mov_b32 v{M2}, v{M1}")
        a(f"v_permlane32_swap_b32 v{M1}, v{M2}")
    def cfill(q):
        for i in range(0, 16, 2): a(f"v_pk_mov_b32 {vr(C[q]+i,2)}, {vr(M1,2)}, {vr(M1,2)} op_sel:[{q},{q}]")
    a(f"v_mov_b32 v5, {FLAG}")
    a("v_mov_b32 v7, 0")
    a("v_mov_b64 v[196:197], 0")
    a("v_mov_b64 v[198:199], 0")
    a.wait_vm("q")
    mfma(a, S4[0][1], SCR, Q[0], "0")
    mfma(a, S4[1][1], SCR, Q[1], "0")
    a(f"v_mov_b64 v[156:157], v[{KVP0}:{KVP1}]")
    a(f"v_mov_b32 v158, v{REDR}")
    a("s_mov_b64 exec, 1")
    a("ds_write_b32 v5, v7")
    a("s_mov_b64 exec, -1")
    a("s_waitcnt lgkmcnt(0)")
    mfma(a, O[0], 196, 196, "0")
    mfma(a, O[1], 196, 196, "0")
    maxtree(a, M1, S4[0][1], True)
    maxtree(a, M2, S4[1][1], True)
    negmax(); cfill(0); cfill(1)
    a(f"s_cmp_eq_u32 s{TY}, 0")
    a.wait_vm("r0")
    a("s_barrier")
    stamp(a, 6)
    if OPT["gst"] == 3: stamp(a, 9, True)
    prime_reads()
    a("s_cbranch_scc0 L_skip_r0")
    for w in range(4):
        for q in range(2):
            a(f"ds_read_b128 {vr(160+8*w+4*q,4)}, v158 offset:{(w>>1)*32768+(w&1)*8192+q*1024}")
    a("s_waitcnt lgkmcnt(11)")
    a("s_branch L_first")
    a.label("L_skip_r0")
    a("s_mov_b32 exec_lo, 1")
    a("s_mov_b32 exec_hi, 1")
    a(f"buffer_store_dword v52, v6, s[32:35], {S.GOFF} offen{SC}")
    a("s_mov_b64 exec, -1")
    a.label("L_redo")
    a("s_waitcnt lgkmcnt(3)")
    a.label("L_first")
    mfma(a, S4[0][0], KB_[0], Q[0], C[0])
    mfma(a, S4[1][0], KB_[0], Q[1], C[1])
    kv_dma(a, 1, 0); kv_dma(a, 1, 1)
    nvm = [0]; marks = {}
    PL, ZL = SCR, SCR + 16
    def wait_after(nm): a(f"s_waitcnt vmcnt({nvm[0]-marks[nm]})")
    def svm(txt):
        a.vmem(txt, "x"); nvm[0] += 1
    def j_drain(): a("s_waitcnt vmcnt(0)")
    def j_kp():
        for j in range(0, 8, 2): a(f"v_pk_add_f32 {vr(160+j,2)}, {vr(160+j,2)}, {vr(168+j,2)}")
        for j in range(0, 8, 2): a(f"v_pk_add_f32 {vr(176+j,2)}, {vr(176+j,2)}, {vr(184+j,2)}")
        for j in range(0, 8, 2): a(f"v_pk_add_f32 {vr(160+j,2)}, {vr(160+j,2)}, {vr(176+j,2)}")
        a(f"buffer_store_dwordx4 v[160:163], v156, s[32:35], {S.KVPOFF} offen{SC}")
        a(f"buffer_store_dwordx4 v[164:167], v157, s[32:35], {S.KVPOFF} offen{SC}")
    def j_p2():
        a(f"v_and_b32 v6, 0x7ff, v{VL8}")
        a(f"buffer_load_dword v{VP0}, v6, s[32:35], {S.F2POLL} offen{SC}")
    def j_ld():
        wait_after("p2")
        check_flags(a, "L_pollF2", 0x7ff, VP0, S.F2POLL)
        a("v_lshrrev_b32 v5, 4, v1")
        a("v_lshlrev_b32 v5, 14, v5")
        a("v_and_b32 v6, 0xf0, v3")
        a("v_add_u32 v6, v6, v5")
        a(f"s_lshr_b32 s{TB}, s2, 5")
        a(f"s_mul_i32 s{TB}, s{TB}, 240")
        a(f"s_sub_u32 s{TB}, {S.LDK}, s{TB}")
        for p in range(4):
            a(f"s_add_u32 s{TC}, {S.LDK}, {p*4096}")
            a(f"buffer_load_dwordx4 {vr(PL+4*p,4)}, v6, s[32:35], s{TC} offen{SC}")
        for p in range(4):
            a(f"s_add_u32 s{TC}, s{TB}, {p*4096}")
            a(f"buffer_load_dwordx4 {vr(ZL+4*p,4)}, v5, s[32:35], s{TC} offen offset:2048{SC}")
    def j_red():
        wait_after("ld")
        B2 = (PL, ZL)
        for base in B2:
            for j in (0, 2):
                a(f"v_pk_add_f32 {vr(base+j,2)}, {vr(base+j,2)}, {vr(base+4+j,2)}")
                a(f"v_pk_add_f32 {vr(base+8+j,2)}, {vr(base+8+j,2)}, {vr(base+12+j,2)}")
        for base in B2:
            for j in (0, 2): a(f"v_pk_add_f32 {vr(base+j,2)}, {vr(base+j,2)}, {vr(base+8+j,2)}")
        for sw in ("32", "16"):
            for base in B2:
                for j in (0, 2): a(f"v_mov_b64 {vr(base+4+j,2)}, {vr(base+j,2)}")
            for base in B2:
                for j in range(4): a(f"v_permlane{sw}_swap_b32 v{base+j}, v{base+4+j}")
            for base in B2:
                for j in (0, 2): a(f"v_pk_add_f32 {vr(base+j,2)}, {vr(base+j,2)}, {vr(base+4+j,2)}")
        a("v_cmp_eq_u32 vcc, 16, v1")
        for base in B2:
            a(f"v_cvt_pk_bf16_f32 v{base+4}, v{base}, v{base+1}")
            a(f"v_cvt_pk_bf16_f32 v{base+5}, v{base+2}, v{base+3}")
        a(f"v_cndmask_b32 v{PL+4}, v{PL+4}, v{ZL+4}, vcc")
        a(f"v_cndmask_b32 v{PL+5}, v{PL+5}, v{ZL+5}, vcc")
        a("s_mov_b64 exec, 0x1ffff")
        a(f"buffer_store_dwordx2 {vr(PL+4,2)}, v3, s[32:35], {S.KVFW} offen{SC}")
        a("s_mov_b64 exec, -1")
    def j_f5():
        a("s_waitcnt vmcnt(0)")
        pub(a, S.F5OFF)
    def j_p5():
        a(f"v_and_b32 v6, 0x7ff, v{VL8}")
        a(f"buffer_load_dword v{VP1}, v6, s[32:35], {S.F5POLL} offen{SC}")
    def j_kv():
        wait_after("p5")
        check_flags(a, "L_pollF5", 0x7ff, VP1, S.F5POLL)
        a(f"v_min_u32 v5, 64, v{G4}")
        a("v_lshrrev_b32 v6, 5, v1")
        a("v_mul_u32_u24 v6, 272, v6")
        a("v_lshl_add_u32 v5, v5, 2, v6")
        for e in range(2):
            for sg in range(2):
                a(f"buffer_load_dwordx4 {vr(SCR+8*e+4*sg,4)}, v5, s[32:35], {S.KVFR} offen offset:{e*2048+sg*544}{SC}")
    def j_om():
        wait_after("kv")
        for sg in range(2):
            for e in range(2): mfma(a, SCR+16+16*e, SCR+8*e+4*sg, PHI+8*e+4*sg, "0" if sg == 0 else SCR+16+16*e)
    def j_oa(e):
        def f():
            D = SCR+16+16*e
            a(f"v_add_f32 v4, {f32(1e-6)}, v{D+8}")
            a("v_rcp_f32 v4, v4")
            for i in range(0, 8, 2): a(f"v_pk_mul_f32 {vr(D+i,2)}, {vr(D+i,2)}, v[4:5] op_sel_hi:[1,0]")
            for q in range(4): a(f"v_cvt_pk_bf16_f32 v{SCR+4*e+q}, v{D+2*q}, v{D+2*q+1}")
            a(f"buffer_store_dwordx4 {vr(SCR+4*e,4)}, v3, s[32:35], {S.OAOFF} offen offset:{e*1024}{SC}")
        return f
    def j_p4():
        a(f"v_and_b32 v6, 0x7ff, v{VL8}")
        svm(f"buffer_load_dword v{VP0}, v6, s[32:35], {S.F4POLL} offen{SC}")
    def j_c4():
        wait_after("p4")
        check_flags(a, "L_pollF4", 0x7ff, VP0, S.F4POLL)
        svm(f"buffer_load_dword v{GV}, v{G4}, s[32:35], {S.GATE3} offen{SC}")
        svm(f"buffer_load_dword v{GV+1}, v{G4}, s[32:35], {S.GATET} offen{SC}")
    def j_la(i):
        def f():
            for k in (2*i, 2*i+1):
                svm(f"buffer_load_dwordx4 {vr(SCR+4*k,4)}, v3, s[32:35], {S.OF3 if k < 4 else S.OF3B} offen offset:{(k%4)*1024}{SC}")
        return f
    def j_tb(k):
        return lambda: svm(f"global_load_dwordx4 {vr(vtab()[k][0],4)}, v{GV}, s[{VT}:{VT+1}] offset:{(k-4)*1024}")
    JB = dict(kp=(R_T0, j_kp), tb6=(R_ANY, j_tb(6)), tb7=(R_ANY, j_tb(7)), d0=(R_T0, j_drain), d1=(R_T1, j_drain), f2=(R_T0W0, lambda: pub(a, S.F2OFF)), f4=(R_T1W0, lambda: pub(a, S.F4OFF)),
              p2=(R_RED, j_p2), ld=(R_RED, j_ld), red=(R_RED, j_red), f5=(R_RED, j_f5),
              p5=(R_T1, j_p5), kv=(R_T1, j_kv), om=(R_T1, j_om), oa0=(R_T1, j_oa(0)), oa1=(R_T1, j_oa(1)),
              p4=(None, j_p4), c4=(None, j_c4), la0=(None, j_la(0)), la1=(None, j_la(1)), la2=(None, j_la(2)), la3=(None, j_la(3)))
    OUTL = []
    def hook(name):
        role, body = JB[name]
        if name not in OPT["y_skip"]:
            if role in OPT["outl"]:
                a(f"s_bitcmp1_b32 {S.ROLE}, {role}")
                a(f"s_cbranch_scc1 L_job_{name}")
                a.label(f"L_ret_{name}")
                keep = a.lines; a.lines = []
                a.label(f"L_job_{name}")
                body()
                a(f"s_branch L_ret_{name}")
                OUTL.extend(a.lines); a.lines = keep
            else:
                if role is not None:
                    a(f"s_bitcmp1_b32 {S.ROLE}, {role}")
                    a(f"s_cbranch_scc0 L_skip_{name}")
                body()
                if role is not None: a.label(f"L_skip_{name}")
        marks[name] = nvm[0]
    SPINS.append(lambda a: a.lines.extend(OUTL))
    JOBS = OPT["sched"]
    p0, p1, p2 = OPT["pos"]
    BST = OPT["bst"]
    SPR = []
    def capture(name):
        keep = a.lines; a.lines = []
        JB[name][1]()
        L, a.lines = a.lines, keep
        marks[name] = nvm[0]
        G = []; glue = False
        for l in L:
            t = l.strip()
            if glue and G: G[-1].append(l)
            else: G.append([l])
            glue = t.startswith(("s_waitcnt", "v_cmp", "s_nop", "s_cbranch")) or (t.startswith("s_mov_b64 exec") and not t.endswith("-1")) or (G[-1][0].strip().startswith("s_mov_b64 exec") and not t.endswith("-1"))
        return G
    def step(T, qi, role=None):
        it, t = T >> 2, T & 3
        KVS = OPT["kvs"] if it else OPT["wos"]
        WOS = OPT["wos"]
        st = 2*t + qi
        s = S4[qi][T & 1]
        def extras(k):
            if (qi, k) == OPT["kat"] and T + 2 < 32: a(f"ds_read_b128 {vr(KB_[T&1],4)}, v{VK} offset:{(T+2)*1024}")
            if (qi, k) == OPT["vat"] and T + 1 < 32:
                a(f"s_mov_b64 exec, s[{MASK}:{MASK+1}]")
                a(f"ds_read_b128 {vr(VA[(T+1)&1],4)}, v{VV} offset:{(T+1)*1024}")
                a(f"ds_read_b128 {vr(VBB[(T+1)&1],4)}, v{VV} offset:{(T+1)*1024+512}")
                a("s_mov_b64 exec, -1")
            if k == OPT["dmk"]:
                if st in KVS and it + 2 < 8:
                    kv_dma(a, it + 2, KVS.index(st)); nvm[0] += 1
                if st in WOS and it >= 1:
                    wo_dma(a, it - 1, WOS.index(st)); nvm[0] += 1
            if k == OPT["jk"]:
                for nm in JOBS.get((it, st), "").split():
                    if (it, st) in DUP and JB[nm][0] == DUP[(it, st)]:
                        if role is not None:
                            assert not SPR, nm
                            SPR.extend(capture(nm))
                            a.lines.extend(SPR.pop(0))
                            SPRN[0] = nm
                    else: hook(nm)
        if OPT["lprio"] and qi == OPT["pq"]: a(f"s_setprio {3 - ((T + OPT['poff']) % 4)}")
        for j in range(16):
            a(f"v_exp_f32 v{s+j}, v{s+j}")
            if j == p0:
                tp = T if qi == 1 else T - 1
                if tp >= 0: smfmac(a, O[1-qi], VBB[tp & 1], S4[1-qi][tp & 1]+8, IDX)
                if st == BST:
                    if it in (OPT["f2it"], OPT["f4it"]):
                        a("s_waitcnt vmcnt(0)"); a.vm = []
                    elif it < 7 and f"r{it+1}" in a.vm: a.wait_vm(f"r{it+1}")
                    a("s_barrier")
                    if it == OPT["f2it"]: hook("f2")
                    if it == OPT["f4it"]: hook("f4")
                extras(0)
            elif j == p1:
                if qi == 0: a("s_waitcnt lgkmcnt(0)")
                if T + 1 < 32: mfma(a, S4[qi][(T+1) & 1], KB_[(T+1) & 1], Q[qi], C[qi])
                extras(1)
            elif j == p2:
                smfmac(a, O[qi], VA[T & 1], s, IDX)
                extras(2)
            elif SPR:
                ism = SPR[0][-1].strip().startswith(("v_mfma", "buffer_"))
                if not ism or j in OPT["mslots"]:
                    a.lines.extend(SPR.pop(0))
                    marks[SPRN[0]] = nvm[0]
    SPRN = [None]
    DUP = {}
    for (lo, hi), role in OPT["dup"].items():
        for u in range(lo, hi): DUP[(u >> 3, u & 7)] = role
    u = 0
    while u < 64:
        rng = [k for k in OPT["dup"] if k[0] == u]
        if not rng:
            step(u >> 1, u & 1); u += 1
            continue
        lo, hi = rng[0]; role = OPT["dup"][rng[0]]
        if lo == 0: a.nop(4)
        a(f"s_bitcmp1_b32 {S.ROLE}, {role}")
        a(f"s_cbranch_scc1 L_dup{lo}")
        vm0, n0 = list(a.vm), nvm[0]
        for k in range(lo, hi): step(k >> 1, k & 1)
        a.label(f"L_dupret{lo}")
        vm1, n1 = list(a.vm), nvm[0]
        keep = a.lines; a.lines = []
        a.vm, nvm[0] = vm0, n0
        a.label(f"L_dup{lo}")
        for k in range(lo, hi): step(k >> 1, k & 1, role)
        assert not SPR and a.vm == vm1 and nvm[0] == n1
        a(f"s_branch L_dupret{lo}")
        OUTL.extend(a.lines); a.lines = keep
        u = hi
    if OPT["lprio"]: a("s_setprio 0")
    a(f"ds_write_b128 v{XW}, {vr(O[0],4)}")
    a(f"ds_write_b128 v{XW}, {vr(O[0]+4,4)} offset:1024")
    smfmac(a, O[1], VBB[1], S4[1][1]+8, IDX)
    a(f"ds_write_b32 v{XW}, v{O[0]+8} offset:2048")
    stamp(a, 7); st4(a, 2)
    SX = 64
    a(f"v_add_f32_e64 v{M1}, |v{O[0]}|, |v{O[0]+1}|")
    a(f"v_add_f32_e64 v{M2}, |v{O[0]+2}|, |v{O[0]+3}|")
    for i in range(4, 9): a(f"v_add_f32_e64 v{M1+(i&1)}, v{M1+(i&1)}, |v{O[0]+i}|")
    a(f"v_mov_b32 v6, {FLAG}")
    a("v_mov_b32 v7, 1")
    a(f"v_mov_b32 v5, {f32(OPT['thr'])}")
    for i in range(0, 9): a(f"v_add_f32_e64 v{M2-(i&1)}, v{M2-(i&1)}, |v{O[1]+i}|")
    a(f"v_add_f32 v{M1}, v{M1}, v{M2}")
    a(f"v_cmp_nlt_f32 vcc, v{M1}, v5")
    a(f"s_waitcnt vmcnt({nvm[0]-marks['c4']})")
    a(f"v_sub_f32 v{GV+1}, 1.0, v{GV+1}")
    a("s_cbranch_vccz L_noflag")
    a("ds_write_b32 v6, v7")
    a.label("L_noflag")
    a("s_waitcnt lgkmcnt(0)")
    a("s_barrier")
    a(f"ds_read_b32 v{M2}, v6")
    a(f"ds_read_b32 v{SX+8}, v{XR} offset:2048")
    a(f"ds_read_b128 {vr(SX,4)}, v{XR}")
    a(f"ds_read_b128 {vr(SX+4,4)}, v{XR} offset:1024")
    a(f"v_cvt_pk_bf16_f32 v{GV+1}, v{GV+1}, v{GV+1}")
    a(f"v_lshlrev_b32 v{GV+1}, 16, v{GV+1}")
    a("s_waitcnt lgkmcnt(2)")
    a(f"v_readfirstlane_b32 s{TB}, v{M2}")
    a(f"v_add_f32 v{O[1]+8}, v{O[1]+8}, v{SX+8}")
    a(f"v_rcp_f32 v{M1}, v{O[1]+8}")
    a(f"s_cmp_lg_u32 s{TB}, 0")
    a("s_cbranch_scc1 L_maybe_fb")
    a.label("L_fin")
    a(f"v_mul_f32 v{M1}, v{M1}, v{GV+1}")
    a("s_waitcnt lgkmcnt(0)")
    for i in range(0, 8, 2): a(f"v_pk_add_f32 {vr(O[1]+i,2)}, {vr(O[1]+i,2)}, {vr(SX+i,2)}")
    for i in range(0, 8, 2): a(f"v_pk_mul_f32 {vr(O[1]+i,2)}, {vr(O[1]+i,2)}, {vr(M1,2)} op_sel_hi:[1,0]")
    for q in range(4): a(f"v_cvt_pk_bf16_f32 v{20+q}, v{O[1]+2*q}, v{O[1]+2*q+1}")
    for q in range(4): a(f"v_min_u32 v{20+q}, -2, v{20+q}")
    a(f"buffer_store_dwordx4 v[20:23], v3, s[32:35], {S.OFB} offen{SC}")
    wo_dma(a, 7, 0)
    wo_dma(a, 7, 1)

    def rare(a):
        a.label("L_maybe_fb")
        a(f"s_cmp_lg_u32 s{ATT}, 0")
        a("s_cbranch_scc1 L_fin")
        a(f"s_mov_b32 s{ATT}, 1")
        a(f"s_mov_b32 {S.ROLE}, 0")
        a("s_waitcnt vmcnt(0) lgkmcnt(0)")
        a("s_barrier")
        for rr in range(8):
            kv_dma(a, rr, 0); kv_dma(a, rr, 1)
        a(f"v_mov_b32 v{M1}, 0xff800000")
        a(f"v_mov_b32 v{M2}, 0xff800000")
        a("v_mov_b32 v4, v3")
        a(f"s_mov_b32 s{CNT}, 64")
        a("s_waitcnt vmcnt(0)")
        a("s_barrier")
        a.label("L_fbloop")
        a(f"ds_read_b128 {vr(KB_[0],4)}, v4")
        a("v_add_u32 v4, 1024, v4")
        a("s_waitcnt lgkmcnt(0)")
        mfma(a, S4[0][0], KB_[0], Q[0], "0")
        mfma(a, S4[1][0], KB_[0], Q[1], "0")
        a.nop(12)
        maxtree(a, M1, S4[0][0], False)
        maxtree(a, M2, S4[1][0], False)
        a(f"s_sub_u32 s{CNT}, s{CNT}, 1")
        a(f"s_cmp_lg_u32 s{CNT}, 0")
        a("s_cbranch_scc1 L_fbloop")
        zero_acc()
        prime_reads()
        negmax(); cfill(0); cfill(1)
        a("s_nop 1")
        a("s_branch L_redo")
    return rare

def phase3(a):
    ACC, OFB_, PEND = 32, 224, TC
    WA = list(range(112, 136, 4)) + list(range(184, 224, 4))
    WB = list(range(64, 128, 4))
    def trread(br, i):
        for ct in range(2):
            f = (WA, WB)[br][2*i+ct]
            a(f"ds_read_b64_tr_b16 {vr(f,2)}, v{TR0+ct} offset:{br*16384+i*2048}")
            a(f"ds_read_b64_tr_b16 {vr(f+2,2)}, v{TR0+ct} offset:{br*16384+i*2048+1024}")
    def oload(k):
        return f"buffer_load_dwordx4 {vr(OFB_+4*k,4)}, v3, s[32:35], {S.OF3 if k < 4 else S.OF3B} offen offset:{(k%4)*1024}{SC}"
    stamp(a, 8); st4(a, 3)
    for i in range(2): trread(0, i)
    a(f"s_add_u32 {S.OF3}, {S.OF3}, 32768")
    a(f"s_add_u32 {S.OF3B}, {S.OF3B}, 32768")
    a(f"s_mov_b32 s{CNT}, {POLL_LIMIT}")
    a(f"s_mov_b32 s{PEND}, 0")
    for p in range(1, 4): a(f"v_xor_b32 v{12+p}, {p*32768}, v{RR}")
    a("s_waitcnt vmcnt(3)")
    OP = OPT["opos"]
    if OP < 8: a("s_barrier")
    for i in range(8):
        if i == OP:
            for k in range(8): a(oload(k))
        if i + 2 < 8: trread(0, i + 2)
        a(f"s_waitcnt lgkmcnt({4*min(2, 7-i)})")
        for ct in range(2): mfma(a, ACC+16*ct, WA[2*i+ct], SCR+4*i, "0" if i == 0 else ACC+16*ct)
        if OP == -1: a(oload(i))
    if OP == 8:
        for k in range(8): a(oload(k))
    NPRE = OPT["npre"]
    NB0 = OPT["nb0"]
    for i in range(NB0): trread(1, i)
    st4(a, 4)
    a("s_waitcnt vmcnt(0)")
    st4(a, 5)
    a("s_barrier")
    todo = list(range(NB0, 8)); mul = list(range(0, 32, 2))
    for k in range(NPRE):
        a(oload(k))
        for _ in range(2):
            if todo:
                a("s_waitcnt lgkmcnt(8)")
                trread(1, todo.pop(0))
        for _ in range(4):
            if mul:
                j = mul.pop(0)
                a(f"v_pk_mul_f32 {vr(ACC+j,2)}, {vr(ACC+j,2)}, {vr(GV,2)} op_sel_hi:[1,0]")
    assert not todo and not mul
    st4(a, 6)
    def test(a, o):
        a(f"v_max3_u32 v4, v{o}, v{o+1}, v{o+2}")
        a(f"v_max_u32 v4, v4, v{o+3}")
        a("v_cmp_eq_u32 vcc, -1, v4")
        a("s_nop 1")
    if OPT["det"]:
        for i in range(8):
            o = OFB_ + 4*i
            a(f"s_waitcnt vmcnt({min(7-i, NPRE-1)})" + (" lgkmcnt(0)" if i == 0 else ""))
            if i == 0: st4(a, 7)
            a.label(f"L_ot{i}")
            test(a, o)
            a(f"s_cbranch_vccnz L_obad{i}")
            a.label(f"L_og{i}")
            for ct in range(2): mfma(a, ACC+16*ct, WB[2*i+ct], o, ACC+16*ct)
            if i + NPRE < 8: a(oload(i + NPRE))
        def retry(a):
            for i in range(8):
                a.label(f"L_obad{i}")
                a(f"s_sub_u32 s{CNT}, s{CNT}, 1")
                a(f"s_cmp_lt_i32 s{CNT}, 1")
                a(f"s_cbranch_scc1 L_og{i}")
                a("s_waitcnt vmcnt(0)")
                a(f"s_sleep {OPT['osleep']}")
                a(oload(i))
                for k in range(i + 1, min(8, i + NPRE)):
                    test(a, OFB_ + 4*k)
                    a(f"s_cbranch_vccz L_os{i}_{k}")
                    a(oload(k))
                    a.label(f"L_os{i}_{k}")
                a("s_waitcnt vmcnt(0)")
                a(f"s_branch L_ot{i}")
    else:
        for i in range(8):
            o = OFB_ + 4*i
            a(f"s_waitcnt vmcnt({7-i})")
            test(a, o)
            a(f"s_cbranch_vccnz L_obad{i}")
            for ct in range(2): mfma(a, ACC+16*ct, WB[2*i+ct], o, ACC+16*ct)
            a.label(f"L_onext{i}")
        a(f"s_cmp_lg_u32 s{PEND}, 0")
        a("s_cbranch_scc1 L_oretry")
        a.label("L_odone")
        def retry(a):
            for i in range(8):
                a.label(f"L_obad{i}")
                a(f"s_bitset1_b32 s{PEND}, {i}")
                a(f"s_branch L_onext{i}")
            a.label("L_oretry")
            a(f"s_sub_u32 s{CNT}, s{CNT}, 1")
            a(f"s_cmp_lt_i32 s{CNT}, 1")
            a("s_cbranch_scc1 L_oexit")
            a(f"s_sleep {OPT['osleep']}")
            for i in range(8):
                a(f"s_bitcmp1_b32 s{PEND}, {i}")
                a(f"s_cbranch_scc0 L_ol{i}")
                a(oload(i))
                a.label(f"L_ol{i}")
            a("s_waitcnt vmcnt(0)")
            for i in range(8):
                o = OFB_ + 4*i
                a(f"s_bitcmp1_b32 s{PEND}, {i}")
                a(f"s_cbranch_scc0 L_oc{i}")
                test(a, o)
                a(f"s_cbranch_vccnz L_oc{i}")
                for ct in range(2): mfma(a, ACC+16*ct, WB[2*i+ct], o, ACC+16*ct)
                a(f"s_bitset0_b32 s{PEND}, {i}")
                a.label(f"L_oc{i}")
            a(f"s_cmp_lg_u32 s{PEND}, 0")
            a("s_cbranch_scc1 L_oretry")
            a.label("L_oexit")
            a.nop(10)
            a("s_branch L_odone")
    SPINS.append(retry)
    stamp(a, 9); st4(a, 8)
    for p in range(1, 4):
        for q in range(2): a(f"ds_write_b128 v{12+p}, {vr(ACC+8*p+4*q,4)} offset:{(p-1)*2048+q*1024}")
    a("s_waitcnt lgkmcnt(0)")
    a("s_barrier")
    for src in range(3):
        for q in range(2): a(f"ds_read_b128 {vr(64+8*src+4*q,4)}, v{RR} offset:{src*2048+q*1024}")
    a("s_waitcnt lgkmcnt(4)")
    for j in range(0, 8, 2): a(f"v_pk_add_f32 {vr(64+j,2)}, {vr(64+j,2)}, {vr(ACC+j,2)}")
    a("s_waitcnt lgkmcnt(0)")
    for j in range(0, 8, 2): a(f"v_pk_add_f32 {vr(72+j,2)}, {vr(72+j,2)}, {vr(80+j,2)}")
    for j in range(0, 8, 2): a(f"v_pk_add_f32 {vr(64+j,2)}, {vr(64+j,2)}, {vr(72+j,2)}")
    for q in range(4): a(f"v_cvt_pk_bf16_f32 v{20+q}, v{64+2*q}, v{64+2*q+1}")
    st4(a, 9)
    a("v_permlane32_swap_b32 v20, v22")
    a("v_permlane32_swap_b32 v21, v23")
    a(f"buffer_store_dwordx4 v[20:23], v{OUTA}, s[24:27], {S.OUTOFF} offen{OPT['outsc']}")
    a(f"s_or_b32 s{TA}, s2, s{W}")
    a(f"s_cmp_lg_u32 s{TA}, 0")
    a("s_cbranch_scc1 L_noE")
    a(f"v_mov_b32 v24, s{TAG}")
    a("s_mov_b64 exec, 1")
    a(f"buffer_store_dword v24, v3, s[32:35], 0 offen offset:{WS_E}")
    a("s_mov_b64 exec, -1")
    a.label("L_noE")
    flush_stamps(a)

def tables():
    t = ".p2align 8\nL_vtab:\n"
    for w in range(8):
        for r, fn in vtab():
            for l in range(0, 64, 2):
                t += ".long " + ",".join(str(x) for x in fn(w, l) + fn(w, l+1)) + "\n"
    t += ".set b, 0\n.rept 256\n.set w, 0\n.rept 8\n"
    for n, e in stab(): t += f".long {e}\n"
    t += ".set w, w+1\n.endr\n.set b, b+1\n.endr\n"
    return t

def main(out):
    hdr = open("cdna_kernels/" + NAME + ".s.ref").read().split("; Override launch")[0]
    txt = hdr + "; @launch grid=(256,1,1) block=(512,1,1) lds=163840\n"
    txt += """; One persistent launch, 256 workgroups of 8 waves (one per CU), generated by a script.
"""
    txt += '.amdgcn_target "amdgcn-amd-amdhsa--gfx950"\n.text\n'
    nm = NAME + "_kernel"
    a = Asm()
    a.label(nm)
    phase1(a)
    rare = phase2(a)
    phase3(a)
    a.label("L_end")
    a("s_endpgm")
    for sp in SPINS: sp(a)
    rare(a)
    a.label("L_code_end")
    a("s_endpgm")
    a.lines, added = autonop(a.lines)
    errs = check(a.lines, nm)
    bare, skipping = [], None
    for l in a.lines:
        if skipping:
            if l.startswith(skipping + ":"): skipping = None
            continue
        bare.append(l)
        if "s_cbranch_scc0 L_skip_" in l or "s_cbranch_scc1 L_skip_" in l: skipping = l.split()[-1]
    errs += check(bare, nm + "(optional blocks skipped)")
    txt += f".globl {nm}\n.p2align 8\n.type {nm},@function\n" + a.text()
    txt += f""".section .rodata,"a"
.p2align 6
.amdhsa_kernel {nm}
  .amdhsa_next_free_vgpr 256
  .amdhsa_next_free_sgpr 102
  .amdhsa_accum_offset 256
  .amdhsa_group_segment_fixed_size 0
  .amdhsa_kernarg_size 88
  .amdhsa_user_sgpr_count 2
  .amdhsa_user_sgpr_kernarg_segment_ptr 1
  .amdhsa_system_sgpr_workgroup_id_x 1
.end_amdhsa_kernel
""" + tables()
    open(out, "w").write(txt)
    for e in errs: print("HAZARD", e)
    print("written", out, len(txt), "bytes;", len(errs), "hazards;", added, "auto nops")

if __name__ == "__main__":
    if "--stamps" in sys.argv:
        STAMPS = True; sys.argv.remove("--stamps")
    for x in list(sys.argv):
        if x.startswith("--o:"):
            k, v = x[4:].split("=", 1)
            assert k in OPT, k
            OPT[k] = eval(v); sys.argv.remove(x)
    main(sys.argv[1] if len(sys.argv) > 1 else "cdna_kernels/" + NAME + ".s")
```
